```python
import torch

def _softmax(x, axis=-1):
    return torch.softmax(x, dim=axis)
def _gelu(x):
    return torch.nn.functional.gelu(x, approximate="tanh")
def _silu(x):
    return torch.nn.functional.silu(x)
def _sigmoid(x):
    return torch.sigmoid(x)
def _layernorm(x, axis=-1, eps=1e-5):
    m = x.mean(dim=axis, keepdim=True)
    v = x.var(dim=axis, keepdim=True, unbiased=False)
    return (x - m) / torch.sqrt(v + eps)
def _scatter_add(tgt, idx, src, axis=0):
    return tgt.clone().index_add_(axis, idx, src)
def _segment_sum(src, seg, n):
    out = torch.zeros((n,) + src.shape[1:], dtype=src.dtype)
    return out.index_add_(0, seg, src)
def _pad(x, pw):
    flat = tuple(v for pair in reversed(pw) for v in pair)
    return torch.nn.functional.pad(x, flat)

kernel_name = 'parallel_sum__ssm_conv_h3__dense_activation_mish__prompt'

def setup_inputs():

    _w = (lambda a: (lambda t: t.to(torch.bfloat16) if t.is_floating_point() else t)(torch.as_tensor(a)))
    def _A_setup():
        B, S, D = 1, 2048, 576
        ks = 4
        return {
            "q": _w((lambda *s: torch.randn(*s, dtype=torch.bfloat16) * 0.05)(B, S, D)),
            "k": _w((lambda *s: torch.randn(*s, dtype=torch.bfloat16) * 0.2)(B, S, D)),
            "v": _w((lambda *s: torch.randn(*s, dtype=torch.bfloat16) * 0.2)(B, S, D)),
            "shift_k": _w((lambda *s: torch.randn(*s, dtype=torch.bfloat16) * 0.2)(D, ks) * 0.5),
            "ssm_k": _w((lambda *s: torch.randn(*s, dtype=torch.bfloat16) * 0.8)(D, S) * (1.0 / S ** 0.5)),
            "ssm_D": _w((lambda *s: torch.randn(*s, dtype=torch.bfloat16) * 0.2)(D)),
        }
    _A_in = _A_setup()

    def _B_setup():
        B, S, D, F = 1, 2048, 576, 4608
        return {
            "x": _w((lambda *s: torch.randn(*s, dtype=torch.bfloat16) * 0.05)(B, S, D)),
            "w1": _w((lambda *s: torch.randn(*s, dtype=torch.bfloat16) * 0.8)(D, F) * (D ** -0.5)),
            "b1": _w((lambda *s: torch.randn(*s, dtype=torch.bfloat16) * 0.2)(F)),
            "w2": _w((lambda *s: torch.randn(*s, dtype=torch.bfloat16) * 0.1)(F, D) * (F ** -0.5)),
        }
    _B_in = _B_setup()

    return {
        "A_q": _A_in["q"],
        "A_k": _A_in["k"],
        "A_v": _A_in["v"],
        "A_shift_k": _A_in["shift_k"],
        "A_ssm_k": _A_in["ssm_k"],
        "A_ssm_D": _A_in["ssm_D"],
        "B_x": _B_in["x"],
        "B_w1": _B_in["w1"],
        "B_b1": _B_in["b1"],
        "B_w2": _B_in["w2"],
    }

def reference(A_q, A_k, A_v, A_shift_k, A_ssm_k, A_ssm_D, B_x, B_w1, B_b1, B_w2):
    def _A_ref(q, k, v, shift_k, ssm_k, ssm_D):
        B, S, D = q.shape
        ks = shift_k.shape[-1]
        k_pad = _pad(k, ((0, 0), (ks - 1, 0), (0, 0)))
        k_shift = torch.zeros_like(k)
        for t in range(ks):
            k_shift = k_shift + k_pad[:, t:t + S, :] * shift_k[:, ks - 1 - t][None, None, :]
        kv = k_shift * v
        L = 2 * S
        kv_pad = _pad(kv, ((0, 0), (0, S), (0, 0)))
        kf_pad = _pad(ssm_k, ((0, 0), (0, S)))
        kv_f = (lambda x, axes=(-2,-1): torch.fft.rfft2(x.float(), dim=axes))(kv_pad[:, None, :, :], axes=(1, 2))
        kf_f = (lambda x, axes=(-2,-1): torch.fft.rfft2(x.float(), dim=axes))(kf_pad[:, None, :], axes=(1, 2))
        kf_f = (lambda x, *d: x.permute(*d))(kf_f, 1, 2, 0)
        y_f = kv_f * kf_f[None, :, :, :]
        y = (lambda x, s, axes=(-2,-1): torch.fft.irfft2(x, s=s, dim=axes).to(torch.bfloat16))(y_f, (1, L), axes=(1, 2))[:, 0, :S, :]
        y = y + kv * ssm_D[None, None, :]
        return q * y

    def _B_ref(x, w1, b1, w2):
        h = torch.einsum("bsd,df->bsf", x, w1) + b1
        sp = torch.log1p(torch.exp(-torch.abs(h))) + torch.where(h > 0, h, torch.zeros_like(h))
        act = h * torch.tanh(sp)
        return torch.einsum("bsf,fd->bsd", act, w2)

    x = A_q
    xn = _layernorm(x, axis=-1)
    return x + _A_ref(xn, A_k, A_v, A_shift_k, A_ssm_k, A_ssm_D) + _B_ref(xn, B_w1, B_b1, B_w2)
```

```python
class Em:
    def __init__(self):
        self.lines = []
        self.reset()
    def reset(self):
        self.vm_n = 0; self.vm_done = -1
        self.lg_n = 0; self.lg_done = -1
    def e(self, s):
        self.lines.append(s)
    def vm(self, s):
        self.lines.append(s); self.vm_n += 1
        return ('vm', self.vm_n - 1)
    def lg(self, s):
        self.lines.append(s); self.lg_n += 1
        return ('lg', self.lg_n - 1)
    def need(self, *ids):
        v = max([i for (k, i) in ids if k == 'vm'], default=-1)
        l = max([i for (k, i) in ids if k == 'lg'], default=-1)
        parts = []
        if v > self.vm_done:
            n = min(self.vm_n - 1 - v, 63)
            parts.append(f'vmcnt({n})'); self.vm_done = self.vm_n - 1 - n
        if l > self.lg_done:
            n = min(self.lg_n - 1 - l, 15)
            parts.append(f'lgkmcnt({n})'); self.lg_done = self.lg_n - 1 - n
        if parts:
            self.lines.append('s_waitcnt ' + ' '.join(parts))
    def all_lg(self):
        if self.lg_n: self.need(('lg', self.lg_n - 1))
    def all_vm(self):
        if self.vm_n: self.need(('vm', self.vm_n - 1))
    def state(self):
        return (self.vm_n, self.vm_done, self.lg_n, self.lg_done)
    def set_state(self, st):
        self.vm_n, self.vm_done, self.lg_n, self.lg_done = st
    def text(self):
        return '\n'.join(self.lines) + '\n'

def vr(b, n=4):
    return f'v[{b}:{b+n-1}]' if n > 1 else f'v{b}'
def sr(b, n=4):
    return f's[{b}:{b+n-1}]'
```

```python
import sys
from em import Em, vr, sr

NAME = 'parallel_sum__ssm_conv_h3__dense_activation_mish__prompt'
HDR = open('cdna_kernels/' + NAME + '.s.ref').read().split('; Override launch')[0]

S, D, F = 2048, 576, 4608
NMT = 26
N_MLP = NMT * 8
N_CONV = 36
PSTRIDE = 130 * 18432
WS_P = 0
WS_Y = 20 << 20
WS_ST = 24 << 20
WS_TS = 28 << 20
WS_BYTES = 32 << 20
LDS_BYTES = 163840
XA_BYTES = 92160
RING_A, RING_B = 9, 8
LOG2E = 0x3fb8aa3b
RSQRT2 = 0x3f3504f3

class Opt:
    ts = False
    dma_delay = 3
    store_flags = ''
    code_pf = True

sQ, sK, sV, sSHK, sSSMK, sSSMD, sW1 = 16, 18, 20, 22, 24, 26, 30
sB1, sW2, sOUT, sDBG, sWS = 32, 34, 36, 38, 40
srdX, srdW1, srdW2, srdB1, srdWS = 44, 48, 52, 56, 60
srdK, srdV, srdSHK, srdSSMK, srdSSMD = 44, 48, 52, 56, 64
sWave, sFS, sMT, sRing, sT0, sT1, sC = 3, 4, 5, 6, 7, 8, 9
sTS = 68

def srd(E, d, p, nbytes):
    E.e(f's_mov_b32 s{d}, s{p}')
    E.e(f's_and_b32 s{d+1}, s{p+1}, 0xffff')
    E.e(f's_mov_b32 s{d+2}, {nbytes}')
    E.e(f's_mov_b32 s{d+3}, 0x20000')

class TS:
    def __init__(self): self.n = 0
    def stamp(self, E):
        if Opt.ts:
            assert self.n < 16
            E.e(f's_memtime s[{sTS+2*self.n}:{sTS+2*self.n+1}]')
            self.n += 1
    def flush(self, E, vtmp):
        if not Opt.ts: return
        E.e('s_waitcnt lgkmcnt(0)')
        E.e(f's_lshl_b32 s{sT0}, s2, 3')
        E.e(f's_add_u32 s{sT0}, s{sT0}, s{sWave}')
        E.e(f's_lshl_b32 s{sT0}, s{sT0}, 6')
        E.e(f's_add_u32 s{sT0}, s{sT0}, {WS_TS}')
        E.e(f'v_mov_b32 v{vtmp+1}, 0')
        for i in range(self.n):
            E.e(f'v_mov_b32 v{vtmp}, s{sTS+2*i}')
            E.e(f'buffer_store_dword v{vtmp}, v{vtmp+1}, {sr(srdWS)}, s{sT0} offen offset:{4*i}')
            E.e('s_waitcnt vmcnt(0)')

vLane = 1
vX0, vX1, vWt0, vWt1, vWo = 2, 3, 4, 5, 6
vD1, vD1o, vD2, vD2o = 7, 8, 9, 10
vAW, vAWo, vP, vPo = 11, 12, 13, 14
vDum = 15
vT = 16
vXF = 24
vWF = 64
vA1 = 84
vA2 = 124
vAo = 164
vO2 = 184
vOo = 224
vBraw = 244

def mlp_prologue(E, ts):
    e = E.e
    e(f's_and_b32 s{sFS}, s2, 7')
    e(f's_lshr_b32 s{sMT}, s2, 3')
    srd(E, srdX, sQ, S*D*2)
    vR, vCc, vOff, vSl = 16, 17, 18, 19
    e(f'v_mul_u32_u24 v{vR}, 43, v{vLane}')
    e(f'v_lshrrev_b32 v{vR}, 8, v{vR}')
    e(f'v_mul_u32_u24 v{vCc}, 6, v{vR}')
    e(f'v_sub_u32 v{vCc}, v{vLane}, v{vCc}')
    e(f's_mul_i32 s{sT0}, s{sWave}, 10')
    e(f'v_add_u32 v{vSl}, s{sT0}, v{vR}')
    e(f's_mul_i32 s{sT1}, s{sMT}, 80')
    e(f'v_add_u32 v{vOff}, s{sT1}, v{vSl}')
    vGrow = 20
    e(f'v_mov_b32 v{vGrow}, v{vOff}')
    e(f'v_mul_u32_u24 v{vOff}, 1152, v{vOff}')
    e(f'v_lshl_add_u32 v{vOff}, v{vCc}, 4, v{vOff}')
    XR = 24
    xl = []
    for i in range(12):
        xl.append(E.vm(f'buffer_load_dwordx4 {vr(XR+4*i)}, v{vOff}, {sr(srdX)}, 0 offen offset:{96*i}'))
    srd(E, srdW1, sW1, D*F*2)
    srd(E, srdW2, sW2, D*F*2)
    srd(E, srdB1, sB1, F*2)
    srd(E, srdWS, sWS, WS_BYTES)
    a, b, c = 21, 22, 23
    e(f'v_and_b32 v{a}, 255, v0')
    e(f'v_cmp_gt_u32 vcc, 200, v{a}')
    e(f's_mul_i32 s{sT0}, s{sMT}, 200')
    e(f'v_add_u32 v{a}, s{sT0}, v{a}')
    e(f's_cmp_ge_u32 s{sWave}, 4')
    e('s_cbranch_scc1 Lpf_w2')
    e(f'v_mul_u32_u24 v{b}, 7282, v{a}')
    e(f'v_lshrrev_b32 v{b}, 16, v{b}')
    e(f'v_mul_u32_u24 v{c}, 9, v{b}')
    e(f'v_sub_u32 v{c}, v{a}, v{c}')
    e(f'v_mul_u32_u24 v{b}, 9216, v{b}')
    e(f'v_lshl_add_u32 v{b}, v{c}, 7, v{b}')
    e(f'v_cndmask_b32 v{b}, -1, v{b}, vcc')
    e(f's_mul_i32 s{sT0}, s{sFS}, 1152')
    e(f'buffer_load_dword v{vDum}, v{b}, {sr(srdW1)}, s{sT0} offen')
    e('s_branch Lpf_done')
    e('Lpf_w2:')
    e(f'v_lshlrev_b32 v{b}, 7, v{a}')
    e(f'v_cndmask_b32 v{b}, -1, v{b}, vcc')
    e(f's_mul_i32 s{sT0}, s{sFS}, 663552')
    e(f'buffer_load_dword v{vDum}, v{b}, {sr(srdW2)}, s{sT0} offen')
    e('Lpf_done:')
    E.vm_n += 1
    if Opt.code_pf:
        e(f's_getpc_b64 s[10:11]')
        e('Lpc:')
        e(f's_mul_i32 s{sT0}, s{sMT}, 8*((Lmlp_end-Lpc+26*1024-1)/(26*1024))')
        e(f's_mul_i32 s{sT1}, s{sWave}, (Lmlp_end-Lpc+26*1024-1)/(26*1024)')
        e(f's_add_u32 s{sT0}, s{sT0}, s{sT1}')
        e(f'v_add_u32 v{a}, s{sT0}, v{vLane}')
        e(f'v_lshlrev_b32 v{a}, 7, v{a}')
        e(f'v_min_u32 v{a}, Lmlp_end-Lpc-4, v{a}')
        e(f'v_cmp_gt_u32 vcc, (Lmlp_end-Lpc+26*1024-1)/(26*1024), v{vLane}')
        e('s_and_saveexec_b64 s[12:13], vcc')
        E.vm(f'global_load_dword v{vDum}, v{a}, s[10:11]')
        e('s_mov_b64 exec, s[12:13]')
    q = 21
    e(f'v_lshrrev_b32 v{q}, 4, v{vLane}')
    e(f's_mul_i32 s{sT0}, s{sFS}, 1152')
    e(f's_lshl_b32 s{sT1}, s{sWave}, 6')
    e(f's_add_u32 s{sT0}, s{sT0}, s{sT1}')
    e(f'v_lshl_add_u32 v{b}, v{q}, 3, s{sT0}')
    bl = []
    for i, off in enumerate((0, 32, 512, 544)):
        bl.append(E.vm(f'buffer_load_dwordx2 {vr(vBraw+2*i,2)}, v{b}, {sr(srdB1)}, 0 offen offset:{off}'))
    e(f's_lshl_b32 s{sT1}, s{sWave}, 5')
    e(f's_sub_u32 s{sT1}, 1024, s{sT1}')
    bl.append(E.vm(f'buffer_load_dwordx2 {vr(vBraw+8,2)}, v{b}, {sr(srdB1)}, s{sT1} offen'))
    e(f'v_lshlrev_b32 v{vX0}, 4, v{vLane}')
    e(f'v_add_u32 v{vX1}, 46080, v{vX0}')
    e(f's_mul_i32 s{sRing}, s{sWave}, {RING_A*1024}')
    e(f's_mul_i32 s{sT1}, s{sWave}, {RING_B*1024}')
    e(f's_add_u32 s{sT1}, s{sT1}, {4*(RING_A-RING_B)*1024}')
    e(f's_cmp_ge_u32 s{sWave}, 4')
    e(f's_cselect_b32 s{sRing}, s{sT1}, s{sRing}')
    e(f's_add_u32 s{sRing}, s{sRing}, {XA_BYTES}')
    e(f'v_lshrrev_b32 v{a}, 2, v{vLane}')
    e(f'v_and_b32 v{c}, 3, v{vLane}')
    e(f'v_lshlrev_b32 v{vWt0}, 6, v{a}')
    e(f'v_lshl_add_u32 v{vWt0}, v{c}, 3, v{vWt0}')
    e(f'v_and_b32 v{b}, 16, v{vLane}')
    e(f'v_lshl_add_u32 v{vWt0}, v{b}, 1, v{vWt0}')
    e(f'v_add_u32 v{vWt0}, s{sRing}, v{vWt0}')
    e(f'v_xor_b32 v{vWt1}, 32, v{vWt0}')
    e(f'v_lshlrev_b32 v{vWo}, 3, v{vLane}')
    e(f'v_add_u32 v{vWo}, s{sRing}, v{vWo}')
    e(f'v_lshrrev_b32 v{b}, 3, v{vLane}')
    e(f'v_and_b32 v{b}, 2, v{b}')
    e(f'v_xor_b32 v{c}, v{c}, v{b}')
    e(f'v_mul_u32_u24 v{vD2}, 1152, v{a}')
    e(f'v_lshl_add_u32 v{vD2}, v{c}, 4, v{vD2}')
    e(f's_mul_i32 s{sT0}, s{sFS}, 663552')
    e(f's_lshl_b32 s{sT1}, s{sWave}, 6')
    e(f's_add_u32 s{sT0}, s{sT0}, s{sT1}')
    e(f'v_add_u32 v{vD2}, s{sT0}, v{vD2}')
    e(f'v_lshrrev_b32 v{b}, 4, v{vLane}')
    e(f'v_lshl_add_u32 v{b}, v{b}, 2, v{a}')
    e(f'v_mul_u32_u24 v{vD1}, 9216, v{b}')
    e(f'v_lshl_add_u32 v{vD1}, v{c}, 4, v{vD1}')
    e(f's_mul_i32 s{sT0}, s{sFS}, 1152')
    e(f's_add_u32 s{sT0}, s{sT0}, s{sT1}')
    e(f'v_add_u32 v{vD1}, s{sT0}, v{vD1}')
    e(f'v_lshrrev_b32 v{a}, 1, v{vLane}')
    e(f'v_and_b32 v{c}, 1, v{vLane}')
    e(f'v_mul_u32_u24 v{vD2o}, 1152, v{a}')
    e(f'v_lshl_add_u32 v{vD2o}, v{c}, 4, v{vD2o}')
    e(f's_lshl_b32 s{sT1}, s{sWave}, 5')
    e(f's_add_u32 s{sT1}, s{sT1}, 1024')
    e(f's_mul_i32 s{sT0}, s{sFS}, 663552')
    e(f's_add_u32 s{sT0}, s{sT0}, s{sT1}')
    e(f'v_add_u32 v{vD2o}, s{sT0}, v{vD2o}')
    e(f'v_and_b32 v{b}, 12, v{a}')
    e(f'v_lshlrev_b32 v{b}, 1, v{b}')
    e(f'v_and_b32 v{vD1o}, 3, v{a}')
    e(f'v_add_u32 v{b}, v{b}, v{vD1o}')
    e(f'v_lshrrev_b32 v{vD1o}, 4, v{a}')
    e(f'v_lshl_add_u32 v{b}, v{vD1o}, 2, v{b}')
    e(f'v_mul_u32_u24 v{vD1o}, 9216, v{b}')
    e(f'v_lshl_add_u32 v{vD1o}, v{c}, 4, v{vD1o}')
    e(f's_mul_i32 s{sT0}, s{sFS}, 1152')
    e(f's_add_u32 s{sT0}, s{sT0}, s{sT1}')
    e(f'v_add_u32 v{vD1o}, s{sT0}, v{vD1o}')
    e(f's_mul_i32 s{sT0}, s{sWave}, 5120')
    e(f'v_add_u32 v{vAW}, s{sT0}, v{vX0}')
    e(f's_lshr_b32 s{sT0}, s{sWave}, 1')
    e(f's_mul_i32 s{sT0}, s{sT0}, 5120')
    e(f's_and_b32 s{sT1}, s{sWave}, 1')
    e(f's_lshl_b32 s{sT1}, s{sT1}, 3')
    e(f's_add_u32 s{sT0}, s{sT0}, s{sT1}')
    e(f's_add_u32 s{sT0}, s{sT0}, {16*5120}')
    e(f'v_add_u32 v{vAWo}, s{sT0}, v{vX0}')
    e(f's_mul_i32 s{sT0}, s{sFS}, {PSTRIDE}')
    e(f's_mul_i32 s10, s{sMT}, {5*18432}')
    e(f's_add_u32 s{sT0}, s{sT0}, s10')
    e(f's_lshl_b32 s10, s{sWave}, 10')
    e(f's_add_u32 s10, s10, s{sT0}')
    e(f'v_add_u32 v{vP}, s10, v{vX0}')
    e(f's_lshr_b32 s10, s{sWave}, 1')
    e(f's_lshl_b32 s10, s10, 10')
    e(f's_add_u32 s10, s10, s{sT1}')
    e(f's_add_u32 s10, s10, s{sT0}')
    e(f's_add_u32 s10, s10, {16*1024}')
    e(f'v_add_u32 v{vPo}, s10, v{vX0}')
    e(f's_mov_b32 s{sC}, {RSQRT2}')
    vSw, vSr, vFe, vFo = 72, 73, 74, 75
    e(f's_lshl_b32 s{sT0}, s{sWave}, 8')
    e(f's_add_u32 s{sT0}, s{sT0}, {LDS_BYTES-2048}')
    e(f'v_lshl_add_u32 v{vSw}, v{vLane}, 2, s{sT0}')
    e(f'v_mul_u32_u24 v{vSr}, 24, v{vR}')
    e(f'v_add_u32 v{vSr}, s{sT0}, v{vSr}')
    e(f'v_lshrrev_b32 v{a}, 4, v{vSl}')
    e(f'v_and_b32 v{b}, 15, v{vSl}')
    e(f'v_lshlrev_b32 v{a}, 10, v{a}')
    e(f'v_lshl_add_u32 v{a}, v{b}, 4, v{a}')
    for (dst, add) in ((vFe, 0), (vFo, 6)):
        e(f'v_add_u32 v{b}, {add}, v{vCc}')
        e(f'v_lshrrev_b32 v{c}, 2, v{b}')
        e(f'v_mul_u32_u24 v{c}, 5120, v{c}')
        e(f'v_and_b32 v{b}, 3, v{b}')
        e(f'v_lshl_add_u32 v{c}, v{b}, 8, v{c}')
        e(f'v_add_u32 v{dst}, v{a}, v{c}')
    return dict(XR=XR, xl=xl, bl=bl, vSw=vSw, vSr=vSr, vFe=vFe, vFo=vFo, vGrow=vGrow, vCc=vCc)

def rowsum(E, P, vs, tmp):
    E.lg(f'ds_write_b32 v{P["vSw"]}, v{vs}')
    E.all_lg()
    for i in range(3):
        E.lg(f'ds_read_b64 {vr(tmp+2*i,2)}, v{P["vSr"]} offset:{8*i}')
    E.all_lg()
    E.e(f'v_add_f32 v{tmp}, v{tmp}, v{tmp+1}')
    E.e(f'v_add_f32 v{tmp+2}, v{tmp+2}, v{tmp+3}')
    E.e(f'v_add_f32 v{tmp+4}, v{tmp+4}, v{tmp+5}')
    E.e(f'v_add_f32 v{tmp}, v{tmp}, v{tmp+2}')
    E.e(f'v_add_f32 v{vs}, v{tmp}, v{tmp+4}')

def bf16r(E, v):
    E.e(f'v_cvt_pk_bf16_f32 v{v}, v{v}, v{v}')
    E.e(f'v_and_b32 v{v}, 0xffff0000, v{v}')

def mlp_ln(E, P, ts, prefill):
    e = E.e
    XR = P['XR']
    XT = 84
    ac = [76, 77, 78, 79]
    tmp = 180
    for i in range(12):
        E.need(P['xl'][i])
        for j in range(4):
            r = XR + 4*i + j
            t = XT + 2*(4*i + j)
            e(f'v_lshlrev_b32 v{t}, 16, v{r}')
            e(f'v_and_b32 v{t+1}, 0xffff0000, v{r}')
            if i == 0 and j < 2:
                e(f'v_mov_b32 v{ac[2*j]}, v{t}')
                e(f'v_mov_b32 v{ac[2*j+1]}, v{t+1}')
            else:
                k = 2*(j & 1)
                e(f'v_pk_add_f32 {vr(ac[k],2)}, {vr(ac[k],2)}, {vr(t,2)}')
    ts.stamp(E)
    prefill()
    e(f'v_pk_add_f32 {vr(ac[0],2)}, {vr(ac[0],2)}, {vr(ac[2],2)}')
    e(f'v_add_f32 v{ac[0]}, v{ac[0]}, v{ac[1]}')
    rowsum(E, P, ac[0], tmp)
    vMu, vM = 80, 82
    e(f'v_mul_f32 v{vMu}, 0x3ae38e39, v{ac[0]}')
    e(f'v_mov_b32 v{vM}, v{vMu}')
    bf16r(E, vM)
    e(f'v_sub_f32 v{vMu}, v{vMu}, v{vM}')
    for i in range(48):
        t = XT + 2*i
        e(f'v_pk_add_f32 {vr(t,2)}, {vr(t,2)}, {vr(vM,2)} op_sel_hi:[1,0] neg_lo:[0,1] neg_hi:[0,1]')
        k = 2*(i & 1)
        if i < 2:
            e(f'v_pk_mul_f32 {vr(ac[k],2)}, {vr(t,2)}, {vr(t,2)}')
        else:
            e(f'v_pk_fma_f32 {vr(ac[k],2)}, {vr(t,2)}, {vr(t,2)}, {vr(ac[k],2)}')
    e(f'v_pk_add_f32 {vr(ac[0],2)}, {vr(ac[0],2)}, {vr(ac[2],2)}')
    e(f'v_add_f32 v{ac[0]}, v{ac[0]}, v{ac[1]}')
    rowsum(E, P, ac[0], tmp)
    vV = ac[0]
    e(f'v_mul_f32 v{vV}, 0x3ae38e39, v{vV}')
    e(f'v_fma_f32 v{vV}, -v{vMu}, v{vMu}, v{vV}')
    e(f'v_max_f32 v{vV}, 0, v{vV}')
    bf16r(E, vV)
    e(f'v_add_f32 v{vV}, 0x3727c5ac, v{vV}')
    bf16r(E, vV)
    e(f'v_sqrt_f32 v{vV}, v{vV}')
    e('s_nop 0')
    bf16r(E, vV)
    e(f'v_rcp_f32 v{vM+1}, v{vV}')
    e('s_mov_b32 exec_hi, 0x0fffffff')
    e(f's_cmp_lg_u32 s{sFS}, 0')
    e('s_cbranch_scc1 Lnostat')
    e(f'v_cmp_eq_u32 vcc, 0, v{P["vCc"]}')
    e('s_and_saveexec_b64 s[12:13], vcc')
    e(f'v_lshlrev_b32 v{tmp}, 3, v{P["vGrow"]}')
    e(f's_mov_b32 s{sT0}, {WS_ST}')
    e(f'buffer_store_dwordx2 {vr(vM,2)}, v{tmp}, {sr(srdWS)}, s{sT0} offen')
    e('s_mov_b64 exec, s[12:13]')
    e('s_branch Lstatd')
    e('Lnostat:')
    e(f'buffer_load_dword v{vDum}, v{vX0}, {sr(srdB1)}, 0 offen')
    e('Lstatd:')
    E.vm_n += 1
    for i in range(12):
        for j in range(4):
            t = XT + 2*(4*i + j)
            e(f'v_pk_mul_f32 {vr(t,2)}, {vr(t,2)}, {vr(vM,2)} op_sel:[0,1] op_sel_hi:[1,1]')
        for j in range(4):
            t = XT + 2*(4*i + j)
            e(f'v_cvt_pk_bf16_f32 v{XR+4*i+j}, v{t}, v{t+1}')
        base = P['vFe'] if i % 2 == 0 else P['vFo']
        m = i // 2
        if m == 4 :
            e(f'v_add_u32 v{base}, {4*15360}, v{base}')
        off = (m % 4) * 15360
        E.lg(f'ds_write_b128 v{base}, {vr(XR+4*i)} offset:{off}')
    e('s_mov_b32 exec_hi, -1')

NPRE = min(RING_A, RING_B)
def mlp_prefill(E):
    ids = []
    for n in range(NPRE):
        ks, b = divmod(n, 2)
        E.e(f's_add_u32 m0, s{sRing}, {n*1024}')
        E.e(f's_mov_b32 s{sT0}, {ks*32*9216 + b*4*9216}')
        ids.append(E.vm(f'buffer_load_dwordx4 v{vD1}, {sr(srdW1)}, s{sT0} offen lds'))
    return ids

def mlp_main(E, cls, P, ts, pre_ids):
    e = E.e
    isA = cls == 'A'
    NR = RING_A if isA else RING_B
    groups = []
    items = []
    steps = []
    def add_item(vaddr, srdn, soff):
        items.append(dict(v=vaddr, srd=srdn, soff=soff, reads=[], id=None)); return len(items) - 1
    def add_unit(stage, st, accb, vaddr, srdn, soff_a, soff_b, first):
        ia = add_item(vaddr, srdn, soff_a); ib = add_item(vaddr, srdn, soff_b)
        for t in range(2):
            groups.append(dict(acc=accb + 20*t, step=st, rd=[(ia, [vWt0, vWt1][t], 0), (ib, [vWt0, vWt1][t], 0)], first=first, stage=stage))
    def add_odd(stage, st, accb, vaddr, srdn, soff, first):
        io = add_item(vaddr, srdn, soff)
        groups.append(dict(acc=accb, step=st, rd=[(io, vWo, 0), (io, vWo, 512)], first=first, stage=stage))
    for stage in 'AB':
        for ks in range(18):
            st = len(steps); g0 = len(groups)
            base = ks*32*9216 + (512 if stage == 'B' else 0)
            add_unit(stage, st, vA1 if stage == 'A' else vA2, vD1, srdW1, base, base + 4*9216, 'bias' if ks == 0 else None)
            if stage == 'B' and isA:
                add_odd(stage, st, vAo, vD1o, srdW1, ks*32*9216, 'bias' if ks == 0 else None)
            steps.append(dict(x=ks, g0=g0, ng=len(groups)-g0, stage=stage, k=ks))
    for kp in range(18):
        st = len(steps); g0 = len(groups)
        base = kp*32*1152
        f = 'zero' if kp == 0 else None
        add_unit('C', st, vA1, vD2, srdW2, base, base + 16*1152, f)
        add_unit('C', st, vO2, vD2, srdW2, base + 512, base + 512 + 16*1152, f)
        if isA:
            add_odd('C', st, vOo, vD2o, srdW2, base, f)
        steps.append(dict(x=kp, g0=g0, ng=len(groups)-g0, stage='C', k=kp))
    NG = len(groups); NM = 5*NG
    gaps = [[] for _ in range(NM)]
    pre = [[] for _ in range(NM)]
    def stepm(s): return 5*steps[s]['g0']

    def do_dma(n):
        it = items[n]
        if n >= NR:
            E.need(*items[n-NR]['reads'])
        e(f's_add_u32 m0, s{sRing}, {(n % NR)*1024}')
        e(f's_mov_b32 s{sT0}, {it["soff"]}')
        it['id'] = E.vm(f'buffer_load_dwordx4 v{it["v"]}, {sr(it["srd"])}, s{sT0} offen lds')
    def do_wread(g, h):
        (n, vb, xo) = groups[g]['rd'][h]
        E.need(items[n]['id'])
        r = vWF + 4*(g % 5) + 2*h
        i = E.lg(f'ds_read_b64_tr_b16 {vr(r,2)}, v{vb} offset:{(n % NR)*1024 + xo}')
        items[n]['reads'].append(i)
        groups[g].setdefault('w', []).append(i)
    def do_xread(s, rt):
        idx = steps[s]['x']*5 + rt
        vb, off = (vX0, idx*1024) if idx < 45 else (vX1, (idx-45)*1024)
        r = vXF + 20*(s % 2) + 4*rt
        i = E.lg(f'ds_read_b128 {vr(r)}, v{vb} offset:{off}')
        steps[s].setdefault('xr', {})[rt] = i

    wpos = {}
    for g in range(5, NG):
        m = 5*(g-5) + 4
        for h in range(2):
            mm = min(m + h, NM-1)
            gaps[mm].append(lambda g=g, h=h: do_wread(g, h))
            wpos[(g, h)] = mm
    last_read = {}
    for g in range(NG):
        for h in range(2):
            n = groups[g]['rd'][h][0]
            last_read[n] = max(last_read.get(n, -1), wpos.get((g, h), -1))
    prev = -1
    for n in range(NR, len(items)):
        m = max(last_read[n-NR] + Opt.dma_delay, prev + 1, 0)
        first_use = min(wpos.get((g, h), -1) for g in range(NG) for h in range(2) if groups[g]['rd'][h][0] == n)
        assert m < first_use, (n, m, first_use)
        gaps[m].append(lambda n=n: do_dma(n))
        prev = m
    sB = 18; sC_ = 36
    wr1, wr2, wro = [], [], []
    def bar(needs):
        def f():
            ids = needs()
            if ids: E.need(*ids)
            ts.stamp(E)
            e('s_barrier')
        return f
    pre[stepm(sB+8)].append(bar(lambda: []))
    pre[stepm(sB+17)].append(bar(lambda: wr1 + list(steps[sB+17]['xr'].values())))
    pre[stepm(sC_+7)].append(bar(lambda: wr2))
    pre[stepm(sC_+15)].append(bar(lambda: wro))
    for s in range(len(steps)-1):
        m0 = stepm(s); n = 5*steps[s]['ng']
        span = max(5, int(n*0.7))
        for rt in range(5):
            gaps[m0 + (rt*span)//5 + (1 if n > 10 else 0)].append(lambda s=s, rt=rt: do_xread(s+1, rt))
    def mish_ops(src, dst, tb):
        ops = []
        T = [tb+i for i in range(4)]
        for i in range(4): ops.append((4, f'v_mul_f32 v{T[i]}, {hex(LOG2E)}, v{src+i}'))
        for i in range(4): ops.append((8, f'v_exp_f32 v{T[i]}, v{T[i]}'))
        for i in range(4): ops.append((4, f'v_fma_f32 v{T[i]}, v{T[i]}, s{sC}, s{sC}'))
        for i in range(4): ops.append((4, f'v_fma_f32 v{T[i]}, v{T[i]}, v{T[i]}, 0.5'))
        for i in range(4): ops.append((8, f'v_rcp_f32 v{T[i]}, v{T[i]}'))
        for i in range(4): ops.append((4, f'v_fma_f32 v{T[i]}, -v{src+i}, v{T[i]}, v{src+i}'))
        ops.append((4, f'v_cvt_pk_bf16_f32 v{dst}, v{T[0]}, v{T[1]}'))
        ops.append((4, f'v_cvt_pk_bf16_f32 v{dst+1}, v{T[2]}, v{T[3]}'))
        return ops
    def spread(ops, m_lo, m_hi, wr_lo):
        tot = sum(c for c, _ in ops)
        acc = 0
        for c, o in ops:
            m = m_lo + int((acc / tot) * (m_hi - m_lo))
            acc += c
            if callable(o):
                gaps[max(m, wr_lo)].append(o)
                if m < wr_lo: wr_lo += 1
            else:
                gaps[m].append(lambda o=o: e(o))
    def unit_ops(accb, woff, wl):
        ops = []
        for rt in range(5):
            a0, a1 = accb + 4*rt, accb + 20 + 4*rt
            ops += mish_ops(a0, a0, vT)
            ops += mish_ops(a1, a0+2, vT+4)
            ops.append((1, lambda a0=a0, rt=rt: wl.append(E.lg(f'ds_write_b128 v{vAW}, {vr(a0)} offset:{woff + rt*1024}'))))
        return ops
    spread(unit_ops(vA1, 0, wr1), stepm(sB)+3, stepm(sB+17)-3, stepm(sB+8))
    spread(unit_ops(vA2, 40960, wr2), stepm(sC_)+3, stepm(sC_+7)-3, 0)
    if isA:
        ops = []
        for rt in range(5):
            a0 = vAo + 4*rt
            ops += mish_ops(a0, a0, vT + 4*(rt & 1))
            ops.append((1, lambda a0=a0, rt=rt: wro.append(E.lg(f'ds_write_b64 v{vAWo}, {vr(a0,2)} offset:{rt*1024}'))))
        spread(ops, stepm(sC_+7), stepm(sC_+15)-3, 0)

    def body():
        for n in range(NPRE): items[n]['id'] = pre_ids[n]
        for n in range(NPRE, NR): do_dma(n)
        E.need(*P['bl'])
        tl = [vA1, vA1+20, vA2, vA2+20] + ([vAo] if isA else [])
        for i, ab in enumerate(tl):
            r = vBraw + 2*i; d = ab + 16
            e(f'v_lshlrev_b32 v{d}, 16, v{r}')
            e(f'v_and_b32 v{d+1}, 0xffff0000, v{r}')
            e(f'v_lshlrev_b32 v{d+2}, 16, v{r+1}')
            e(f'v_and_b32 v{d+3}, 0xffff0000, v{r+1}')
        for g in range(5):
            for h in range(2): do_wread(g, h)
        E.all_lg()
        ts.stamp(E)
        e('s_barrier')
        for rt in range(5): do_xread(0, rt)
        for m in range(NM):
            g, rt = divmod(m, 5)
            G = groups[g]; s = G['step']
            for f in pre[m]: f()
            E.need(*(G['w'] + [steps[s]['xr'][rt]]))
            d = G['acc'] + 4*rt
            c = vr(d)
            if G['first'] == 'bias': c = vr(G['acc'] + 16)
            if G['first'] == 'zero': c = '0'
            e(f'v_mfma_f32_16x16x32_bf16 {vr(d)}, {vr(vWF + 4*(g % 5))}, {vr(vXF + 20*(s % 2) + 4*rt)}, {c}')
            for f in gaps[m]: f()
        ts.stamp(E)
        e('s_nop 7')
        for (ab, uo) in ((vA1, 0), (vO2, 8192)):
            for rt in range(5):
                a0, a1 = ab + 4*rt, ab + 20 + 4*rt
                e(f'v_cvt_pk_bf16_f32 v{a0}, v{a0}, v{a0+1}')
                e(f'v_cvt_pk_bf16_f32 v{a0+1}, v{a0+2}, v{a0+3}')
                e(f'v_cvt_pk_bf16_f32 v{a0+2}, v{a1}, v{a1+1}')
                e(f'v_cvt_pk_bf16_f32 v{a0+3}, v{a1+2}, v{a1+3}')
                e(f's_mov_b32 s{sT0}, {rt*18432 + uo}')
                E.vm(f'buffer_store_dwordx4 {vr(a0)}, v{vP}, {sr(srdWS)}, s{sT0} offen{Opt.store_flags}')
        if isA:
            for rt in range(5):
                a0 = vOo + 4*rt
                e(f'v_cvt_pk_bf16_f32 v{a0}, v{a0}, v{a0+1}')
                e(f'v_cvt_pk_bf16_f32 v{a0+1}, v{a0+2}, v{a0+3}')
                e(f's_mov_b32 s{sT0}, {rt*18432}')
                E.vm(f'buffer_store_dwordx2 {vr(a0,2)}, v{vPo}, {sr(srdWS)}, s{sT0} offen{Opt.store_flags}')
        if Opt.ts:
            E.all_vm()
            ts.stamp(E)
            ts.flush(E, vT)
        e('s_endpgm')
    body()

RS = 4672
HS = 4160
HB0 = 16*RS
def conv(E):
    e = E.e
    ts = TS()
    ts.stamp(E)
    sCT, sCh, sHB, sIt = 4, 5, 6, 9
    e(f's_sub_u32 s{sT0}, s2, {N_MLP}')
    e(f's_and_b32 s{sCT}, s{sT0}, 7')
    e(f's_lshl_b32 s{sCT}, s{sCT}, 2')
    e(f's_lshr_b32 s{sT1}, s{sT0}, 3')
    e(f's_add_u32 s{sCT}, s{sCT}, s{sT1}')
    e(f's_cmp_ge_u32 s{sT0}, 32')
    e(f's_cselect_b32 s{sCT}, s{sT0}, s{sCT}')
    srd(E, srdK, sK, S*D*2)
    srd(E, srdV, sV, S*D*2)
    vRg, vHf, b0, b1, b2 = 2, 3, 4, 5, 6
    e(f'v_lshrrev_b32 v{vRg}, 1, v0')
    e(f'v_and_b32 v{vHf}, 1, v0')
    e(f'v_mul_u32_u24 v{b1}, {8*1152}, v{vRg}')
    e(f'v_lshl_add_u32 v{b1}, v{vHf}, 4, v{b1}')
    e(f's_lshl_b32 s{sT0}, s{sCT}, 5')
    e(f'v_add_u32 v{b1}, s{sT0}, v{b1}')
    e(f'v_subrev_u32 v{b0}, 3456, v{b1}')
    e(f'v_add_u32 v{b2}, 4608, v{b1}')
    KR, VR, SKR, SKF = 16, 60, 92, 108
    srd(E, srdSHK, sSHK, D*4*2)
    e(f's_lshl_b32 s{sT0}, s{sCT}, 7')
    e(f'v_lshlrev_b32 v7, 6, v{vHf}')
    skl = [E.vm(f'buffer_load_dwordx4 {vr(SKR+4*i)}, v7, {sr(srdSHK)}, s{sT0} offen offset:{16*i}') for i in range(4)]
    kl, vl = [], []
    for j in range(11):
        bb, off = (b0, j*1152) if j < 3 else ((b1, (j-3)*1152) if j < 7 else (b2, (j-7)*1152))
        kl.append(E.vm(f'buffer_load_dwordx4 {vr(KR+4*j)}, v{bb}, {sr(srdK)}, 0 offen offset:{off}'))
    for j in range(8):
        bb, off = (b1, j*1152) if j < 4 else (b2, (j-4)*1152)
        vl.append(E.vm(f'buffer_load_dwordx4 {vr(VR+4*j)}, v{bb}, {sr(srdV)}, 0 offen offset:{off}'))
    srd(E, srdSSMK, sSSMK, D*S*2)
    srd(E, srdSSMD, sSSMD, D*2)
    srd(E, srdWS, sWS, WS_BYTES)
    e(f's_lshl_b32 s{sCh}, s{sCT}, 4')
    e(f's_lshl_b32 s{sT0}, s{sWave}, 1')
    e(f's_add_u32 s{sCh}, s{sCh}, s{sT0}')
    e(f's_mul_i32 s{sHB}, s{sWave}, {2*HS}')
    e(f's_add_u32 s{sHB}, s{sHB}, {HB0}')
    vL16, vZ = 8, 140
    vH0, vDv = 9, 10
    e(f'v_lshlrev_b32 v{vL16}, 4, v{vLane}')
    for i in range(4): e(f'v_mov_b32 v{vZ+i}, 0')
    def hload():
        ids = []
        e(f's_lshl_b32 s{sT0}, s{sCh}, 12')
        e(f's_add_u32 m0, s{sHB}, 32')
        e(f's_add_u32 s{sT1}, s{sT0}, 2')
        for i in range(4):
            ids.append(E.vm(f'buffer_load_dwordx4 v{vL16}, {sr(srdSSMK)}, s{sT0} offen offset:{1024*i} lds'))
        e(f's_add_u32 m0, s{sHB}, {HS+32}')
        e('s_nop 0')
        for i in range(4):
            ids.append(E.vm(f'buffer_load_dwordx4 v{vL16}, {sr(srdSSMK)}, s{sT1} offen offset:{1024*i} lds'))
        ids.append(E.vm(f'buffer_load_ushort v{vH0}, v{vZ}, {sr(srdSSMK)}, s{sT0} offen'))
        e(f's_lshl_b32 s{sT0}, s{sCh}, 1')
        ids.append(E.vm(f'buffer_load_ushort v{vDv+1}, v{vZ}, {sr(srdSSMD)}, s{sT0} offen'))
        return ids
    hl = hload()
    e(f's_lshl_b32 s{sT0}, s{sCh}, 12')
    e(f's_add_u32 s{sT0}, s{sT0}, 4096')
    e(f'v_and_b32 v12, 31, v{vLane}')
    e('v_lshlrev_b32 v12, 7, v12')
    E.vm(f'buffer_load_dword v15, v12, {sr(srdSSMK)}, s{sT0} offen')
    e('v_lshrrev_b32 v12, 5, v0')
    e(f'v_mul_u32_u24 v12, {RS}, v12')
    e('v_and_b32 v13, 31, v0')
    e('v_lshl_add_u32 v12, v13, 4, v12')
    E.lg(f'ds_write_b128 v12, {vr(vZ)} offset:4096')
    e(f'v_and_b32 v12, 1, v{vLane}')
    e(f'v_lshlrev_b32 v12, 4, v12')
    e(f'v_add_u32 v12, s{sHB}, v12')
    E.lg(f'ds_write_b128 v12, {vr(vZ)}')
    E.lg(f'ds_write_b128 v12, {vr(vZ)} offset:{HS}')
    vKW = 14
    e(f'v_mul_u32_u24 v{vKW}, {8*RS}, v{vHf}')
    e(f'v_lshlrev_b32 v12, 4, v{vRg}')
    e(f'v_sub_u32 v{vKW}, v{vKW}, v12')
    e(f'v_add_u32 v{vKW}, 4080, v{vKW}')
    E.need(*skl)
    for i in range(16):
        e(f'v_lshlrev_b32 v{SKF+2*i}, 16, v{SKR+i}')
        e(f'v_and_b32 v{SKF+2*i+1}, 0xffff0000, v{SKR+i}')
    KF, AC, PK = 144, 156, 164
    E.need(*(kl + vl))
    ts.stamp(E)
    for ch in range(8):
        m, hi = divmod(ch, 2)
        def unp(d, s_):
            e(f'v_and_b32 v{d}, 0xffff0000, v{s_}' if hi else f'v_lshlrev_b32 v{d}, 16, v{s_}')
        for j in range(11): unp(KF+j, KR+4*j+m)
        for s_ in range(8): e(f'v_mul_f32 v{AC+s_}, v{KF+s_}, v{SKF+4*ch+3}')
        for tap in (2, 1, 0):
            for s_ in range(8): e(f'v_fmac_f32 v{AC+s_}, v{KF+s_+3-tap}, v{SKF+4*ch+tap}')
        for s_ in range(8): unp(KF+s_, VR+4*s_+m)
        for s_ in range(8): e(f'v_mul_f32 v{AC+s_}, v{AC+s_}, v{KF+s_}')
        pk = PK + 4*(ch & 1)
        for mm in range(4): e(f'v_cvt_pk_bf16_f32 v{pk+mm}, v{AC+7-2*mm}, v{AC+6-2*mm}')
        E.lg(f'ds_write_b128 v{vKW}, {vr(pk)} offset:{ch*RS}')
    vA = [2, 3, 4, 5]; vB, vE = 6, 7
    e(f'v_and_b32 v12, 15, v{vLane}')
    e(f'v_lshrrev_b32 v13, 4, v{vLane}')
    e(f'v_and_b32 v14, 1, v12')
    e(f'v_add_u32 v{vA[0]}, v12, v14')
    e(f'v_lshl_add_u32 v{vA[0]}, v13, 3, v{vA[0]}')
    e(f'v_lshlrev_b32 v{vA[0]}, 1, v{vA[0]}')
    e(f'v_xor_b32 v14, 1, v14')
    e(f'v_mul_u32_u24 v14, {HS}, v14')
    e(f'v_add3_u32 v{vA[0]}, v{vA[0]}, v14, s{sHB}')
    for i in range(1, 4): e(f'v_add_u32 v{vA[i]}, {1024*i}, v{vA[0]}')
    e(f's_mul_i32 s{sT0}, s{sWave}, {2*RS}')
    e(f'v_lshlrev_b32 v14, 5, v12')
    e(f'v_lshlrev_b32 v{vB}, 4, v13')
    e(f'v_sub_u32 v{vB}, v{vB}, v14')
    e(f'v_add_u32 v{vB}, 480, v{vB}')
    e(f'v_add_u32 v{vB}, s{sT0}, v{vB}')
    e(f'v_lshl_add_u32 v14, v13, 3, v14')
    e(f'v_sub_u32 v{vE}, 504, v14')
    e(f'v_add_u32 v{vE}, s{sT0}, v{vE}')
    e(f'v_mov_b32 v12, s{sHB}')
    E.all_lg()
    ts.stamp(E)
    e('s_barrier')
    e(f's_mov_b32 s{sIt}, 0')
    e('Lconv_ch:')
    e('s_waitcnt vmcnt(0) lgkmcnt(0)')
    E.reset()
    AF, BF, ACC = 16, 80, 176
    e(f'v_lshlrev_b32 v{vDv}, 16, v{vDv+1}')
    w0 = E.lg(f'ds_write_b16 v12, v{vH0} offset:{HS+30}')
    E.need(w0)
    aid, bid = {}, {}
    def aread(v, ee, h):
        r = AF + 32*(v % 2) + 4*ee + 2*h
        o = (512*(ee & 1) + 64*(7-v) + 8*h) // 4
        aid.setdefault((v, ee), []).append(E.lg(f'ds_read2_b32 {vr(r,2)}, v{vA[ee >> 1]} offset0:{o} offset1:{o+1}'))
    def bread(v, u):
        bid[(v, u)] = E.lg(f'ds_read_b128 {vr(BF+4*u)}, v{vB} offset:{512*(7-u) + 64*(7-v)}')
    bread(0, 0)
    for ee in range(8):
        aread(0, ee, 0); aread(0, ee, 1)
    for u in range(1, 8): bread(0, u)
    for v in range(8):
        fill = []
        if v < 7:
            fill = [(lambda v=v, ee=ee, h=h: aread(v+1, ee, h)) for ee in range(8) for h in range(2)]
        cnt = 0
        for u in range(8):
            for w in range(u, 8):
                E.need(*(aid[(v, w-u)] + [bid[(v, u)]]))
                c = '0' if (v == 0 and u == 0) else vr(ACC+4*w)
                e(f'v_mfma_f32_16x16x32_bf16 {vr(ACC+4*w)}, {vr(AF + 32*(v % 2) + 4*(w-u))}, {vr(BF+4*u)}, {c}')
                if fill and cnt % 2 == 0: fill.pop(0)()
                cnt += 1
                if v == 7 and u == 1 and w == 1:
                    e(f's_add_u32 s{sCh}, s{sCh}, 1')
                    e(f's_cmp_lg_u32 s{sIt}, 0')
                    e('s_cbranch_scc1 Lconv_norefill')
                    hload()
                    e('Lconv_norefill:')
            if v < 7: bread(v+1, u)
        assert not fill
    KVR = 16
    kr = [E.lg(f'ds_read_b64 {vr(KVR+2*w,2)}, v{vE} offset:{512*(7-w)}') for w in range(8)]
    e('s_nop 4')
    for w in range(8):
        E.need(kr[w])
        a = ACC + 4*w; t = 40 + 4*(w & 1)
        e(f'v_lshlrev_b32 v{t+3}, 16, v{KVR+2*w}')
        e(f'v_and_b32 v{t+2}, 0xffff0000, v{KVR+2*w}')
        e(f'v_lshlrev_b32 v{t+1}, 16, v{KVR+2*w+1}')
        e(f'v_and_b32 v{t}, 0xffff0000, v{KVR+2*w+1}')
        for r in range(4): e(f'v_fmac_f32 v{a+r}, v{t+r}, v{vDv}')
        e(f'v_cvt_pk_bf16_f32 v{KVR+2*w}, v{a+3}, v{a+2}')
        e(f'v_cvt_pk_bf16_f32 v{KVR+2*w+1}, v{a+1}, v{a}')
        E.lg(f'ds_write_b64 v{vE}, {vr(KVR+2*w,2)} offset:{512*(7-w)}')
    e(f'v_add_u32 v{vB}, {RS}, v{vB}')
    e(f'v_add_u32 v{vE}, {RS}, v{vE}')
    e(f's_add_u32 s{sIt}, s{sIt}, 1')
    e(f's_cmp_lt_u32 s{sIt}, 2')
    e('s_cbranch_scc1 Lconv_ch')
    e('s_waitcnt vmcnt(0) lgkmcnt(0)')
    E.reset()
    ts.stamp(E)
    e('s_barrier')
    e(f'v_lshrrev_b32 v2, 5, v{vLane}')
    e(f'v_lshrrev_b32 v3, 2, v{vLane}')
    e('v_and_b32 v3, 3, v3')
    e('v_lshl_add_u32 v3, v2, 3, v3')
    e(f'v_mul_u32_u24 v3, {RS}, v3')
    e(f'v_and_b32 v4, 16, v{vLane}')
    e('v_lshl_add_u32 v3, v4, 1, v3')
    e(f'v_and_b32 v5, 3, v{vLane}')
    e('v_lshl_add_u32 v3, v5, 3, v3')
    e(f's_lshl_b32 s{sT0}, s{sWave}, 9')
    e(f'v_add_u32 v3, s{sT0}, v3')
    e(f'v_and_b32 v5, 31, v{vLane}')
    e(f's_lshl_b32 s{sT0}, s{sWave}, 8')
    e(f'v_add_u32 v5, s{sT0}, v5')
    e(f'v_sub_u32 v5, {2047-224}, v5')
    e('v_lshlrev_b32 v5, 5, v5')
    e('v_lshl_add_u32 v5, v2, 4, v5')
    e(f's_lshl_b32 s{sT0}, s{sCT}, 16')
    e(f's_add_u32 s{sT0}, s{sT0}, {WS_Y}')
    e(f's_add_u32 s{sT1}, s{sT0}, 4096')
    rd = []
    for blk in range(8):
        r = 16 + 4*blk
        i0 = E.lg(f'ds_read_b64_tr_b16 {vr(r,2)}, v3 offset:{64*blk}')
        i1 = E.lg(f'ds_read_b64_tr_b16 {vr(r+2,2)}, v3 offset:{64*blk + 4*RS}')
        rd.append([i0, i1])
    for blk in range(8):
        E.need(*rd[blk])
        o = (7-blk)*1024
        so = sT0 if o < 4096 else sT1
        E.vm(f'buffer_store_dwordx4 {vr(16+4*blk)}, v5, {sr(srdWS)}, s{so} offen offset:{o % 4096}{Opt.store_flags}')
    if Opt.ts:
        E.all_vm()
        ts.stamp(E)
        ts.flush(E, 60)
    e('s_endpgm')

def k1(E):
    e = E.e
    e('.p2align 8')
    e('.type k1_kernel,@function')
    e('k1_kernel:')
    e(f's_cmp_ge_u32 s2, {N_MLP+N_CONV}')
    e('s_cbranch_scc1 Lk1_exit')
    e('s_load_dwordx16 s[16:31], s[0:1], 0')
    e('s_load_dwordx8 s[32:39], s[0:1], 64')
    e('s_load_dwordx2 s[40:41], s[0:1], 96')
    e(f'v_and_b32 v{vLane}, 63, v0')
    e('v_lshrrev_b32 v2, 6, v0')
    e('s_nop 0')
    e(f'v_readfirstlane_b32 s{sWave}, v2')
    e(f's_cmp_ge_u32 s2, {N_MLP}')
    e('s_waitcnt lgkmcnt(0)')
    e('s_cbranch_scc1 Lconv')
    ts = TS()
    ts.stamp(E)
    P = mlp_prologue(E, ts)
    pre_ids = []
    mlp_ln(E, P, ts, lambda: pre_ids.extend(mlp_prefill(E)))
    st = E.state(); tsn = ts.n
    e(f's_cmp_ge_u32 s{sWave}, 4')
    e('s_cbranch_scc1 LmlpB')
    mlp_main(E, 'A', P, ts, pre_ids)
    e('LmlpB:')
    E.set_state(st); ts.n = tsn
    mlp_main(E, 'B', P, ts, pre_ids)
    e('Lmlp_end:')
    e('Lconv:')
    E.reset()
    conv(E)
    e('Lk1_exit:')
    e('s_endpgm')

def k2(E):
    e = E.e
    E.reset()
    e('.p2align 8')
    e('.type k2_kernel,@function')
    e('k2_kernel:')
    e('s_cmp_ge_u32 s2, 256')
    e('s_cbranch_scc1 Lk2_exit')
    e('s_load_dwordx2 s[16:17], s[0:1], 0')
    e('s_load_dwordx2 s[18:19], s[0:1], 80')
    e('s_load_dwordx2 s[20:21], s[0:1], 96')
    e('v_and_b32 v1, 63, v0')
    e('v_lshrrev_b32 v2, 6, v0')
    e('s_lshr_b32 s4, s2, 1')
    e('v_readfirstlane_b32 s3, v2')
    e('s_and_b32 s5, s2, 1')
    e('s_mul_i32 s5, s5, 9')
    e('s_add_u32 s5, s5, s3')
    e('s_mul_i32 s6, s4, 18432')
    e('s_lshl_b32 s7, s5, 10')
    e('s_add_u32 s6, s6, s7')
    e('v_lshlrev_b32 v2, 4, v1')
    e('s_waitcnt lgkmcnt(0)')
    srd(E, 24, 20, WS_BYTES)
    pl = []
    for p in range(8):
        if p: e(f's_add_u32 s6, s6, {PSTRIDE}')
        pl.append(E.vm(f'buffer_load_dwordx4 {vr(16+4*p)}, v2, s[24:27], s6 offen'))
    srd(E, 28, 16, S*D*2)
    srd(E, 32, 18, S*D*2)
    e('v_and_b32 v3, 15, v1')
    e('s_lshl_b32 s7, s4, 4')
    e('v_add_u32 v3, s7, v3')
    e('v_lshrrev_b32 v4, 4, v1')
    e('v_and_b32 v5, 1, v4')
    e('v_lshrrev_b32 v4, 1, v4')
    e('v_mul_u32_u24 v6, 1152, v3')
    e('v_lshl_add_u32 v6, v5, 5, v6')
    e('v_lshl_add_u32 v6, v4, 4, v6')
    e('s_lshl_b32 s8, s5, 6')
    xl = E.vm('buffer_load_dwordx4 v[48:51], v6, s[28:31], s8 offen')
    e('v_lshlrev_b32 v7, 5, v3')
    e('v_lshl_add_u32 v7, v4, 4, v7')
    e('v_lshl_add_u32 v7, v5, 16, v7')
    e('s_lshl_b32 s9, s5, 17')
    e(f's_add_u32 s9, s9, {WS_Y}')
    yl = E.vm('buffer_load_dwordx4 v[52:55], v7, s[24:27], s9 offen')
    e('v_lshlrev_b32 v8, 3, v3')
    e(f's_mov_b32 s10, {WS_ST}')
    sl = E.vm('buffer_load_dwordx2 v[56:57], v8, s[24:27], s10 offen')
    SUM, T = 60, 68
    for p in range(8):
        E.need(pl[p])
        for j in range(4):
            r = 16 + 4*p + j
            if p == 0:
                e(f'v_lshlrev_b32 v{SUM+2*j}, 16, v{r}')
                e(f'v_and_b32 v{SUM+2*j+1}, 0xffff0000, v{r}')
            else:
                e(f'v_lshlrev_b32 v{T+2*j}, 16, v{r}')
                e(f'v_and_b32 v{T+2*j+1}, 0xffff0000, v{r}')
        if p:
            for j in range(4):
                e(f'v_pk_add_f32 {vr(SUM+2*j,2)}, {vr(SUM+2*j,2)}, {vr(T+2*j,2)}')
    for j in range(4):
        e(f'v_cvt_pk_bf16_f32 v{16+j}, v{SUM+2*j}, v{SUM+2*j+1}')
    e('s_nop 1')
    e('v_permlane16_swap_b32 v16, v18')
    e('v_permlane16_swap_b32 v17, v19')
    E.need(xl, yl, sl)
    X, Y, N = 24, 32, 40
    for j in range(4):
        e(f'v_lshlrev_b32 v{X+2*j}, 16, v{48+j}')
        e(f'v_and_b32 v{X+2*j+1}, 0xffff0000, v{48+j}')
        e(f'v_lshlrev_b32 v{Y+2*j}, 16, v{52+j}')
        e(f'v_and_b32 v{Y+2*j+1}, 0xffff0000, v{52+j}')
    def rnd(b):
        for j in range(4):
            e(f'v_cvt_pk_bf16_f32 v{T+j}, v{b+2*j}, v{b+2*j+1}')
        for j in range(4):
            e(f'v_lshlrev_b32 v{b+2*j}, 16, v{T+j}')
            e(f'v_and_b32 v{b+2*j+1}, 0xffff0000, v{T+j}')
    for i in range(8): e(f'v_sub_f32 v{N+i}, v{X+i}, v56')
    rnd(N)
    for i in range(8): e(f'v_mul_f32 v{N+i}, v{N+i}, v57')
    rnd(N)
    for i in range(8): e(f'v_mul_f32 v{N+i}, v{N+i}, v{Y+i}')
    rnd(N)
    for i in range(8): e(f'v_add_f32 v{N+i}, v{N+i}, v{X+i}')
    rnd(N)
    for j in range(4):
        e(f'v_lshlrev_b32 v{Y+2*j}, 16, v{16+j}')
        e(f'v_and_b32 v{Y+2*j+1}, 0xffff0000, v{16+j}')
    for i in range(8): e(f'v_add_f32 v{N+i}, v{N+i}, v{Y+i}')
    for j in range(4):
        e(f'v_cvt_pk_bf16_f32 v{T+j}, v{N+2*j}, v{N+2*j+1}')
    e(f'buffer_store_dwordx4 {vr(T)}, v6, s[32:35], s8 offen')
    e('Lk2_exit:')
    e('s_endpgm')

def desc(name, vg, sg):
    return f'''.p2align 6
.amdhsa_kernel {name}
  .amdhsa_next_free_vgpr {vg}
  .amdhsa_next_free_sgpr {sg}
  .amdhsa_accum_offset {vg}
  .amdhsa_group_segment_fixed_size 0
  .amdhsa_kernarg_size 104
  .amdhsa_user_sgpr_count 2
  .amdhsa_user_sgpr_kernarg_segment_ptr 1
  .amdhsa_system_sgpr_workgroup_id_x 1
.end_amdhsa_kernel
'''

def build():
    E = Em()
    e = E.e
    head = HDR + f'; @launch kernel=k1_kernel grid=({N_MLP+N_CONV},1,1) block=(512,1,1) lds={LDS_BYTES}\n'
    head += '; @launch kernel=k2_kernel grid=(256,1,1) block=(576,1,1) lds=0\n'
    head += '.amdgcn_target "amdgcn-amd-amdhsa--gfx950"\n.text\n.globl k1_kernel\n.globl k2_kernel\n'
    k1(E)
    k2(E)
    tail = '.section .rodata,"a"\n' + desc('k1_kernel', 256, 102) + desc('k2_kernel', 80, 48)
    return head + E.text() + tail

if __name__ == '__main__':
    out = sys.argv[1] if len(sys.argv) > 1 else 'cdna_kernels/' + NAME + '.s'
    for a in sys.argv[2:]:
        k, v = a.split('=', 1)
        cur = getattr(Opt, k)
        setattr(Opt, k, type(cur)(int(v)) if isinstance(cur, (bool, int)) else v)
    t = build()
    open(out, 'w').write(t)
    print(out, len(t), 'bytes', t.count('\n'), 'lines')
```

```python
import sys
from em import Em, vr, sr

NAME = 'parallel_sum__ssm_conv_h3__dense_activation_mish__prompt'
HDR = open('cdna_kernels/' + NAME + '.s.ref').read().split('; Override launch')[0]

S, D, F = 2048, 576, 4608
NMT = 26
N_MLP = NMT * 8
N_CONV = 36
NWG = 256
IDX_MLP0 = 6
PSTRIDE = 130 * 18432
WS_P = 0
WS_Y = 20 << 20
WS_ST = 24 << 20
WS_TS = 28 << 20
WS_FL = 26 << 20
KNAME = NAME + '_kernel'
WS_BYTES = 32 << 20
LDS_BYTES = 163840
XA_BYTES = 92160
RING_A, RING_B = 9, 8
LOG2E = 0x3fb8aa3b
RSQRT2 = 0x3f3504f3

class Opt:
    ts = False
    dma_delay = 3
    code_pf = True
    w2pf = True
    lnts = False
    early_steps = 6
    kvpf = True
    nomlp = False

sQ, sK, sV, sSHK, sSSMK, sSSMD, sW1 = 16, 18, 20, 22, 24, 26, 30
sB1, sW2, sOUT, sDBG, sWS = 32, 34, 36, 38, 40
srdX, srdW1, srdW2, srdB1, srdWS = 44, 48, 52, 56, 60
srdK, srdV, srdSHK, srdSSMK, srdSSMD = 44, 48, 52, 56, 64
sWave, sFS, sMT, sRing, sT0, sT1, sC = 3, 4, 5, 6, 7, 8, 9
sTS = 68
sHF, sHL, sPF, sPL, sU1, sR1, sU2, sR2, sHas2, sFlF, sFlL, sFlO = 18, 19, 20, 21, 22, 23, 24, 25, 26, 27, 28, 29
sME, sML = 64, 66
SC = ' sc1'
vLane = 1

def srd(E, d, p, nbytes):
    E.e(f's_mov_b32 s{d}, s{p}')
    E.e(f's_and_b32 s{d+1}, s{p+1}, 0xffff')
    E.e(f's_mov_b32 s{d+2}, {nbytes}')
    E.e(f's_mov_b32 s{d+3}, 0x20000')

class TS:
    def __init__(self): self.n = 0
    def stamp(self, E):
        if Opt.ts:
            assert self.n < 14
            E.e(f's_memtime s[{sTS+2*self.n}:{sTS+2*self.n+1}]')
            self.n += 1
    def stamp2(self, E, sIt):
        if Opt.ts:
            TS.uid = getattr(TS, 'uid', 0) + 1
            u = TS.uid
            E.e(f's_cmp_lg_u32 s{sIt}, 0')
            E.e(f's_cbranch_scc1 Lts{u}a')
            self.stamp(E)
            E.e(f's_branch Lts{u}b')
            E.e(f'Lts{u}a:')
            self.stamp(E)
            E.e(f'Lts{u}b:')
    def rt0(self, E):
        if Opt.ts: E.e(f's_memrealtime s[{sTS+28}:{sTS+29}]')
    def flush(self, E, vtmp):
        if not Opt.ts: return
        E.e(f's_memrealtime s[{sTS+30}:{sTS+31}]')
        E.e('s_waitcnt lgkmcnt(0)')
        E.e(f's_lshl_b32 s{sT0}, s2, 3')
        E.e(f's_add_u32 s{sT0}, s{sT0}, s{sWave}')
        E.e(f's_lshl_b32 s{sT0}, s{sT0}, 6')
        E.e(f's_add_u32 s{sT0}, s{sT0}, {WS_TS}')
        E.e(f'v_mov_b32 v{vtmp}, 0')
        for i in list(range(self.n)) + [14, 15]:
            E.e(f'v_writelane_b32 v{vtmp}, s{sTS+2*i}, {i}')
        E.e(f'v_lshlrev_b32 v{vtmp+1}, 2, v{vLane}')
        E.e('s_mov_b64 exec, 0xffff')
        E.e(f'buffer_store_dword v{vtmp}, v{vtmp+1}, {sr(srdWS)}, s{sT0} offen')

vX0, vX1, vWt0, vWt1, vWo = 2, 3, 4, 5, 6
vD1, vD1o, vD2, vD2o = 7, 8, 9, 10
vAW, vAWo, vP, vPo = 11, 12, 13, 14
vDum = 15
vT = 16
vXF = 24
vWF = 64
vA1 = 84
vA2 = 124
vAo = 164
vO2 = 184
vOo = 224
vBraw = 244
vXg0, vXg1 = 254, 255

vFlOld = 186
def flag_poll_addr(E, v):
    e = E.e
    e(f's_mul_i32 s{sT0}, s{sMT}, {18*128}')
    e(f's_add_u32 s{sT0}, s{sT0}, {WS_FL}')
    e(f's_lshl_b32 s{sT1}, s{sU1}, 7')
    e(f's_add_u32 s{sT1}, s{sT1}, s{sT0}')
    e(f'v_lshl_add_u32 v{v}, v{vLane}, 2, s{sT1}')
    e(f's_sub_u32 s{sT1}, s{sU2}, s{sU1}')
    e(f's_sub_u32 s{sT1}, s{sT1}, 1')
    e(f's_lshl_b32 s{sT1}, s{sT1}, 7')
    e('s_mov_b32 exec_lo, 0')
    e(f'v_add_u32 v{v}, s{sT1}, v{v}')
    e('s_mov_b32 exec_lo, -1')
def flag_addrs(E, rF=None, rL=None, rO=None):
    e = E.e
    rF, rL, rO = rF or sFlF, rL or sFlL, rO or sFlO
    e(f's_mul_i32 s{sT0}, s{sMT}, {18*128}')
    e(f's_lshl_b32 s{sT1}, s{sFS}, 2')
    e(f's_add_u32 s{sT0}, s{sT0}, s{sT1}')
    e(f's_add_u32 s{sT0}, s{sT0}, {WS_FL}')
    e(f's_lshl_b32 s{sT1}, s{sWave}, 7')
    e(f's_add_u32 s{sT1}, s{sT1}, s{sT0}')
    e(f's_lshl_b32 s{rF}, s{sHF}, 1')
    e(f's_add_u32 s{rF}, s{rF}, s{sT1}')
    e(f's_lshl_b32 s{rL}, s{sHL}, 1')
    e(f's_add_u32 s{rL}, s{rL}, s{sT1}')
    e(f's_and_b32 s{rO}, s{sWave}, 2')
    e(f's_lshl_b32 s{rO}, s{rO}, 6')
    e(f's_add_u32 s{rO}, s{rO}, s{sT0}')
    e(f's_and_b32 s{sT1}, s{sWave}, 1')
    e(f's_lshl_b32 s{sT1}, s{sT1}, 5')
    e(f's_add_u32 s{rO}, s{rO}, s{sT1}')
    e(f's_add_u32 s{rO}, s{rO}, {16*128}')

def mlp_prologue(E, ts):
    e = E.e
    e(f's_sub_u32 s{sMT}, s{sMT}, {IDX_MLP0}')
    srd(E, srdX, sQ, S*D*2)
    vR, vCc, vOff, vSl = 16, 17, 18, 19
    e(f'v_mul_u32_u24 v{vR}, 43, v{vLane}')
    e(f'v_lshrrev_b32 v{vR}, 8, v{vR}')
    e(f'v_mul_u32_u24 v{vCc}, 6, v{vR}')
    e(f'v_sub_u32 v{vCc}, v{vLane}, v{vCc}')
    e(f's_mul_i32 s{sT0}, s{sWave}, 10')
    e(f'v_add_u32 v{vSl}, s{sT0}, v{vR}')
    e(f's_mul_i32 s{sT1}, s{sMT}, 80')
    e(f'v_add_u32 v{vOff}, s{sT1}, v{vSl}')
    vGrow = 20
    e(f'v_mov_b32 v{vGrow}, v{vOff}')
    e(f'v_mul_u32_u24 v{vOff}, 1152, v{vOff}')
    e(f'v_lshl_add_u32 v{vOff}, v{vCc}, 4, v{vOff}')
    XR = 24
    xl = []
    for i in range(12):
        xl.append(E.vm(f'buffer_load_dwordx4 {vr(XR+4*i)}, v{vOff}, {sr(srdX)}, 0 offen offset:{96*i}'))
    srd(E, srdW1, sW1, D*F*2)
    srd(E, srdW2, sW2, D*F*2)
    srd(E, srdB1, sB1, F*2)
    srd(E, srdWS, sWS, WS_BYTES)
    e(f's_and_b32 s{sT0}, s{sFS}, 1')
    e(f's_lshl_b32 s{sHL}, s{sT0}, 9')
    e(f's_xor_b32 s{sHF}, s{sHL}, 512')
    e(f's_lshl_b32 s{sPF}, s{sHF}, 4')
    e(f's_lshl_b32 s{sPL}, s{sHL}, 4')
    e(f's_lshl_b32 s{sU1}, s{sFS}, 1')
    e(f's_cmp_ge_u32 s{sWave}, 5')
    e(f's_cselect_b32 s{sT0}, 5, 0')
    e(f's_addc_u32 s{sU1}, s{sU1}, 0')
    e(f's_sub_u32 s{sR1}, s{sWave}, s{sT0}')
    e(f's_mov_b32 s{sHas2}, 1')
    e(f's_lshl_b32 s{sU2}, s{sFS}, 1')
    e(f's_add_u32 s{sU2}, s{sU2}, 1')
    e(f's_add_u32 s{sR2}, s{sWave}, 3')
    e(f's_cmp_lt_u32 s{sWave}, 2')
    e('s_cbranch_scc1 Lslot_done')
    e(f's_cmp_ge_u32 s{sFS}, 5')
    e(f's_cselect_b32 s{sT0}, 5, 0')
    e(f's_cselect_b32 s{sU2}, 17, 16')
    e(f's_sub_u32 s{sR2}, s{sFS}, s{sT0}')
    e(f's_cmp_eq_u32 s{sWave}, 2')
    e('s_cbranch_scc1 Lslot_done')
    e(f's_mov_b32 s{sU2}, 17')
    e(f's_add_u32 s{sR2}, s{sFS}, 3')
    e(f's_lshl_b32 s{sT0}, s{sWave}, 3')
    e(f's_add_u32 s{sT0}, s{sT0}, s{sFS}')
    e(f's_cmp_lt_u32 s{sT0}, 26')
    e('s_cbranch_scc1 Lslot_done')
    e(f's_mov_b32 s{sHas2}, 0')
    e(f's_mov_b32 s{sU2}, s{sU1}')
    e('Lslot_done:')
    flag_poll_addr(E, 21)
    fl0 = E.vm(f'buffer_load_dword v0, v21, {sr(srdWS)}, 0 offen{SC}')
    flag_addrs(E)
    e(f'v_mov_b32 v22, s{sFlF}')
    e(f'v_writelane_b32 v22, s{sFlL}, 1')
    e(f'v_writelane_b32 v22, s{sFlO}, 2')
    fl1 = E.vm(f'buffer_load_dword v{vFlOld}, v22, {sr(srdWS)}, 0 offen{SC}')
    a, b, c = 21, 22, 23
    e(f'v_cmp_gt_u32 vcc, 12, v{vLane}')
    e(f's_mul_i32 s{sT0}, s{sWave}, {12*26}')
    e(f's_mul_i32 s{sT1}, s{sMT}, 12')
    e(f's_add_u32 s{sT0}, s{sT0}, s{sT1}')
    e(f'v_add_u32 v{a}, s{sT0}, v{vLane}')
    e(f'v_lshrrev_b32 v{b}, 2, v{a}')
    e(f'v_and_b32 v{c}, 3, v{a}')
    e(f'v_mul_u32_u24 v{b}, 9216, v{b}')
    e(f'v_lshl_add_u32 v{b}, v{c}, 7, v{b}')
    e(f'v_cndmask_b32 v{b}, -1, v{b}, vcc')
    e(f's_mul_i32 s{sT0}, s{sFS}, 1152')
    E.vm(f'buffer_load_dword v{vDum}, v{b}, {sr(srdW1)}, s{sT0} offen')
    if Opt.code_pf:
        e(f's_getpc_b64 s[10:11]')
        e('Lpc:')
        e(f's_mul_i32 s{sT0}, s{sMT}, 8*((Lmlp_end-Lpc+26*1024-1)/(26*1024))')
        e(f's_mul_i32 s{sT1}, s{sWave}, (Lmlp_end-Lpc+26*1024-1)/(26*1024)')
        e(f's_add_u32 s{sT0}, s{sT0}, s{sT1}')
        e(f'v_add_u32 v{a}, s{sT0}, v{vLane}')
        e(f'v_lshlrev_b32 v{a}, 7, v{a}')
        e(f'v_min_u32 v{a}, Lmlp_end-Lpc-4, v{a}')
        e(f'v_cmp_gt_u32 vcc, (Lmlp_end-Lpc+26*1024-1)/(26*1024), v{vLane}')
        e('s_and_saveexec_b64 s[12:13], vcc')
        E.vm(f'global_load_dword v{vDum}, v{a}, s[10:11]')
        e('s_mov_b64 exec, s[12:13]')
    q = 21
    e(f'v_lshrrev_b32 v{q}, 4, v{vLane}')
    e(f's_mul_i32 s{sT0}, s{sFS}, 1152')
    e(f's_lshl_b32 s{sT1}, s{sWave}, 6')
    e(f's_add_u32 s{sT0}, s{sT0}, s{sT1}')
    e(f'v_lshl_add_u32 v{b}, v{q}, 3, s{sT0}')
    bl = []
    for i, off in enumerate((0, 32, 512, 544)):
        bl.append(E.vm(f'buffer_load_dwordx2 {vr(vBraw+2*i,2)}, v{b}, {sr(srdB1)}, 0 offen offset:{off}'))
    e(f's_lshl_b32 s{sT1}, s{sWave}, 5')
    e(f's_sub_u32 s{sT1}, 1024, s{sT1}')
    bl.append(E.vm(f'buffer_load_dwordx2 {vr(vBraw+8,2)}, v{b}, {sr(srdB1)}, s{sT1} offen'))
    e(f'v_lshlrev_b32 v{vX0}, 4, v{vLane}')
    e(f'v_add_u32 v{vX1}, 46080, v{vX0}')
    e(f's_mul_i32 s{sRing}, s{sWave}, {RING_A*1024}')
    e(f's_mul_i32 s{sT1}, s{sWave}, {RING_B*1024}')
    e(f's_add_u32 s{sT1}, s{sT1}, {4*(RING_A-RING_B)*1024}')
    e(f's_cmp_ge_u32 s{sWave}, 4')
    e(f's_cselect_b32 s{sRing}, s{sT1}, s{sRing}')
    e(f's_add_u32 s{sRing}, s{sRing}, {XA_BYTES}')
    e(f'v_lshrrev_b32 v{a}, 2, v{vLane}')
    e(f'v_and_b32 v{c}, 3, v{vLane}')
    e(f'v_lshlrev_b32 v{vWt0}, 6, v{a}')
    e(f'v_lshl_add_u32 v{vWt0}, v{c}, 3, v{vWt0}')
    e(f'v_and_b32 v{b}, 16, v{vLane}')
    e(f'v_lshl_add_u32 v{vWt0}, v{b}, 1, v{vWt0}')
    e(f'v_add_u32 v{vWt0}, s{sRing}, v{vWt0}')
    e(f'v_xor_b32 v{vWt1}, 32, v{vWt0}')
    e(f'v_lshlrev_b32 v{vWo}, 3, v{vLane}')
    e(f'v_add_u32 v{vWo}, s{sRing}, v{vWo}')
    e(f'v_lshrrev_b32 v{b}, 3, v{vLane}')
    e(f'v_and_b32 v{b}, 2, v{b}')
    e(f'v_xor_b32 v{c}, v{c}, v{b}')
    e(f'v_mul_u32_u24 v{vD2}, 1152, v{a}')
    e(f'v_lshl_add_u32 v{vD2}, v{c}, 4, v{vD2}')
    e(f's_mul_i32 s{sT0}, s{sFS}, 663552')
    e(f's_lshl_b32 s{sT1}, s{sWave}, 6')
    e(f's_add_u32 s{sT0}, s{sT0}, s{sT1}')
    e(f'v_add_u32 v{vD2}, s{sT0}, v{vD2}')
    e(f'v_lshrrev_b32 v{b}, 4, v{vLane}')
    e(f'v_lshl_add_u32 v{b}, v{b}, 2, v{a}')
    e(f'v_mul_u32_u24 v{vD1}, 9216, v{b}')
    e(f'v_lshl_add_u32 v{vD1}, v{c}, 4, v{vD1}')
    e(f's_mul_i32 s{sT0}, s{sFS}, 1152')
    e(f's_add_u32 s{sT0}, s{sT0}, s{sT1}')
    e(f'v_add_u32 v{vD1}, s{sT0}, v{vD1}')
    e(f'v_lshrrev_b32 v{a}, 1, v{vLane}')
    e(f'v_and_b32 v{c}, 1, v{vLane}')
    e(f'v_mul_u32_u24 v{vD2o}, 1152, v{a}')
    e(f'v_lshl_add_u32 v{vD2o}, v{c}, 4, v{vD2o}')
    e(f's_lshl_b32 s{sT1}, s{sWave}, 5')
    e(f's_add_u32 s{sT1}, s{sT1}, 1024')
    e(f's_mul_i32 s{sT0}, s{sFS}, 663552')
    e(f's_add_u32 s{sT0}, s{sT0}, s{sT1}')
    e(f'v_add_u32 v{vD2o}, s{sT0}, v{vD2o}')
    e(f'v_and_b32 v{b}, 12, v{a}')
    e(f'v_lshlrev_b32 v{b}, 1, v{b}')
    e(f'v_and_b32 v{vD1o}, 3, v{a}')
    e(f'v_add_u32 v{b}, v{b}, v{vD1o}')
    e(f'v_lshrrev_b32 v{vD1o}, 4, v{a}')
    e(f'v_lshl_add_u32 v{b}, v{vD1o}, 2, v{b}')
    e(f'v_mul_u32_u24 v{vD1o}, 9216, v{b}')
    e(f'v_lshl_add_u32 v{vD1o}, v{c}, 4, v{vD1o}')
    e(f's_mul_i32 s{sT0}, s{sFS}, 1152')
    e(f's_add_u32 s{sT0}, s{sT0}, s{sT1}')
    e(f'v_add_u32 v{vD1o}, s{sT0}, v{vD1o}')
    e(f's_mul_i32 s{sT0}, s{sWave}, 5120')
    e(f'v_add_u32 v{vAW}, s{sT0}, v{vX0}')
    e(f's_lshr_b32 s{sT0}, s{sWave}, 1')
    e(f's_mul_i32 s{sT0}, s{sT0}, 5120')
    e(f's_and_b32 s{sT1}, s{sWave}, 1')
    e(f's_lshl_b32 s{sT1}, s{sT1}, 3')
    e(f's_add_u32 s{sT0}, s{sT0}, s{sT1}')
    e(f's_add_u32 s{sT0}, s{sT0}, {16*5120}')
    e(f'v_add_u32 v{vAWo}, s{sT0}, v{vX0}')
    e(f's_mul_i32 s{sT0}, s{sFS}, {PSTRIDE}')
    e(f's_mul_i32 s10, s{sMT}, {5*18432}')
    e(f's_add_u32 s{sT0}, s{sT0}, s10')
    e(f's_lshl_b32 s10, s{sWave}, 10')
    e(f's_add_u32 s10, s10, s{sT0}')
    e(f'v_add_u32 v{vP}, s10, v{vX0}')
    e(f's_lshr_b32 s10, s{sWave}, 1')
    e(f's_lshl_b32 s10, s10, 10')
    e(f's_add_u32 s10, s10, s{sT1}')
    e(f's_add_u32 s10, s10, s{sT0}')
    e(f's_add_u32 s10, s10, {16*1024}')
    e(f'v_add_u32 v{vPo}, s10, v{vX0}')
    e(f's_mov_b32 s{sC}, {RSQRT2}')
    vSw, vSr, vFe, vFo = 72, 73, 74, 75
    e(f's_lshl_b32 s{sT0}, s{sWave}, 8')
    e(f's_add_u32 s{sT0}, s{sT0}, {LDS_BYTES-2048}')
    e(f'v_lshl_add_u32 v{vSw}, v{vLane}, 2, s{sT0}')
    e(f'v_mul_u32_u24 v{vSr}, 24, v{vR}')
    e(f'v_add_u32 v{vSr}, s{sT0}, v{vSr}')
    e(f'v_lshrrev_b32 v{a}, 4, v{vSl}')
    e(f'v_and_b32 v{b}, 15, v{vSl}')
    e(f'v_lshlrev_b32 v{a}, 10, v{a}')
    e(f'v_lshl_add_u32 v{a}, v{b}, 6, v{a}')
    e(f'v_lshrrev_b32 v{vFo}, 2, v{b}')
    e(f'v_and_b32 v76, 2, v{vFo}')
    for (dst, add) in ((vFe, 0), (vFo, 6)):
        e(f'v_add_u32 v{b}, {add}, v{vCc}')
        e(f'v_lshrrev_b32 v{c}, 2, v{b}')
        e(f'v_mul_u32_u24 v{c}, 5120, v{c}')
        e(f'v_and_b32 v{b}, 3, v{b}')
        e(f'v_xor_b32 v{b}, v{b}, v76')
        e(f'v_lshl_add_u32 v{c}, v{b}, 4, v{c}')
        e(f'v_add_u32 v{dst}, v{a}, v{c}')
    e(f'v_and_b32 v{a}, 15, v{vLane}')
    e(f'v_lshrrev_b32 v{b}, 4, v{vLane}')
    e(f'v_lshrrev_b32 v{c}, 2, v{a}')
    e(f'v_and_b32 v{c}, 2, v{c}')
    e(f'v_xor_b32 v{b}, v{b}, v{c}')
    e(f'v_lshlrev_b32 v{vXg0}, 6, v{a}')
    e(f'v_lshl_add_u32 v{vXg0}, v{b}, 4, v{vXg0}')
    e(f'v_add_u32 v{vXg1}, 46080, v{vXg0}')
    return dict(fl=[fl0, fl1], vR=vR, XR=XR, xl=xl, bl=bl, vSw=vSw, vSr=vSr, vFe=vFe, vFo=vFo, vGrow=vGrow, vCc=vCc)

def rowsum(E, P, vs, tmp):
    E.lg(f'ds_write_b32 v{P["vSw"]}, v{vs}')
    E.all_lg()
    for i in range(3):
        E.lg(f'ds_read_b64 {vr(tmp+2*i,2)}, v{P["vSr"]} offset:{8*i}')
    E.all_lg()
    E.e(f'v_add_f32 v{tmp}, v{tmp}, v{tmp+1}')
    E.e(f'v_add_f32 v{tmp+2}, v{tmp+2}, v{tmp+3}')
    E.e(f'v_add_f32 v{tmp+4}, v{tmp+4}, v{tmp+5}')
    E.e(f'v_add_f32 v{tmp}, v{tmp}, v{tmp+2}')
    E.e(f'v_add_f32 v{vs}, v{tmp}, v{tmp+4}')

def bf16r(E, v):
    E.e(f'v_cvt_pk_bf16_f32 v{v}, v{v}, v{v}')
    E.e(f'v_and_b32 v{v}, 0xffff0000, v{v}')

def mlp_ln(E, P, ts, prefill):
    e = E.e
    XR = P['XR']
    XT = 84
    ac = [76, 77, 78, 79]
    tmp = 180
    for i in range(12):
        E.need(P['xl'][i])
        for j in range(4):
            r = XR + 4*i + j
            t = XT + 2*(4*i + j)
            e(f'v_lshlrev_b32 v{t}, 16, v{r}')
            e(f'v_and_b32 v{t+1}, 0xffff0000, v{r}')
            if i == 0 and j < 2:
                e(f'v_mov_b32 v{ac[2*j]}, v{t}')
                e(f'v_mov_b32 v{ac[2*j+1]}, v{t+1}')
            else:
                k = 2*(j & 1)
                e(f'v_pk_add_f32 {vr(ac[k],2)}, {vr(ac[k],2)}, {vr(t,2)}')
    ts.stamp(E)
    prefill()
    if Opt.lnts: ts.stamp(E)
    e(f'v_pk_add_f32 {vr(ac[0],2)}, {vr(ac[0],2)}, {vr(ac[2],2)}')
    e(f'v_add_f32 v{ac[0]}, v{ac[0]}, v{ac[1]}')
    rowsum(E, P, ac[0], tmp)
    if Opt.lnts: ts.stamp(E)
    vMu, vM = 80, 82
    e(f'v_mul_f32 v{vMu}, 0x3ae38e39, v{ac[0]}')
    e(f'v_mov_b32 v{vM}, v{vMu}')
    bf16r(E, vM)
    e(f'v_sub_f32 v{vMu}, v{vMu}, v{vM}')
    for i in range(48):
        t = XT + 2*i
        e(f'v_pk_add_f32 {vr(t,2)}, {vr(t,2)}, {vr(vM,2)} op_sel_hi:[1,0] neg_lo:[0,1] neg_hi:[0,1]')
        k = 2*(i & 1)
        if i < 2:
            e(f'v_pk_mul_f32 {vr(ac[k],2)}, {vr(t,2)}, {vr(t,2)}')
        else:
            e(f'v_pk_fma_f32 {vr(ac[k],2)}, {vr(t,2)}, {vr(t,2)}, {vr(ac[k],2)}')
    e(f'v_pk_add_f32 {vr(ac[0],2)}, {vr(ac[0],2)}, {vr(ac[2],2)}')
    e(f'v_add_f32 v{ac[0]}, v{ac[0]}, v{ac[1]}')
    rowsum(E, P, ac[0], tmp)
    if Opt.lnts: ts.stamp(E)
    vV = ac[0]
    e(f'v_mul_f32 v{vV}, 0x3ae38e39, v{vV}')
    e(f'v_fma_f32 v{vV}, -v{vMu}, v{vMu}, v{vV}')
    e(f'v_max_f32 v{vV}, 0, v{vV}')
    bf16r(E, vV)
    e(f'v_add_f32 v{vV}, 0x3727c5ac, v{vV}')
    bf16r(E, vV)
    e(f'v_sqrt_f32 v{vV}, v{vV}')
    e('s_nop 0')
    bf16r(E, vV)
    e(f'v_rcp_f32 v{vM+1}, v{vV}')
    e('s_mov_b32 exec_hi, 0x0fffffff')
    e(f'v_cmp_eq_u32 vcc, 0, v{P["vCc"]}')
    e(f's_lshl_b32 s{sT0}, s{sWave}, 8')
    e(f's_add_u32 s{sT0}, s{sT0}, {LDS_BYTES-2048}')
    e(f'v_lshl_add_u32 v{tmp}, v{P["vR"]}, 3, s{sT0}')
    e('s_and_saveexec_b64 s[12:13], vcc')
    E.lg(f'ds_write_b64 v{tmp}, {vr(vM,2)}')
    e('s_mov_b64 exec, s[12:13]')
    for i in range(12):
        for j in range(4):
            t = XT + 2*(4*i + j)
            e(f'v_pk_mul_f32 {vr(t,2)}, {vr(t,2)}, {vr(vM,2)} op_sel:[0,1] op_sel_hi:[1,1]')
        for j in range(4):
            t = XT + 2*(4*i + j)
            e(f'v_cvt_pk_bf16_f32 v{XR+4*i+j}, v{t}, v{t+1}')
        base = P['vFe'] if i % 2 == 0 else P['vFo']
        m = i // 2
        if m == 4 :
            e(f'v_add_u32 v{base}, {4*15360}, v{base}')
        off = (m % 4) * 15360
        E.lg(f'ds_write_b128 v{base}, {vr(XR+4*i)} offset:{off}')
    e('s_mov_b32 exec_hi, -1')
    if Opt.lnts: ts.stamp(E)

NPRE = min(RING_A, RING_B)
def mlp_prefill(E):
    ids = []
    for n in range(NPRE):
        ks, b = divmod(n, 2)
        E.e(f's_add_u32 m0, s{sRing}, {n*1024}')
        E.e(f's_mov_b32 s{sT0}, {ks*32*9216 + b*4*9216}')
        ids.append(E.vm(f'buffer_load_dwordx4 v{vD1}, {sr(srdW1)}, s{sT0} offen lds'))
    return ids

def mlp_main(E, cls, P, ts, pre_ids):
    e = E.e
    isA = cls == 'A'
    NR = RING_A if isA else RING_B
    groups = []
    items = []
    steps = []
    def add_item(vaddr, srdn, soff):
        items.append(dict(v=vaddr, srd=srdn, soff=soff, reads=[], id=None)); return len(items) - 1
    def add_unit(stage, st, accb, vaddr, srdn, soff_a, soff_b, first):
        ia = add_item(vaddr, srdn, soff_a); ib = add_item(vaddr, srdn, soff_b)
        for t in range(2):
            groups.append(dict(acc=accb + 20*t, step=st, rd=[(ia, [vWt0, vWt1][t], 0), (ib, [vWt0, vWt1][t], 0)], first=first, stage=stage))
    def add_odd(stage, st, accb, vaddr, srdn, soff, first):
        io = add_item(vaddr, srdn, soff)
        groups.append(dict(acc=accb, step=st, rd=[(io, vWo, 0), (io, vWo, 512)], first=first, stage=stage))
    for stage in 'AB':
        for ks in range(18):
            st = len(steps); g0 = len(groups)
            base = ks*32*9216 + (512 if stage == 'B' else 0)
            add_unit(stage, st, vA1 if stage == 'A' else vA2, vD1, srdW1, base, base + 4*9216, 'bias' if ks == 0 else None)
            if stage == 'B' and isA:
                add_odd(stage, st, vAo, vD1o, srdW1, ks*32*9216, 'bias' if ks == 0 else None)
            steps.append(dict(x=ks, g0=g0, ng=len(groups)-g0, stage=stage, k=ks))
    def g2step(kp, doF, doL):
        st = len(steps); g0 = len(groups)
        base = kp*32*1152
        f = 'zero' if kp == 0 else None
        if doF: add_unit('C', st, vA1, vD2, srdW2, (sHF, base), (sHF, base + 16*1152), f)
        if doL: add_unit('C', st, vO2, vD2, srdW2, (sHL, base), (sHL, base + 16*1152), f)
        if doF and isA:
            add_odd('C', st, vOo, vD2o, srdW2, base, f)
        steps.append(dict(x=kp, g0=g0, ng=len(groups)-g0, stage='C', k=kp))
    for kp in range(8): g2step(kp, True, True)
    for kp in range(8, 18): g2step(kp, True, False)
    for kp in range(8, 18): g2step(kp, False, True)
    NG = len(groups); NM = 5*NG
    gaps = [[] for _ in range(NM)]
    pre = [[] for _ in range(NM)]
    def stepm(s): return 5*steps[s]['g0']

    def do_dma(n):
        it = items[n]
        if n >= NR:
            E.need(*items[n-NR]['reads'])
        e(f's_add_u32 m0, s{sRing}, {(n % NR)*1024}')
        if isinstance(it['soff'], tuple):
            e(f's_add_u32 s{sT0}, s{it["soff"][0]}, {it["soff"][1]}')
        else:
            e(f's_mov_b32 s{sT0}, {it["soff"]}')
        it['id'] = E.vm(f'buffer_load_dwordx4 v{it["v"]}, {sr(it["srd"])}, s{sT0} offen lds')
    def do_wread(g, h):
        (n, vb, xo) = groups[g]['rd'][h]
        E.need(items[n]['id'])
        r = vWF + 4*(g % 5) + 2*h
        i = E.lg(f'ds_read_b64_tr_b16 {vr(r,2)}, v{vb} offset:{(n % NR)*1024 + xo}')
        items[n]['reads'].append(i)
        groups[g].setdefault('w', []).append(i)
    def do_xread(s, rt):
        idx = steps[s]['x']*5 + rt
        b0, b1 = (vX0, vX1) if steps[s]['stage'] == 'C' else (vXg0, vXg1)
        vb, off = (b0, idx*1024) if idx < 45 else (b1, (idx-45)*1024)
        r = vXF + 20*(s % 2) + 4*rt
        i = E.lg(f'ds_read_b128 {vr(r)}, v{vb} offset:{off}')
        steps[s].setdefault('xr', {})[rt] = i

    wpos = {}
    for g in range(5, NG):
        m = 5*(g-5) + 4
        for h in range(2):
            mm = min(m + h, NM-1)
            gaps[mm].append(lambda g=g, h=h: do_wread(g, h))
            wpos[(g, h)] = mm
    last_read = {}
    for g in range(NG):
        for h in range(2):
            n = groups[g]['rd'][h][0]
            last_read[n] = max(last_read.get(n, -1), wpos.get((g, h), -1))
    prev = -1
    for n in range(NR, len(items)):
        m = max(last_read[n-NR] + Opt.dma_delay, prev + 1, 0)
        first_use = min(wpos.get((g, h), -1) for g in range(NG) for h in range(2) if groups[g]['rd'][h][0] == n)
        assert m < first_use, (n, m, first_use)
        gaps[m].append(lambda n=n: do_dma(n))
        prev = m
    sB = 18; sC_ = 36
    wr1, wr2, wro = [], [], []
    def bar(needs):
        def f():
            ids = needs()
            if ids: E.need(*ids)
            ts.stamp(E)
            e('s_barrier')
        return f
    pre[stepm(sB+8)].append(bar(lambda: []))
    pre[stepm(sB+17)].append(bar(lambda: wr1 + list(steps[sB+17]['xr'].values())))
    pre[stepm(sC_+7)].append(bar(lambda: wr2))
    pre[stepm(sC_+15)].append(bar(lambda: wro))
    for s in range(len(steps)-1):
        m0 = stepm(s); n = 5*steps[s]['ng']
        span = max(5, int(n*0.7))
        for rt in range(5):
            gaps[m0 + (rt*span)//5 + (1 if n > 10 else 0)].append(lambda s=s, rt=rt: do_xread(s+1, rt))
    def mish_ops(src, dst, tb):
        ops = []
        T = [tb+i for i in range(4)]
        for i in range(4): ops.append((4, f'v_mul_f32 v{T[i]}, {hex(LOG2E)}, v{src+i}'))
        for i in range(4): ops.append((8, f'v_exp_f32 v{T[i]}, v{T[i]}'))
        for i in range(4): ops.append((4, f'v_fma_f32 v{T[i]}, v{T[i]}, s{sC}, s{sC}'))
        for i in range(4): ops.append((4, f'v_fma_f32 v{T[i]}, v{T[i]}, v{T[i]}, 0.5'))
        for i in range(4): ops.append((8, f'v_rcp_f32 v{T[i]}, v{T[i]}'))
        for i in range(4): ops.append((4, f'v_fma_f32 v{T[i]}, -v{src+i}, v{T[i]}, v{src+i}'))
        ops.append((4, f'v_cvt_pk_bf16_f32 v{dst}, v{T[0]}, v{T[1]}'))
        ops.append((4, f'v_cvt_pk_bf16_f32 v{dst+1}, v{T[2]}, v{T[3]}'))
        return ops
    def spread(ops, m_lo, m_hi, wr_lo):
        tot = sum(c for c, _ in ops)
        acc = 0
        for c, o in ops:
            m = m_lo + int((acc / tot) * (m_hi - m_lo))
            acc += c
            if callable(o):
                gaps[max(m, wr_lo)].append(o)
                if m < wr_lo: wr_lo += 1
            else:
                gaps[m].append(lambda o=o: e(o))
    def unit_ops(accb, woff, wl):
        ops = []
        for rt in range(5):
            a0, a1 = accb + 4*rt, accb + 20 + 4*rt
            ops += mish_ops(a0, a0, vT)
            ops += mish_ops(a1, a0+2, vT+4)
            ops.append((1, lambda a0=a0, rt=rt: wl.append(E.lg(f'ds_write_b128 v{vAW}, {vr(a0)} offset:{woff + rt*1024}'))))
        return ops
    spread(unit_ops(vA1, 0, wr1), stepm(sB)+3, stepm(sB+17)-3, stepm(sB+8))
    spread(unit_ops(vA2, 40960, wr2), stepm(sC_)+3, stepm(sC_+7)-3, 0)
    if isA:
        ops = []
        for rt in range(5):
            a0 = vAo + 4*rt
            ops += mish_ops(a0, a0, vT + 4*(rt & 1))
            ops.append((1, lambda a0=a0, rt=rt: wro.append(E.lg(f'ds_write_b64 v{vAWo}, {vr(a0,2)} offset:{rt*1024}'))))
        spread(ops, stepm(sC_+7), stepm(sC_+15)-3, 0)

    sD2 = sC_ + 18
    early = []
    def pack_store(ab, sbase, rt, lst):
        a0, a1 = ab + 4*rt, ab + 20 + 4*rt
        def st():
            e(f's_add_u32 s{sT0}, s{sbase}, {rt*18432}')
            lst.append(E.vm(f'buffer_store_dwordx4 {vr(a0)}, v{vP}, {sr(srdWS)}, s{sT0} offen{SC}'))
        return [(4, f'v_cvt_pk_bf16_f32 v{a0}, v{a0}, v{a0+1}'), (4, f'v_cvt_pk_bf16_f32 v{a0+1}, v{a0+2}, v{a0+3}'),
                (4, f'v_cvt_pk_bf16_f32 v{a0+2}, v{a1}, v{a1+1}'), (4, f'v_cvt_pk_bf16_f32 v{a0+3}, v{a1+2}, v{a1+3}'), (4, st)]
    def pack_store_odd(rt, lst):
        a0 = vOo + 4*rt
        def st():
            e(f's_mov_b32 s{sT0}, {rt*18432}')
            lst.append(E.vm(f'buffer_store_dwordx2 {vr(a0,2)}, v{vPo}, {sr(srdWS)}, s{sT0} offen{SC}'))
        return [(4, f'v_cvt_pk_bf16_f32 v{a0}, v{a0}, v{a0+1}'), (4, f'v_cvt_pk_bf16_f32 v{a0+1}, v{a0+2}, v{a0+3}'), (4, st)]
    ops = []
    for rt in range(5):
        ops += pack_store(vA1, sPF, rt, early)
        if isA: ops += pack_store_odd(rt, early)
    spread(ops, stepm(sD2)+5, stepm(sD2 + Opt.early_steps), 0)

    def body():
        for n in range(NPRE): items[n]['id'] = pre_ids[n]
        for n in range(NPRE, NR): do_dma(n)
        E.need(*P['bl'])
        tl = [vA1, vA1+20, vA2, vA2+20] + ([vAo] if isA else [])
        for i, ab in enumerate(tl):
            r = vBraw + 2*i; d = ab + 16
            e(f'v_lshlrev_b32 v{d}, 16, v{r}')
            e(f'v_and_b32 v{d+1}, 0xffff0000, v{r}')
            e(f'v_lshlrev_b32 v{d+2}, 16, v{r+1}')
            e(f'v_and_b32 v{d+3}, 0xffff0000, v{r+1}')
        E.need(*P['fl'])
        for i, r in enumerate((sFlF, sFlL, sFlO)):
            e(f'v_readlane_b32 s{r}, v{vFlOld}, {i}')
        for g in range(5):
            for h in range(2): do_wread(g, h)
        E.all_lg()
        ts.stamp(E)
        e('s_barrier')
        for rt in range(5): do_xread(0, rt)
        for m in range(NM):
            g, rt = divmod(m, 5)
            G = groups[g]; s = G['step']
            for f in pre[m]: f()
            E.need(*(G['w'] + [steps[s]['xr'][rt]]))
            d = G['acc'] + 4*rt
            c = vr(d)
            if G['first'] == 'bias': c = vr(G['acc'] + 16)
            if G['first'] == 'zero': c = '0'
            e(f'v_mfma_f32_16x16x32_bf16 {vr(d)}, {vr(vWF + 4*(g % 5))}, {vr(vXF + 20*(s % 2) + 4*rt)}, {c}')
            for f in gaps[m]: f()
        ts.stamp(E)
        e('s_nop 7')
        late = []
        for rt in range(5):
            for c, o in pack_store(vO2, sPL, rt, late):
                o() if callable(o) else e(o)
        flag_addrs(E, 10, 11, 12)
        e(f'v_mov_b32 v{vT}, 0')
        def flag(val, adr):
            e(f's_add_u32 s{val}, s{val}, 1')
            e(f'v_mov_b32 v{vT+1}, s{val}')
            E.vm(f'buffer_store_dword v{vT+1}, v{vT}, {sr(srdWS)}, s{adr} offen{SC}')
        e('s_mov_b64 exec, 1')
        E.need(*early)
        flag(sFlF, 10)
        if isA: flag(sFlO, 12)
        E.need(*late)
        flag(sFlL, 11)
        e('s_mov_b64 exec, -1')
        ts.stamp(E)
        e('s_branch Ltail')
    body()

def poll(E, name, vcur, vadr, mask, first_issued):
    e = E.e
    e('s_mov_b32 s10, 0')
    if first_issued: e(f's_branch L{name}_chk')
    e(f'L{name}:')
    e(f'buffer_load_dword v{vcur}, v{vadr}, {sr(srdWS)}, 0 offen{SC}')
    e(f'L{name}_chk:')
    e('s_waitcnt vmcnt(0)')
    e(f'v_cmp_ne_u32 vcc, v{vcur}, v0')
    e(f's_and_b64 s[12:13], vcc, s[{mask}:{mask+1}]')
    e(f's_cmp_eq_u64 s[12:13], s[{mask}:{mask+1}]')
    e(f's_cbranch_scc1 L{name}_ok')
    e('s_add_u32 s10, s10, 1')
    e('s_cmp_lt_u32 s10, 0x40000')
    e(f's_cbranch_scc1 L{name}')
    e(f'L{name}_ok:')

def mlp_tail(E, ts):
    e = E.e
    e('Ltail:')
    E.reset()
    vFa, vCur = 2, 3
    flag_poll_addr(E, vFa)
    e(f'buffer_load_dword v{vCur}, v{vFa}, {sr(srdWS)}, 0 offen{SC}')
    srd(E, srdB1, sOUT, S*D*2)
    for (u, lo) in ((sU1, 0), (sU2, 1)):
        e(f's_movk_i32 s{sT0}, 0x55')
        e(f's_cmp_lt_u32 s{u}, 8')
        e(f's_cselect_b32 s{sML+lo}, s{sT0}, 0xaa')
        e(f's_xor_b32 s{sME+lo}, s{sML+lo}, 0x500ff')
        e(f's_cmp_ge_u32 s{u}, 16')
        e(f's_cselect_b32 s{sME+lo}, 0xfffff, s{sME+lo}')
        e(f's_cselect_b32 s{sML+lo}, 0, s{sML+lo}')
    e(f's_cmp_eq_u32 s{sHas2}, 0')
    e('s_cbranch_scc1 Ltail1')
    tsn = ts.n
    for ns in (2, 1):
        ts.n = tsn
        if ns == 1: e('Ltail1:')
        E.reset()
        sl = []
        e('v_and_b32 v4, 15, v1')
        e('v_lshrrev_b32 v5, 4, v1')
        e('v_and_b32 v6, 1, v5')
        e('v_lshrrev_b32 v5, 1, v5')
        e('v_lshlrev_b32 v7, 4, v1')
        for s_ in range(ns):
            u, r = (sU1, sR1) if s_ == 0 else (sU2, sR2)
            B = 24 + 96*s_
            d = dict(EP=B, LP=B+16, XR=B+32, YR=B+36, ST=B+40, SUM=B+44, T=B+52, X=B+60, Y=B+68, N=B+76, xa=B+84, ya=B+85, sa=B+86,
                     sE=30+4*s_, sL=31+4*s_, sX=32+4*s_, sY=33+4*s_)
            sl.append(d)
            e(f's_lshl_b32 s{sT0}, s{r}, 4')
            e(f'v_add_u32 v8, s{sT0}, v4')
            e('v_mul_u32_u24 v9, 205, v8')
            e('v_lshrrev_b32 v9, 11, v9')
            e('v_mul_u32_u24 v9, 176, v9')
            e('v_lshl_add_u32 v9, v8, 3, v9')
            e(f'v_add_u32 v{d["sa"]}, {LDS_BYTES-2048}, v9')
            d['st'] = E.lg(f'ds_read_b64 {vr(d["ST"],2)}, v{d["sa"]}')
            e(f's_mul_i32 s{sT0}, s{sMT}, 80')
            e(f'v_add_u32 v8, s{sT0}, v8')
            e(f'v_mul_u32_u24 v{d["xa"]}, 1152, v8')
            e(f'v_lshl_add_u32 v{d["xa"]}, v6, 5, v{d["xa"]}')
            e(f'v_lshl_add_u32 v{d["xa"]}, v5, 4, v{d["xa"]}')
            e(f'v_lshlrev_b32 v{d["ya"]}, 5, v8')
            e(f'v_lshl_add_u32 v{d["ya"]}, v5, 4, v{d["ya"]}')
            e(f'v_lshl_add_u32 v{d["ya"]}, v6, 16, v{d["ya"]}')
            e(f's_lshl_b32 s{d["sX"]}, s{u}, 6')
            e(f's_lshl_b32 s{d["sY"]}, s{u}, 17')
            e(f's_add_u32 s{d["sY"]}, s{d["sY"]}, {WS_Y}')
            e(f's_mul_i32 s{sT0}, s{sMT}, 5')
            e(f's_add_u32 s{sT0}, s{sT0}, s{r}')
            e(f's_mul_i32 s{sT0}, s{sT0}, 18432')
            e(f's_lshl_b32 s{sT1}, s{u}, 10')
            e(f's_add_u32 s{sT0}, s{sT0}, s{sT1}')
            e(f's_add_u32 s{sT1}, s{sT0}, {PSTRIDE}')
            e(f's_cmp_lt_u32 s{u}, 8')
            e(f's_cselect_b32 s{d["sE"]}, s{sT1}, s{sT0}')
            e(f's_cselect_b32 s{d["sL"]}, s{sT0}, s{sT1}')
        if ns == 1:
            e(f's_mov_b32 s{sME+1}, 0')
            e(f's_mov_b32 s{sML+1}, 0')
        poll(E, f'pe{ns}', vCur, vFa, sME, True)
        ts.stamp(E)
        def ploads(d, key, sb):
            ids = []
            for i in range(4):
                if i: e(f's_add_u32 s{d[sb]}, s{d[sb]}, {2*PSTRIDE}')
                ids.append(E.vm(f'buffer_load_dwordx4 {vr(d[key]+4*i)}, v7, {sr(srdWS)}, s{d[sb]} offen{SC}'))
            return ids
        def psum(d, key, ids, first):
            SUM, T = d['SUM'], d['T']
            for p in range(4):
                E.need(ids[p])
                dst = SUM if (first and p == 0) else T
                for j in range(4):
                    r = d[key] + 4*p + j
                    e(f'v_lshlrev_b32 v{dst+2*j}, 16, v{r}')
                    e(f'v_and_b32 v{dst+2*j+1}, 0xffff0000, v{r}')
                if dst == T:
                    for j in range(4):
                        e(f'v_pk_add_f32 {vr(SUM+2*j,2)}, {vr(SUM+2*j,2)}, {vr(T+2*j,2)}')
        for d in sl:
            d['xl'] = E.vm(f'buffer_load_dwordx4 {vr(d["XR"])}, v{d["xa"]}, {sr(srdX)}, s{d["sX"]} offen')
            d['yl'] = E.vm(f'buffer_load_dwordx4 {vr(d["YR"])}, v{d["ya"]}, {sr(srdWS)}, s{d["sY"]} offen{SC}')
            d['el'] = ploads(d, 'EP', 'sE')
        E.vm(f'buffer_load_dword v{vCur}, v{vFa}, {sr(srdWS)}, 0 offen{SC}')
        for d in sl:
            X, Y, N, T = d['X'], d['Y'], d['N'], d['T']
            E.need(d['xl'], d['yl'], d['st'])
            for j in range(4):
                e(f'v_lshlrev_b32 v{X+2*j}, 16, v{d["XR"]+j}')
                e(f'v_and_b32 v{X+2*j+1}, 0xffff0000, v{d["XR"]+j}')
                e(f'v_lshlrev_b32 v{Y+2*j}, 16, v{d["YR"]+j}')
                e(f'v_and_b32 v{Y+2*j+1}, 0xffff0000, v{d["YR"]+j}')
            def rnd(b):
                for j in range(4):
                    e(f'v_cvt_pk_bf16_f32 v{T+j}, v{b+2*j}, v{b+2*j+1}')
                for j in range(4):
                    e(f'v_lshlrev_b32 v{b+2*j}, 16, v{T+j}')
                    e(f'v_and_b32 v{b+2*j+1}, 0xffff0000, v{T+j}')
            for i in range(8): e(f'v_sub_f32 v{N+i}, v{X+i}, v{d["ST"]}')
            rnd(N)
            for i in range(8): e(f'v_mul_f32 v{N+i}, v{N+i}, v{d["ST"]+1}')
            rnd(N)
            for i in range(8): e(f'v_mul_f32 v{N+i}, v{N+i}, v{Y+i}')
            rnd(N)
            for i in range(8): e(f'v_add_f32 v{N+i}, v{N+i}, v{X+i}')
            rnd(N)
        poll(E, f'pl{ns}', vCur, vFa, sML, True)
        E.vm_done = E.vm_n - 1
        ts.stamp(E)
        for d in sl: d['ll'] = ploads(d, 'LP', 'sL')
        for d in sl: psum(d, 'EP', d['el'], True)
        for d in sl:
            psum(d, 'LP', d['ll'], False)
            SUM, T, Y, N, X = d['SUM'], d['T'], d['Y'], d['N'], d['X']
            for j in range(4):
                e(f'v_cvt_pk_bf16_f32 v{X+j}, v{SUM+2*j}, v{SUM+2*j+1}')
            e('s_nop 1')
            e(f'v_permlane16_swap_b32 v{X}, v{X+2}')
            e(f'v_permlane16_swap_b32 v{X+1}, v{X+3}')
            for j in range(4):
                e(f'v_lshlrev_b32 v{Y+2*j}, 16, v{X+j}')
                e(f'v_and_b32 v{Y+2*j+1}, 0xffff0000, v{X+j}')
            for i in range(8): e(f'v_add_f32 v{N+i}, v{N+i}, v{Y+i}')
            for j in range(4):
                e(f'v_cvt_pk_bf16_f32 v{T+j}, v{N+2*j}, v{N+2*j+1}')
            E.vm(f'buffer_store_dwordx4 {vr(T)}, v{d["xa"]}, {sr(srdB1)}, s{d["sX"]} offen')
        if Opt.ts:
            E.all_vm()
            ts.stamp(E)
            ts.flush(E, vT)
        e('s_endpgm')

RS = 4672
HS = 4160
HB0 = 16*RS
def conv(E):
    e = E.e
    ts = TS()
    ts.stamp(E)
    sCT, sCh, sHB, sIt, sIdx = 10, 11, 6, 9, 5
    e(f's_cmp_eq_u32 s{sIdx}, 5')
    e('s_cbranch_scc1 Lhelper')
    e(f's_lshl_b32 s{sCT}, s{sFS}, 2')
    e(f's_add_u32 s{sCT}, s{sCT}, s{sIdx}')
    sMode, sLoc, sHsel = 12, 13, 14
    e(f's_mov_b32 s{sMode}, 0')
    e(f's_mov_b32 s{sHsel}, 0')
    e(f's_lshl_b32 s{sLoc}, s{sWave}, 1')
    e(f's_cmp_lt_u32 s{sIdx}, 4')
    e('s_cbranch_scc1 Lconv_go')
    e(f's_lshr_b32 s{sCT}, s{sFS}, 1')
    e(f's_add_u32 s{sCT}, s{sCT}, 32')
    e(f's_mov_b32 s{sMode}, 1')
    e(f's_and_b32 s{sHsel}, s{sFS}, 1')
    e(f's_lshl_b32 s{sLoc}, s{sHsel}, 3')
    e(f's_add_u32 s{sLoc}, s{sLoc}, s{sWave}')
    e('Lconv_go:')
    if Opt.kvpf:
        e(f's_cmp_lg_u32 s{sMode}, 0')
        e('s_cbranch_scc1 Lnokvpf')
        e(f's_cmp_lt_u32 s{sWave}, 4')
        e(f's_cselect_b32 s{srdK}, s{sK}, s{sV}')
        e(f's_cselect_b32 s{srdK+1}, s{sK+1}, s{sV+1}')
        e(f's_and_b32 s{srdK+1}, s{srdK+1}, 0xffff')
        e(f's_mov_b32 s{srdK+2}, {S*D*2}')
        e(f's_mov_b32 s{srdK+3}, 0x20000')
        e(f's_and_b32 s{sT0}, s{sWave}, 3')
        e(f's_lshl_b32 s{sT1}, s{sIdx}, 2')
        e(f's_add_u32 s{sT0}, s{sT0}, s{sT1}')
        e(f's_mul_i32 s{sT0}, s{sT0}, {64*1152}')
        e(f's_lshl_b32 s{sT1}, s{sFS}, 7')
        e(f's_add_u32 s{sT0}, s{sT0}, s{sT1}')
        e(f'v_mul_u32_u24 v2, 1152, v{vLane}')
        e(f'buffer_load_dword v15, v2, {sr(srdK)}, s{sT0} offen')
        e(f's_add_u32 s{sT0}, s{sT0}, {1024*1152}')
        e(f'buffer_load_dword v15, v2, {sr(srdK)}, s{sT0} offen')
        e('Lnokvpf:')
    vZ = 140
    for i in range(4): e(f'v_mov_b32 v{vZ+i}, 0')
    e(f's_mul_i32 s{sHB}, s{sWave}, {2*HS}')
    e(f's_add_u32 s{sHB}, s{sHB}, {HB0}')
    e('v_lshrrev_b32 v12, 5, v0')
    e(f'v_mul_u32_u24 v12, {RS}, v12')
    e('v_and_b32 v13, 31, v0')
    e('v_lshl_add_u32 v12, v13, 4, v12')
    E.lg(f'ds_write_b128 v12, {vr(vZ)} offset:4096')
    e(f'v_and_b32 v12, 1, v{vLane}')
    e(f'v_lshlrev_b32 v12, 4, v12')
    e(f'v_add_u32 v12, s{sHB}, v12')
    E.lg(f'ds_write_b128 v12, {vr(vZ)}')
    E.lg(f'ds_write_b128 v12, {vr(vZ)} offset:{HS}')
    vCn = 240
    e(f'v_mov_b32 v{vCn}, {LDS_BYTES-64}')
    E.lg(f'ds_write_b64 v{vCn}, {vr(vZ,2)}')
    srd(E, srdK, sK, S*D*2)
    srd(E, srdV, sV, S*D*2)
    vRg, vHf, b0, b1, b2 = 2, 3, 4, 5, 6
    e(f's_add_u32 s{sT0}, s{sWave}, s{sCT}')
    e(f's_and_b32 s{sT0}, s{sT0}, 3')
    e(f's_and_b32 s{sT1}, s{sWave}, 4')
    e(f's_or_b32 s{sT0}, s{sT0}, s{sT1}')
    e(f's_lshl_b32 s{sT0}, s{sT0}, 5')
    e(f'v_lshrrev_b32 v{vRg}, 1, v{vLane}')
    e(f'v_add_u32 v{vRg}, s{sT0}, v{vRg}')
    e(f'v_and_b32 v{vHf}, 1, v0')
    e(f'v_mul_u32_u24 v{b1}, {8*1152}, v{vRg}')
    e(f'v_lshl_add_u32 v{b1}, v{vHf}, 4, v{b1}')
    e(f's_lshl_b32 s{sT0}, s{sCT}, 5')
    e(f'v_add_u32 v{b1}, s{sT0}, v{b1}')
    e(f'v_subrev_u32 v{b0}, 3456, v{b1}')
    e(f'v_add_u32 v{b2}, 4608, v{b1}')
    KR, VR, SKR, SKF = 16, 60, 92, 108
    E.all_lg()
    if Opt.kvpf:
        e('s_waitcnt vmcnt(1)')
    e('s_barrier')
    if Opt.kvpf:
        e(f's_cmp_lt_u32 s{sWave}, 4')
        e('s_cbranch_scc1 Lkvpf_w')
        e('s_waitcnt vmcnt(0)')
        e('Lkvpf_w:')
    ts.stamp(E)
    kl, vl = [], []
    for j in range(3, 11):
        bb, off = (b1, (j-3)*1152) if j < 7 else (b2, (j-7)*1152)
        kl.append(E.vm(f'buffer_load_dwordx4 {vr(KR+4*j)}, v{bb}, {sr(srdK)}, 0 offen offset:{off}'))
    for j in range(8):
        bb, off = (b1, j*1152) if j < 4 else (b2, (j-4)*1152)
        vl.append(E.vm(f'buffer_load_dwordx4 {vr(VR+4*j)}, v{bb}, {sr(srdV)}, 0 offen offset:{off}'))
    e('s_mov_b32 exec_lo, 0x00030003')
    e('s_mov_b32 exec_hi, 0x00030003')
    for j in range(3):
        kl.append(E.vm(f'buffer_load_dwordx4 {vr(KR+4*j)}, v{b0}, {sr(srdK)}, 0 offen offset:{j*1152}'))
    e('s_mov_b64 exec, -1')
    srd(E, srdSHK, sSHK, D*4*2)
    e(f's_lshl_b32 s{sT0}, s{sCT}, 7')
    e(f'v_lshlrev_b32 v7, 6, v{vHf}')
    skl = [E.vm(f'buffer_load_dwordx4 {vr(SKR+4*i)}, v7, {sr(srdSHK)}, s{sT0} offen offset:{16*i}') for i in range(4)]
    srd(E, srdSSMK, sSSMK, D*S*2)
    srd(E, srdSSMD, sSSMD, D*2)
    srd(E, srdWS, sWS, WS_BYTES)
    e(f's_lshl_b32 s{sCh}, s{sCT}, 4')
    e(f's_add_u32 s{sCh}, s{sCh}, s{sLoc}')
    vL16 = 8
    vH0, vDv, vDraw = 9, 10, 11
    e(f'v_lshlrev_b32 v{vL16}, 4, v{vLane}')
    def hload(np_):
        e(f's_lshl_b32 s{sT0}, s{sCh}, 12')
        e(f's_add_u32 m0, s{sHB}, 32')
        e(f's_add_u32 s{sT1}, s{sT0}, 2')
        for i in range(np_):
            E.vm(f'buffer_load_dwordx4 v{vL16}, {sr(srdSSMK)}, s{sT0} offen offset:{1024*i} lds')
        e(f's_add_u32 m0, s{sHB}, {HS+32}')
        e('s_nop 0')
        for i in range(np_):
            E.vm(f'buffer_load_dwordx4 v{vL16}, {sr(srdSSMK)}, s{sT1} offen offset:{1024*i} lds')
        E.vm(f'buffer_load_ushort v{vH0}, v{vZ}, {sr(srdSSMK)}, s{sT0} offen')
    hload(4)
    e(f's_lshl_b32 s{sT0}, s{sCh}, 1')
    E.vm(f'buffer_load_ushort v{vDraw}, v{vZ}, {sr(srdSSMD)}, s{sT0} offen')
    e(f's_sub_u32 s{sT1}, 1, s{sMode}')
    e(f's_lshl_b32 s{sT1}, s{sT1}, 1')
    e(f's_add_u32 s{sT0}, s{sT0}, s{sT1}')
    E.vm(f'buffer_load_ushort v{vDv}, v{vZ}, {sr(srdSSMD)}, s{sT0} offen')
    vFo_, vFa_ = 241, 242
    e(f'v_mul_u32_u24 v{vFa_}, {18*128}, v{vLane}')
    e(f's_lshr_b32 s{sT0}, s{sCT}, 1')
    e(f's_lshl_b32 s{sT0}, s{sT0}, 7')
    e(f's_and_b32 s{sT1}, s{sCT}, 1')
    e(f's_lshl_b32 s{sT1}, s{sT1}, 1')
    e(f's_add_u32 s{sT1}, s{sT1}, s{sHsel}')
    e(f's_lshl_b32 s{sT1}, s{sT1}, 2')
    e(f's_add_u32 s{sT0}, s{sT0}, s{sT1}')
    e(f's_add_u32 s{sT0}, s{sT0}, {WS_FL + 64}')
    e(f'v_add_u32 v{vFa_}, s{sT0}, v{vFa_}')
    e(f's_mov_b64 exec, {(1 << NMT) - 1}')
    E.vm(f'buffer_load_dword v{vFo_}, v{vFa_}, {sr(srdWS)}, 0 offen{SC}')
    e('s_mov_b64 exec, -1')
    e(f's_lshl_b32 s{sT0}, s{sCh}, 12')
    e(f's_add_u32 s{sT0}, s{sT0}, 4096')
    e(f'v_and_b32 v12, 31, v{vLane}')
    e('v_lshlrev_b32 v12, 7, v12')
    E.vm(f'buffer_load_dword v15, v12, {sr(srdSSMK)}, s{sT0} offen')
    vKW = 14
    e(f'v_mul_u32_u24 v{vKW}, {8*RS}, v{vHf}')
    e(f'v_lshlrev_b32 v12, 4, v{vRg}')
    e(f'v_sub_u32 v{vKW}, v{vKW}, v12')
    e(f'v_add_u32 v{vKW}, 4080, v{vKW}')
    E.need(*(kl + vl + skl))
    ts.stamp(E)
    for j in range(3):
        for m in range(4):
            e(f'v_mov_b32_dpp v{KR+4*j+m}, v{KR+4*(j+8)+m} row_shr:2 row_mask:0xf bank_mask:0xf')
    for i in range(16):
        e(f'v_lshlrev_b32 v{SKF+2*i}, 16, v{SKR+i}')
        e(f'v_and_b32 v{SKF+2*i+1}, 0xffff0000, v{SKR+i}')
    KF, AC, PK = 144, 156, 164
    for ch in range(8):
        m, hi = divmod(ch, 2)
        def unp(d, s_):
            e(f'v_and_b32 v{d}, 0xffff0000, v{s_}' if hi else f'v_lshlrev_b32 v{d}, 16, v{s_}')
        for j in range(11): unp(KF+j, KR+4*j+m)
        for s_ in range(8): e(f'v_mul_f32 v{AC+s_}, v{KF+s_}, v{SKF+4*ch+3}')
        for tap in (2, 1, 0):
            for s_ in range(8): e(f'v_fmac_f32 v{AC+s_}, v{KF+s_+3-tap}, v{SKF+4*ch+tap}')
        for s_ in range(8): unp(KF+s_, VR+4*s_+m)
        for s_ in range(8): e(f'v_mul_f32 v{AC+s_}, v{AC+s_}, v{KF+s_}')
        pk = PK + 4*(ch & 1)
        for mm in range(4): e(f'v_cvt_pk_bf16_f32 v{pk+mm}, v{AC+7-2*mm}, v{AC+6-2*mm}')
        E.lg(f'ds_write_b128 v{vKW}, {vr(pk)} offset:{ch*RS}')
    vA = [2, 3, 4, 5]; vB, vE = 6, 7
    e(f'v_and_b32 v12, 15, v{vLane}')
    e(f'v_lshrrev_b32 v13, 4, v{vLane}')
    e(f'v_and_b32 v14, 1, v12')
    e(f'v_add_u32 v{vA[0]}, v12, v14')
    e(f'v_lshl_add_u32 v{vA[0]}, v13, 3, v{vA[0]}')
    e(f'v_lshlrev_b32 v{vA[0]}, 1, v{vA[0]}')
    e(f'v_xor_b32 v14, 1, v14')
    e(f'v_mul_u32_u24 v14, {HS}, v14')
    e(f'v_add3_u32 v{vA[0]}, v{vA[0]}, v14, s{sHB}')
    for i in range(1, 4): e(f'v_add_u32 v{vA[i]}, {1024*i}, v{vA[0]}')
    e(f's_mul_i32 s{sT0}, s{sLoc}, {RS}')
    e(f'v_lshlrev_b32 v14, 5, v12')
    e(f'v_lshlrev_b32 v{vB}, 4, v13')
    e(f'v_sub_u32 v{vB}, v{vB}, v14')
    e(f'v_add_u32 v{vB}, 480, v{vB}')
    e(f'v_add_u32 v{vB}, s{sT0}, v{vB}')
    e(f'v_lshl_add_u32 v14, v13, 3, v14')
    e(f'v_sub_u32 v{vE}, {504+RS}, v14')
    e(f's_mul_i32 s{sT1}, s{sMode}, {RS}')
    e(f's_sub_u32 s{sT0}, s{sT0}, s{sT1}')
    e(f'v_add_u32 v{vE}, s{sT0}, v{vE}')
    e(f'v_mov_b32 v12, s{sHB}')
    e(f's_and_b32 s{sT0}, s{sWave}, 4')
    e(f'v_add_u32 v13, s{sT0}, v{vCn}')
    e('v_mov_b32 v14, 1')
    E.all_lg()
    e('s_mov_b64 exec, 1')
    e('ds_add_u32 v13, v14')
    e('s_mov_b64 exec, -1')
    ts.stamp(E)
    def cpoll(name, off):
        e(f'L{name}:')
        e(f'ds_read_b32 v14, v{vCn} offset:{off}')
        e('s_waitcnt lgkmcnt(0)')
        e(f'v_readfirstlane_b32 s{sT0}, v14')
        e(f's_cmp_ge_u32 s{sT0}, 4')
        e(f's_cbranch_scc1 L{name}_ok')
        e('s_sleep 2')
        e(f's_branch L{name}')
        e(f'L{name}_ok:')
    cpoll('cpoll0', 0)
    AF, BF, ACC, SAV = 16, 80, 176, 208
    def cpass(name, us, nE, refill):
        e(f's_mov_b32 s{sIt}, s{sMode}')
        e(f'L{name}:')
        e('s_waitcnt vmcnt(0) lgkmcnt(0)')
        E.reset()
        ts.stamp2(E, sIt)
        if name == 'cp1' and Opt.w2pf:
            e(f's_cmp_lg_u32 s{sIt}, 0')
            e('s_cbranch_scc1 Lnow2pf')
            srd(E, srdK, sW2, D*F*2)
            e(f's_mul_i32 s{sT0}, s{sFS}, 663552')
            e(f's_mul_i32 s{sT1}, s{sIdx}, {54*128}')
            e(f's_add_u32 s{sT0}, s{sT0}, s{sT1}')
            e(f's_mul_i32 s{sT1}, s{sWave}, {216*128}')
            e(f's_add_u32 s{sT0}, s{sT0}, s{sT1}')
            e(f'v_lshlrev_b32 v13, 7, v{vLane}')
            e('s_mov_b32 exec_hi, 0x003fffff')
            for i in range(3):
                e(f'buffer_load_dword v15, v13, {sr(srdK)}, s{sT0} offen')
                if i < 2: e(f's_add_u32 s{sT0}, s{sT0}, {1728*128}')
            e('s_mov_b32 exec_hi, -1')
            e('Lnow2pf:')
        w0 = E.lg(f'ds_write_b16 v12, v{vH0} offset:{HS+30}')
        E.need(w0)
        aid, bid = {}, {}
        def aread(v, ee, h):
            r = AF + 32*(v % 2) + 4*ee + 2*h
            o = (512*(ee & 1) + 64*(7-v) + 8*h) // 4
            aid.setdefault((v, ee), []).append(E.lg(f'ds_read2_b32 {vr(r,2)}, v{vA[ee >> 1]} offset0:{o} offset1:{o+1}'))
        def bread(v, u):
            bid[(v, u)] = E.lg(f'ds_read_b128 {vr(BF + 16*(v % 2) + 4*(u & 3))}, v{vB} offset:{512*(7-u) + 64*(7-v)}')
        def reads(v):
            L = [lambda: bread(v, us[0])]
            for ee in range(nE):
                L += [lambda ee=ee: aread(v, ee, 0), lambda ee=ee: aread(v, ee, 1)]
            L += [(lambda u=u: bread(v, u)) for u in us[1:]]
            return L
        for f in reads(0): f()
        nm = sum(8-u for u in us)
        for v in range(8):
            fill = reads(v+1) if v < 7 else []
            nf = len(fill); cnt = 0; done = 0
            for u in us:
                for w in range(u, 8):
                    E.need(*(aid[(v, w-u)] + [bid[(v, u)]]))
                    c = '0' if (v == 0 and u == 0) else vr(ACC+4*w)
                    e(f'v_mfma_f32_16x16x32_bf16 {vr(ACC+4*w)}, {vr(AF + 32*(v % 2) + 4*(w-u))}, {vr(BF + 16*(v % 2) + 4*(u & 3))}, {c}')
                    cnt += 1
                    while fill and done < cnt * nf / max(nm - 2, 1):
                        fill.pop(0)(); done += 1
                    if v == 7 and u == us[1] and w == u:
                        e(f's_cmp_lg_u32 s{sIt}, 0')
                        e(f's_cbranch_scc1 L{name}_nr')
                        refill()
                        e(f'L{name}_nr:')
            assert not fill
    def refill1():
        e(f's_add_u32 s{sCh}, s{sCh}, 1')
        hload(4)
    cpass('cp1', [0, 1, 2, 3], 8, refill1)
    e(f's_cmp_lg_u32 s{sIt}, 0')
    e('s_cbranch_scc1 Lcp1_done')
    e('s_nop 7')
    for r in range(32): e(f'v_mov_b32 v{SAV+r}, v{ACC+r}')
    e(f'v_add_u32 v{vB}, {RS}, v{vB}')
    e(f's_mov_b32 s{sIt}, 1')
    e('s_branch Lcp1')
    e('Lcp1_done:')
    e(f'v_lshlrev_b32 v{vDv}, 16, v{vDv}')
    cpoll('cpoll1', 4)
    def refill2():
        e(f's_sub_u32 s{sCh}, s{sCh}, 1')
        hload(2)
    cpass('cp2', [4, 5, 6, 7], 4, refill2)
    KVR = 112
    kr = [E.lg(f'ds_read_b64 {vr(KVR+2*w,2)}, v{vE} offset:{512*(7-w)}') for w in range(8)]
    for w in range(8):
        E.need(kr[w])
        a = ACC + 4*w; t = 128 + 4*(w & 1)
        e(f'v_lshlrev_b32 v{t+3}, 16, v{KVR+2*w}')
        e(f'v_and_b32 v{t+2}, 0xffff0000, v{KVR+2*w}')
        e(f'v_lshlrev_b32 v{t+1}, 16, v{KVR+2*w+1}')
        e(f'v_and_b32 v{t}, 0xffff0000, v{KVR+2*w+1}')
        for r in range(4): e(f'v_fmac_f32 v{a+r}, v{t+r}, v{vDv}')
        e(f'v_cvt_pk_bf16_f32 v{KVR+2*w}, v{a+3}, v{a+2}')
        e(f'v_cvt_pk_bf16_f32 v{KVR+2*w+1}, v{a+1}, v{a}')
        E.lg(f'ds_write_b64 v{vE}, {vr(KVR+2*w,2)} offset:{512*(7-w)}')
    e(f's_cmp_lg_u32 s{sIt}, 0')
    e('s_cbranch_scc1 Lcp2_done')
    for r in range(32): e(f'v_mov_b32 v{ACC+r}, v{SAV+r}')
    e(f'v_subrev_u32 v{vB}, {RS}, v{vB}')
    e(f'v_subrev_u32 v{vE}, {RS}, v{vE}')
    e(f'v_lshlrev_b32 v{vDv}, 16, v{vDraw}')
    e(f's_mov_b32 s{sIt}, 1')
    e('s_branch Lcp2')
    e('Lcp2_done:')
    e('s_waitcnt vmcnt(0) lgkmcnt(0)')
    E.reset()
    ts.stamp(E)
    e('s_barrier')
    e(f'v_lshrrev_b32 v2, 5, v{vLane}')
    e(f'v_lshrrev_b32 v3, 2, v{vLane}')
    e('v_and_b32 v3, 3, v3')
    e('v_lshl_add_u32 v3, v2, 3, v3')
    e(f'v_mul_u32_u24 v3, {RS}, v3')
    e(f'v_and_b32 v4, 16, v{vLane}')
    e('v_lshl_add_u32 v3, v4, 1, v3')
    e(f'v_and_b32 v5, 3, v{vLane}')
    e('v_lshl_add_u32 v3, v5, 3, v3')
    e(f's_lshl_b32 s{sT0}, s{sWave}, 9')
    e(f'v_add_u32 v3, s{sT0}, v3')
    e(f'v_and_b32 v5, 31, v{vLane}')
    e(f's_lshl_b32 s{sT0}, s{sWave}, 8')
    e(f'v_add_u32 v5, s{sT0}, v5')
    e(f'v_sub_u32 v5, {2047-224}, v5')
    e('v_lshlrev_b32 v5, 5, v5')
    e('v_lshl_add_u32 v5, v2, 4, v5')
    e(f's_lshl_b32 s{sT0}, s{sCT}, 16')
    e(f's_add_u32 s{sT0}, s{sT0}, {WS_Y}')
    e(f's_add_u32 s{sT1}, s{sT0}, 4096')
    rd = []
    for blk in range(8):
        r = 16 + 4*blk
        i0 = E.lg(f'ds_read_b64_tr_b16 {vr(r,2)}, v3 offset:{64*blk}')
        i1 = E.lg(f'ds_read_b64_tr_b16 {vr(r+2,2)}, v3 offset:{64*blk + 4*RS}')
        rd.append([i0, i1])
    E.all_lg()
    e(f's_cmp_eq_u32 s{sMode}, 0')
    e('s_cbranch_scc1 Lconv_st')
    e(f's_sub_u32 exec_lo, s{sHsel}, 1')
    e(f's_sub_u32 exec_hi, 0, s{sHsel}')
    e('Lconv_st:')
    for blk in range(8):
        o = (7-blk)*1024
        so = sT0 if o < 4096 else sT1
        E.vm(f'buffer_store_dwordx4 {vr(16+4*blk)}, v5, {sr(srdWS)}, s{so} offen offset:{o % 4096}{SC}')
    e('s_mov_b64 exec, -1')
    E.all_vm()
    e('s_barrier')
    e(f's_cmp_lg_u32 s{sWave}, 0')
    e('s_cbranch_scc1 Lconv_end')
    e(f'v_add_u32 v{vFo_}, 1, v{vFo_}')
    e(f's_mov_b64 exec, {(1 << NMT) - 1}')
    e(f'buffer_store_dword v{vFo_}, v{vFa_}, {sr(srdWS)}, 0 offen{SC}')
    e('s_mov_b64 exec, -1')
    e('Lconv_end:')
    if Opt.ts:
        ts.stamp(E)
        ts.flush(E, 60)
    e('s_endpgm')
    e('Lhelper:')
    srd(E, srdW1, sW1, D*F*2)
    e(f's_mul_i32 s{sT0}, s{sFS}, 1152')
    e(f's_add_u32 s{sT0}, s{sT0}, 512')
    for i in range(6):
        e(f'v_add_u32 v2, {512*i}, v0')
        e('v_mul_u32_u24 v3, 13108, v2')
        e('v_lshrrev_b32 v3, 16, v3')
        e('v_mul_u32_u24 v4, 5, v3')
        e('v_sub_u32 v4, v2, v4')
        e('v_mul_u32_u24 v3, 9216, v3')
        e('v_lshl_add_u32 v3, v4, 7, v3')
        e(f'buffer_load_dword v{8+i}, v3, {sr(srdW1)}, s{sT0} offen')
    e('s_waitcnt vmcnt(0)')
    e('s_endpgm')

def k1(E):
    e = E.e
    e('.p2align 8')
    e(f'.type {KNAME},@function')
    e(f'{KNAME}:')
    e(f's_cmp_ge_u32 s2, {NWG}')
    e('s_cbranch_scc1 Lk1_exit')
    TS().rt0(E)
    e('s_load_dwordx16 s[16:31], s[0:1], 0')
    e('s_load_dwordx8 s[32:39], s[0:1], 64')
    e('s_load_dwordx2 s[40:41], s[0:1], 96')
    e(f'v_and_b32 v{vLane}, 63, v0')
    e('v_lshrrev_b32 v2, 6, v0')
    e(f's_and_b32 s{sFS}, s2, 7')
    e(f'v_readfirstlane_b32 s{sWave}, v2')
    e(f's_lshr_b32 s{sMT}, s2, 3')
    e(f's_cmp_lt_u32 s{sMT}, {IDX_MLP0}')
    e('s_waitcnt lgkmcnt(0)')
    e('s_cbranch_scc1 Lconv')
    if Opt.nomlp: e('s_endpgm')
    ts = TS()
    ts.stamp(E)
    P = mlp_prologue(E, ts)
    pre_ids = []
    mlp_ln(E, P, ts, lambda: pre_ids.extend(mlp_prefill(E)))
    st = E.state(); tsn = ts.n
    e(f's_cmp_ge_u32 s{sWave}, 4')
    e('s_cbranch_scc1 LmlpB')
    mlp_main(E, 'A', P, ts, pre_ids)
    e('LmlpB:')
    E.set_state(st); ts.n = tsn
    mlp_main(E, 'B', P, ts, pre_ids)
    mlp_tail(E, ts)
    e('Lmlp_end:')
    e('Lconv:')
    E.reset()
    conv(E)
    e('Lk1_exit:')
    e('s_endpgm')

def desc(name, vg, sg):
    return f'''.p2align 6
.amdhsa_kernel {name}
  .amdhsa_next_free_vgpr {vg}
  .amdhsa_next_free_sgpr {sg}
  .amdhsa_accum_offset {vg}
  .amdhsa_group_segment_fixed_size 0
  .amdhsa_kernarg_size 104
  .amdhsa_user_sgpr_count 2
  .amdhsa_user_sgpr_kernarg_segment_ptr 1
  .amdhsa_system_sgpr_workgroup_id_x 1
.end_amdhsa_kernel
'''

def build():
    E = Em()
    e = E.e
    head = HDR + f'; @launch grid=({NWG},1,1) block=(512,1,1) lds={LDS_BYTES}\n'
    head += f'.amdgcn_target "amdgcn-amd-amdhsa--gfx950"\n.text\n.globl {KNAME}\n'
    k1(E)
    tail = '.section .rodata,"a"\n' + desc(KNAME, 256, 102)
    return head + E.text() + tail

if __name__ == '__main__':
    out = sys.argv[1] if len(sys.argv) > 1 else 'cdna_kernels/' + NAME + '.s'
    for a in sys.argv[2:]:
        k, v = a.split('=', 1)
        cur = getattr(Opt, k)
        setattr(Opt, k, type(cur)(int(v)) if isinstance(cur, (bool, int)) else v)
    t = build()
    open(out, 'w').write(t)
    print(out, len(t), 'bytes', t.count('\n'), 'lines')
```

```python
import sys
from em import Em, vr, sr

NAME = 'parallel_sum__ssm_conv_h3__dense_activation_mish__prompt'
HDR = open('cdna_kernels/' + NAME + '.s.ref').read().split('; Override launch')[0]

S, D, F = 2048, 576, 4608
NMT = 26
N_MLP = NMT * 8
N_CONV = 36
NWG = 256
IDX_MLP0 = 6
PSTRIDE = 130 * 18432
WS_P = 0
WS_Y = 20 << 20
WS_ST = 24 << 20
WS_TS = 28 << 20
WS_FL = 26 << 20
KNAME = NAME + '_kernel'
WS_BYTES = 32 << 20
LDS_BYTES = 163840
XA_BYTES = 92160
RING_A, RING_B = 9, 8
LOG2E = 0x3fb8aa3b
RSQRT2 = 0x3f3504f3

class Opt:
    ts = False
    dma_delay = 3
    code_pf = True
    w2pf = True
    lnts = False
    early_steps = 6
    kvpf = True
    nomlp = False
    dbg = 0

sQ, sK, sV, sSHK, sSSMK, sSSMD, sW1 = 16, 18, 20, 22, 24, 26, 30
sB1, sW2, sOUT, sDBG, sWS = 32, 34, 36, 38, 40
srdX, srdW1, srdW2, srdB1, srdWS = 44, 48, 52, 56, 60
srdK, srdV, srdSHK, srdSSMK, srdSSMD = 44, 48, 52, 56, 64
sWave, sFS, sMT, sRing, sT0, sT1, sC = 3, 4, 5, 6, 7, 8, 9
sTS = 68
sHF, sHL, sPF, sPL, sU1, sR1, sU2, sR2, sHas2, sFlF, sFlL, sFlO = 18, 19, 20, 21, 22, 23, 24, 25, 26, 27, 28, 29
sME, sML = 64, 66
SC = ' sc1'
vLane = 1

def srd(E, d, p, nbytes):
    E.e(f's_mov_b32 s{d}, s{p}')
    E.e(f's_and_b32 s{d+1}, s{p+1}, 0xffff')
    E.e(f's_mov_b32 s{d+2}, {nbytes}')
    E.e(f's_mov_b32 s{d+3}, 0x20000')

class TS:
    def __init__(self): self.n = 0
    def stamp(self, E):
        if Opt.ts:
            assert self.n < 14
            E.e(f's_memtime s[{sTS+2*self.n}:{sTS+2*self.n+1}]')
            self.n += 1
    def stamp2(self, E, sIt):
        if Opt.ts:
            TS.uid = getattr(TS, 'uid', 0) + 1
            u = TS.uid
            E.e(f's_cmp_lg_u32 s{sIt}, 0')
            E.e(f's_cbranch_scc1 Lts{u}a')
            self.stamp(E)
            E.e(f's_branch Lts{u}b')
            E.e(f'Lts{u}a:')
            self.stamp(E)
            E.e(f'Lts{u}b:')
    def rt0(self, E):
        if Opt.ts: E.e(f's_memrealtime s[{sTS+28}:{sTS+29}]')
    def flush(self, E, vtmp):
        if not Opt.ts: return
        E.e(f's_memrealtime s[{sTS+30}:{sTS+31}]')
        E.e('s_waitcnt lgkmcnt(0)')
        E.e(f's_lshl_b32 s{sT0}, s2, 3')
        E.e(f's_add_u32 s{sT0}, s{sT0}, s{sWave}')
        E.e(f's_lshl_b32 s{sT0}, s{sT0}, 6')
        E.e(f's_add_u32 s{sT0}, s{sT0}, {WS_TS}')
        E.e(f'v_mov_b32 v{vtmp}, 0')
        for i in list(range(self.n)) + [14, 15]:
            E.e(f'v_writelane_b32 v{vtmp}, s{sTS+2*i}, {i}')
        E.e(f'v_lshlrev_b32 v{vtmp+1}, 2, v{vLane}')
        E.e('s_mov_b64 exec, 0xffff')
        E.e(f'buffer_store_dword v{vtmp}, v{vtmp+1}, {sr(srdWS)}, s{sT0} offen')
        if Opt.dbg:
            TS.uid = getattr(TS, 'uid', 0) + 1
            u = TS.uid
            srd(E, 44, sDBG, 256)
            E.e('s_mov_b64 exec, 1')
            E.e(f's_not_b32 s{sT1}, s{sTS+28}')
            E.e(f'v_mov_b32 v{vtmp+2}, s{sT1}')
            E.e(f'v_mov_b32 v{vtmp+3}, s{sTS+30}')
            E.e(f'buffer_atomic_umax v{vtmp+2}, v{vtmp+1}, s[44:47], 0 offen offset:56')
            E.e(f'buffer_atomic_umax v{vtmp+3}, v{vtmp+1}, s[44:47], 0 offen offset:60')
            E.e(f's_cmp_lg_u32 s2, {Opt.dbg}')
            E.e(f's_cbranch_scc1 Ldbg{u}')
            E.e(f's_cmp_lg_u32 s{sWave}, 5')
            E.e(f's_cbranch_scc1 Ldbg{u}')
            E.e('s_mov_b64 exec, 0x3fff')
            E.e(f'v_readlane_b32 s{sT1}, v{vtmp}, 0')
            E.e('s_nop 1')
            E.e(f'v_subrev_u32 v{vtmp}, s{sT1}, v{vtmp}')
            E.e(f'buffer_store_dword v{vtmp}, v{vtmp+1}, s[44:47], 0 offen')
            E.e(f'Ldbg{u}:')

vX0, vX1, vWt0, vWt1, vWo = 2, 3, 4, 5, 6
vD1, vD1o, vD2, vD2o = 7, 8, 9, 10
vAW, vAWo, vP, vPo = 11, 12, 13, 14
vDum = 15
vT = 16
vXF = 24
vWF = 64
vA1 = 84
vA2 = 124
vAo = 164
vO2 = 184
vOo = 224
vBraw = 244
vXg0, vXg1 = 254, 255

vFlOld = 186
def flag_poll_addr(E, v):
    e = E.e
    e(f's_mul_i32 s{sT0}, s{sMT}, {18*128}')
    e(f's_add_u32 s{sT0}, s{sT0}, {WS_FL}')
    e(f's_lshl_b32 s{sT1}, s{sU1}, 7')
    e(f's_add_u32 s{sT1}, s{sT1}, s{sT0}')
    e(f'v_lshl_add_u32 v{v}, v{vLane}, 2, s{sT1}')
    e(f's_sub_u32 s{sT1}, s{sU2}, s{sU1}')
    e(f's_sub_u32 s{sT1}, s{sT1}, 1')
    e(f's_lshl_b32 s{sT1}, s{sT1}, 7')
    e('s_mov_b32 exec_lo, 0')
    e(f'v_add_u32 v{v}, s{sT1}, v{v}')
    e('s_mov_b32 exec_lo, -1')
def flag_addrs(E, rF=None, rL=None, rO=None):
    e = E.e
    rF, rL, rO = rF or sFlF, rL or sFlL, rO or sFlO
    e(f's_mul_i32 s{sT0}, s{sMT}, {18*128}')
    e(f's_lshl_b32 s{sT1}, s{sFS}, 2')
    e(f's_add_u32 s{sT0}, s{sT0}, s{sT1}')
    e(f's_add_u32 s{sT0}, s{sT0}, {WS_FL}')
    e(f's_lshl_b32 s{sT1}, s{sWave}, 7')
    e(f's_add_u32 s{sT1}, s{sT1}, s{sT0}')
    e(f's_lshl_b32 s{rF}, s{sHF}, 1')
    e(f's_add_u32 s{rF}, s{rF}, s{sT1}')
    e(f's_lshl_b32 s{rL}, s{sHL}, 1')
    e(f's_add_u32 s{rL}, s{rL}, s{sT1}')
    e(f's_and_b32 s{rO}, s{sWave}, 2')
    e(f's_lshl_b32 s{rO}, s{rO}, 6')
    e(f's_add_u32 s{rO}, s{rO}, s{sT0}')
    e(f's_and_b32 s{sT1}, s{sWave}, 1')
    e(f's_lshl_b32 s{sT1}, s{sT1}, 5')
    e(f's_add_u32 s{rO}, s{rO}, s{sT1}')
    e(f's_add_u32 s{rO}, s{rO}, {16*128}')

def mlp_prologue(E, ts):
    e = E.e
    e(f's_sub_u32 s{sMT}, s{sMT}, {IDX_MLP0}')
    srd(E, srdX, sQ, S*D*2)
    vR, vCc, vOff, vSl = 16, 17, 18, 19
    e(f'v_mul_u32_u24 v{vR}, 43, v{vLane}')
    e(f'v_lshrrev_b32 v{vR}, 8, v{vR}')
    e(f'v_mul_u32_u24 v{vCc}, 6, v{vR}')
    e(f'v_sub_u32 v{vCc}, v{vLane}, v{vCc}')
    e(f's_mul_i32 s{sT0}, s{sWave}, 10')
    e(f'v_add_u32 v{vSl}, s{sT0}, v{vR}')
    e(f's_mul_i32 s{sT1}, s{sMT}, 80')
    e(f'v_add_u32 v{vOff}, s{sT1}, v{vSl}')
    vGrow = 20
    e(f'v_mov_b32 v{vGrow}, v{vOff}')
    e(f'v_mul_u32_u24 v{vOff}, 1152, v{vOff}')
    e(f'v_lshl_add_u32 v{vOff}, v{vCc}, 4, v{vOff}')
    XR = 24
    xl = []
    for i in range(12):
        xl.append(E.vm(f'buffer_load_dwordx4 {vr(XR+4*i)}, v{vOff}, {sr(srdX)}, 0 offen offset:{96*i}'))
    srd(E, srdW1, sW1, D*F*2)
    srd(E, srdW2, sW2, D*F*2)
    srd(E, srdB1, sB1, F*2)
    srd(E, srdWS, sWS, WS_BYTES)
    e(f's_and_b32 s{sT0}, s{sFS}, 1')
    e(f's_lshl_b32 s{sHL}, s{sT0}, 9')
    e(f's_xor_b32 s{sHF}, s{sHL}, 512')
    e(f's_lshl_b32 s{sPF}, s{sHF}, 4')
    e(f's_lshl_b32 s{sPL}, s{sHL}, 4')
    e(f's_lshl_b32 s{sU1}, s{sFS}, 1')
    e(f's_cmp_ge_u32 s{sWave}, 5')
    e(f's_cselect_b32 s{sT0}, 5, 0')
    e(f's_addc_u32 s{sU1}, s{sU1}, 0')
    e(f's_sub_u32 s{sR1}, s{sWave}, s{sT0}')
    e(f's_mov_b32 s{sHas2}, 1')
    e(f's_lshl_b32 s{sU2}, s{sFS}, 1')
    e(f's_add_u32 s{sU2}, s{sU2}, 1')
    e(f's_add_u32 s{sR2}, s{sWave}, 3')
    e(f's_cmp_lt_u32 s{sWave}, 2')
    e('s_cbranch_scc1 Lslot_done')
    e(f's_cmp_ge_u32 s{sFS}, 5')
    e(f's_cselect_b32 s{sT0}, 5, 0')
    e(f's_cselect_b32 s{sU2}, 17, 16')
    e(f's_sub_u32 s{sR2}, s{sFS}, s{sT0}')
    e(f's_cmp_eq_u32 s{sWave}, 2')
    e('s_cbranch_scc1 Lslot_done')
    e(f's_mov_b32 s{sU2}, 17')
    e(f's_add_u32 s{sR2}, s{sFS}, 3')
    e(f's_lshl_b32 s{sT0}, s{sWave}, 3')
    e(f's_add_u32 s{sT0}, s{sT0}, s{sFS}')
    e(f's_cmp_lt_u32 s{sT0}, 26')
    e('s_cbranch_scc1 Lslot_done')
    e(f's_mov_b32 s{sHas2}, 0')
    e(f's_mov_b32 s{sU2}, s{sU1}')
    e('Lslot_done:')
    flag_poll_addr(E, 21)
    fl0 = E.vm(f'buffer_load_dword v0, v21, {sr(srdWS)}, 0 offen{SC}')
    flag_addrs(E)
    e(f'v_mov_b32 v22, s{sFlF}')
    e(f'v_writelane_b32 v22, s{sFlL}, 1')
    e(f'v_writelane_b32 v22, s{sFlO}, 2')
    fl1 = E.vm(f'buffer_load_dword v{vFlOld}, v22, {sr(srdWS)}, 0 offen{SC}')
    a, b, c = 21, 22, 23
    e(f'v_cmp_gt_u32 vcc, 12, v{vLane}')
    e(f's_mul_i32 s{sT0}, s{sWave}, {12*26}')
    e(f's_mul_i32 s{sT1}, s{sMT}, 12')
    e(f's_add_u32 s{sT0}, s{sT0}, s{sT1}')
    e(f'v_add_u32 v{a}, s{sT0}, v{vLane}')
    e(f'v_lshrrev_b32 v{b}, 2, v{a}')
    e(f'v_and_b32 v{c}, 3, v{a}')
    e(f'v_mul_u32_u24 v{b}, 9216, v{b}')
    e(f'v_lshl_add_u32 v{b}, v{c}, 7, v{b}')
    e(f'v_cndmask_b32 v{b}, -1, v{b}, vcc')
    e(f's_mul_i32 s{sT0}, s{sFS}, 1152')
    E.vm(f'buffer_load_dword v{vDum}, v{b}, {sr(srdW1)}, s{sT0} offen')
    if Opt.code_pf:
        e(f's_getpc_b64 s[10:11]')
        e('Lpc:')
        e(f's_mul_i32 s{sT0}, s{sMT}, 8*((Lmlp_end-Lpc+26*1024-1)/(26*1024))')
        e(f's_mul_i32 s{sT1}, s{sWave}, (Lmlp_end-Lpc+26*1024-1)/(26*1024)')
        e(f's_add_u32 s{sT0}, s{sT0}, s{sT1}')
        e(f'v_add_u32 v{a}, s{sT0}, v{vLane}')
        e(f'v_lshlrev_b32 v{a}, 7, v{a}')
        e(f'v_min_u32 v{a}, Lmlp_end-Lpc-4, v{a}')
        e(f'v_cmp_gt_u32 vcc, (Lmlp_end-Lpc+26*1024-1)/(26*1024), v{vLane}')
        e('s_and_saveexec_b64 s[12:13], vcc')
        E.vm(f'global_load_dword v{vDum}, v{a}, s[10:11]')
        e('s_mov_b64 exec, s[12:13]')
    q = 21
    e(f'v_lshrrev_b32 v{q}, 4, v{vLane}')
    e(f's_mul_i32 s{sT0}, s{sFS}, 1152')
    e(f's_lshl_b32 s{sT1}, s{sWave}, 6')
    e(f's_add_u32 s{sT0}, s{sT0}, s{sT1}')
    e(f'v_lshl_add_u32 v{b}, v{q}, 3, s{sT0}')
    bl = []
    for i, off in enumerate((0, 32, 512, 544)):
        bl.append(E.vm(f'buffer_load_dwordx2 {vr(vBraw+2*i,2)}, v{b}, {sr(srdB1)}, 0 offen offset:{off}'))
    e(f's_lshl_b32 s{sT1}, s{sWave}, 5')
    e(f's_sub_u32 s{sT1}, 1024, s{sT1}')
    bl.append(E.vm(f'buffer_load_dwordx2 {vr(vBraw+8,2)}, v{b}, {sr(srdB1)}, s{sT1} offen'))
    e(f'v_lshlrev_b32 v{vX0}, 4, v{vLane}')
    e(f'v_add_u32 v{vX1}, 46080, v{vX0}')
    e(f's_mul_i32 s{sRing}, s{sWave}, {RING_A*1024}')
    e(f's_mul_i32 s{sT1}, s{sWave}, {RING_B*1024}')
    e(f's_add_u32 s{sT1}, s{sT1}, {4*(RING_A-RING_B)*1024}')
    e(f's_cmp_ge_u32 s{sWave}, 4')
    e(f's_cselect_b32 s{sRing}, s{sT1}, s{sRing}')
    e(f's_add_u32 s{sRing}, s{sRing}, {XA_BYTES}')
    e(f'v_lshrrev_b32 v{a}, 2, v{vLane}')
    e(f'v_and_b32 v{c}, 3, v{vLane}')
    e(f'v_lshlrev_b32 v{vWt0}, 6, v{a}')
    e(f'v_lshl_add_u32 v{vWt0}, v{c}, 3, v{vWt0}')
    e(f'v_and_b32 v{b}, 16, v{vLane}')
    e(f'v_lshl_add_u32 v{vWt0}, v{b}, 1, v{vWt0}')
    e(f'v_add_u32 v{vWt0}, s{sRing}, v{vWt0}')
    e(f'v_xor_b32 v{vWt1}, 32, v{vWt0}')
    e(f'v_lshlrev_b32 v{vWo}, 3, v{vLane}')
    e(f'v_add_u32 v{vWo}, s{sRing}, v{vWo}')
    e(f'v_lshrrev_b32 v{b}, 3, v{vLane}')
    e(f'v_and_b32 v{b}, 2, v{b}')
    e(f'v_xor_b32 v{c}, v{c}, v{b}')
    e(f'v_mul_u32_u24 v{vD2}, 1152, v{a}')
    e(f'v_lshl_add_u32 v{vD2}, v{c}, 4, v{vD2}')
    e(f's_mul_i32 s{sT0}, s{sFS}, 663552')
    e(f's_lshl_b32 s{sT1}, s{sWave}, 6')
    e(f's_add_u32 s{sT0}, s{sT0}, s{sT1}')
    e(f'v_add_u32 v{vD2}, s{sT0}, v{vD2}')
    e(f'v_lshrrev_b32 v{b}, 4, v{vLane}')
    e(f'v_lshl_add_u32 v{b}, v{b}, 2, v{a}')
    e(f'v_mul_u32_u24 v{vD1}, 9216, v{b}')
    e(f'v_lshl_add_u32 v{vD1}, v{c}, 4, v{vD1}')
    e(f's_mul_i32 s{sT0}, s{sFS}, 1152')
    e(f's_add_u32 s{sT0}, s{sT0}, s{sT1}')
    e(f'v_add_u32 v{vD1}, s{sT0}, v{vD1}')
    e(f'v_lshrrev_b32 v{a}, 1, v{vLane}')
    e(f'v_and_b32 v{c}, 1, v{vLane}')
    e(f'v_mul_u32_u24 v{vD2o}, 1152, v{a}')
    e(f'v_lshl_add_u32 v{vD2o}, v{c}, 4, v{vD2o}')
    e(f's_lshl_b32 s{sT1}, s{sWave}, 5')
    e(f's_add_u32 s{sT1}, s{sT1}, 1024')
    e(f's_mul_i32 s{sT0}, s{sFS}, 663552')
    e(f's_add_u32 s{sT0}, s{sT0}, s{sT1}')
    e(f'v_add_u32 v{vD2o}, s{sT0}, v{vD2o}')
    e(f'v_and_b32 v{b}, 12, v{a}')
    e(f'v_lshlrev_b32 v{b}, 1, v{b}')
    e(f'v_and_b32 v{vD1o}, 3, v{a}')
    e(f'v_add_u32 v{b}, v{b}, v{vD1o}')
    e(f'v_lshrrev_b32 v{vD1o}, 4, v{a}')
    e(f'v_lshl_add_u32 v{b}, v{vD1o}, 2, v{b}')
    e(f'v_mul_u32_u24 v{vD1o}, 9216, v{b}')
    e(f'v_lshl_add_u32 v{vD1o}, v{c}, 4, v{vD1o}')
    e(f's_mul_i32 s{sT0}, s{sFS}, 1152')
    e(f's_add_u32 s{sT0}, s{sT0}, s{sT1}')
    e(f'v_add_u32 v{vD1o}, s{sT0}, v{vD1o}')
    e(f's_mul_i32 s{sT0}, s{sWave}, 5120')
    e(f'v_add_u32 v{vAW}, s{sT0}, v{vX0}')
    e(f's_lshr_b32 s{sT0}, s{sWave}, 1')
    e(f's_mul_i32 s{sT0}, s{sT0}, 5120')
    e(f's_and_b32 s{sT1}, s{sWave}, 1')
    e(f's_lshl_b32 s{sT1}, s{sT1}, 3')
    e(f's_add_u32 s{sT0}, s{sT0}, s{sT1}')
    e(f's_add_u32 s{sT0}, s{sT0}, {16*5120}')
    e(f'v_add_u32 v{vAWo}, s{sT0}, v{vX0}')
    e(f's_mul_i32 s{sT0}, s{sFS}, {PSTRIDE}')
    e(f's_mul_i32 s10, s{sMT}, {5*18432}')
    e(f's_add_u32 s{sT0}, s{sT0}, s10')
    e(f's_lshl_b32 s10, s{sWave}, 10')
    e(f's_add_u32 s10, s10, s{sT0}')
    e(f'v_add_u32 v{vP}, s10, v{vX0}')
    e(f's_lshr_b32 s10, s{sWave}, 1')
    e(f's_lshl_b32 s10, s10, 10')
    e(f's_add_u32 s10, s10, s{sT1}')
    e(f's_add_u32 s10, s10, s{sT0}')
    e(f's_add_u32 s10, s10, {16*1024}')
    e(f'v_add_u32 v{vPo}, s10, v{vX0}')
    e(f's_mov_b32 s{sC}, {RSQRT2}')
    vSw, vSr, vFe, vFo = 72, 73, 74, 75
    e(f's_lshl_b32 s{sT0}, s{sWave}, 8')
    e(f's_add_u32 s{sT0}, s{sT0}, {LDS_BYTES-2048}')
    e(f'v_lshl_add_u32 v{vSw}, v{vLane}, 2, s{sT0}')
    e(f'v_mul_u32_u24 v{vSr}, 24, v{vR}')
    e(f'v_add_u32 v{vSr}, s{sT0}, v{vSr}')
    e(f'v_lshrrev_b32 v{a}, 4, v{vSl}')
    e(f'v_and_b32 v{b}, 15, v{vSl}')
    e(f'v_lshlrev_b32 v{a}, 10, v{a}')
    e(f'v_lshl_add_u32 v{a}, v{b}, 6, v{a}')
    e(f'v_lshrrev_b32 v{vFo}, 2, v{b}')
    e(f'v_and_b32 v76, 2, v{vFo}')
    for (dst, add) in ((vFe, 0), (vFo, 6)):
        e(f'v_add_u32 v{b}, {add}, v{vCc}')
        e(f'v_lshrrev_b32 v{c}, 2, v{b}')
        e(f'v_mul_u32_u24 v{c}, 5120, v{c}')
        e(f'v_and_b32 v{b}, 3, v{b}')
        e(f'v_xor_b32 v{b}, v{b}, v76')
        e(f'v_lshl_add_u32 v{c}, v{b}, 4, v{c}')
        e(f'v_add_u32 v{dst}, v{a}, v{c}')
    e(f'v_and_b32 v{a}, 15, v{vLane}')
    e(f'v_lshrrev_b32 v{b}, 4, v{vLane}')
    e(f'v_lshrrev_b32 v{c}, 2, v{a}')
    e(f'v_and_b32 v{c}, 2, v{c}')
    e(f'v_xor_b32 v{b}, v{b}, v{c}')
    e(f'v_lshlrev_b32 v{vXg0}, 6, v{a}')
    e(f'v_lshl_add_u32 v{vXg0}, v{b}, 4, v{vXg0}')
    e(f'v_add_u32 v{vXg1}, 46080, v{vXg0}')
    return dict(fl=[fl0, fl1], vR=vR, XR=XR, xl=xl, bl=bl, vSw=vSw, vSr=vSr, vFe=vFe, vFo=vFo, vGrow=vGrow, vCc=vCc)

def rowsum(E, P, vs, tmp):
    E.lg(f'ds_write_b32 v{P["vSw"]}, v{vs}')
    E.all_lg()
    for i in range(3):
        E.lg(f'ds_read_b64 {vr(tmp+2*i,2)}, v{P["vSr"]} offset:{8*i}')
    E.all_lg()
    E.e(f'v_add_f32 v{tmp}, v{tmp}, v{tmp+1}')
    E.e(f'v_add_f32 v{tmp+2}, v{tmp+2}, v{tmp+3}')
    E.e(f'v_add_f32 v{tmp+4}, v{tmp+4}, v{tmp+5}')
    E.e(f'v_add_f32 v{tmp}, v{tmp}, v{tmp+2}')
    E.e(f'v_add_f32 v{vs}, v{tmp}, v{tmp+4}')

def bf16r(E, v):
    E.e(f'v_cvt_pk_bf16_f32 v{v}, v{v}, v{v}')
    E.e(f'v_and_b32 v{v}, 0xffff0000, v{v}')

def mlp_ln(E, P, ts, prefill):
    e = E.e
    XR = P['XR']
    XT = 84
    ac = [76, 77, 78, 79]
    tmp = 180
    for i in range(12):
        E.need(P['xl'][i])
        for j in range(4):
            r = XR + 4*i + j
            t = XT + 2*(4*i + j)
            e(f'v_lshlrev_b32 v{t}, 16, v{r}')
            e(f'v_and_b32 v{t+1}, 0xffff0000, v{r}')
            if i == 0 and j < 2:
                e(f'v_mov_b32 v{ac[2*j]}, v{t}')
                e(f'v_mov_b32 v{ac[2*j+1]}, v{t+1}')
            else:
                k = 2*(j & 1)
                e(f'v_pk_add_f32 {vr(ac[k],2)}, {vr(ac[k],2)}, {vr(t,2)}')
    ts.stamp(E)
    prefill()
    if Opt.lnts: ts.stamp(E)
    e(f'v_pk_add_f32 {vr(ac[0],2)}, {vr(ac[0],2)}, {vr(ac[2],2)}')
    e(f'v_add_f32 v{ac[0]}, v{ac[0]}, v{ac[1]}')
    rowsum(E, P, ac[0], tmp)
    if Opt.lnts: ts.stamp(E)
    vMu, vM = 80, 82
    e(f'v_mul_f32 v{vMu}, 0x3ae38e39, v{ac[0]}')
    e(f'v_mov_b32 v{vM}, v{vMu}')
    bf16r(E, vM)
    e(f'v_sub_f32 v{vMu}, v{vMu}, v{vM}')
    for i in range(48):
        t = XT + 2*i
        e(f'v_pk_add_f32 {vr(t,2)}, {vr(t,2)}, {vr(vM,2)} op_sel_hi:[1,0] neg_lo:[0,1] neg_hi:[0,1]')
        k = 2*(i & 1)
        if i < 2:
            e(f'v_pk_mul_f32 {vr(ac[k],2)}, {vr(t,2)}, {vr(t,2)}')
        else:
            e(f'v_pk_fma_f32 {vr(ac[k],2)}, {vr(t,2)}, {vr(t,2)}, {vr(ac[k],2)}')
    e(f'v_pk_add_f32 {vr(ac[0],2)}, {vr(ac[0],2)}, {vr(ac[2],2)}')
    e(f'v_add_f32 v{ac[0]}, v{ac[0]}, v{ac[1]}')
    rowsum(E, P, ac[0], tmp)
    if Opt.lnts: ts.stamp(E)
    vV = ac[0]
    e(f'v_mul_f32 v{vV}, 0x3ae38e39, v{vV}')
    e(f'v_fma_f32 v{vV}, -v{vMu}, v{vMu}, v{vV}')
    e(f'v_max_f32 v{vV}, 0, v{vV}')
    bf16r(E, vV)
    e(f'v_add_f32 v{vV}, 0x3727c5ac, v{vV}')
    bf16r(E, vV)
    e(f'v_sqrt_f32 v{vV}, v{vV}')
    e('s_nop 0')
    bf16r(E, vV)
    e(f'v_rcp_f32 v{vM+1}, v{vV}')
    e('s_mov_b32 exec_hi, 0x0fffffff')
    e(f'v_cmp_eq_u32 vcc, 0, v{P["vCc"]}')
    e(f's_lshl_b32 s{sT0}, s{sWave}, 8')
    e(f's_add_u32 s{sT0}, s{sT0}, {LDS_BYTES-2048}')
    e(f'v_lshl_add_u32 v{tmp}, v{P["vR"]}, 3, s{sT0}')
    e('s_and_saveexec_b64 s[12:13], vcc')
    E.lg(f'ds_write_b64 v{tmp}, {vr(vM,2)}')
    e('s_mov_b64 exec, s[12:13]')
    for i in range(12):
        for j in range(4):
            t = XT + 2*(4*i + j)
            e(f'v_pk_mul_f32 {vr(t,2)}, {vr(t,2)}, {vr(vM,2)} op_sel:[0,1] op_sel_hi:[1,1]')
        for j in range(4):
            t = XT + 2*(4*i + j)
            e(f'v_cvt_pk_bf16_f32 v{XR+4*i+j}, v{t}, v{t+1}')
        base = P['vFe'] if i % 2 == 0 else P['vFo']
        m = i // 2
        if m == 4 :
            e(f'v_add_u32 v{base}, {4*15360}, v{base}')
        off = (m % 4) * 15360
        E.lg(f'ds_write_b128 v{base}, {vr(XR+4*i)} offset:{off}')
    e('s_mov_b32 exec_hi, -1')
    if Opt.lnts: ts.stamp(E)

NPRE = min(RING_A, RING_B)
def mlp_prefill(E):
    ids = []
    for n in range(NPRE):
        ks, b = divmod(n, 2)
        E.e(f's_add_u32 m0, s{sRing}, {n*1024}')
        E.e(f's_mov_b32 s{sT0}, {ks*32*9216 + b*4*9216}')
        ids.append(E.vm(f'buffer_load_dwordx4 v{vD1}, {sr(srdW1)}, s{sT0} offen lds'))
    return ids

def mlp_main(E, cls, P, ts, pre_ids):
    e = E.e
    isA = cls == 'A'
    NR = RING_A if isA else RING_B
    groups = []
    items = []
    steps = []
    def add_item(vaddr, srdn, soff):
        items.append(dict(v=vaddr, srd=srdn, soff=soff, reads=[], id=None)); return len(items) - 1
    def add_unit(stage, st, accb, vaddr, srdn, soff_a, soff_b, first):
        ia = add_item(vaddr, srdn, soff_a); ib = add_item(vaddr, srdn, soff_b)
        for t in range(2):
            groups.append(dict(acc=accb + 20*t, step=st, rd=[(ia, [vWt0, vWt1][t], 0), (ib, [vWt0, vWt1][t], 0)], first=first, stage=stage))
    def add_odd(stage, st, accb, vaddr, srdn, soff, first):
        io = add_item(vaddr, srdn, soff)
        groups.append(dict(acc=accb, step=st, rd=[(io, vWo, 0), (io, vWo, 512)], first=first, stage=stage))
    for stage in 'AB':
        for ks in range(18):
            st = len(steps); g0 = len(groups)
            base = ks*32*9216 + (512 if stage == 'B' else 0)
            add_unit(stage, st, vA1 if stage == 'A' else vA2, vD1, srdW1, base, base + 4*9216, 'bias' if ks == 0 else None)
            if stage == 'B' and isA:
                add_odd(stage, st, vAo, vD1o, srdW1, ks*32*9216, 'bias' if ks == 0 else None)
            steps.append(dict(x=ks, g0=g0, ng=len(groups)-g0, stage=stage, k=ks))
    def g2step(kp, doF, doL):
        st = len(steps); g0 = len(groups)
        base = kp*32*1152
        f = 'zero' if kp == 0 else None
        if doF: add_unit('C', st, vA1, vD2, srdW2, (sHF, base), (sHF, base + 16*1152), f)
        if doL: add_unit('C', st, vO2, vD2, srdW2, (sHL, base), (sHL, base + 16*1152), f)
        if doF and isA:
            add_odd('C', st, vOo, vD2o, srdW2, base, f)
        steps.append(dict(x=kp, g0=g0, ng=len(groups)-g0, stage='C', k=kp))
    for kp in range(8): g2step(kp, True, True)
    for kp in range(8, 18): g2step(kp, True, False)
    for kp in range(8, 18): g2step(kp, False, True)
    NG = len(groups); NM = 5*NG
    gaps = [[] for _ in range(NM)]
    pre = [[] for _ in range(NM)]
    def stepm(s): return 5*steps[s]['g0']

    def do_dma(n):
        it = items[n]
        if n >= NR:
            E.need(*items[n-NR]['reads'])
        e(f's_add_u32 m0, s{sRing}, {(n % NR)*1024}')
        if isinstance(it['soff'], tuple):
            e(f's_add_u32 s{sT0}, s{it["soff"][0]}, {it["soff"][1]}')
        else:
            e(f's_mov_b32 s{sT0}, {it["soff"]}')
        it['id'] = E.vm(f'buffer_load_dwordx4 v{it["v"]}, {sr(it["srd"])}, s{sT0} offen lds')
    def do_wread(g, h):
        (n, vb, xo) = groups[g]['rd'][h]
        E.need(items[n]['id'])
        r = vWF + 4*(g % 5) + 2*h
        i = E.lg(f'ds_read_b64_tr_b16 {vr(r,2)}, v{vb} offset:{(n % NR)*1024 + xo}')
        items[n]['reads'].append(i)
        groups[g].setdefault('w', []).append(i)
    def do_xread(s, rt):
        idx = steps[s]['x']*5 + rt
        b0, b1 = (vX0, vX1) if steps[s]['stage'] == 'C' else (vXg0, vXg1)
        vb, off = (b0, idx*1024) if idx < 45 else (b1, (idx-45)*1024)
        r = vXF + 20*(s % 2) + 4*rt
        i = E.lg(f'ds_read_b128 {vr(r)}, v{vb} offset:{off}')
        steps[s].setdefault('xr', {})[rt] = i

    wpos = {}
    for g in range(5, NG):
        m = 5*(g-5) + 4
        for h in range(2):
            mm = min(m + h, NM-1)
            gaps[mm].append(lambda g=g, h=h: do_wread(g, h))
            wpos[(g, h)] = mm
    last_read = {}
    for g in range(NG):
        for h in range(2):
            n = groups[g]['rd'][h][0]
            last_read[n] = max(last_read.get(n, -1), wpos.get((g, h), -1))
    prev = -1
    for n in range(NR, len(items)):
        m = max(last_read[n-NR] + Opt.dma_delay, prev + 1, 0)
        first_use = min(wpos.get((g, h), -1) for g in range(NG) for h in range(2) if groups[g]['rd'][h][0] == n)
        assert m < first_use, (n, m, first_use)
        gaps[m].append(lambda n=n: do_dma(n))
        prev = m
    sB = 18; sC_ = 36
    wr1, wr2, wro = [], [], []
    def bar(needs):
        def f():
            ids = needs()
            if ids: E.need(*ids)
            ts.stamp(E)
            e('s_barrier')
        return f
    pre[stepm(sB+8)].append(bar(lambda: []))
    pre[stepm(sB+17)].append(bar(lambda: wr1 + list(steps[sB+17]['xr'].values())))
    pre[stepm(sC_+7)].append(bar(lambda: wr2))
    pre[stepm(sC_+15)].append(bar(lambda: wro))
    for s in range(len(steps)-1):
        m0 = stepm(s); n = 5*steps[s]['ng']
        span = max(5, int(n*0.7))
        for rt in range(5):
            gaps[m0 + (rt*span)//5 + (1 if n > 10 else 0)].append(lambda s=s, rt=rt: do_xread(s+1, rt))
    def mish_ops(src, dst, tb):
        ops = []
        T = [tb+i for i in range(4)]
        for i in range(4): ops.append((4, f'v_mul_f32 v{T[i]}, {hex(LOG2E)}, v{src+i}'))
        for i in range(4): ops.append((8, f'v_exp_f32 v{T[i]}, v{T[i]}'))
        for i in range(4): ops.append((4, f'v_fma_f32 v{T[i]}, v{T[i]}, s{sC}, s{sC}'))
        for i in range(4): ops.append((4, f'v_fma_f32 v{T[i]}, v{T[i]}, v{T[i]}, 0.5'))
        for i in range(4): ops.append((8, f'v_rcp_f32 v{T[i]}, v{T[i]}'))
        for i in range(4): ops.append((4, f'v_fma_f32 v{T[i]}, -v{src+i}, v{T[i]}, v{src+i}'))
        ops.append((4, f'v_cvt_pk_bf16_f32 v{dst}, v{T[0]}, v{T[1]}'))
        ops.append((4, f'v_cvt_pk_bf16_f32 v{dst+1}, v{T[2]}, v{T[3]}'))
        return ops
    def spread(ops, m_lo, m_hi, wr_lo):
        tot = sum(c for c, _ in ops)
        acc = 0
        for c, o in ops:
            m = m_lo + int((acc / tot) * (m_hi - m_lo))
            acc += c
            if callable(o):
                gaps[max(m, wr_lo)].append(o)
                if m < wr_lo: wr_lo += 1
            else:
                gaps[m].append(lambda o=o: e(o))
    def unit_ops(accb, woff, wl):
        ops = []
        for rt in range(5):
            a0, a1 = accb + 4*rt, accb + 20 + 4*rt
            ops += mish_ops(a0, a0, vT)
            ops += mish_ops(a1, a0+2, vT+4)
            ops.append((1, lambda a0=a0, rt=rt: wl.append(E.lg(f'ds_write_b128 v{vAW}, {vr(a0)} offset:{woff + rt*1024}'))))
        return ops
    spread(unit_ops(vA1, 0, wr1), stepm(sB)+3, stepm(sB+17)-3, stepm(sB+8))
    spread(unit_ops(vA2, 40960, wr2), stepm(sC_)+3, stepm(sC_+7)-3, 0)
    if isA:
        ops = []
        for rt in range(5):
            a0 = vAo + 4*rt
            ops += mish_ops(a0, a0, vT + 4*(rt & 1))
            ops.append((1, lambda a0=a0, rt=rt: wro.append(E.lg(f'ds_write_b64 v{vAWo}, {vr(a0,2)} offset:{rt*1024}'))))
        spread(ops, stepm(sC_+7), stepm(sC_+15)-3, 0)

    sD2 = sC_ + 18
    early = []
    def pack_store(ab, sbase, rt, lst):
        a0, a1 = ab + 4*rt, ab + 20 + 4*rt
        def st():
            e(f's_add_u32 s{sT0}, s{sbase}, {rt*18432}')
            lst.append(E.vm(f'buffer_store_dwordx4 {vr(a0)}, v{vP}, {sr(srdWS)}, s{sT0} offen{SC}'))
        return [(4, f'v_cvt_pk_bf16_f32 v{a0}, v{a0}, v{a0+1}'), (4, f'v_cvt_pk_bf16_f32 v{a0+1}, v{a0+2}, v{a0+3}'),
                (4, f'v_cvt_pk_bf16_f32 v{a0+2}, v{a1}, v{a1+1}'), (4, f'v_cvt_pk_bf16_f32 v{a0+3}, v{a1+2}, v{a1+3}'), (4, st)]
    def pack_store_odd(rt, lst):
        a0 = vOo + 4*rt
        def st():
            e(f's_mov_b32 s{sT0}, {rt*18432}')
            lst.append(E.vm(f'buffer_store_dwordx2 {vr(a0,2)}, v{vPo}, {sr(srdWS)}, s{sT0} offen{SC}'))
        return [(4, f'v_cvt_pk_bf16_f32 v{a0}, v{a0}, v{a0+1}'), (4, f'v_cvt_pk_bf16_f32 v{a0+1}, v{a0+2}, v{a0+3}'), (4, st)]
    ops = []
    for rt in range(5):
        ops += pack_store(vA1, sPF, rt, early)
        if isA: ops += pack_store_odd(rt, early)
    spread(ops, stepm(sD2)+5, stepm(sD2 + Opt.early_steps), 0)

    def body():
        for n in range(NPRE): items[n]['id'] = pre_ids[n]
        for n in range(NPRE, NR): do_dma(n)
        E.need(*P['bl'])
        tl = [vA1, vA1+20, vA2, vA2+20] + ([vAo] if isA else [])
        for i, ab in enumerate(tl):
            r = vBraw + 2*i; d = ab + 16
            e(f'v_lshlrev_b32 v{d}, 16, v{r}')
            e(f'v_and_b32 v{d+1}, 0xffff0000, v{r}')
            e(f'v_lshlrev_b32 v{d+2}, 16, v{r+1}')
            e(f'v_and_b32 v{d+3}, 0xffff0000, v{r+1}')
        E.need(*P['fl'])
        for i, r in enumerate((sFlF, sFlL, sFlO)):
            e(f'v_readlane_b32 s{r}, v{vFlOld}, {i}')
        for g in range(5):
            for h in range(2): do_wread(g, h)
        E.all_lg()
        ts.stamp(E)
        e('s_barrier')
        for rt in range(5): do_xread(0, rt)
        for m in range(NM):
            g, rt = divmod(m, 5)
            G = groups[g]; s = G['step']
            for f in pre[m]: f()
            E.need(*(G['w'] + [steps[s]['xr'][rt]]))
            d = G['acc'] + 4*rt
            c = vr(d)
            if G['first'] == 'bias': c = vr(G['acc'] + 16)
            if G['first'] == 'zero': c = '0'
            e(f'v_mfma_f32_16x16x32_bf16 {vr(d)}, {vr(vWF + 4*(g % 5))}, {vr(vXF + 20*(s % 2) + 4*rt)}, {c}')
            for f in gaps[m]: f()
        ts.stamp(E)
        e('s_nop 7')
        late = []
        for rt in range(5):
            for c, o in pack_store(vO2, sPL, rt, late):
                o() if callable(o) else e(o)
        flag_addrs(E, 10, 11, 12)
        e(f'v_mov_b32 v{vT}, 0')
        def flag(val, adr):
            e(f's_add_u32 s{val}, s{val}, 1')
            e(f'v_mov_b32 v{vT+1}, s{val}')
            E.vm(f'buffer_store_dword v{vT+1}, v{vT}, {sr(srdWS)}, s{adr} offen{SC}')
        e('s_mov_b64 exec, 1')
        E.need(*early)
        flag(sFlF, 10)
        if isA: flag(sFlO, 12)
        E.need(*late)
        flag(sFlL, 11)
        e('s_mov_b64 exec, -1')
        ts.stamp(E)
        e('s_branch Ltail')
    body()

def poll(E, name, vcur, vadr, mask, first_issued):
    e = E.e
    e('s_mov_b32 s10, 0')
    if first_issued: e(f's_branch L{name}_chk')
    e(f'L{name}:')
    e(f'buffer_load_dword v{vcur}, v{vadr}, {sr(srdWS)}, 0 offen{SC}')
    e(f'L{name}_chk:')
    e('s_waitcnt vmcnt(0)')
    e(f'v_cmp_ne_u32 vcc, v{vcur}, v0')
    e(f's_and_b64 s[12:13], vcc, s[{mask}:{mask+1}]')
    e(f's_cmp_eq_u64 s[12:13], s[{mask}:{mask+1}]')
    e(f's_cbranch_scc1 L{name}_ok')
    e('s_add_u32 s10, s10, 1')
    e('s_cmp_lt_u32 s10, 0x40000')
    e(f's_cbranch_scc1 L{name}')
    e(f'L{name}_ok:')

def mlp_tail(E, ts):
    e = E.e
    e('Ltail:')
    E.reset()
    vFa, vCur = 2, 3
    flag_poll_addr(E, vFa)
    e(f'buffer_load_dword v{vCur}, v{vFa}, {sr(srdWS)}, 0 offen{SC}')
    srd(E, srdB1, sOUT, S*D*2)
    for (u, lo) in ((sU1, 0), (sU2, 1)):
        e(f's_movk_i32 s{sT0}, 0x55')
        e(f's_cmp_lt_u32 s{u}, 8')
        e(f's_cselect_b32 s{sML+lo}, s{sT0}, 0xaa')
        e(f's_xor_b32 s{sME+lo}, s{sML+lo}, 0x500ff')
        e(f's_cmp_ge_u32 s{u}, 16')
        e(f's_cselect_b32 s{sME+lo}, 0xfffff, s{sME+lo}')
        e(f's_cselect_b32 s{sML+lo}, 0, s{sML+lo}')
    e(f's_cmp_eq_u32 s{sHas2}, 0')
    e('s_cbranch_scc1 Ltail1')
    tsn = ts.n
    for ns in (2, 1):
        ts.n = tsn
        if ns == 1: e('Ltail1:')
        E.reset()
        sl = []
        e('v_and_b32 v4, 15, v1')
        e('v_lshrrev_b32 v5, 4, v1')
        e('v_and_b32 v6, 1, v5')
        e('v_lshrrev_b32 v5, 1, v5')
        e('v_lshlrev_b32 v7, 4, v1')
        for s_ in range(ns):
            u, r = (sU1, sR1) if s_ == 0 else (sU2, sR2)
            B = 24 + 96*s_
            d = dict(EP=B, LP=B+16, XR=B+32, YR=B+36, ST=B+40, SUM=B+44, T=B+52, X=B+60, Y=B+68, N=B+76, xa=B+84, ya=B+85, sa=B+86,
                     sE=30+4*s_, sL=31+4*s_, sX=32+4*s_, sY=33+4*s_)
            sl.append(d)
            e(f's_lshl_b32 s{sT0}, s{r}, 4')
            e(f'v_add_u32 v8, s{sT0}, v4')
            e('v_mul_u32_u24 v9, 205, v8')
            e('v_lshrrev_b32 v9, 11, v9')
            e('v_mul_u32_u24 v9, 176, v9')
            e('v_lshl_add_u32 v9, v8, 3, v9')
            e(f'v_add_u32 v{d["sa"]}, {LDS_BYTES-2048}, v9')
            d['st'] = E.lg(f'ds_read_b64 {vr(d["ST"],2)}, v{d["sa"]}')
            e(f's_mul_i32 s{sT0}, s{sMT}, 80')
            e(f'v_add_u32 v8, s{sT0}, v8')
            e(f'v_mul_u32_u24 v{d["xa"]}, 1152, v8')
            e(f'v_lshl_add_u32 v{d["xa"]}, v6, 5, v{d["xa"]}')
            e(f'v_lshl_add_u32 v{d["xa"]}, v5, 4, v{d["xa"]}')
            e(f'v_lshlrev_b32 v{d["ya"]}, 5, v8')
            e(f'v_lshl_add_u32 v{d["ya"]}, v5, 4, v{d["ya"]}')
            e(f'v_lshl_add_u32 v{d["ya"]}, v6, 16, v{d["ya"]}')
            e(f's_lshl_b32 s{d["sX"]}, s{u}, 6')
            e(f's_lshl_b32 s{d["sY"]}, s{u}, 17')
            e(f's_add_u32 s{d["sY"]}, s{d["sY"]}, {WS_Y}')
            e(f's_mul_i32 s{sT0}, s{sMT}, 5')
            e(f's_add_u32 s{sT0}, s{sT0}, s{r}')
            e(f's_mul_i32 s{sT0}, s{sT0}, 18432')
            e(f's_lshl_b32 s{sT1}, s{u}, 10')
            e(f's_add_u32 s{sT0}, s{sT0}, s{sT1}')
            e(f's_add_u32 s{sT1}, s{sT0}, {PSTRIDE}')
            e(f's_cmp_lt_u32 s{u}, 8')
            e(f's_cselect_b32 s{d["sE"]}, s{sT1}, s{sT0}')
            e(f's_cselect_b32 s{d["sL"]}, s{sT0}, s{sT1}')
        if ns == 1:
            e(f's_mov_b32 s{sME+1}, 0')
            e(f's_mov_b32 s{sML+1}, 0')
        poll(E, f'pe{ns}', vCur, vFa, sME, True)
        ts.stamp(E)
        def ploads(d, key, sb):
            ids = []
            for i in range(4):
                if i: e(f's_add_u32 s{d[sb]}, s{d[sb]}, {2*PSTRIDE}')
                ids.append(E.vm(f'buffer_load_dwordx4 {vr(d[key]+4*i)}, v7, {sr(srdWS)}, s{d[sb]} offen{SC}'))
            return ids
        def psum(d, key, ids, first):
            SUM, T = d['SUM'], d['T']
            for p in range(4):
                E.need(ids[p])
                dst = SUM if (first and p == 0) else T
                for j in range(4):
                    r = d[key] + 4*p + j
                    e(f'v_lshlrev_b32 v{dst+2*j}, 16, v{r}')
                    e(f'v_and_b32 v{dst+2*j+1}, 0xffff0000, v{r}')
                if dst == T:
                    for j in range(4):
                        e(f'v_pk_add_f32 {vr(SUM+2*j,2)}, {vr(SUM+2*j,2)}, {vr(T+2*j,2)}')
        for d in sl:
            d['xl'] = E.vm(f'buffer_load_dwordx4 {vr(d["XR"])}, v{d["xa"]}, {sr(srdX)}, s{d["sX"]} offen')
            d['yl'] = E.vm(f'buffer_load_dwordx4 {vr(d["YR"])}, v{d["ya"]}, {sr(srdWS)}, s{d["sY"]} offen{SC}')
            d['el'] = ploads(d, 'EP', 'sE')
        E.vm(f'buffer_load_dword v{vCur}, v{vFa}, {sr(srdWS)}, 0 offen{SC}')
        for d in sl:
            X, Y, N, T = d['X'], d['Y'], d['N'], d['T']
            E.need(d['xl'], d['yl'], d['st'])
            for j in range(4):
                e(f'v_lshlrev_b32 v{X+2*j}, 16, v{d["XR"]+j}')
                e(f'v_and_b32 v{X+2*j+1}, 0xffff0000, v{d["XR"]+j}')
                e(f'v_lshlrev_b32 v{Y+2*j}, 16, v{d["YR"]+j}')
                e(f'v_and_b32 v{Y+2*j+1}, 0xffff0000, v{d["YR"]+j}')
            def rnd(b):
                for j in range(4):
                    e(f'v_cvt_pk_bf16_f32 v{T+j}, v{b+2*j}, v{b+2*j+1}')
                for j in range(4):
                    e(f'v_lshlrev_b32 v{b+2*j}, 16, v{T+j}')
                    e(f'v_and_b32 v{b+2*j+1}, 0xffff0000, v{T+j}')
            for i in range(8): e(f'v_sub_f32 v{N+i}, v{X+i}, v{d["ST"]}')
            rnd(N)
            for i in range(8): e(f'v_mul_f32 v{N+i}, v{N+i}, v{d["ST"]+1}')
            rnd(N)
            for i in range(8): e(f'v_mul_f32 v{N+i}, v{N+i}, v{Y+i}')
            rnd(N)
            for i in range(8): e(f'v_add_f32 v{N+i}, v{N+i}, v{X+i}')
            rnd(N)
        poll(E, f'pl{ns}', vCur, vFa, sML, True)
        E.vm_done = E.vm_n - 1
        ts.stamp(E)
        for d in sl: d['ll'] = ploads(d, 'LP', 'sL')
        for d in sl: psum(d, 'EP', d['el'], True)
        for d in sl:
            psum(d, 'LP', d['ll'], False)
            SUM, T, Y, N, X = d['SUM'], d['T'], d['Y'], d['N'], d['X']
            for j in range(4):
                e(f'v_cvt_pk_bf16_f32 v{X+j}, v{SUM+2*j}, v{SUM+2*j+1}')
            e('s_nop 1')
            e(f'v_permlane16_swap_b32 v{X}, v{X+2}')
            e(f'v_permlane16_swap_b32 v{X+1}, v{X+3}')
            for j in range(4):
                e(f'v_lshlrev_b32 v{Y+2*j}, 16, v{X+j}')
                e(f'v_and_b32 v{Y+2*j+1}, 0xffff0000, v{X+j}')
            for i in range(8): e(f'v_add_f32 v{N+i}, v{N+i}, v{Y+i}')
            for j in range(4):
                e(f'v_cvt_pk_bf16_f32 v{T+j}, v{N+2*j}, v{N+2*j+1}')
            E.vm(f'buffer_store_dwordx4 {vr(T)}, v{d["xa"]}, {sr(srdB1)}, s{d["sX"]} offen')
        if Opt.ts:
            E.all_vm()
            ts.stamp(E)
            ts.flush(E, vT)
        e('s_endpgm')

RS = 4672
HS = 4160
HB0 = 16*RS
def conv(E):
    e = E.e
    ts = TS()
    ts.stamp(E)
    sCT, sCh, sHB, sIt, sIdx = 10, 11, 6, 9, 5
    e(f's_cmp_eq_u32 s{sIdx}, 5')
    e('s_cbranch_scc1 Lhelper')
    e(f's_lshl_b32 s{sCT}, s{sFS}, 2')
    e(f's_add_u32 s{sCT}, s{sCT}, s{sIdx}')
    sMode, sLoc, sHsel = 12, 13, 14
    e(f's_mov_b32 s{sMode}, 0')
    e(f's_mov_b32 s{sHsel}, 0')
    e(f's_lshl_b32 s{sLoc}, s{sWave}, 1')
    e(f's_cmp_lt_u32 s{sIdx}, 4')
    e('s_cbranch_scc1 Lconv_go')
    e(f's_lshr_b32 s{sCT}, s{sFS}, 1')
    e(f's_add_u32 s{sCT}, s{sCT}, 32')
    e(f's_mov_b32 s{sMode}, 1')
    e(f's_and_b32 s{sHsel}, s{sFS}, 1')
    e(f's_lshl_b32 s{sLoc}, s{sHsel}, 3')
    e(f's_add_u32 s{sLoc}, s{sLoc}, s{sWave}')
    e('Lconv_go:')
    if Opt.kvpf:
        e(f's_cmp_lg_u32 s{sMode}, 0')
        e('s_cbranch_scc1 Lnokvpf')
        e(f's_cmp_lt_u32 s{sWave}, 4')
        e(f's_cselect_b32 s{srdK}, s{sK}, s{sV}')
        e(f's_cselect_b32 s{srdK+1}, s{sK+1}, s{sV+1}')
        e(f's_and_b32 s{srdK+1}, s{srdK+1}, 0xffff')
        e(f's_mov_b32 s{srdK+2}, {S*D*2}')
        e(f's_mov_b32 s{srdK+3}, 0x20000')
        e(f's_and_b32 s{sT0}, s{sWave}, 3')
        e(f's_lshl_b32 s{sT1}, s{sIdx}, 2')
        e(f's_add_u32 s{sT0}, s{sT0}, s{sT1}')
        e(f's_mul_i32 s{sT0}, s{sT0}, {64*1152}')
        e(f's_lshl_b32 s{sT1}, s{sFS}, 7')
        e(f's_add_u32 s{sT0}, s{sT0}, s{sT1}')
        e(f'v_mul_u32_u24 v2, 1152, v{vLane}')
        e(f'buffer_load_dword v15, v2, {sr(srdK)}, s{sT0} offen')
        e(f's_add_u32 s{sT0}, s{sT0}, {1024*1152}')
        e(f'buffer_load_dword v15, v2, {sr(srdK)}, s{sT0} offen')
        e('Lnokvpf:')
    vZ = 140
    for i in range(4): e(f'v_mov_b32 v{vZ+i}, 0')
    e(f's_mul_i32 s{sHB}, s{sWave}, {2*HS}')
    e(f's_add_u32 s{sHB}, s{sHB}, {HB0}')
    e('v_lshrrev_b32 v12, 5, v0')
    e(f'v_mul_u32_u24 v12, {RS}, v12')
    e('v_and_b32 v13, 31, v0')
    e('v_lshl_add_u32 v12, v13, 4, v12')
    E.lg(f'ds_write_b128 v12, {vr(vZ)} offset:4096')
    e(f'v_and_b32 v12, 1, v{vLane}')
    e(f'v_lshlrev_b32 v12, 4, v12')
    e(f'v_add_u32 v12, s{sHB}, v12')
    E.lg(f'ds_write_b128 v12, {vr(vZ)}')
    E.lg(f'ds_write_b128 v12, {vr(vZ)} offset:{HS}')
    vCn = 240
    e(f'v_mov_b32 v{vCn}, {LDS_BYTES-64}')
    E.lg(f'ds_write_b64 v{vCn}, {vr(vZ,2)}')
    srd(E, srdK, sK, S*D*2)
    srd(E, srdV, sV, S*D*2)
    vRg, vHf, b0, b1, b2 = 2, 3, 4, 5, 6
    e(f's_add_u32 s{sT0}, s{sWave}, s{sCT}')
    e(f's_and_b32 s{sT0}, s{sT0}, 3')
    e(f's_and_b32 s{sT1}, s{sWave}, 4')
    e(f's_or_b32 s{sT0}, s{sT0}, s{sT1}')
    e(f's_lshl_b32 s{sT0}, s{sT0}, 5')
    e(f'v_lshrrev_b32 v{vRg}, 1, v{vLane}')
    e(f'v_add_u32 v{vRg}, s{sT0}, v{vRg}')
    e(f'v_and_b32 v{vHf}, 1, v0')
    e(f'v_mul_u32_u24 v{b1}, {8*1152}, v{vRg}')
    e(f'v_lshl_add_u32 v{b1}, v{vHf}, 4, v{b1}')
    e(f's_lshl_b32 s{sT0}, s{sCT}, 5')
    e(f'v_add_u32 v{b1}, s{sT0}, v{b1}')
    e(f'v_subrev_u32 v{b0}, 3456, v{b1}')
    e(f'v_add_u32 v{b2}, 4608, v{b1}')
    KR, VR, SKR, SKF = 16, 60, 92, 108
    E.all_lg()
    if Opt.kvpf:
        e('s_waitcnt vmcnt(1)')
    e('s_barrier')
    if Opt.kvpf:
        e(f's_cmp_lt_u32 s{sWave}, 4')
        e('s_cbranch_scc1 Lkvpf_w')
        e('s_waitcnt vmcnt(0)')
        e('Lkvpf_w:')
    ts.stamp(E)
    kl, vl = [], []
    for j in range(3, 11):
        bb, off = (b1, (j-3)*1152) if j < 7 else (b2, (j-7)*1152)
        kl.append(E.vm(f'buffer_load_dwordx4 {vr(KR+4*j)}, v{bb}, {sr(srdK)}, 0 offen offset:{off}'))
    for j in range(8):
        bb, off = (b1, j*1152) if j < 4 else (b2, (j-4)*1152)
        vl.append(E.vm(f'buffer_load_dwordx4 {vr(VR+4*j)}, v{bb}, {sr(srdV)}, 0 offen offset:{off}'))
    e('s_mov_b32 exec_lo, 0x00030003')
    e('s_mov_b32 exec_hi, 0x00030003')
    for j in range(3):
        kl.append(E.vm(f'buffer_load_dwordx4 {vr(KR+4*j)}, v{b0}, {sr(srdK)}, 0 offen offset:{j*1152}'))
    e('s_mov_b64 exec, -1')
    srd(E, srdSHK, sSHK, D*4*2)
    e(f's_lshl_b32 s{sT0}, s{sCT}, 7')
    e(f'v_lshlrev_b32 v7, 6, v{vHf}')
    skl = [E.vm(f'buffer_load_dwordx4 {vr(SKR+4*i)}, v7, {sr(srdSHK)}, s{sT0} offen offset:{16*i}') for i in range(4)]
    srd(E, srdSSMK, sSSMK, D*S*2)
    srd(E, srdSSMD, sSSMD, D*2)
    srd(E, srdWS, sWS, WS_BYTES)
    e(f's_lshl_b32 s{sCh}, s{sCT}, 4')
    e(f's_add_u32 s{sCh}, s{sCh}, s{sLoc}')
    vL16 = 8
    vH0, vDv, vDraw = 9, 10, 11
    e(f'v_lshlrev_b32 v{vL16}, 4, v{vLane}')
    def hload(np_):
        e(f's_lshl_b32 s{sT0}, s{sCh}, 12')
        e(f's_add_u32 m0, s{sHB}, 32')
        e(f's_add_u32 s{sT1}, s{sT0}, 2')
        for i in range(np_):
            E.vm(f'buffer_load_dwordx4 v{vL16}, {sr(srdSSMK)}, s{sT0} offen offset:{1024*i} lds')
        e(f's_add_u32 m0, s{sHB}, {HS+32}')
        e('s_nop 0')
        for i in range(np_):
            E.vm(f'buffer_load_dwordx4 v{vL16}, {sr(srdSSMK)}, s{sT1} offen offset:{1024*i} lds')
        E.vm(f'buffer_load_ushort v{vH0}, v{vZ}, {sr(srdSSMK)}, s{sT0} offen')
    hload(4)
    e(f's_lshl_b32 s{sT0}, s{sCh}, 1')
    E.vm(f'buffer_load_ushort v{vDraw}, v{vZ}, {sr(srdSSMD)}, s{sT0} offen')
    e(f's_sub_u32 s{sT1}, 1, s{sMode}')
    e(f's_lshl_b32 s{sT1}, s{sT1}, 1')
    e(f's_add_u32 s{sT0}, s{sT0}, s{sT1}')
    E.vm(f'buffer_load_ushort v{vDv}, v{vZ}, {sr(srdSSMD)}, s{sT0} offen')
    vFo_, vFa_ = 241, 242
    e(f'v_mul_u32_u24 v{vFa_}, {18*128}, v{vLane}')
    e(f's_lshr_b32 s{sT0}, s{sCT}, 1')
    e(f's_lshl_b32 s{sT0}, s{sT0}, 7')
    e(f's_and_b32 s{sT1}, s{sCT}, 1')
    e(f's_lshl_b32 s{sT1}, s{sT1}, 1')
    e(f's_add_u32 s{sT1}, s{sT1}, s{sHsel}')
    e(f's_lshl_b32 s{sT1}, s{sT1}, 2')
    e(f's_add_u32 s{sT0}, s{sT0}, s{sT1}')
    e(f's_add_u32 s{sT0}, s{sT0}, {WS_FL + 64}')
    e(f'v_add_u32 v{vFa_}, s{sT0}, v{vFa_}')
    e(f's_mov_b64 exec, {(1 << NMT) - 1}')
    E.vm(f'buffer_load_dword v{vFo_}, v{vFa_}, {sr(srdWS)}, 0 offen{SC}')
    e('s_mov_b64 exec, -1')
    e(f's_lshl_b32 s{sT0}, s{sCh}, 12')
    e(f's_add_u32 s{sT0}, s{sT0}, 4096')
    e(f'v_and_b32 v12, 31, v{vLane}')
    e('v_lshlrev_b32 v12, 7, v12')
    E.vm(f'buffer_load_dword v15, v12, {sr(srdSSMK)}, s{sT0} offen')
    vKW = 14
    e(f'v_mul_u32_u24 v{vKW}, {8*RS}, v{vHf}')
    e(f'v_lshlrev_b32 v12, 4, v{vRg}')
    e(f'v_sub_u32 v{vKW}, v{vKW}, v12')
    e(f'v_add_u32 v{vKW}, 4080, v{vKW}')
    E.need(*(kl + vl + skl))
    ts.stamp(E)
    for j in range(3):
        for m in range(4):
            e(f'v_mov_b32_dpp v{KR+4*j+m}, v{KR+4*(j+8)+m} row_shr:2 row_mask:0xf bank_mask:0xf')
    for i in range(16):
        e(f'v_lshlrev_b32 v{SKF+2*i}, 16, v{SKR+i}')
        e(f'v_and_b32 v{SKF+2*i+1}, 0xffff0000, v{SKR+i}')
    KF, AC, PK = 144, 156, 164
    for ch in range(8):
        m, hi = divmod(ch, 2)
        def unp(d, s_):
            e(f'v_and_b32 v{d}, 0xffff0000, v{s_}' if hi else f'v_lshlrev_b32 v{d}, 16, v{s_}')
        for j in range(11): unp(KF+j, KR+4*j+m)
        for s_ in range(8): e(f'v_mul_f32 v{AC+s_}, v{KF+s_}, v{SKF+4*ch+3}')
        for tap in (2, 1, 0):
            for s_ in range(8): e(f'v_fmac_f32 v{AC+s_}, v{KF+s_+3-tap}, v{SKF+4*ch+tap}')
        for s_ in range(8): unp(KF+s_, VR+4*s_+m)
        for s_ in range(8): e(f'v_mul_f32 v{AC+s_}, v{AC+s_}, v{KF+s_}')
        pk = PK + 4*(ch & 1)
        for mm in range(4): e(f'v_cvt_pk_bf16_f32 v{pk+mm}, v{AC+7-2*mm}, v{AC+6-2*mm}')
        E.lg(f'ds_write_b128 v{vKW}, {vr(pk)} offset:{ch*RS}')
    vA = [2, 3, 4, 5]; vB, vE = 6, 7
    e(f'v_and_b32 v12, 15, v{vLane}')
    e(f'v_lshrrev_b32 v13, 4, v{vLane}')
    e(f'v_and_b32 v14, 1, v12')
    e(f'v_add_u32 v{vA[0]}, v12, v14')
    e(f'v_lshl_add_u32 v{vA[0]}, v13, 3, v{vA[0]}')
    e(f'v_lshlrev_b32 v{vA[0]}, 1, v{vA[0]}')
    e(f'v_xor_b32 v14, 1, v14')
    e(f'v_mul_u32_u24 v14, {HS}, v14')
    e(f'v_add3_u32 v{vA[0]}, v{vA[0]}, v14, s{sHB}')
    for i in range(1, 4): e(f'v_add_u32 v{vA[i]}, {1024*i}, v{vA[0]}')
    e(f's_mul_i32 s{sT0}, s{sLoc}, {RS}')
    e(f'v_lshlrev_b32 v14, 5, v12')
    e(f'v_lshlrev_b32 v{vB}, 4, v13')
    e(f'v_sub_u32 v{vB}, v{vB}, v14')
    e(f'v_add_u32 v{vB}, 480, v{vB}')
    e(f'v_add_u32 v{vB}, s{sT0}, v{vB}')
    e(f'v_lshl_add_u32 v14, v13, 3, v14')
    e(f'v_sub_u32 v{vE}, {504+RS}, v14')
    e(f's_mul_i32 s{sT1}, s{sMode}, {RS}')
    e(f's_sub_u32 s{sT0}, s{sT0}, s{sT1}')
    e(f'v_add_u32 v{vE}, s{sT0}, v{vE}')
    e(f'v_mov_b32 v12, s{sHB}')
    e(f's_and_b32 s{sT0}, s{sWave}, 4')
    e(f'v_add_u32 v13, s{sT0}, v{vCn}')
    e('v_mov_b32 v14, 1')
    E.all_lg()
    e('s_mov_b64 exec, 1')
    e('ds_add_u32 v13, v14')
    e('s_mov_b64 exec, -1')
    ts.stamp(E)
    def cpoll(name, off):
        e(f'L{name}:')
        e(f'ds_read_b32 v14, v{vCn} offset:{off}')
        e('s_waitcnt lgkmcnt(0)')
        e(f'v_readfirstlane_b32 s{sT0}, v14')
        e(f's_cmp_ge_u32 s{sT0}, 4')
        e(f's_cbranch_scc1 L{name}_ok')
        e('s_sleep 2')
        e(f's_branch L{name}')
        e(f'L{name}_ok:')
    cpoll('cpoll0', 0)
    AF, BF, ACC, SAV = 16, 80, 176, 208
    def cpass(name, us, nE, refill):
        e(f's_mov_b32 s{sIt}, s{sMode}')
        e(f'L{name}:')
        e('s_waitcnt vmcnt(0) lgkmcnt(0)')
        E.reset()
        ts.stamp2(E, sIt)
        if name == 'cp1' and Opt.w2pf:
            e(f's_cmp_lg_u32 s{sIt}, 0')
            e('s_cbranch_scc1 Lnow2pf')
            srd(E, srdK, sW2, D*F*2)
            e(f's_mul_i32 s{sT0}, s{sFS}, 663552')
            e(f's_mul_i32 s{sT1}, s{sIdx}, {54*128}')
            e(f's_add_u32 s{sT0}, s{sT0}, s{sT1}')
            e(f's_mul_i32 s{sT1}, s{sWave}, {216*128}')
            e(f's_add_u32 s{sT0}, s{sT0}, s{sT1}')
            e(f'v_lshlrev_b32 v13, 7, v{vLane}')
            e('s_mov_b32 exec_hi, 0x003fffff')
            for i in range(3):
                e(f'buffer_load_dword v15, v13, {sr(srdK)}, s{sT0} offen')
                if i < 2: e(f's_add_u32 s{sT0}, s{sT0}, {1728*128}')
            e('s_mov_b32 exec_hi, -1')
            e('Lnow2pf:')
        w0 = E.lg(f'ds_write_b16 v12, v{vH0} offset:{HS+30}')
        E.need(w0)
        aid, bid = {}, {}
        def aread(v, ee, h):
            r = AF + 32*(v % 2) + 4*ee + 2*h
            o = (512*(ee & 1) + 64*(7-v) + 8*h) // 4
            aid.setdefault((v, ee), []).append(E.lg(f'ds_read2_b32 {vr(r,2)}, v{vA[ee >> 1]} offset0:{o} offset1:{o+1}'))
        def bread(v, u):
            bid[(v, u)] = E.lg(f'ds_read_b128 {vr(BF + 16*(v % 2) + 4*(u & 3))}, v{vB} offset:{512*(7-u) + 64*(7-v)}')
        def reads(v):
            L = [lambda: bread(v, us[0])]
            for ee in range(nE):
                L += [lambda ee=ee: aread(v, ee, 0), lambda ee=ee: aread(v, ee, 1)]
            L += [(lambda u=u: bread(v, u)) for u in us[1:]]
            return L
        for f in reads(0): f()
        nm = sum(8-u for u in us)
        for v in range(8):
            fill = reads(v+1) if v < 7 else []
            nf = len(fill); cnt = 0; done = 0
            for u in us:
                for w in range(u, 8):
                    E.need(*(aid[(v, w-u)] + [bid[(v, u)]]))
                    c = '0' if (v == 0 and u == 0) else vr(ACC+4*w)
                    e(f'v_mfma_f32_16x16x32_bf16 {vr(ACC+4*w)}, {vr(AF + 32*(v % 2) + 4*(w-u))}, {vr(BF + 16*(v % 2) + 4*(u & 3))}, {c}')
                    cnt += 1
                    while fill and done < cnt * nf / max(nm - 2, 1):
                        fill.pop(0)(); done += 1
                    if v == 7 and u == us[1] and w == u:
                        e(f's_cmp_lg_u32 s{sIt}, 0')
                        e(f's_cbranch_scc1 L{name}_nr')
                        refill()
                        e(f'L{name}_nr:')
            assert not fill
    def refill1():
        e(f's_add_u32 s{sCh}, s{sCh}, 1')
        hload(4)
    cpass('cp1', [0, 1, 2, 3], 8, refill1)
    e(f's_cmp_lg_u32 s{sIt}, 0')
    e('s_cbranch_scc1 Lcp1_done')
    e('s_nop 7')
    for r in range(32): e(f'v_mov_b32 v{SAV+r}, v{ACC+r}')
    e(f'v_add_u32 v{vB}, {RS}, v{vB}')
    e(f's_mov_b32 s{sIt}, 1')
    e('s_branch Lcp1')
    e('Lcp1_done:')
    e(f'v_lshlrev_b32 v{vDv}, 16, v{vDv}')
    cpoll('cpoll1', 4)
    def refill2():
        e(f's_sub_u32 s{sCh}, s{sCh}, 1')
        hload(2)
    cpass('cp2', [4, 5, 6, 7], 4, refill2)
    KVR = 112
    kr = [E.lg(f'ds_read_b64 {vr(KVR+2*w,2)}, v{vE} offset:{512*(7-w)}') for w in range(8)]
    for w in range(8):
        E.need(kr[w])
        a = ACC + 4*w; t = 128 + 4*(w & 1)
        e(f'v_lshlrev_b32 v{t+3}, 16, v{KVR+2*w}')
        e(f'v_and_b32 v{t+2}, 0xffff0000, v{KVR+2*w}')
        e(f'v_lshlrev_b32 v{t+1}, 16, v{KVR+2*w+1}')
        e(f'v_and_b32 v{t}, 0xffff0000, v{KVR+2*w+1}')
        for r in range(4): e(f'v_fmac_f32 v{a+r}, v{t+r}, v{vDv}')
        e(f'v_cvt_pk_bf16_f32 v{KVR+2*w}, v{a+3}, v{a+2}')
        e(f'v_cvt_pk_bf16_f32 v{KVR+2*w+1}, v{a+1}, v{a}')
        E.lg(f'ds_write_b64 v{vE}, {vr(KVR+2*w,2)} offset:{512*(7-w)}')
    e(f's_cmp_lg_u32 s{sIt}, 0')
    e('s_cbranch_scc1 Lcp2_done')
    for r in range(32): e(f'v_mov_b32 v{ACC+r}, v{SAV+r}')
    e(f'v_subrev_u32 v{vB}, {RS}, v{vB}')
    e(f'v_subrev_u32 v{vE}, {RS}, v{vE}')
    e(f'v_lshlrev_b32 v{vDv}, 16, v{vDraw}')
    e(f's_mov_b32 s{sIt}, 1')
    e('s_branch Lcp2')
    e('Lcp2_done:')
    e('s_waitcnt vmcnt(0) lgkmcnt(0)')
    E.reset()
    ts.stamp(E)
    e('s_barrier')
    e(f'v_lshrrev_b32 v2, 5, v{vLane}')
    e(f'v_lshrrev_b32 v3, 2, v{vLane}')
    e('v_and_b32 v3, 3, v3')
    e('v_lshl_add_u32 v3, v2, 3, v3')
    e(f'v_mul_u32_u24 v3, {RS}, v3')
    e(f'v_and_b32 v4, 16, v{vLane}')
    e('v_lshl_add_u32 v3, v4, 1, v3')
    e(f'v_and_b32 v5, 3, v{vLane}')
    e('v_lshl_add_u32 v3, v5, 3, v3')
    e(f's_lshl_b32 s{sT0}, s{sWave}, 9')
    e(f'v_add_u32 v3, s{sT0}, v3')
    e(f'v_and_b32 v5, 31, v{vLane}')
    e(f's_lshl_b32 s{sT0}, s{sWave}, 8')
    e(f'v_add_u32 v5, s{sT0}, v5')
    e(f'v_sub_u32 v5, {2047-224}, v5')
    e('v_lshlrev_b32 v5, 5, v5')
    e('v_lshl_add_u32 v5, v2, 4, v5')
    e(f's_lshl_b32 s{sT0}, s{sCT}, 16')
    e(f's_add_u32 s{sT0}, s{sT0}, {WS_Y}')
    e(f's_add_u32 s{sT1}, s{sT0}, 4096')
    rd = []
    for blk in range(8):
        r = 16 + 4*blk
        i0 = E.lg(f'ds_read_b64_tr_b16 {vr(r,2)}, v3 offset:{64*blk}')
        i1 = E.lg(f'ds_read_b64_tr_b16 {vr(r+2,2)}, v3 offset:{64*blk + 4*RS}')
        rd.append([i0, i1])
    E.all_lg()
    e(f's_cmp_eq_u32 s{sMode}, 0')
    e('s_cbranch_scc1 Lconv_st')
    e(f's_sub_u32 exec_lo, s{sHsel}, 1')
    e(f's_sub_u32 exec_hi, 0, s{sHsel}')
    e('Lconv_st:')
    for blk in range(8):
        o = (7-blk)*1024
        so = sT0 if o < 4096 else sT1
        E.vm(f'buffer_store_dwordx4 {vr(16+4*blk)}, v5, {sr(srdWS)}, s{so} offen offset:{o % 4096}{SC}')
    e('s_mov_b64 exec, -1')
    E.all_vm()
    e('s_barrier')
    e(f's_cmp_lg_u32 s{sWave}, 0')
    e('s_cbranch_scc1 Lconv_end')
    e(f'v_add_u32 v{vFo_}, 1, v{vFo_}')
    e(f's_mov_b64 exec, {(1 << NMT) - 1}')
    e(f'buffer_store_dword v{vFo_}, v{vFa_}, {sr(srdWS)}, 0 offen{SC}')
    e('s_mov_b64 exec, -1')
    e('Lconv_end:')
    if Opt.ts:
        ts.stamp(E)
        ts.flush(E, 60)
    e('s_endpgm')
    e('Lhelper:')
    srd(E, srdW1, sW1, D*F*2)
    e(f's_mul_i32 s{sT0}, s{sFS}, 1152')
    e(f's_add_u32 s{sT0}, s{sT0}, 512')
    for i in range(6):
        e(f'v_add_u32 v2, {512*i}, v0')
        e('v_mul_u32_u24 v3, 13108, v2')
        e('v_lshrrev_b32 v3, 16, v3')
        e('v_mul_u32_u24 v4, 5, v3')
        e('v_sub_u32 v4, v2, v4')
        e('v_mul_u32_u24 v3, 9216, v3')
        e('v_lshl_add_u32 v3, v4, 7, v3')
        e(f'buffer_load_dword v{8+i}, v3, {sr(srdW1)}, s{sT0} offen')
    e('s_waitcnt vmcnt(0)')
    e('s_endpgm')

def k1(E):
    e = E.e
    e('.p2align 8')
    e(f'.type {KNAME},@function')
    e(f'{KNAME}:')
    e(f's_cmp_ge_u32 s2, {NWG}')
    e('s_cbranch_scc1 Lk1_exit')
    TS().rt0(E)
    e('s_load_dwordx16 s[16:31], s[0:1], 0')
    e('s_load_dwordx8 s[32:39], s[0:1], 64')
    e('s_load_dwordx2 s[40:41], s[0:1], 96')
    e(f'v_and_b32 v{vLane}, 63, v0')
    e('v_lshrrev_b32 v2, 6, v0')
    e(f's_and_b32 s{sFS}, s2, 7')
    e(f'v_readfirstlane_b32 s{sWave}, v2')
    e(f's_lshr_b32 s{sMT}, s2, 3')
    e(f's_cmp_lt_u32 s{sMT}, {IDX_MLP0}')
    e('s_waitcnt lgkmcnt(0)')
    e('s_cbranch_scc1 Lconv')
    if Opt.nomlp: e('s_endpgm')
    ts = TS()
    ts.stamp(E)
    P = mlp_prologue(E, ts)
    pre_ids = []
    mlp_ln(E, P, ts, lambda: pre_ids.extend(mlp_prefill(E)))
    st = E.state(); tsn = ts.n
    e(f's_cmp_ge_u32 s{sWave}, 4')
    e('s_cbranch_scc1 LmlpB')
    mlp_main(E, 'A', P, ts, pre_ids)
    e('LmlpB:')
    E.set_state(st); ts.n = tsn
    mlp_main(E, 'B', P, ts, pre_ids)
    mlp_tail(E, ts)
    e('Lmlp_end:')
    e('Lconv:')
    E.reset()
    conv(E)
    e('Lk1_exit:')
    e('s_endpgm')

def desc(name, vg, sg):
    return f'''.p2align 6
.amdhsa_kernel {name}
  .amdhsa_next_free_vgpr {vg}
  .amdhsa_next_free_sgpr {sg}
  .amdhsa_accum_offset {vg}
  .amdhsa_group_segment_fixed_size 0
  .amdhsa_kernarg_size 104
  .amdhsa_user_sgpr_count 2
  .amdhsa_user_sgpr_kernarg_segment_ptr 1
  .amdhsa_system_sgpr_workgroup_id_x 1
.end_amdhsa_kernel
'''

def build():
    E = Em()
    e = E.e
    head = HDR + f'; @launch grid=({NWG},1,1) block=(512,1,1) lds={LDS_BYTES}\n'
    head += f'.amdgcn_target "amdgcn-amd-amdhsa--gfx950"\n.text\n.globl {KNAME}\n'
    k1(E)
    tail = '.section .rodata,"a"\n' + desc(KNAME, 256, 102)
    return head + E.text() + tail

if __name__ == '__main__':
    out = sys.argv[1] if len(sys.argv) > 1 else 'cdna_kernels/' + NAME + '.s'
    for a in sys.argv[2:]:
        k, v = a.split('=', 1)
        cur = getattr(Opt, k)
        setattr(Opt, k, type(cur)(int(v)) if isinstance(cur, (bool, int)) else v)
    t = build()
    open(out, 'w').write(t)
    print(out, len(t), 'bytes', t.count('\n'), 'lines')
```

```python
class Em:
    lgmerge = 7
    def __init__(self):
        self.lines = []
        self.reset()
    def reset(self):
        self.vm_n = 0; self.vm_done = -1
        self.lg_n = 0; self.lg_done = -1
        self.clock = None; self.lg_clk = {}
    def e(self, s):
        self.lines.append(s)
    def vm(self, s):
        self.lines.append(s); self.vm_n += 1
        return ('vm', self.vm_n - 1)
    def lg(self, s):
        self.lines.append(s); self.lg_n += 1
        self.lg_clk[self.lg_n - 1] = self.clock
        return ('lg', self.lg_n - 1)
    def need(self, *ids):
        v = max([i for (k, i) in ids if k == 'vm'], default=-1)
        l = max([i for (k, i) in ids if k == 'lg'], default=-1)
        parts = []
        if v > self.vm_done:
            n = min(self.vm_n - 1 - v, 63)
            parts.append(f'vmcnt({n})'); self.vm_done = self.vm_n - 1 - n
        if l > self.lg_done:
            if self.clock is not None:
                while l + 1 < self.lg_n and self.lg_clk.get(l + 1) is not None and self.lg_clk[l + 1] <= self.clock - self.lgmerge:
                    l += 1
            n = min(self.lg_n - 1 - l, 15)
            parts.append(f'lgkmcnt({n})'); self.lg_done = self.lg_n - 1 - n
        if parts:
            self.lines.append('s_waitcnt ' + ' '.join(parts))
    def all_lg(self):
        if self.lg_n: self.need(('lg', self.lg_n - 1))
    def all_vm(self):
        if self.vm_n: self.need(('vm', self.vm_n - 1))
    def state(self):
        return (self.vm_n, self.vm_done, self.lg_n, self.lg_done)
    def set_state(self, st):
        self.vm_n, self.vm_done, self.lg_n, self.lg_done = st
    def text(self):
        return '\n'.join(self.lines) + '\n'

def vr(b, n=4):
    return f'v[{b}:{b+n-1}]' if n > 1 else f'v{b}'
def sr(b, n=4):
    return f's[{b}:{b+n-1}]'
```

```python
import sys
from em import Em, vr, sr

NAME = 'parallel_sum__ssm_conv_h3__dense_activation_mish__prompt'
HDR = open('cdna_kernels/' + NAME + '.s.ref').read().split('; Override launch')[0]

S, D, F = 2048, 576, 4608
NMT = 26
N_MLP = NMT * 8
N_CONV = 36
NWG = 256
IDX_MLP0 = 6
PSTRIDE = 130 * 18432
WS_P = 0
WS_Y = 20 << 20
WS_ST = 24 << 20
WS_TS = 28 << 20
WS_FL = 26 << 20
KNAME = NAME + '_kernel'
WS_BYTES = 32 << 20
LDS_BYTES = 163840
XA_BYTES = 92160
LOG2E = 0x3fb8aa3b
RSQRT2 = 0x3f3504f3

class Opt:
    ts = False
    dlat = 18
    dma_delay = 6
    wlead = 4
    xlead = 10
    cap = 2
    lgmerge = 7
    oddR = 3
    dspace = 4
    psleep = 1
    fine = ''
    x_warm = 0
    x_nochk = 0
    budget = 12
    wcost = 4
    force = 2
    x_qidle = 0
    x_nolgw = 0
    x_novmw = 0
    wrate = 1
    wslack = 1
    mnop = -1
    fold = 1
    qdeep = 1
    egate = 24
    pw0 = 3
    pw1 = 2
    qsig = 24
    tmpl = 0
    x_nopub = 0
    cprio = 1
    spin = 0
    x_nowr = 0
    x_pq = 0
    sthr = 5
    milp = 4
    cph = 12
    pph = 7
    wph = 0
    code_pf = True
    w2pf = True
    hpf = True
    lnts = False
    kvpf = 1
    nomlp = False
    dbg = 0
    tlbw = True
    bgate = 8
    x_nodma = 0
    x_nomish = 0

sQ, sK, sV, sSHK, sSSMK, sSSMD, sW1 = 16, 18, 20, 22, 24, 26, 30
sB1, sW2, sOUT, sDBG, sWS = 32, 34, 36, 38, 40
srdX, srdW1, srdW2, srdB1, srdWS = 44, 48, 52, 56, 60
srdK, srdV, srdSHK, srdSSMK, srdSSMD = 44, 48, 52, 56, 64
sWave, sFS, sMT, sRing, sT0, sT1, sC = 3, 4, 5, 6, 7, 8, 9
sTS = 68
sWi, sLine2, sOddM, sFlA, sFlO, sFin = 18, 19, 20, 21, 22, 23
sXcd, sI, sWr = 14, 15, 42
SC = ' sc1'
vLane = 1

def srd(E, d, p, nbytes):
    E.e(f's_mov_b32 s{d}, s{p}')
    E.e(f's_and_b32 s{d+1}, s{p+1}, 0xffff')
    E.e(f's_mov_b32 s{d+2}, {nbytes}')
    E.e(f's_mov_b32 s{d+3}, 0x20000')

class TS:
    def __init__(self): self.n = 0
    def stamp(self, E, fine=False):
        if Opt.ts and (bool(Opt.fine) == fine or self.n == 0 or getattr(self, 'conv', False)):
            assert self.n < 14
            E.e(f's_memtime s[{sTS+2*self.n}:{sTS+2*self.n+1}]')
            self.n += 1
    def val(self, E, sreg):
        if Opt.ts and Opt.spin:
            E.e(f's_add_u32 s{sTS+2*self.n}, s{sreg}, s{sTS}')
            self.n += 1
    def stamp2(self, E, sIt):
        if Opt.ts:
            TS.uid = getattr(TS, 'uid', 0) + 1
            u = TS.uid
            E.e(f's_cmp_lg_u32 s{sIt}, 0')
            E.e(f's_cbranch_scc1 Lts{u}a')
            self.stamp(E)
            E.e(f's_branch Lts{u}b')
            E.e(f'Lts{u}a:')
            self.stamp(E)
            E.e(f'Lts{u}b:')
    def rt0(self, E):
        if Opt.ts: E.e(f's_memrealtime s[{sTS+28}:{sTS+29}]')
    def flush(self, E, vtmp):
        if not Opt.ts: return
        E.e(f's_memrealtime s[{sTS+30}:{sTS+31}]')
        E.e('s_waitcnt lgkmcnt(0)')
        E.e(f's_lshl_b32 s{sT0}, s2, 3')
        E.e(f's_add_u32 s{sT0}, s{sT0}, s{sWave}')
        E.e(f's_lshl_b32 s{sT0}, s{sT0}, 6')
        E.e(f's_add_u32 s{sT0}, s{sT0}, {WS_TS}')
        E.e(f'v_mov_b32 v{vtmp}, 0')
        for i in list(range(self.n)) + [14, 15]:
            E.e(f'v_writelane_b32 v{vtmp}, s{sTS+2*i}, {i}')
        E.e(f'v_lshlrev_b32 v{vtmp+1}, 2, v{vLane}')
        E.e('s_mov_b64 exec, 0xffff')
        E.e(f'buffer_store_dword v{vtmp}, v{vtmp+1}, {sr(srdWS)}, s{sT0} offen')
        if Opt.dbg:
            TS.uid = getattr(TS, 'uid', 0) + 1
            u = TS.uid
            srd(E, 44, sDBG, 256)
            E.e('s_mov_b64 exec, 1')
            E.e(f's_not_b32 s{sT1}, s{sTS+28}')
            E.e(f'v_mov_b32 v{vtmp+2}, s{sT1}')
            E.e(f'v_mov_b32 v{vtmp+3}, s{sTS+30}')
            E.e(f'buffer_atomic_umax v{vtmp+2}, v{vtmp+1}, s[44:47], 0 offen offset:56')
            E.e(f'buffer_atomic_umax v{vtmp+3}, v{vtmp+1}, s[44:47], 0 offen offset:60')
            E.e(f's_cmp_lg_u32 s2, {Opt.dbg}')
            E.e(f's_cbranch_scc1 Ldbg{u}')
            E.e(f's_cmp_lg_u32 s{sWave}, 5')
            E.e(f's_cbranch_scc1 Ldbg{u}')
            E.e('s_mov_b64 exec, 0x3fff')
            E.e(f'v_readlane_b32 s{sT1}, v{vtmp}, 0')
            E.e('s_nop 1')
            E.e(f'v_subrev_u32 v{vtmp}, s{sT1}, v{vtmp}')
            E.e(f'buffer_store_dword v{vtmp}, v{vtmp+1}, s[44:47], 0 offen')
            E.e(f'Ldbg{u}:')

vX0, vX1, vXg0, vXg1 = 2, 3, 4, 5
vWt = [6, 7, 8, 9]
vWo = 10
vD1a, vD1b, vD2a, vD2b, vDo = 11, 12, 13, 14, 15
vAW, vAWo, vP, vPo = 16, 17, 18, 19
vSA, vSB, vSW, vS, vPg = 20, 21, 22, 23, 24
vOld2, vDum, vS2 = 25, 26, 27
sSpin = 100
vT = 28
vXF = 36
vWF = 76
vAcc = 116
vBraw = 216
vFlOld = 226
SCR = LDS_BYTES - 2048
STW = SCR + 128
FLB = 256

ODDB = XA_BYTES + 12288
ODDR = 5
ODDOFF = [0, 16384, 32768, 49152, 53248]
assert ODDB + ODDOFF[4] + 4096 <= SCR

def flag_base(E, dst):
    E.e(f's_mul_i32 s{dst}, s{sMT}, {9*FLB}')
    E.e(f's_add_u32 s{dst}, s{dst}, {WS_FL}')

def flag_addrs(E, rA, rO):
    e = E.e
    flag_base(E, sT0)
    e(f's_lshl_b32 s{sT1}, s{sFS}, 4')
    e(f's_add_u32 s{sT0}, s{sT0}, s{sT1}')
    e(f's_lshl_b32 s{rA}, s{sLine2}, 8')
    e(f's_add_u32 s{rA}, s{rA}, s{sT0}')
    e(f's_lshl_b32 s{rO}, s{sWi}, 2')
    e(f's_add_u32 s{rO}, s{rO}, s{sT0}')
    e(f's_add_u32 s{rO}, s{rO}, {8*FLB}')

def mlp_prologue(E, ts):
    e = E.e
    a, b, c, d = vT, vT+1, vT+2, vT+3
    e(f's_sub_u32 s{sMT}, s{sMT}, {IDX_MLP0}')
    def kvpf_issue():
        e('s_mov_b64 exec, 0x3ff')
        E.vm(f'buffer_load_dword v{vDum}, v{vT+7}, {sr(srdW2)}, s10 offen')
        e('s_mov_b64 exec, -1')
    if Opt.kvpf:
        e(f's_cmp_lt_u32 s{sWave}, 4')
        e(f's_cselect_b32 s{srdW2}, s{sK}, s{sV}')
        e(f's_cselect_b32 s{srdW2+1}, s{sK+1}, s{sV+1}')
        e(f's_and_b32 s{srdW2+1}, s{srdW2+1}, 0xffff')
        e(f's_mov_b32 s{srdW2+2}, {S*D*2}')
        e(f's_mov_b32 s{srdW2+3}, 0x20000')
        e(f's_and_b32 s{sT0}, s{sWave}, 3')
        e(f's_lshl_b32 s{sT1}, s{sMT}, 2')
        e(f's_add_u32 s{sT0}, s{sT0}, s{sT1}')
        e(f's_mul_i32 s{sT0}, s{sT0}, {10*1152}')
        e(f's_lshl_b32 s{sT1}, s{sFS}, 7')
        e(f's_add_u32 s10, s{sT0}, s{sT1}')
        e(f'v_mul_u32_u24 v{vT+7}, 1152, v{vLane}')
        kvpf_issue()
    srd(E, srdX, sQ, S*D*2)
    vR, vCc, vOff, vSl = 180, 181, 182, 183
    e(f'v_mul_u32_u24 v{vR}, 43, v{vLane}')
    e(f'v_lshrrev_b32 v{vR}, 8, v{vR}')
    e(f'v_mul_u32_u24 v{vCc}, 6, v{vR}')
    e(f'v_sub_u32 v{vCc}, v{vLane}, v{vCc}')
    e(f's_mul_i32 s{sT0}, s{sWave}, 10')
    e(f'v_add_u32 v{vSl}, s{sT0}, v{vR}')
    e(f's_mul_i32 s{sT1}, s{sMT}, 80')
    e(f'v_add_u32 v{vOff}, s{sT1}, v{vSl}')
    e(f'v_mul_u32_u24 v{vOff}, 1152, v{vOff}')
    e(f'v_lshl_add_u32 v{vOff}, v{vCc}, 4, v{vOff}')
    XR = 36
    xl = []
    for i in range(12):
        xl.append(E.vm(f'buffer_load_dwordx4 {vr(XR+4*i)}, v{vOff}, {sr(srdX)}, 0 offen offset:{96*i}'))
    if Opt.kvpf == 2:
        e(f's_add_u32 s10, s10, {1024*1152}')
        kvpf_issue()
    srd(E, srdW1, sW1, D*F*2)
    srd(E, srdW2, sW2, D*F*2)
    srd(E, srdB1, sB1, F*2)
    srd(E, srdWS, sWS, WS_BYTES)
    e(f'v_cmp_gt_u32 vcc, 12, v{vLane}')
    e(f's_mul_i32 s{sT0}, s{sWave}, {12*26}')
    e(f's_mul_i32 s{sT1}, s{sMT}, 12')
    e(f's_add_u32 s{sT0}, s{sT0}, s{sT1}')
    e(f'v_add_u32 v{a}, s{sT0}, v{vLane}')
    e(f'v_lshrrev_b32 v{b}, 2, v{a}')
    e(f'v_and_b32 v{c}, 3, v{a}')
    e(f'v_mul_u32_u24 v{b}, 9216, v{b}')
    e(f'v_lshl_add_u32 v{b}, v{c}, 7, v{b}')
    e(f'v_cndmask_b32 v{b}, -1, v{b}, vcc')
    e(f's_mul_i32 s{sT0}, s{sFS}, 1152')
    E.vm(f'buffer_load_dword v{vDum}, v{b}, {sr(srdW1)}, s{sT0} offen')
    e(f's_and_b32 s{sWi}, s{sWave}, 3')
    e(f's_lshr_b32 s{sT0}, s{sWave}, 2')
    e(f's_xor_b32 s{sT0}, s{sT0}, s{sFS}')
    e(f's_and_b32 s{sT0}, s{sT0}, 1')
    e(f's_xor_b32 s{sT0}, s{sT0}, 1')
    e(f's_lshl_b32 s{sLine2}, s{sT0}, 2')
    e(f's_add_u32 s{sLine2}, s{sLine2}, s{sWi}')
    e(f's_and_b32 s{sT0}, s{sFS}, 1')
    e(f's_lshl_b32 s{sT0}, s{sT0}, 2')
    e(f's_lshr_b32 s{sFin}, s{sFS}, 1')
    e(f's_add_u32 s{sFin}, s{sFin}, s{sT0}')
    flag_addrs(E, sFlA, sFlO)
    e(f'v_mov_b32 v{a}, s{sFlA}')
    e(f'v_writelane_b32 v{a}, s{sFlO}, 1')
    e('s_mov_b64 exec, 3')
    fl = [E.vm(f'buffer_load_dword v{vFlOld}, v{a}, {sr(srdWS)}, 0 offen{SC}')]
    e('s_mov_b64 exec, -1')
    e(f'v_lshlrev_b32 v{b}, 2, v{vLane}')
    flag_base(E, sT0)
    e(f's_lshl_b32 s{sT1}, s{sFin}, 8')
    e(f's_add_u32 s{sT1}, s{sT1}, s{sT0}')
    e(f's_add_u32 s{sT0}, s{sT0}, {8*FLB}')
    e(f's_cmp_ge_u32 s{sWave}, 4')
    e('s_cbranch_scc1 Lnoold')
    e(f'buffer_load_dword v0, v{b}, {sr(srdWS)}, s{sT1} offen{SC}')
    e(f'buffer_load_dword v{vOld2}, v{b}, {sr(srdWS)}, s{sT0} offen{SC}')
    e('Lnoold:')
    if Opt.code_pf:
        e(f's_getpc_b64 s[10:11]')
        e('Lpc:')
        e(f's_mul_i32 s{sT0}, s{sMT}, 8*((Lmlp_end-Lpc+26*1024-1)/(26*1024))')
        e(f's_mul_i32 s{sT1}, s{sWave}, (Lmlp_end-Lpc+26*1024-1)/(26*1024)')
        e(f's_add_u32 s{sT0}, s{sT0}, s{sT1}')
        e(f'v_add_u32 v{a}, s{sT0}, v{vLane}')
        e(f'v_lshlrev_b32 v{a}, 7, v{a}')
        e(f'v_min_u32 v{a}, Lmlp_end-Lpc-4, v{a}')
        e(f'v_cmp_gt_u32 vcc, (Lmlp_end-Lpc+26*1024-1)/(26*1024), v{vLane}')
        e('s_and_saveexec_b64 s[12:13], vcc')
        E.vm(f'global_load_dword v{vDum}, v{a}, s[10:11]')
        e('s_mov_b64 exec, s[12:13]')
    e(f'v_lshrrev_b32 v{d}, 4, v{vLane}')
    e(f's_mul_i32 s{sT0}, s{sFS}, 1152')
    e(f'v_lshl_add_u32 v{b}, v{d}, 3, s{sT0}')
    e(f's_lshl_b32 s{sT1}, s{sWave}, 7')
    bl = []
    for i in range(4):
        bl.append(E.vm(f'buffer_load_dwordx2 {vr(vBraw+2*i,2)}, v{b}, {sr(srdB1)}, s{sT1} offen offset:{32*i}'))
    e(f's_lshl_b32 s{sT1}, s{sWi}, 5')
    bl.append(E.vm(f'buffer_load_dwordx2 {vr(vBraw+8,2)}, v{b}, {sr(srdB1)}, s{sT1} offen offset:1024'))
    oddb = ODDB
    e(f'v_lshlrev_b32 v{vX0}, 4, v{vLane}')
    e(f'v_add_u32 v{vX1}, 46080, v{vX0}')
    e(f's_lshl_b32 s{sRing}, s{sWi}, 14')
    e(f's_add_u32 s{sRing}, s{sRing}, {XA_BYTES}')
    e(f's_lshr_b32 s{sT1}, s{sWave}, 2')
    e(f's_lshl_b32 s{sT1}, s{sT1}, 12')
    e(f's_add_u32 s15, s{sRing}, s{sT1}')
    e(f's_lshl_b32 s{sOddM}, s{sWi}, 10')
    e(f's_add_u32 s{sOddM}, s{sOddM}, {oddb}')
    e(f'v_lshrrev_b32 v{a}, 2, v{vLane}')
    e(f'v_and_b32 v{c}, 3, v{vLane}')
    e(f'v_lshlrev_b32 v{b}, 7, v{a}')
    e(f'v_lshl_add_u32 v{b}, v{c}, 3, v{b}')
    e(f'v_bfe_u32 v{c}, v{vLane}, 3, 2')
    e(f'v_lshl_add_u32 v{b}, v{c}, 5, v{b}')
    for t in range(4):
        e(f'v_xor_b32 v{vWt[t]}, {32*t}, v{b}')
        e(f'v_add_u32 v{vWt[t]}, s{sRing}, v{vWt[t]}')
    e(f's_lshl_b32 s{sT0}, s{sWi}, 5')
    e(f'v_xor_b32 v{vWo}, s{sT0}, v{b}')
    e(f'v_add_u32 v{vWo}, {oddb}, v{vWo}')
    e(f'v_lshrrev_b32 v{a}, 3, v{vLane}')
    e(f'v_and_b32 v{c}, 7, v{vLane}')
    e(f'v_and_b32 v{b}, 6, v{a}')
    e(f'v_xor_b32 v{c}, v{c}, v{b}')
    e(f'v_mul_u32_u24 v{d}, 1152, v{a}')
    e(f'v_lshl_add_u32 v{d}, v{c}, 4, v{d}')
    e(f's_mul_i32 s{sT0}, s{sFS}, 663552')
    e(f's_lshl_b32 s{sT1}, s{sLine2}, 7')
    e(f's_add_u32 s{sT1}, s{sT1}, s{sT0}')
    e(f'v_add_u32 v{vD2a}, s{sT1}, v{d}')
    e(f'v_add_u32 v{vD2b}, {8*1152-1024}, v{vD2a}')
    e(f's_mul_i32 s{sT1}, s{sWi}, {8*1152}')
    e(f's_add_u32 s{sT1}, s{sT1}, s{sT0}')
    e(f's_add_u32 s{sT1}, s{sT1}, 1024')
    e(f'v_add_u32 v{vDo}, s{sT1}, v{d}')
    e(f'v_and_b32 v{b}, 4, v{a}')
    e(f'v_add_u32 v{b}, v{b}, v{a}')
    e(f'v_mul_u32_u24 v{d}, 9216, v{b}')
    e(f'v_lshl_add_u32 v{d}, v{c}, 4, v{d}')
    e(f's_mul_i32 s{sT0}, s{sFS}, 1152')
    e(f's_lshl_b32 s{sT1}, s{sWave}, 7')
    e(f's_add_u32 s{sT1}, s{sT1}, s{sT0}')
    e(f'v_add_u32 v{vD1a}, s{sT1}, v{d}')
    e(f'v_add_u32 v{vD1b}, {16*9216-1024}, v{vD1a}')
    e(f's_cmp_lt_u32 s{sWave}, 4')
    e('s_cbranch_scc1 Lodd_p')
    e(f's_and_b32 s{sT1}, s{sWi}, 1')
    e(f's_mul_i32 s{sT1}, s{sT1}, {16*9216}')
    e(f's_add_u32 s{sT0}, s{sT0}, s{sT1}')
    e(f's_lshr_b32 s{sT1}, s{sWi}, 1')
    e(f's_mul_i32 s{sT1}, s{sT1}, {4*9216}')
    e(f's_add_u32 s{sT0}, s{sT0}, s{sT1}')
    e(f's_add_u32 s{sT0}, s{sT0}, 1024')
    e(f'v_add_u32 v{vDo}, s{sT0}, v{d}')
    e('Lodd_p:')
    e(f's_and_b32 s{sT0}, s{sWave}, 4')
    e(f's_add_u32 s{sT0}, s{sT0}, s{sWave}')
    e(f's_mul_i32 s{sT0}, s{sT0}, 5120')
    e(f'v_add_u32 v{vAW}, s{sT0}, v{vX0}')
    e(f's_lshr_b32 s{sT0}, s{sWi}, 1')
    e(f's_mul_i32 s{sT0}, s{sT0}, 5120')
    e(f's_and_b32 s{sT1}, s{sWi}, 1')
    e(f's_lshl_b32 s{sT1}, s{sT1}, 3')
    e(f's_add_u32 s{sT0}, s{sT0}, s{sT1}')
    e(f's_add_u32 s{sT0}, s{sT0}, {16*5120}')
    e(f'v_add_u32 v{vAWo}, s{sT0}, v{vX0}')
    e(f's_mul_i32 s{sT0}, s{sFS}, {PSTRIDE}')
    e(f's_mul_i32 s10, s{sMT}, {5*18432}')
    e(f's_add_u32 s{sT0}, s{sT0}, s10')
    e(f's_lshl_b32 s10, s{sLine2}, 11')
    e(f's_add_u32 s10, s10, s{sT0}')
    e(f'v_add_u32 v{vP}, s10, v{vX0}')
    e(f's_lshl_b32 s10, s{sWi}, 9')
    e(f's_add_u32 s10, s10, s{sT0}')
    e(f's_add_u32 s10, s10, {16*1024}')
    e(f'v_lshl_add_u32 v{vPo}, v{vLane}, 3, s10')
    e(f's_mov_b32 s{sC}, {RSQRT2}')
    e(f's_mov_b32 s{sSpin}, 0')
    e(f'v_and_b32 v{a}, 3, v{vLane}')
    e(f'v_lshlrev_b32 v{a}, 2, v{a}')
    e(f'v_add_u32 v{vSA}, {STW}, v{a}')
    e(f'v_add_u32 v{vSB}, {STW+16}, v{a}')
    e(f's_lshl_b32 s{sT0}, s{sWave}, 2')
    e(f's_add_u32 s{sT0}, s{sT0}, {STW}')
    e(f'v_mov_b32 v{vSW}, s{sT0}')
    vSw, vSr, vFe, vFo = 184, 185, 186, 187
    e(f's_lshl_b32 s{sT0}, s{sWave}, 8')
    e(f's_add_u32 s{sT0}, s{sT0}, {SCR}')
    e(f'v_lshl_add_u32 v{vSw}, v{vLane}, 2, s{sT0}')
    e(f'v_mul_u32_u24 v{vSr}, 24, v{vR}')
    e(f'v_add_u32 v{vSr}, s{sT0}, v{vSr}')
    e(f'v_lshrrev_b32 v{a}, 4, v{vSl}')
    e(f'v_and_b32 v{b}, 15, v{vSl}')
    e(f'v_lshlrev_b32 v{a}, 10, v{a}')
    e(f'v_lshl_add_u32 v{a}, v{b}, 6, v{a}')
    e(f'v_lshrrev_b32 v{d}, 2, v{b}')
    e(f'v_and_b32 v{d}, 2, v{d}')
    for (dst, add) in ((vFe, 0), (vFo, 6)):
        e(f'v_add_u32 v{b}, {add}, v{vCc}')
        e(f'v_lshrrev_b32 v{c}, 2, v{b}')
        e(f'v_mul_u32_u24 v{c}, 5120, v{c}')
        e(f'v_and_b32 v{b}, 3, v{b}')
        e(f'v_xor_b32 v{b}, v{b}, v{d}')
        e(f'v_lshl_add_u32 v{c}, v{b}, 4, v{c}')
        e(f'v_add_u32 v{dst}, v{a}, v{c}')
    e(f'v_and_b32 v{a}, 15, v{vLane}')
    e(f'v_lshrrev_b32 v{b}, 4, v{vLane}')
    e(f'v_lshrrev_b32 v{c}, 2, v{a}')
    e(f'v_and_b32 v{c}, 2, v{c}')
    e(f'v_xor_b32 v{b}, v{b}, v{c}')
    e(f'v_lshlrev_b32 v{vXg0}, 6, v{a}')
    e(f'v_lshl_add_u32 v{vXg0}, v{b}, 4, v{vXg0}')
    e(f'v_add_u32 v{vXg1}, 46080, v{vXg0}')
    return dict(fl=fl, vR=vR, XR=XR, xl=xl, bl=bl, vSw=vSw, vSr=vSr, vFe=vFe, vFo=vFo, vCc=vCc)

def rowsum(E, P, vs, tmp):
    E.lg(f'ds_write_b32 v{P["vSw"]}, v{vs}')
    E.all_lg()
    for i in range(3):
        E.lg(f'ds_read_b64 {vr(tmp+2*i,2)}, v{P["vSr"]} offset:{8*i}')
    E.all_lg()
    E.e(f'v_add_f32 v{tmp}, v{tmp}, v{tmp+1}')
    E.e(f'v_add_f32 v{tmp+2}, v{tmp+2}, v{tmp+3}')
    E.e(f'v_add_f32 v{tmp+4}, v{tmp+4}, v{tmp+5}')
    E.e(f'v_add_f32 v{tmp}, v{tmp}, v{tmp+2}')
    E.e(f'v_add_f32 v{vs}, v{tmp}, v{tmp+4}')

def bf16r(E, v):
    E.e(f'v_cvt_pk_bf16_f32 v{v}, v{v}, v{v}')
    E.e(f'v_and_b32 v{v}, 0xffff0000, v{v}')

def mlp_ln(E, P, ts, prefill):
    e = E.e
    XR = P['XR']
    XT = 84
    ac = [188, 189, 190, 191]
    tmp = 196
    for i in range(12):
        E.need(P['xl'][i])
        for j in range(4):
            r = XR + 4*i + j
            t = XT + 2*(4*i + j)
            e(f'v_lshlrev_b32 v{t}, 16, v{r}')
            e(f'v_and_b32 v{t+1}, 0xffff0000, v{r}')
            if i == 0 and j < 2:
                e(f'v_mov_b32 v{ac[2*j]}, v{t}')
                e(f'v_mov_b32 v{ac[2*j+1]}, v{t+1}')
            else:
                k = 2*(j & 1)
                e(f'v_pk_add_f32 {vr(ac[k],2)}, {vr(ac[k],2)}, {vr(t,2)}')
    ts.stamp(E)
    prefill()
    e(f'v_pk_add_f32 {vr(ac[0],2)}, {vr(ac[0],2)}, {vr(ac[2],2)}')
    e(f'v_add_f32 v{ac[0]}, v{ac[0]}, v{ac[1]}')
    rowsum(E, P, ac[0], tmp)
    vMu, vM = 192, 194
    e(f'v_mul_f32 v{vMu}, 0x3ae38e39, v{ac[0]}')
    e(f'v_mov_b32 v{vM}, v{vMu}')
    bf16r(E, vM)
    e(f'v_sub_f32 v{vMu}, v{vMu}, v{vM}')
    for i in range(48):
        t = XT + 2*i
        e(f'v_pk_add_f32 {vr(t,2)}, {vr(t,2)}, {vr(vM,2)} op_sel_hi:[1,0] neg_lo:[0,1] neg_hi:[0,1]')
        k = 2*(i & 1)
        if i < 2:
            e(f'v_pk_mul_f32 {vr(ac[k],2)}, {vr(t,2)}, {vr(t,2)}')
        else:
            e(f'v_pk_fma_f32 {vr(ac[k],2)}, {vr(t,2)}, {vr(t,2)}, {vr(ac[k],2)}')
    e(f'v_pk_add_f32 {vr(ac[0],2)}, {vr(ac[0],2)}, {vr(ac[2],2)}')
    e(f'v_add_f32 v{ac[0]}, v{ac[0]}, v{ac[1]}')
    rowsum(E, P, ac[0], tmp)
    vV = ac[0]
    e(f'v_mul_f32 v{vV}, 0x3ae38e39, v{vV}')
    e(f'v_fma_f32 v{vV}, -v{vMu}, v{vMu}, v{vV}')
    e(f'v_max_f32 v{vV}, 0, v{vV}')
    bf16r(E, vV)
    e(f'v_add_f32 v{vV}, 0x3727c5ac, v{vV}')
    bf16r(E, vV)
    e(f'v_sqrt_f32 v{vV}, v{vV}')
    e('s_nop 0')
    bf16r(E, vV)
    e(f'v_rcp_f32 v{vM+1}, v{vV}')
    e(f's_cmp_lg_u32 s{sWave}, 0')
    e('s_cbranch_scc1 Lnoz')
    e(f'v_mov_b32 v{tmp}, 0')
    e(f'ds_write_b32 v{vSA}, v{tmp}')
    e(f'ds_write_b32 v{vSB}, v{tmp}')
    e('Lnoz:')
    e('s_mov_b32 exec_hi, 0x0fffffff')
    e(f'v_cmp_eq_u32 vcc, 0, v{P["vCc"]}')
    e(f's_lshl_b32 s{sT0}, s{sWave}, 8')
    e(f's_add_u32 s{sT0}, s{sT0}, {SCR}')
    e(f'v_lshl_add_u32 v{tmp+1}, v{P["vR"]}, 3, s{sT0}')
    e('s_and_saveexec_b64 s[12:13], vcc')
    E.lg(f'ds_write_b64 v{tmp+1}, {vr(vM,2)}')
    e('s_mov_b64 exec, s[12:13]')
    if Opt.fold:
        e(f'v_mul_f32 v{vMu+1}, {hex(LOG2E)}, v{vM+1}')
        vM = vMu
    for i in range(12):
        for j in range(4):
            t = XT + 2*(4*i + j)
            e(f'v_pk_mul_f32 {vr(t,2)}, {vr(t,2)}, {vr(vM,2)} op_sel:[0,1] op_sel_hi:[1,1]')
        for j in range(4):
            t = XT + 2*(4*i + j)
            e(f'v_cvt_pk_bf16_f32 v{XR+4*i+j}, v{t}, v{t+1}')
        base = P['vFe'] if i % 2 == 0 else P['vFo']
        m = i // 2
        if m == 4 :
            e(f'v_add_u32 v{base}, {4*15360}, v{base}')
        off = (m % 4) * 15360
        E.lg(f'ds_write_b128 v{base}, {vr(XR+4*i)} offset:{off}')
    e('s_mov_b32 exec_hi, -1')

sD_ = 11
def mlp_prefill(E):
    ids = []
    for n in range(2):
        E.e(f's_add_u32 m0, s15, {(2+n)*2048}')
        E.e(f's_mov_b32 s{sD_}, {n*4*9216}')
        E.vm(f'buffer_load_dwordx4 v{vD1a}, {sr(srdW1)}, s{sD_} offen lds')
        ids.append(E.vm(f'buffer_load_dwordx4 v{vD1b}, {sr(srdW1)}, s{sD_} offen offset:1024 lds'))
    return ids

KORD = [0, 2, 4, 6, 1, 3, 5, 7, 8, 10, 12, 14, 9, 11, 13, 15, 16, 17]
stubs = []
def mlp_main(E, cls, P, ts, pre_ids):
    e = E.e
    isP = cls == 'P'
    R = ODDR
    vSown = vSA if isP else vSB
    steps, groups, pairs, odds = [], [], [], []
    for gm in (1, 2):
        for k in range(18):
            kx = k if gm == 1 else KORD[k]
            hasodd = (gm == 1) != isP
            st = dict(gm=gm, k=k, x=k, g0=len(groups), odd=hasodd, xr={})
            rs = 9216 if gm == 1 else 1152
            hb = 4 if gm == 1 else 16
            st['pa'] = len(pairs)
            for h in range(2):
                pairs.append(dict(gm=gm, soff=kx*32*rs + h*hb*rs, reads=[], id=None))
            if hasodd:
                st['oi'] = len(odds); odds.append(dict(gm=gm, soff=kx*32*rs, id=None, reads=[]))
            for t in range(5 if hasodd else 4):
                groups.append(dict(step=len(steps), t=t, w=[]))
            st['ng'] = len(groups) - st['g0']
            steps.append(st)
    NG = len(groups); NM = 5*NG
    own, flo = ((0, 2) if isP else (4, 2))
    lastuse = {}
    deep = (not isP) and Opt.qdeep
    for n, p in enumerate(pairs):
        s_, h = divmod(n, 2); k = s_ % 18
        isflo = (k % 2 == 0) and (k > 0 or (isP and s_ == 0))
        p['slot'] = (flo if isflo else own) + h
        if deep and s_ >= 18 + 4:
            p['slot'] = [2, 0, 6, 4][(k - 4) % 4] + h
        p['prev'] = lastuse.get(p['slot']); lastuse[p['slot']] = n
    nxt = {p['prev']: n for n, p in enumerate(pairs) if p['prev'] is not None}
    pre = [[] for _ in range(NM)]
    gaps = [[] for _ in range(NM)]
    def stepm(s): return 5*steps[s]['g0'] if s < len(steps) else NM
    so0 = 18 if isP else 0
    PB, QB = 6, 2
    pbase = PB if isP else QB
    obase = 18 if isP else 0

    def wait_status(name, vaddr, thr, pre_id=None, part=0):
        vv = vS
        if pre_id is None:
            vv = vS2
            pre_id = E.lg(f'ds_read_b32 v{vv}, v{vaddr}')
        if part != 2:
            E.need(pre_id)
            e(f'v_cmp_gt_u32 vcc, {thr}, v{vv}')
        if part == 1: return
        e(f's_cbranch_vccnz Lw{name}')
        e(f'Lr{name}:')
        stubs.extend([f'Lw{name}:', f'ds_read_b32 v{vv}, v{vaddr}', f's_add_u32 s{sSpin}, s{sSpin}, 1', f's_cmp_gt_u32 s{sSpin}, 0x100000', f's_cbranch_scc1 Lr{name}',
                      's_waitcnt lgkmcnt(0)', f'v_cmp_gt_u32 vcc, {thr}, v{vv}', f's_cbranch_vccz Lr{name}', 's_sleep 1', f's_branch Lw{name}'])
    def publish(val):
        e(f'v_mov_b32 v{vPg}, {val}')
        E.lg(f'ds_write_b32 v{vSW}, v{vPg}')
    def p_m0(n): e(f's_add_u32 m0, s{sRing}, {pairs[n]["slot"]*2048}')
    def p_so(n): e(f's_mov_b32 s{sD_}, {pairs[n]["soff"]}')
    def p_ld(n, i):
        it = pairs[n]
        if it['prev'] is not None and i == 0:
            assert len(pairs[it['prev']]['reads']) == 4
            E.need(*pairs[it['prev']]['reads'])
        va, sd = ((vD1a, vD1b), srdW1) if it['gm'] == 1 else ((vD2a, vD2b), srdW2)
        if Opt.x_nodma:
            e('s_nop 0'); x = ('vm', 0)
        else:
            x = E.vm(f'buffer_load_dwordx4 v{va[i]}, {sr(sd)}, s{sD_} offen{" offset:1024" if i else ""} lds')
        if i: it['id'] = x
    def p_all(n): p_m0(n); p_so(n); p_ld(n, 0); p_ld(n, 1)
    def o_m0(n): e(f's_add_u32 m0, s{sOddM}, {ODDOFF[(obase + n) % R]}')
    def o_so(n): e(f's_mov_b32 s{sD_}, {odds[n]["soff"]}')
    def o_ld(n):
        sd = srdW1 if odds[n]['gm'] == 1 else srdW2
        if Opt.x_nodma:
            e('s_nop 0'); odds[n]['id'] = ('vm', 0)
        else:
            odds[n]['id'] = E.vm(f'buffer_load_dwordx4 v{vDo}, {sr(sd)}, s{sD_} offen lds')
    def wreg(s, t): return vWF + 20*(s % 2) + 4*t
    def do_wread(s, t, h):
        st = steps[s]; g = st['g0'] + t
        if t < 4:
            n = st['pa'] + h
            E.need(pairs[n]['id'])
            i = E.lg(f'ds_read_b64_tr_b16 {vr(wreg(s,t)+2*h,2)}, v{vWt[t]} offset:{pairs[n]["slot"]*2048}')
            pairs[n]['reads'].append(i)
        else:
            n = st['oi']
            i = E.lg(f'ds_read_b64_tr_b16 {vr(wreg(s,t)+2*h,2)}, v{vWo} offset:{ODDOFF[(obase + n) % R] + h*2048}')
            odds[n]['reads'].append(i)
        groups[g]['w'].append(i)
    def do_xread(s, rt):
        idx = steps[s]['x']*5 + rt
        b0, b1 = (vX0, vX1) if steps[s]['gm'] == 2 else (vXg0, vXg1)
        vb, off = (b0, idx*1024) if idx < 45 else (b1, (idx-45)*1024)
        steps[s]['xr'][rt] = E.lg(f'ds_read_b128 {vr(vXF + 20*(s % 2) + 4*rt)}, v{vb} offset:{off}')

    TN = dict(Wa=[0,1,3,4], Wb=[10,11,13,14], X=[5,6,8,9,15], DA=[12,17], DAs=[8,9], DB=[2,7], DBs=[-2,-1], lg=19)
    TO = dict(Wa=[0,1,3,4], Wb=[14,15,16,18], X=[8,9,11,19,20], DA=[12,17], DAs=[8,9], DB=[2,7], DBs=[-2,-2], lg=24,
              Wo=[5,6], Sr=10, Pv=11, Sw=13, Cm=19, Br=21, Do=22, Dos=[18,20])
    if Opt.tmpl == 1:
        TO = dict(Wa=[0,1,3,4], Wb=[9,10,11,13], X=[14,15,16,18,19], DA=[17,22], DAs=[13,14], DB=[2,7], DBs=[-2,-2], lg=24,
                  Wo=[5,6], Sr=-4, Pv=18, Sw=20, Cm=8, Br=10, Do=12, Dos=[8,9])
    if Opt.tmpl == 2:
        TO = dict(Wa=[0,1,3,4], Wb=[13,14,15,16], X=[5,6,8,9,10], DA=[17,22], DAs=[13,14], DB=[7,12], DBs=[3,4], lg=24,
                  Wo=[18,19], Sr=11, Pv=5, Sw=20, Cm=21, Br=23, Do=27, Dos=[23,24], lag=1)
    manual = set()
    def at(s, g, f):
        if steps[s]['k'] == 0 and g < 0: pre[stepm(s)].append(f)
        else: gaps[stepm(s) + g].append(f)
    sread = {}
    gated = {26: QB+18, 30: QB+19, 34: QB+20} if isP else {}
    for s in range(36):
        st = steps[s]; T = TO if st['odd'] else TN; k = st['k']
        if k < 17:
            for h, key in ((0, 'Wa'), (1, 'Wb')):
                for t in range(4): at(s, T[key][t], lambda s=s, t=t, h=h: do_wread(s+1, t, h))
            if s+1 in gated:
                at(s, T['X'][0]-1, lambda s=s: (ts.stamp(E), wait_status(f'Pg{s}', vSB, gated[s+1])))
            for rt in range(5): at(s, T['X'][rt], lambda s=s, rt=rt: do_xread(s+1, rt))
            at(s, T['lg'], lambda s=s: E.need(*([steps[s+1]['xr'][0]] + groups[steps[s+1]['g0']]['w'])))
        def place(n, D, Ds):
            at(s, Ds[0], lambda n=n: p_m0(n)); at(s, Ds[1], lambda n=n: p_so(n))
            at(s, D[0], lambda n=n: p_ld(n, 0)); at(s, D[1], lambda n=n: p_ld(n, 1))
            manual.discard(n)
        def ok(n):
            return n is not None and not (pairs[n]['slot'] in (flo, flo+1) and (n // 36) != (pairs[n]['prev'] // 36))
        if k < 17 and ok(nxt.get(steps[s+1]['pa'])): place(nxt[steps[s+1]['pa']], T['DA'], T['DAs'])
        if k >= 1 and ok(nxt.get(st['pa'] + 1)): place(nxt[st['pa'] + 1], T['DB'], T['DBs'])
        if st['odd']:
            if k < 17:
                for h in range(2): at(s, T['Wo'][h], lambda s=s, h=h: do_wread(s+1, 4, h))
            if k < 16 and not Opt.x_nochk:
                at(s, T['Sr'], lambda k=k: sread.__setitem__(k, E.lg(f'ds_read_b32 v{vS}, v{vSown}')))
                at(s, T['Cm'], lambda k=k: wait_status(f'{cls}o{k}', vSown, pbase + k - 1, sread[k], part=1))
                at(s, T['Br'], lambda k=k: wait_status(f'{cls}o{k}', vSown, pbase + k - 1, sread[k], part=2))
            if k + R < 18:
                n = k + R
                at(s, T['Dos'][0], lambda n=n: o_m0(n)); at(s, T['Dos'][1], lambda n=n: o_so(n)); at(s, T['Do'], lambda n=n: o_ld(n))
            def pub(k=k, s=s, T=T):
                ids = list(steps[s]['xr'].values()) + pairs[steps[s]['pa']]['reads'] + pairs[steps[s]['pa']+1]['reads']
                if T.get('lag'):
                    ids += odds[k]['reads']
                elif k + 1 < 18: ids += odds[k+1]['reads']
                ids.append(odds[min(k + R - 2, 17)]['id'])
                E.need(*ids)
                E.lg(f'ds_write_b32 v{vSW}, v{vPg}')
            if not (Opt.x_nopub and (k not in (3, 7, 14, 16, 17))):
                at(s, T['Pv'], lambda k=k: e(f'v_mov_b32 v{vPg}, {pbase + k}')); at(s, T['Sw'], pub)
    if deep:
        at(19, 16, lambda: wait_status('Qe', vSA, PB + 17))
        for i, n in enumerate((46, 47, 48, 49)):
            at(20 + i // 2, 7 if i % 2 == 0 else 17, lambda n=n: p_all(n))
    if not isP:
        at(Opt.qsig, 15, lambda: e(f'v_mov_b32 v{vPg}, {QB + 21}'))
        at(Opt.qsig, 16, lambda: E.lg(f'ds_write_b32 v{vSW}, v{vPg}'))
    if isP:
        at(16, 0, lambda: e(f'v_mov_b32 v{vPg}, 1'))
        at(16, 2, lambda: (E.need(*(pairs[32]['reads'] + pairs[33]['reads'])), E.lg(f'ds_write_b32 v{vSW}, v{vPg}')))

    def mish_quad(src, dst, tb):
        T = [tb+i for i in range(4)]
        I = range(4)
        o = []
        if Opt.fold:
            o += [f'v_exp_f32 v{T[i]}, v{src+i}' for i in I]
        else:
            o += [f'v_mul_f32 v{T[i]}, {hex(LOG2E)}, v{src+i}' for i in I]
            o += [f'v_exp_f32 v{T[i]}, v{T[i]}' for i in I]
        o += [f'v_fma_f32 v{T[i]}, v{T[i]}, s{sC}, s{sC}' for i in I]
        o += [f'v_fma_f32 v{T[i]}, v{T[i]}, v{T[i]}, 0.5' for i in I]
        o += [f'v_rcp_f32 v{T[i]}, v{T[i]}' for i in I]
        o += [f'v_fma_f32 v{T[i]}, -v{src+i}, v{T[i]}, v{src+i}' for i in I]
        o += [f'v_cvt_pk_bf16_f32 v{dst}, v{T[0]}, v{T[1]}', f'v_cvt_pk_bf16_f32 v{dst+1}, v{T[2]}, v{T[3]}']
        if Opt.x_nomish: o = o[-2:]
        if Opt.mnop >= 0:
            o2 = []; acc = 0
            for op in o:
                o2.append(op)
                acc += 8 if ('exp' in op or 'rcp' in op) else 4
                if acc >= 8:
                    o2.append(f's_nop {Opt.mnop}'); acc = 0
            o = o2
        return o
    def mish_rt(hf, rt):
        a0, a1 = vAcc + 40*hf + 4*rt, vAcc + 40*hf + 20 + 4*rt
        for o in mish_quad(a0, a0, vT): e(o)
        for o in mish_quad(a1, a0+2, vT+4): e(o)
    def wr(hf, rt):
        if Opt.x_nowr: return ('lg', 0)
        return E.lg(f'ds_write_b128 v{vAW}, {vr(vAcc + 40*hf + 4*rt)} offset:{hf*20480 + rt*1024}')
    def w_stage(s0):
        for h in range(2):
            for t in range(4): do_wread(s0, t, h)
        p_all(steps[s0+1]['pa']); p_all(steps[s0+1]['pa'] + 1)
    def valu_phase():
        clk = E.clock; E.clock = None
        ts.stamp(E)
        e('s_setprio 0')
        if isP:
            publish(2)
            e('s_nop 4')
            w = []
            for rt in range(Opt.pw0): mish_rt(0, rt)
            wait_status('Pa', vSA, 2)
            wait_status('Pb', vSB, QB + 3)
            pend = [(0, rt) for rt in range(Opt.pw0)]
            def mish_w(hf, rt):
                a0, a1 = vAcc + 40*hf + 4*rt, vAcc + 40*hf + 20 + 4*rt
                for (src, dst, tb) in ((a0, a0, vT), (a1, a0+2, vT+4)):
                    ops = mish_quad(src, dst, tb)
                    for i, o in enumerate(ops):
                        e(o)
                        if pend and pend[0][0] <= allowed[0] and i == len(ops) // 2: w.append(wr(*pend.pop(0)))
                pend.append((hf, rt))
            allowed = [0]
            for rt in range(Opt.pw0, 5): mish_w(0, rt)
            w_stage(18)
            for rt in range(5):
                if rt == Opt.pw1:
                    wait_status('Pb2', vSB, QB + 7); allowed[0] = 1
                mish_w(1, rt)
            for x in pend: w.append(wr(*x))
            ts.stamp(E)
            E.need(*w)
            publish(3)
            for n in range(R):
                if n in (0, 3): wait_status(f'Pc{n}', vSB, QB + 18 + (2 if n == 0 else R-1) - R - 1)
                o_m0(n); o_so(n); o_ld(n)
            p_all(40); p_all(41)
            E.need(odds[R-1]['id'])
            publish(4)
            wait_status('Pd', vSA, 4)
            for h in range(2): do_wread(18, 4, h)
            for rt in range(5): do_xread(18, rt)
            E.need(*odds[0]['reads'])
            publish(5)
        else:
            e('s_nop 7')
            for rt in range(2): mish_rt(0, rt)
            wait_status('Qa', vSB, QB + 17)
            wait_status('Qp', vSA, 2)
            w = [wr(0, 0), wr(0, 1)]
            for rt in range(2, 5):
                mish_rt(0, rt); w.append(wr(0, rt))
            E.need(*w); publish(QB + 18)
            w = []
            for rt in range(5):
                mish_rt(1, rt); w.append(wr(1, rt))
            E.need(*w); publish(QB + 19)
            w = []
            for rt in range(5):
                a0 = vAcc + 80 + 4*rt
                for o in mish_quad(a0, a0, vT + 4*(rt & 1)): e(o)
                w.append(E.lg(f'ds_write_b64 v{vAWo}, {vr(a0,2)} offset:{rt*1024}'))
            E.need(*w); publish(QB + 20)
            ts.stamp(E)
            w_stage(18)
            wait_status('Qc', vSB, QB + 20)
            wait_status('Qd', vSA, 3)
            for rt in range(5): do_xread(18, rt)
            wait_status('Qb', vSA, PB + 16)
            p_all(40); p_all(41)
        e('s_setprio 1')
        ts.stamp(E)
        E.clock = clk
    if not isP:
        pre[0].append(lambda: ts.val(E, sSpin)); pre[stepm(18)].append(lambda: ts.val(E, sSpin))
    pre[stepm(18)].insert(0, valu_phase)
    if Opt.fine:
        lo_, st_ = [int(x) for x in Opt.fine.split(',')]
        for i in range(13):
            if lo_ + i*st_ < 36: pre[stepm(lo_ + i*st_)].append(lambda: ts.stamp(E, True))

    for n in range(2): pairs[n]['id'] = pre_ids[n]
    if isP:
        p_all(2); p_all(3)
    else:
        for n in range(R):
            o_m0(n); o_so(n); o_ld(n)
    E.need(*P['bl'])
    for i in range(4 if isP else 5):
        r = vBraw + 2*i; d = vAcc + 20*i + 16
        e(f'v_lshlrev_b32 v{d}, 16, v{r}')
        e(f'v_and_b32 v{d+1}, 0xffff0000, v{r}')
        e(f'v_lshlrev_b32 v{d+2}, 16, v{r+1}')
        e(f'v_and_b32 v{d+3}, 0xffff0000, v{r+1}')
        if Opt.fold:
            for j in range(4): e(f'v_mul_f32 v{d+j}, {hex(LOG2E)}, v{d+j}')
    E.need(*P['fl'])
    e(f'v_readlane_b32 s{sFlA+3}, v{vFlOld}, 0')
    e(f'v_readlane_b32 s{sFlO+3}, v{vFlOld}, 1')
    if Opt.x_warm:
        a, b, c = vT, vT+1, vT+2
        e(f's_mul_i32 s{sT0}, s{sMT}, 200')
        e(f's_mul_i32 s{sT1}, s{sWi}, 50')
        e(f's_add_u32 s{sT0}, s{sT0}, s{sT1}')
        e(f'v_add_u32 v{a}, s{sT0}, v{vLane}')
        if isP:
            e(f'v_mul_u32_u24 v{b}, 7282, v{a}')
            e(f'v_lshrrev_b32 v{b}, 16, v{b}')
            e(f'v_mul_u32_u24 v{c}, 9, v{b}')
            e(f'v_sub_u32 v{c}, v{a}, v{c}')
            e(f'v_mul_u32_u24 v{b}, 9216, v{b}')
            e(f'v_lshl_add_u32 v{b}, v{c}, 7, v{b}')
            e(f's_mul_i32 s{sT0}, s{sFS}, 1152')
            E.vm(f'buffer_load_dword v{vDum}, v{b}, {sr(srdW1)}, s{sT0} offen')
        else:
            e(f'v_lshlrev_b32 v{b}, 7, v{a}')
            e(f's_mul_i32 s{sT0}, s{sFS}, 663552')
            E.vm(f'buffer_load_dword v{vDum}, v{b}, {sr(srdW2)}, s{sT0} offen')
        E.all_vm()
        for i in range(3): e('s_sleep 127')
    if isP:
        for h in range(2):
            for t in range(4): do_wread(0, t, h)
        p_all(4); p_all(5)
    else:
        E.need(odds[R-1]['id'])
    e('s_waitcnt lgkmcnt(0)'); E.lg_done = E.lg_n - 1
    ts.stamp(E)
    e('s_barrier')
    e(f's_setprio {3 if isP else 2}')
    for rt in range(5): do_xread(0, rt)
    if not isP:
        for h in range(2): do_wread(0, 4, h)
        w_stage(0)
        E.need(*odds[0]['reads'])
        publish(1)
        wait_status('Qs', vSA, 1)
        p_all(4); p_all(5)
    for m in range(NM):
        g, rt = divmod(m, 5)
        G = groups[g]; s = G['step']; st = steps[s]
        E.clock = m
        for f in pre[m]: f()
        assert len(G['w']) == 2, (cls, m, g)
        E.need(*(G['w'] + [st['xr'][rt]]))
        ab = vAcc + 20*G['t']; d = ab + 4*rt
        c = vr(d)
        if st['k'] == 0: c = vr(ab + 16) if st['gm'] == 1 else '0'
        e(f'v_mfma_f32_16x16x32_bf16 {vr(d)}, {vr(wreg(s, G["t"]))}, {vr(vXF + 20*(s % 2) + 4*rt)}, {c}')
        for f in gaps[m]: f()
    assert all(p['id'] for p in pairs) and all(len(p['reads']) == 4 for p in pairs)
    E.clock = None
    ts.stamp(E)
    e('s_setprio 0')
    e('s_nop 6')
    sts = []
    for u in range(2):
        for rt in range(5):
            a0, a1 = vAcc + 40*u + 4*rt, vAcc + 40*u + 20 + 4*rt
            e(f'v_cvt_pk_bf16_f32 v{a0}, v{a0}, v{a0+1}')
            e(f'v_cvt_pk_bf16_f32 v{a0+1}, v{a0+2}, v{a0+3}')
            e(f'v_cvt_pk_bf16_f32 v{a0+2}, v{a1}, v{a1+1}')
            e(f'v_cvt_pk_bf16_f32 v{a0+3}, v{a1+2}, v{a1+3}')
            e(f's_mov_b32 s{sT0}, {rt*18432}')
            if isP and len(sts) >= Opt.sthr: E.need(sts[-Opt.sthr])
            sts.append(E.vm(f'buffer_store_dwordx4 {vr(a0)}, v{vP}, {sr(srdWS)}, s{sT0} offen offset:{u*1024}{SC}'))
    if isP:
        for rt in range(5):
            a0 = vAcc + 80 + 4*rt
            e(f'v_cvt_pk_bf16_f32 v{a0}, v{a0}, v{a0+1}')
            e(f'v_cvt_pk_bf16_f32 v{a0+1}, v{a0+2}, v{a0+3}')
            e(f's_mov_b32 s{sT0}, {rt*18432}')
            if len(sts) >= Opt.sthr: E.need(sts[-Opt.sthr])
            sts.append(E.vm(f'buffer_store_dwordx2 {vr(a0,2)}, v{vPo}, {sr(srdWS)}, s{sT0} offen{SC}'))
    e(f'v_mov_b32 v{vT}, 0')
    e(f's_add_u32 s{sFlA+3}, s{sFlA+3}, 1')
    e(f's_add_u32 s{sFlO+3}, s{sFlO+3}, 1')
    e(f'v_mov_b32 v{vT+1}, s{sFlA+3}')
    e(f'v_mov_b32 v{vT+2}, s{sFlO+3}')
    e('s_mov_b64 exec, 1')
    E.need(*sts)
    E.vm(f'buffer_store_dword v{vT+1}, v{vT}, {sr(srdWS)}, s{sFlA} offen{SC}')
    if isP: E.vm(f'buffer_store_dword v{vT+2}, v{vT}, {sr(srdWS)}, s{sFlO} offen{SC}')
    e('s_mov_b64 exec, -1')
    if not isP: publish(QB + 22)
    ts.stamp(E)
    if isP:
        mlp_tail(E, ts, lambda: wait_status('Pt', vSB, QB + 21), lambda: wait_status('Pu', vSB, QB + 22))
    else:
        ts.flush(E, vT)
        e('s_endpgm')

def gpoll(E, name, vcur, vadr, sb, vold, mask):
    e = E.e
    e('s_mov_b32 s10, 0')
    e(f'L{name}:')
    e(f'buffer_load_dword v{vcur}, v{vadr}, {sr(srdWS)}, s{sb} offen{SC}')
    e('s_waitcnt vmcnt(0)')
    e(f'v_cmp_ne_u32 vcc, v{vcur}, v{vold}')
    e(f's_and_b64 s[12:13], vcc, s[{mask}:{mask+1}]')
    e(f's_cmp_eq_u64 s[12:13], s[{mask}:{mask+1}]')
    e(f's_cbranch_scc1 L{name}_ok')
    if Opt.psleep: e(f's_sleep {Opt.psleep}')
    e('s_add_u32 s10, s10, 1')
    e('s_cmp_lt_u32 s10, 0x40000')
    e(f's_cbranch_scc1 L{name}')
    e(f'L{name}_ok:')
    E.vm_done = E.vm_n - 1

def mlp_tail(E, ts, gate, gate2):
    e = E.e
    sME, sML, sMO = 64, 66, 28
    sFb, sFo, sU3, sR3 = 26, 27, 42, 43
    vFa, vCur = 2, 3
    srd(E, srdB1, sOUT, S*D*2)
    e(f'v_lshlrev_b32 v{vFa}, 2, v{vLane}')
    flag_base(E, sFo)
    e(f's_lshl_b32 s{sFb}, s{sFin}, 8')
    e(f's_add_u32 s{sFb}, s{sFb}, s{sFo}')
    e(f's_add_u32 s{sFo}, s{sFo}, {8*FLB}')
    e(f's_mov_b32 s{sML}, 0x01010101')
    e(f's_and_b32 s{sT0}, s{sFS}, 1')
    e(f's_lshl_b32 s{sT0}, s{sT0}, 2')
    e(f's_lshl_b32 s{sML}, s{sML}, s{sT0}')
    e(f's_mov_b32 s{sML+1}, 0')
    e(f's_xor_b32 s{sME}, s{sML}, 0x11111111')
    e(f's_mov_b32 s{sME+1}, 0x55')
    e(f's_lshl_b32 s{sU3}, s{sFin}, 1')
    e(f's_add_u32 s{sU3}, s{sU3}, 1')
    e(f's_add_u32 s{sR3}, s{sWi}, 3')
    e(f's_mov_b64 s[{sMO}:{sMO+1}], 0')
    e(f's_cmp_lt_u32 s{sWi}, 2')
    e('s_cbranch_scc1 Ls3_done')
    e(f's_mov_b32 s{sMO}, -1')
    e(f's_mov_b32 s{sMO+1}, 0xff')
    e(f's_sub_u32 s{sT0}, s{sWi}, 2')
    e(f's_lshl_b32 s{sT0}, s{sT0}, 3')
    e(f's_add_u32 s{sT0}, s{sT0}, s{sFS}')
    e(f's_cmp_ge_u32 s{sT0}, 5')
    e(f's_cselect_b32 s{sT1}, 5, 0')
    e(f's_cselect_b32 s{sU3}, 17, 16')
    e(f's_sub_u32 s{sR3}, s{sT0}, s{sT1}')
    e(f's_cmp_lt_u32 s{sR3}, 5')
    e('s_cbranch_scc1 Ls3_done')
    e(f's_mov_b64 s[{sMO}:{sMO+1}], 0')
    e('Ls3_done:')
    e('v_and_b32 v4, 15, v1')
    e('v_lshrrev_b32 v5, 4, v1')
    e('v_and_b32 v6, 1, v5')
    e('v_lshrrev_b32 v5, 1, v5')
    e('v_lshlrev_b32 v7, 4, v1')
    e(f's_cmp_ge_u32 s{sU3}, 16')
    e(f's_cselect_b32 s{sT0}, 3, 4')
    e(f's_cselect_b32 s{sT1}, 512, 8')
    e(f'v_lshlrev_b32 v10, s{sT0}, v1')
    e(f'v_add_u32 v11, s{sT1}, v10')
    sl = []
    for s_ in range(3):
        B = 36 + 72*s_
        d = dict(EP=B, LP=B+16, XR=B+32, YR=B+36, ST=B+40, xa=B+42, ya=B+43, SUM=B+44, N=B+52, X=B+60,
                 sE=30+4*s_, sL=31+4*s_, sX=32+4*s_, sY=33+4*s_)
        sl.append(d)
        if s_ < 2:
            e(f's_add_u32 s15, s{sWi}, {4*s_}')
            e(f's_lshl_b32 s14, s{sFin}, 1')
            e('s_cmp_ge_u32 s15, 5')
            e(f's_cselect_b32 s{sT0}, 5, 0')
            e('s_addc_u32 s14, s14, 0')
            e(f's_sub_u32 s15, s15, s{sT0}')
            u, r = 14, 15
        else:
            u, r = sU3, sR3
        e(f's_min_u32 s{sT0}, s{r}, 4')
        e(f's_lshl_b32 s{sT0}, s{sT0}, 4')
        e(f'v_add_u32 v8, s{sT0}, v4')
        e('v_mul_u32_u24 v9, 205, v8')
        e('v_lshrrev_b32 v9, 11, v9')
        e('v_mul_u32_u24 v9, 176, v9')
        e('v_lshl_add_u32 v9, v8, 3, v9')
        e(f'v_add_u32 v9, {SCR}, v9')
        d['st'] = E.lg(f'ds_read_b64 {vr(d["ST"],2)}, v9')
        e(f's_mul_i32 s{sT0}, s{sMT}, 80')
        e(f'v_add_u32 v8, s{sT0}, v8')
        e(f'v_mul_u32_u24 v{d["xa"]}, 1152, v8')
        e(f'v_lshl_add_u32 v{d["xa"]}, v6, 5, v{d["xa"]}')
        e(f'v_lshl_add_u32 v{d["xa"]}, v5, 4, v{d["xa"]}')
        e(f'v_lshlrev_b32 v{d["ya"]}, 4, v8')
        e(f'v_lshl_add_u32 v{d["ya"]}, v5, 15, v{d["ya"]}')
        e(f'v_lshl_add_u32 v{d["ya"]}, v6, 16, v{d["ya"]}')
        e(f's_lshl_b32 s{d["sX"]}, s{u}, 6')
        e(f's_lshl_b32 s{d["sY"]}, s{u}, 17')
        e(f's_add_u32 s{d["sY"]}, s{d["sY"]}, {WS_Y}')
        e(f's_mul_i32 s{sT0}, s{sMT}, 5')
        e(f's_add_u32 s{sT0}, s{sT0}, s{r}')
        e(f's_mul_i32 s{sT0}, s{sT0}, 18432')
        e(f's_lshl_b32 s{sT1}, s{u}, 10')
        e(f's_add_u32 s{sT0}, s{sT0}, s{sT1}')
        e(f's_add_u32 s{sT1}, s{sT0}, {PSTRIDE}')
        e(f's_bitcmp1_b32 s{sFS}, 0')
        e(f's_cselect_b32 s{d["sE"]}, s{sT0}, s{sT1}')
        e(f's_cselect_b32 s{d["sL"]}, s{sT1}, s{sT0}')
        if s_ == 2:
            e(f's_cmp_ge_u32 s{r}, 5')
            for k in ('sE', 'sL', 'sX', 'sY'):
                e(f's_cselect_b32 s{d[k]}, 0x40000000, s{d[k]}')
    gate()
    for d in sl:
        d['xl'] = E.vm(f'buffer_load_dwordx4 {vr(d["XR"])}, v{d["xa"]}, {sr(srdX)}, s{d["sX"]} offen')
    gpoll(E, 'pe', vCur, vFa, sFb, 0, sME)
    e(f's_cmp_eq_u32 s{sMO}, 0')
    e('s_cbranch_scc1 Lpo_ok')
    gpoll(E, 'po', vCur, vFa, sFo, vOld2, sMO)
    ts.stamp(E)
    T = vT
    def ploads(d, key, sb):
        ids = []
        for i in range(4):
            if i: e(f's_add_u32 s{d[sb]}, s{d[sb]}, {2*PSTRIDE}')
            if d is not sl[2]:
                ids.append(E.vm(f'buffer_load_dwordx4 {vr(d[key]+4*i)}, v7, {sr(srdWS)}, s{d[sb]} offen{SC}'))
            else:
                E.vm(f'buffer_load_dwordx2 {vr(d[key]+4*i,2)}, v10, {sr(srdWS)}, s{d[sb]} offen{SC}')
                ids.append(E.vm(f'buffer_load_dwordx2 {vr(d[key]+4*i+2,2)}, v11, {sr(srdWS)}, s{d[sb]} offen{SC}'))
        return ids
    def psum(d, key, ids, first):
        SUM = d['SUM']
        for p in range(4):
            E.need(ids[p])
            dst = SUM if (first and p == 0) else T
            for j in range(4):
                r = d[key] + 4*p + j
                e(f'v_lshlrev_b32 v{dst+2*j}, 16, v{r}')
                e(f'v_and_b32 v{dst+2*j+1}, 0xffff0000, v{r}')
            if dst == T and first:
                for j in range(8):
                    e(f'v_add_f32 v{SUM+j}, v{SUM+j}, v{T+j}')
            elif dst == T:
                for j in range(4):
                    e(f'v_pk_add_f32 {vr(SUM+2*j,2)}, {vr(SUM+2*j,2)}, {vr(T+2*j,2)}')
    for d in sl:
        d['yl'] = E.vm(f'buffer_load_dwordx4 {vr(d["YR"])}, v{d["ya"]}, {sr(srdWS)}, s{d["sY"]} offen{SC}')
        d['el'] = ploads(d, 'EP', 'sE')
    for d in sl:
        X, N, Y = d['X'], d['N'], d['LP']
        E.need(d['yl'], d['st'])
        for j in range(4):
            e(f'v_lshlrev_b32 v{X+2*j}, 16, v{d["XR"]+j}')
            e(f'v_and_b32 v{X+2*j+1}, 0xffff0000, v{d["XR"]+j}')
            e(f'v_lshlrev_b32 v{Y+2*j}, 16, v{d["YR"]+j}')
            e(f'v_and_b32 v{Y+2*j+1}, 0xffff0000, v{d["YR"]+j}')
        def rnd(b):
            for j in range(4):
                e(f'v_cvt_pk_bf16_f32 v{T+j}, v{b+2*j}, v{b+2*j+1}')
            for j in range(4):
                e(f'v_lshlrev_b32 v{b+2*j}, 16, v{T+j}')
                e(f'v_and_b32 v{b+2*j+1}, 0xffff0000, v{T+j}')
        for i in range(8): e(f'v_sub_f32 v{N+i}, v{X+i}, v{d["ST"]}')
        rnd(N)
        for i in range(8): e(f'v_mul_f32 v{N+i}, v{N+i}, v{d["ST"]+1}')
        rnd(N)
        for i in range(8): e(f'v_mul_f32 v{N+i}, v{N+i}, v{Y+i}')
        rnd(N)
        for i in range(8): e(f'v_add_f32 v{N+i}, v{N+i}, v{X+i}')
        rnd(N)
        psum(d, 'EP', d['el'], True)
    gate2()
    gpoll(E, 'pl', vCur, vFa, sFb, 0, sML)
    ts.stamp(E)
    e('s_setprio 3')
    for d in sl: d['ll'] = ploads(d, 'LP', 'sL')
    for d in sl:
        psum(d, 'LP', d['ll'], False)
        SUM, N, X, Y = d['SUM'], d['N'], d['X'], d['EP']
        if Opt.fold:
            for i in range(8): e(f'v_mul_f32 v{SUM+i}, 0x3f317218, v{SUM+i}')
        for j in range(4):
            e(f'v_cvt_pk_bf16_f32 v{X+j}, v{SUM+2*j}, v{SUM+2*j+1}')
        e('s_nop 1')
        e(f'v_permlane16_swap_b32 v{X}, v{X+2}')
        e(f'v_permlane16_swap_b32 v{X+1}, v{X+3}')
        for j in range(4):
            e(f'v_lshlrev_b32 v{Y+2*j}, 16, v{X+j}')
            e(f'v_and_b32 v{Y+2*j+1}, 0xffff0000, v{X+j}')
        for i in range(8): e(f'v_add_f32 v{N+i}, v{N+i}, v{Y+i}')
        for j in range(4):
            e(f'v_cvt_pk_bf16_f32 v{X+4+j}, v{N+2*j}, v{N+2*j+1}')
        E.vm(f'buffer_store_dwordx4 {vr(X+4)}, v{d["xa"]}, {sr(srdB1)}, s{d["sX"]} offen')
    if Opt.ts:
        E.all_vm()
        ts.stamp(E)
        ts.flush(E, vT)
    e('s_endpgm')

RS = 4672
HS = 4160
HB0 = 16*RS
def conv(E):
    e = E.e
    ts = TS(); ts.conv = True
    ts.stamp(E)
    sCT, sCh, sHB, sIt, sIdx = 10, 11, 6, 9, 5
    e(f's_cmp_eq_u32 s{sIdx}, 5')
    e('s_cbranch_scc1 Lhelper')
    e(f's_lshl_b32 s{sCT}, s{sFS}, 2')
    e(f's_add_u32 s{sCT}, s{sCT}, s{sIdx}')
    sMode, sLoc, sHsel = 12, 13, 14
    e(f's_mov_b32 s{sMode}, 0')
    e(f's_mov_b32 s{sHsel}, 0')
    e(f's_lshl_b32 s{sLoc}, s{sWave}, 1')
    e(f's_cmp_lt_u32 s{sIdx}, 4')
    e('s_cbranch_scc1 Lconv_go')
    e(f's_lshr_b32 s{sCT}, s{sFS}, 1')
    e(f's_add_u32 s{sCT}, s{sCT}, 32')
    e(f's_mov_b32 s{sMode}, 1')
    e(f's_and_b32 s{sHsel}, s{sFS}, 1')
    e(f's_lshl_b32 s{sLoc}, s{sHsel}, 3')
    e(f's_add_u32 s{sLoc}, s{sLoc}, s{sWave}')
    e('Lconv_go:')
    vZ = 140
    for i in range(4): e(f'v_mov_b32 v{vZ+i}, 0')
    e(f's_mul_i32 s{sHB}, s{sWave}, {2*HS}')
    e(f's_add_u32 s{sHB}, s{sHB}, {HB0}')
    e('v_lshrrev_b32 v12, 5, v0')
    e(f'v_mul_u32_u24 v12, {RS}, v12')
    e('v_and_b32 v13, 31, v0')
    e('v_lshl_add_u32 v12, v13, 4, v12')
    E.lg(f'ds_write_b128 v12, {vr(vZ)} offset:4096')
    e(f'v_and_b32 v12, 1, v{vLane}')
    e(f'v_lshlrev_b32 v12, 4, v12')
    e(f'v_add_u32 v12, s{sHB}, v12')
    E.lg(f'ds_write_b128 v12, {vr(vZ)}')
    E.lg(f'ds_write_b128 v12, {vr(vZ)} offset:{HS}')
    vCn = 240
    e(f'v_mov_b32 v{vCn}, {LDS_BYTES-64}')
    E.lg(f'ds_write_b128 v{vCn}, {vr(vZ)}')
    srd(E, srdK, sK, S*D*2)
    srd(E, srdV, sV, S*D*2)
    vRg, vHf, b0, b1, b2 = 2, 3, 4, 5, 6
    e(f's_add_u32 s{sT0}, s{sWave}, s{sCT}')
    e(f's_and_b32 s{sT0}, s{sT0}, 3')
    e(f's_and_b32 s{sT1}, s{sWave}, 4')
    e(f's_or_b32 s{sT0}, s{sT0}, s{sT1}')
    e(f's_lshl_b32 s{sT0}, s{sT0}, 5')
    e(f'v_lshrrev_b32 v{vRg}, 1, v{vLane}')
    e(f'v_add_u32 v{vRg}, s{sT0}, v{vRg}')
    e(f'v_and_b32 v{vHf}, 1, v0')
    e(f'v_mul_u32_u24 v{b1}, {8*1152}, v{vRg}')
    e(f'v_lshl_add_u32 v{b1}, v{vHf}, 4, v{b1}')
    e(f's_lshl_b32 s{sT0}, s{sCT}, 5')
    e(f'v_add_u32 v{b1}, s{sT0}, v{b1}')
    e(f'v_subrev_u32 v{b0}, 3456, v{b1}')
    e(f'v_add_u32 v{b2}, 4608, v{b1}')
    KR, VR, SKR, SKF = 16, 60, 92, 108
    srd(E, srdSHK, sSHK, D*4*2)
    e(f's_lshl_b32 s{sT0}, s{sCT}, 7')
    e(f'v_lshlrev_b32 v7, 6, v{vHf}')
    skl = [E.vm(f'buffer_load_dwordx4 {vr(SKR+4*i)}, v7, {sr(srdSHK)}, s{sT0} offen offset:{16*i}') for i in range(4)]
    srd(E, srdSSMK, sSSMK, D*S*2)
    srd(E, srdSSMD, sSSMD, D*2)
    srd(E, srdWS, sWS, WS_BYTES)
    e(f's_lshl_b32 s{sCh}, s{sCT}, 4')
    e(f's_add_u32 s{sCh}, s{sCh}, s{sLoc}')
    vL16 = 8
    vH0, vDv, vDraw = 9, 10, 11
    e(f'v_lshlrev_b32 v{vL16}, 4, v{vLane}')
    def hload(np_):
        e(f's_lshl_b32 s{sT0}, s{sCh}, 12')
        e(f's_add_u32 m0, s{sHB}, 32')
        e(f's_add_u32 s{sT1}, s{sT0}, 2')
        for i in range(np_):
            E.vm(f'buffer_load_dwordx4 v{vL16}, {sr(srdSSMK)}, s{sT0} offen offset:{1024*i} lds')
        e(f's_add_u32 m0, s{sHB}, {HS+32}')
        e('s_nop 0')
        for i in range(np_):
            E.vm(f'buffer_load_dwordx4 v{vL16}, {sr(srdSSMK)}, s{sT1} offen offset:{1024*i} lds')
        E.vm(f'buffer_load_ushort v{vH0}, v{vZ}, {sr(srdSSMK)}, s{sT0} offen')
    e(f's_lshl_b32 s{sT0}, s{sCh}, 1')
    E.vm(f'buffer_load_ushort v{vDraw}, v{vZ}, {sr(srdSSMD)}, s{sT0} offen')
    e(f's_sub_u32 s{sT1}, 1, s{sMode}')
    e(f's_lshl_b32 s{sT1}, s{sT1}, 1')
    e(f's_add_u32 s{sT0}, s{sT0}, s{sT1}')
    E.vm(f'buffer_load_ushort v{vDv}, v{vZ}, {sr(srdSSMD)}, s{sT0} offen')
    vFo_, vFa_ = 241, 242
    e(f'v_mul_u32_u24 v{vFa_}, {9*FLB}, v{vLane}')
    e(f's_lshr_b32 s{sT0}, s{sCT}, 2')
    e(f's_lshl_b32 s{sT0}, s{sT0}, 8')
    e(f's_and_b32 s{sT1}, s{sCT}, 3')
    e(f's_lshl_b32 s{sT1}, s{sT1}, 1')
    e(f's_add_u32 s{sT1}, s{sT1}, s{sHsel}')
    e(f's_lshl_b32 s{sT1}, s{sT1}, 2')
    e(f's_add_u32 s{sT0}, s{sT0}, s{sT1}')
    e(f's_add_u32 s{sT0}, s{sT0}, {WS_FL + 128}')
    e(f'v_add_u32 v{vFa_}, s{sT0}, v{vFa_}')
    e(f'v_lshlrev_b32 v12, 7, v{vLane}')
    e(f's_lshl_b32 s15, s{sCh}, 12')
    e(f's_cmp_ge_u32 s{sWave}, 4')
    e('s_cbranch_scc1 Lconv_nw')
    e('s_mov_b32 exec_hi, 0')
    e(f'buffer_load_dword v15, v12, {sr(srdSSMK)}, s15 offen')
    e('s_mov_b32 exec_hi, -1')
    e('Lconv_nw:')
    E.all_lg()
    e('s_barrier')
    def cpoll(name, off):
        e(f'L{name}:')
        e(f'ds_read_b32 v14, v{vCn} offset:{off}')
        e('s_waitcnt lgkmcnt(0)')
        e(f'v_readfirstlane_b32 s{sT0}, v14')
        e(f's_cmp_ge_u32 s{sT0}, 4')
        e(f's_cbranch_scc1 L{name}_ok')
        e('s_sleep 2')
        e(f's_branch L{name}')
        e(f'L{name}_ok:')
    e(f's_cmp_lt_u32 s{sWave}, 4')
    e('s_cbranch_scc1 Lconv_a')
    cpoll('cpollb', 8)
    e(f'buffer_load_dword v15, v12, {sr(srdSSMK)}, s15 offen')
    e(f's_cmp_lg_u32 s{sMode}, 0')
    e('s_cbranch_scc1 Lconv_ld')
    e(f's_sub_u32 s15, s15, {7*4096}')
    e('s_mov_b32 exec_hi, 0')
    e(f'buffer_load_dword v15, v12, {sr(srdSSMK)}, s15 offen')
    e('s_mov_b32 exec_hi, -1')
    e('s_branch Lconv_ld')
    e('Lconv_a:')
    e(f's_cmp_lg_u32 s{sMode}, 0')
    e('s_cbranch_scc1 Lconv_ld')
    e('s_waitcnt vmcnt(0)')
    e('Lconv_ld:')
    ts.stamp(E)
    kl, vl = [], []
    for j in range(3, 11):
        bb, off = (b1, (j-3)*1152) if j < 7 else (b2, (j-7)*1152)
        kl.append(E.vm(f'buffer_load_dwordx4 {vr(KR+4*j)}, v{bb}, {sr(srdK)}, 0 offen offset:{off}'))
    for j in range(8):
        bb, off = (b1, j*1152) if j < 4 else (b2, (j-4)*1152)
        vl.append(E.vm(f'buffer_load_dwordx4 {vr(VR+4*j)}, v{bb}, {sr(srdV)}, 0 offen offset:{off}'))
    e('s_mov_b32 exec_lo, 0x00030003')
    e('s_mov_b32 exec_hi, 0x00030003')
    for j in range(3):
        kl.append(E.vm(f'buffer_load_dwordx4 {vr(KR+4*j)}, v{b0}, {sr(srdK)}, 0 offen offset:{j*1152}'))
    e('s_mov_b64 exec, -1')
    hload(4)
    e(f's_mov_b64 exec, {(1 << NMT) - 1}')
    e(f's_cmp_eq_u32 s{sWave}, 7')
    e(f's_cselect_b32 s{sT0}, 0, 0x40000000')
    E.vm(f'buffer_load_dword v{vFo_}, v{vFa_}, {sr(srdWS)}, s{sT0} offen{SC}')
    e('s_mov_b64 exec, -1')
    vKW = 14
    e(f'v_mul_u32_u24 v{vKW}, {8*RS}, v{vHf}')
    e(f'v_lshlrev_b32 v12, 4, v{vRg}')
    e(f'v_sub_u32 v{vKW}, v{vKW}, v12')
    e(f'v_add_u32 v{vKW}, 4080, v{vKW}')
    E.need(*kl[:Opt.bgate])
    e('v_mov_b32 v12, 1')
    e('s_mov_b64 exec, 1')
    E.lg(f'ds_add_u32 v{vCn}, v12 offset:8')
    e('s_mov_b64 exec, -1')
    E.need(*(kl + vl + skl))
    ts.stamp(E)
    for j in range(3):
        for m in range(4):
            e(f'v_mov_b32_dpp v{KR+4*j+m}, v{KR+4*(j+8)+m} row_shr:2 row_mask:0xf bank_mask:0xf')
    for i in range(16):
        e(f'v_lshlrev_b32 v{SKF+2*i}, 16, v{SKR+i}')
        e(f'v_and_b32 v{SKF+2*i+1}, 0xffff0000, v{SKR+i}')
    KF, AC, PK = 144, 156, 164
    for ch in range(8):
        m, hi = divmod(ch, 2)
        def unp(d, s_):
            e(f'v_and_b32 v{d}, 0xffff0000, v{s_}' if hi else f'v_lshlrev_b32 v{d}, 16, v{s_}')
        for j in range(11): unp(KF+j, KR+4*j+m)
        for s_ in range(8): e(f'v_mul_f32 v{AC+s_}, v{KF+s_}, v{SKF+4*ch+3}')
        for tap in (2, 1, 0):
            for s_ in range(8): e(f'v_fmac_f32 v{AC+s_}, v{KF+s_+3-tap}, v{SKF+4*ch+tap}')
        for s_ in range(8): unp(KF+s_, VR+4*s_+m)
        for s_ in range(8): e(f'v_mul_f32 v{AC+s_}, v{AC+s_}, v{KF+s_}')
        pk = PK + 4*(ch & 1)
        for mm in range(4): e(f'v_cvt_pk_bf16_f32 v{pk+mm}, v{AC+7-2*mm}, v{AC+6-2*mm}')
        E.lg(f'ds_write_b128 v{vKW}, {vr(pk)} offset:{ch*RS}')
    vA = [2, 3, 4, 5]; vB, vE = 6, 7
    e(f'v_and_b32 v12, 15, v{vLane}')
    e(f'v_lshrrev_b32 v13, 4, v{vLane}')
    e(f'v_and_b32 v14, 1, v12')
    e(f'v_add_u32 v{vA[0]}, v12, v14')
    e(f'v_lshl_add_u32 v{vA[0]}, v13, 3, v{vA[0]}')
    e(f'v_lshlrev_b32 v{vA[0]}, 1, v{vA[0]}')
    e(f'v_xor_b32 v14, 1, v14')
    e(f'v_mul_u32_u24 v14, {HS}, v14')
    e(f'v_add3_u32 v{vA[0]}, v{vA[0]}, v14, s{sHB}')
    for i in range(1, 4): e(f'v_add_u32 v{vA[i]}, {1024*i}, v{vA[0]}')
    e(f's_mul_i32 s{sT0}, s{sLoc}, {RS}')
    e(f'v_lshlrev_b32 v14, 5, v12')
    e(f'v_lshlrev_b32 v{vB}, 4, v13')
    e(f'v_sub_u32 v{vB}, v{vB}, v14')
    e(f'v_add_u32 v{vB}, 480, v{vB}')
    e(f'v_add_u32 v{vB}, s{sT0}, v{vB}')
    e(f'v_lshl_add_u32 v14, v13, 3, v14')
    e(f'v_sub_u32 v{vE}, {504+RS}, v14')
    e(f's_mul_i32 s{sT1}, s{sMode}, {RS}')
    e(f's_sub_u32 s{sT0}, s{sT0}, s{sT1}')
    e(f'v_add_u32 v{vE}, s{sT0}, v{vE}')
    e(f'v_mov_b32 v12, s{sHB}')
    e(f's_and_b32 s{sT0}, s{sWave}, 4')
    e(f'v_add_u32 v13, s{sT0}, v{vCn}')
    e('v_mov_b32 v14, 1')
    E.all_lg()
    e('s_mov_b64 exec, 1')
    e('ds_add_u32 v13, v14')
    e('s_mov_b64 exec, -1')
    ts.stamp(E)
    cpoll('cpoll0', 0)
    if Opt.cprio:
        e(f's_cmp_lt_u32 s{sWave}, 4')
        e('s_cbranch_scc1 Lconv_pr')
        e('s_setprio 1')
        e('Lconv_pr:')
    AF, BF, ACC, SAV = 16, 80, 176, 208
    def cpass(name, us, nE, refill):
        e(f's_mov_b32 s{sIt}, s{sMode}')
        e(f'L{name}:')
        e('s_waitcnt vmcnt(0) lgkmcnt(0)')
        E.reset()
        ts.stamp2(E, sIt)
        if name == 'cp1' and Opt.w2pf:
            e(f's_cmp_lg_u32 s{sIt}, 0')
            e('s_cbranch_scc1 Lnow2pf')
            e(f's_cmp_lt_u32 s{sWave}, 4')
            e('s_cbranch_scc1 Lnow2pf')
            srd(E, srdK, sW2, D*F*2)
            e(f's_mul_i32 s{sT0}, s{sFS}, 663552')
            e(f's_mul_i32 s{sT1}, s{sIdx}, {54*128}')
            e(f's_add_u32 s{sT0}, s{sT0}, s{sT1}')
            e(f's_and_b32 s{sT1}, s{sWave}, 3')
            e(f's_mul_i32 s{sT1}, s{sT1}, {216*128}')
            e(f's_add_u32 s{sT0}, s{sT0}, s{sT1}')
            e(f'v_lshlrev_b32 v13, 7, v{vLane}')
            e('s_mov_b32 exec_hi, 0x003fffff')
            for i in range(6):
                e(f'buffer_load_dword v15, v13, {sr(srdK)}, s{sT0} offen')
                if i < 5: e(f's_add_u32 s{sT0}, s{sT0}, {864*128}')
            e('s_mov_b32 exec_hi, -1')
            e('Lnow2pf:')
        w0 = E.lg(f'ds_write_b16 v12, v{vH0} offset:{HS+30}')
        E.need(w0)
        aid, bid = {}, {}
        def aread(v, ee, h):
            r = AF + 32*(v % 2) + 4*ee + 2*h
            o = (512*(ee & 1) + 64*(7-v) + 8*h) // 4
            aid.setdefault((v, ee), []).append(E.lg(f'ds_read2_b32 {vr(r,2)}, v{vA[ee >> 1]} offset0:{o} offset1:{o+1}'))
        def bread(v, u):
            bid[(v, u)] = E.lg(f'ds_read_b128 {vr(BF + 16*(v % 2) + 4*(u & 3))}, v{vB} offset:{512*(7-u) + 64*(7-v)}')
        def reads(v):
            L = [lambda: bread(v, us[0])]
            for ee in range(nE):
                L += [lambda ee=ee: aread(v, ee, 0), lambda ee=ee: aread(v, ee, 1)]
            L += [(lambda u=u: bread(v, u)) for u in us[1:]]
            return L
        for f in reads(0): f()
        nm = sum(8-u for u in us)
        for v in range(8):
            fill = reads(v+1) if v < 7 else []
            nf = len(fill); cnt = 0; done = 0
            for u in us:
                for w in range(u, 8):
                    E.need(*(aid[(v, w-u)] + [bid[(v, u)]]))
                    c = '0' if (v == 0 and u == 0) else vr(ACC+4*w)
                    e(f'v_mfma_f32_16x16x32_bf16 {vr(ACC+4*w)}, {vr(AF + 32*(v % 2) + 4*(w-u))}, {vr(BF + 16*(v % 2) + 4*(u & 3))}, {c}')
                    cnt += 1
                    while fill and done < cnt * nf / max(nm - 2, 1):
                        fill.pop(0)(); done += 1
                    if v == 7 and u == us[1] and w == u:
                        e(f's_cmp_lg_u32 s{sIt}, 0')
                        e(f's_cbranch_scc1 L{name}_nr')
                        refill()
                        e(f'L{name}_nr:')
            assert not fill
    def refill1():
        e(f's_add_u32 s{sCh}, s{sCh}, 1')
        hload(4)
    cpass('cp1', [0, 1, 2, 3], 8, refill1)
    e(f's_cmp_lg_u32 s{sIt}, 0')
    e('s_cbranch_scc1 Lcp1_done')
    e('s_nop 7')
    for r in range(32): e(f'v_mov_b32 v{SAV+r}, v{ACC+r}')
    e(f'v_add_u32 v{vB}, {RS}, v{vB}')
    e(f's_mov_b32 s{sIt}, 1')
    e('s_branch Lcp1')
    e('Lcp1_done:')
    e(f'v_lshlrev_b32 v{vDv}, 16, v{vDv}')
    cpoll('cpoll1', 4)
    def refill2():
        e(f's_sub_u32 s{sCh}, s{sCh}, 1')
        hload(2)
    cpass('cp2', [4, 5, 6, 7], 4, refill2)
    KVR = 112
    kr = [E.lg(f'ds_read_b64 {vr(KVR+2*w,2)}, v{vE} offset:{512*(7-w)}') for w in range(8)]
    for w in range(8):
        E.need(kr[w])
        a = ACC + 4*w; t = 128 + 4*(w & 1)
        e(f'v_lshlrev_b32 v{t+3}, 16, v{KVR+2*w}')
        e(f'v_and_b32 v{t+2}, 0xffff0000, v{KVR+2*w}')
        e(f'v_lshlrev_b32 v{t+1}, 16, v{KVR+2*w+1}')
        e(f'v_and_b32 v{t}, 0xffff0000, v{KVR+2*w+1}')
        for r in range(4): e(f'v_fmac_f32 v{a+r}, v{t+r}, v{vDv}')
        e(f'v_cvt_pk_bf16_f32 v{KVR+2*w}, v{a+3}, v{a+2}')
        e(f'v_cvt_pk_bf16_f32 v{KVR+2*w+1}, v{a+1}, v{a}')
        E.lg(f'ds_write_b64 v{vE}, {vr(KVR+2*w,2)} offset:{512*(7-w)}')
    e(f's_cmp_lg_u32 s{sIt}, 0')
    e('s_cbranch_scc1 Lcp2_done')
    for r in range(32): e(f'v_mov_b32 v{ACC+r}, v{SAV+r}')
    e(f'v_subrev_u32 v{vB}, {RS}, v{vB}')
    e(f'v_subrev_u32 v{vE}, {RS}, v{vE}')
    e(f'v_lshlrev_b32 v{vDv}, 16, v{vDraw}')
    e(f's_mov_b32 s{sIt}, 1')
    e('s_branch Lcp2')
    e('Lcp2_done:')
    e('s_waitcnt vmcnt(0) lgkmcnt(0)')
    E.reset()
    ts.stamp(E)
    e('s_barrier')
    e(f'v_lshrrev_b32 v2, 5, v{vLane}')
    e(f'v_lshrrev_b32 v3, 2, v{vLane}')
    e('v_and_b32 v3, 3, v3')
    e('v_lshl_add_u32 v3, v2, 3, v3')
    e(f'v_mul_u32_u24 v3, {RS}, v3')
    e(f'v_and_b32 v4, 16, v{vLane}')
    e('v_lshl_add_u32 v3, v4, 1, v3')
    e(f'v_and_b32 v5, 3, v{vLane}')
    e('v_lshl_add_u32 v3, v5, 3, v3')
    e(f's_lshl_b32 s{sT0}, s{sWave}, 9')
    e(f'v_add_u32 v3, s{sT0}, v3')
    e(f'v_and_b32 v5, 31, v{vLane}')
    e(f's_lshl_b32 s{sT0}, s{sWave}, 8')
    e(f'v_add_u32 v5, s{sT0}, v5')
    e(f'v_sub_u32 v5, {2047-224}, v5')
    e('v_lshlrev_b32 v5, 4, v5')
    e('v_lshl_add_u32 v5, v2, 15, v5')
    e(f's_lshl_b32 s{sT0}, s{sCT}, 16')
    e(f's_add_u32 s{sT0}, s{sT0}, {WS_Y}')
    e(f's_add_u32 s{sT1}, s{sT0}, 4096')
    rd = []
    for blk in range(8):
        r = 16 + 4*blk
        i0 = E.lg(f'ds_read_b64_tr_b16 {vr(r,2)}, v3 offset:{64*blk}')
        i1 = E.lg(f'ds_read_b64_tr_b16 {vr(r+2,2)}, v3 offset:{64*blk + 4*RS}')
        rd.append([i0, i1])
    E.all_lg()
    e(f's_cmp_eq_u32 s{sMode}, 0')
    e('s_cbranch_scc1 Lconv_st')
    e(f's_sub_u32 exec_lo, s{sHsel}, 1')
    e(f's_sub_u32 exec_hi, 0, s{sHsel}')
    e('Lconv_st:')
    for blk in range(8):
        E.vm(f'buffer_store_dwordx4 {vr(16+4*blk)}, v5, {sr(srdWS)}, s{sT0} offen offset:{(7-blk)*512}{SC}')
    e('s_mov_b64 exec, -1')
    E.all_vm()
    e('s_barrier')
    e(f's_cmp_lg_u32 s{sWave}, 7')
    e('s_cbranch_scc1 Lconv_end')
    e(f'v_add_u32 v{vFo_}, 1, v{vFo_}')
    e(f's_mov_b64 exec, {(1 << NMT) - 1}')
    e(f'buffer_store_dword v{vFo_}, v{vFa_}, {sr(srdWS)}, 0 offen{SC}')
    e('s_mov_b64 exec, -1')
    e('Lconv_end:')
    if Opt.ts:
        ts.stamp(E)
        ts.flush(E, 60)
    e('s_endpgm')
    e('Lhelper:')
    srd(E, srdW1, sW1, D*F*2)
    e(f's_mul_i32 s{sT0}, s{sFS}, 1152')
    e(f's_add_u32 s{sT0}, s{sT0}, 512')
    for i in range(6 if Opt.hpf else 0):
        e(f'v_add_u32 v2, {512*i}, v0')
        e('v_mul_u32_u24 v3, 13108, v2')
        e('v_lshrrev_b32 v3, 16, v3')
        e('v_mul_u32_u24 v4, 5, v3')
        e('v_sub_u32 v4, v2, v4')
        e('v_mul_u32_u24 v3, 9216, v3')
        e('v_lshl_add_u32 v3, v4, 7, v3')
        e(f'buffer_load_dword v{8+i}, v3, {sr(srdW1)}, s{sT0} offen')
    if Opt.tlbw:
        srd(E, srdWS, sWS, WS_BYTES)
        srd(E, srdB1, sOUT, S*D*2)
        e('v_lshlrev_b32 v2, 16, v0')
        e(f'buffer_load_dword v14, v2, {sr(srdWS)}, 0 offen{SC}')
        e(f'buffer_load_dword v15, v2, {sr(srdB1)}, 0 offen')
    e('s_waitcnt vmcnt(0)')
    e('s_endpgm')

def k1(E):
    e = E.e
    e('.p2align 8')
    e(f'.type {KNAME},@function')
    e(f'{KNAME}:')
    e(f's_cmp_ge_u32 s2, {NWG}')
    e('s_cbranch_scc1 Lk1_exit')
    TS().rt0(E)
    e('s_load_dwordx16 s[16:31], s[0:1], 0')
    e('s_load_dwordx8 s[32:39], s[0:1], 64')
    e('s_load_dwordx2 s[40:41], s[0:1], 96')
    e(f'v_and_b32 v{vLane}, 63, v0')
    e('v_lshrrev_b32 v2, 6, v0')
    e(f's_and_b32 s{sFS}, s2, 7')
    e(f'v_readfirstlane_b32 s{sWave}, v2')
    e(f's_lshr_b32 s{sMT}, s2, 3')
    e(f's_cmp_lt_u32 s{sMT}, {IDX_MLP0}')
    e('s_waitcnt lgkmcnt(0)')
    e('s_cbranch_scc1 Lconv')
    if Opt.nomlp: e('s_endpgm')
    ts = TS()
    ts.stamp(E)
    P = mlp_prologue(E, ts)
    pre_ids = []
    mlp_ln(E, P, ts, lambda: pre_ids.extend(mlp_prefill(E)))
    st = E.state(); tsn = ts.n
    e(f's_cmp_ge_u32 s{sWave}, 4')
    e('s_cbranch_scc1 LmlpB')
    mlp_main(E, 'P', P, ts, pre_ids)
    e('LmlpB:')
    E.set_state(st); ts.n = tsn
    mlp_main(E, 'Q', P, ts, pre_ids)
    for l in stubs: e(l)
    e('Lmlp_end:')
    e('Lconv:')
    E.reset()
    conv(E)
    e('Lk1_exit:')
    e('s_endpgm')

def desc(name, vg, sg):
    return f'''.p2align 6
.amdhsa_kernel {name}
  .amdhsa_next_free_vgpr {vg}
  .amdhsa_next_free_sgpr {sg}
  .amdhsa_accum_offset {vg}
  .amdhsa_group_segment_fixed_size 0
  .amdhsa_kernarg_size 104
  .amdhsa_user_sgpr_count 2
  .amdhsa_user_sgpr_kernarg_segment_ptr 1
  .amdhsa_system_sgpr_workgroup_id_x 1
.end_amdhsa_kernel
'''

def build():
    E = Em()
    e = E.e
    head = HDR + f'; @launch grid=({NWG},1,1) block=(512,1,1) lds={LDS_BYTES}\n'
    head += f'.amdgcn_target "amdgcn-amd-amdhsa--gfx950"\n.text\n.globl {KNAME}\n'
    k1(E)
    tail = '.section .rodata,"a"\n' + desc(KNAME, 256, 102)
    return head + E.text() + tail

if __name__ == '__main__':
    out = sys.argv[1] if len(sys.argv) > 1 else 'cdna_kernels/' + NAME + '.s'
    for a in sys.argv[2:]:
        k, v = a.split('=', 1)
        cur = getattr(Opt, k)
        setattr(Opt, k, type(cur)(int(v)) if isinstance(cur, (bool, int)) else v)
    Em.lgmerge = Opt.lgmerge
    t = build()
    open(out, 'w').write(t)
    print(out, len(t), 'bytes', t.count('\n'), 'lines')
```

```python
import sys
from em import Em, vr, sr

NAME = 'parallel_sum__ssm_conv_h3__dense_activation_mish__prompt'
HDR = open('cdna_kernels/' + NAME + '.s.ref').read().split('; Override launch')[0]

S, D, F = 2048, 576, 4608
NMT = 26
N_MLP = NMT * 8
N_CONV = 36
NWG = 256
IDX_MLP0 = 6
PSTRIDE = 130 * 18432
WS_P = 0
WS_Y = 20 << 20
WS_ST = 24 << 20
WS_TS = 28 << 20
WS_FL = 26 << 20
KNAME = NAME + '_kernel'
WS_BYTES = 32 << 20
LDS_BYTES = 163840
XA_BYTES = 92160
LOG2E = 0x3fb8aa3b
RSQRT2 = 0x3f3504f3

class Opt:
    ts = False
    dlat = 18
    dma_delay = 6
    wlead = 4
    xlead = 10
    cap = 2
    lgmerge = 7
    oddR = 3
    dspace = 4
    psleep = 1
    fine = ''
    x_warm = 0
    x_nochk = 0
    budget = 12
    wcost = 4
    force = 2
    x_qidle = 0
    x_nolgw = 0
    x_novmw = 0
    wrate = 1
    wslack = 1
    mnop = -1
    fold = 1
    qdeep = 1
    egate = 24
    pw0 = 3
    pw1 = 2
    qsig = 27
    edelay = 0
    pthr = 9
    esleep = 2
    tmpl = 0
    x_nopub = 0
    cprio = 1
    spin = 0
    x_nowr = 0
    x_pq = 0
    sthr = 15
    milp = 4
    cph = 12
    pph = 7
    wph = 0
    code_pf = True
    w2pf = 1
    qpf = 0
    bwait = 0
    w2at = 2
    w1b = 1
    hdelay = 60
    rt = 0
    cdelay = 0
    h3at = 3
    prom = 0
    promf = ' sc1'
    hpf = True
    lnts = False
    kvpf = 1
    nomlp = False
    dbg = 0
    tlbw = True
    bgate = 8
    x_nodma = 0
    nt = ''
    dot = 1
    x_nomish = 0

sQ, sK, sV, sSHK, sSSMK, sSSMD, sW1 = 16, 18, 20, 22, 24, 26, 30
sB1, sW2, sOUT, sDBG, sWS = 32, 34, 36, 38, 40
srdX, srdW1, srdW2, srdB1, srdWS = 44, 48, 52, 56, 60
srdK, srdV, srdSHK, srdSSMK, srdSSMD = 44, 48, 52, 56, 64
sWave, sFS, sMT, sRing, sT0, sT1, sC = 3, 4, 5, 6, 7, 8, 9
sTS = 68
sWi, sLine2, sOddM, sFlA, sFlO, sFin = 18, 19, 20, 21, 22, 23
sXcd, sI, sWr = 14, 15, 42
SC = ' sc1'
vLane = 1

def srd(E, d, p, nbytes):
    E.e(f's_mov_b32 s{d}, s{p}')
    E.e(f's_and_b32 s{d+1}, s{p+1}, 0xffff')
    E.e(f's_mov_b32 s{d+2}, {nbytes}')
    E.e(f's_mov_b32 s{d+3}, 0x20000')

class TS:
    def __init__(self): self.n = 0
    def stamp(self, E, fine=False):
        if Opt.ts and (bool(Opt.fine) == fine or self.n == 0 or getattr(self, 'conv', False)):
            assert self.n < 14
            E.e(f'{"s_memrealtime" if Opt.rt else "s_memtime"} s[{sTS+2*self.n}:{sTS+2*self.n+1}]')
            self.n += 1
    def val(self, E, sreg):
        if Opt.ts and Opt.spin:
            E.e(f's_add_u32 s{sTS+2*self.n}, s{sreg}, s{sTS}')
            self.n += 1
    def stamp2(self, E, sIt):
        if Opt.ts:
            TS.uid = getattr(TS, 'uid', 0) + 1
            u = TS.uid
            E.e(f's_cmp_lg_u32 s{sIt}, 0')
            E.e(f's_cbranch_scc1 Lts{u}a')
            self.stamp(E)
            E.e(f's_branch Lts{u}b')
            E.e(f'Lts{u}a:')
            self.stamp(E)
            E.e(f'Lts{u}b:')
    def rt0(self, E):
        if Opt.ts: E.e(f's_memrealtime s[{sTS+28}:{sTS+29}]')
    def flush(self, E, vtmp):
        if not Opt.ts: return
        E.e(f's_memrealtime s[{sTS+30}:{sTS+31}]')
        E.e('s_waitcnt lgkmcnt(0)')
        E.e(f's_lshl_b32 s{sT0}, s2, 3')
        E.e(f's_add_u32 s{sT0}, s{sT0}, s{sWave}')
        E.e(f's_lshl_b32 s{sT0}, s{sT0}, 6')
        E.e(f's_add_u32 s{sT0}, s{sT0}, {WS_TS}')
        E.e(f'v_mov_b32 v{vtmp}, 0')
        for i in list(range(self.n)) + [14, 15]:
            E.e(f'v_writelane_b32 v{vtmp}, s{sTS+2*i}, {i}')
        E.e(f'v_lshlrev_b32 v{vtmp+1}, 2, v{vLane}')
        E.e('s_mov_b64 exec, 0xffff')
        E.e(f'buffer_store_dword v{vtmp}, v{vtmp+1}, {sr(srdWS)}, s{sT0} offen')
        if Opt.dbg:
            TS.uid = getattr(TS, 'uid', 0) + 1
            u = TS.uid
            srd(E, 44, sDBG, 256)
            E.e('s_mov_b64 exec, 1')
            E.e(f's_not_b32 s{sT1}, s{sTS+28}')
            E.e(f'v_mov_b32 v{vtmp+2}, s{sT1}')
            E.e(f'v_mov_b32 v{vtmp+3}, s{sTS+30}')
            E.e(f'buffer_atomic_umax v{vtmp+2}, v{vtmp+1}, s[44:47], 0 offen offset:56')
            E.e(f'buffer_atomic_umax v{vtmp+3}, v{vtmp+1}, s[44:47], 0 offen offset:60')
            E.e(f's_cmp_lg_u32 s2, {Opt.dbg}')
            E.e(f's_cbranch_scc1 Ldbg{u}')
            E.e(f's_cmp_lg_u32 s{sWave}, 5')
            E.e(f's_cbranch_scc1 Ldbg{u}')
            E.e('s_mov_b64 exec, 0x3fff')
            E.e(f'v_readlane_b32 s{sT1}, v{vtmp}, 0')
            E.e('s_nop 1')
            E.e(f'v_subrev_u32 v{vtmp}, s{sT1}, v{vtmp}')
            E.e(f'buffer_store_dword v{vtmp}, v{vtmp+1}, s[44:47], 0 offen')
            E.e(f'Ldbg{u}:')

vX0, vX1, vXg0, vXg1 = 2, 3, 4, 5
vWt = [6, 7, 8, 9]
vWo = 10
vD1a, vD1b, vD2a, vD2b, vDo = 11, 12, 13, 14, 15
vAW, vAWo, vP, vPo = 16, 17, 18, 19
vSA, vSB, vSW, vS, vPg = 20, 21, 22, 23, 24
vOld2, vDum, vS2 = 25, 26, 27
sSpin = 100
vT = 28
vXF = 36
vWF = 76
vAcc = 116
vBraw = 216
vFlOld = 226
SCR = LDS_BYTES - 2048
STW = SCR + 128
FLB = 256

ODDB = XA_BYTES + 12288
ODDR = 5
ODDOFF = [0, 16384, 32768, 49152, 53248]
assert ODDB + ODDOFF[4] + 4096 <= SCR

def flag_base(E, dst):
    E.e(f's_mul_i32 s{dst}, s{sMT}, {9*FLB}')
    E.e(f's_add_u32 s{dst}, s{dst}, {WS_FL}')

def flag_addrs(E, rA, rO):
    e = E.e
    flag_base(E, sT0)
    e(f's_lshl_b32 s{sT1}, s{sFS}, 4')
    e(f's_add_u32 s{sT0}, s{sT0}, s{sT1}')
    e(f's_lshl_b32 s{rA}, s{sLine2}, 8')
    e(f's_add_u32 s{rA}, s{rA}, s{sT0}')
    e(f's_lshl_b32 s{rO}, s{sWi}, 2')
    e(f's_add_u32 s{rO}, s{rO}, s{sT0}')
    e(f's_add_u32 s{rO}, s{rO}, {8*FLB}')

def mlp_prologue(E, ts):
    e = E.e
    a, b, c, d = vT, vT+1, vT+2, vT+3
    e(f's_sub_u32 s{sMT}, s{sMT}, {IDX_MLP0}')
    def kvpf_issue():
        e('s_mov_b64 exec, 0x3ff')
        E.vm(f'buffer_load_dword v{vDum}, v{vT+7}, {sr(srdW2)}, s10 offen{Opt.nt}')
        e('s_mov_b64 exec, -1')
    if Opt.kvpf:
        e(f's_cmp_lt_u32 s{sWave}, 4')
        e(f's_cselect_b32 s{srdW2}, s{sK}, s{sV}')
        e(f's_cselect_b32 s{srdW2+1}, s{sK+1}, s{sV+1}')
        e(f's_and_b32 s{srdW2+1}, s{srdW2+1}, 0xffff')
        e(f's_mov_b32 s{srdW2+2}, {S*D*2}')
        e(f's_mov_b32 s{srdW2+3}, 0x20000')
        e(f's_and_b32 s{sT0}, s{sWave}, 3')
        e(f's_lshl_b32 s{sT1}, s{sMT}, 2')
        e(f's_add_u32 s{sT0}, s{sT0}, s{sT1}')
        e(f's_mul_i32 s{sT0}, s{sT0}, {10*1152}')
        e(f's_lshl_b32 s{sT1}, s{sFS}, 7')
        e(f's_add_u32 s10, s{sT0}, s{sT1}')
        e(f'v_mul_u32_u24 v{vT+7}, 1152, v{vLane}')
        kvpf_issue()
    srd(E, srdX, sQ, S*D*2)
    vR, vCc, vOff, vSl = 180, 181, 182, 183
    e(f'v_mul_u32_u24 v{vR}, 43, v{vLane}')
    e(f'v_lshrrev_b32 v{vR}, 8, v{vR}')
    e(f'v_mul_u32_u24 v{vCc}, 6, v{vR}')
    e(f'v_sub_u32 v{vCc}, v{vLane}, v{vCc}')
    e(f's_mul_i32 s{sT0}, s{sWave}, 10')
    e(f'v_add_u32 v{vSl}, s{sT0}, v{vR}')
    e(f's_mul_i32 s{sT1}, s{sMT}, 80')
    e(f'v_add_u32 v{vOff}, s{sT1}, v{vSl}')
    e(f'v_mul_u32_u24 v{vOff}, 1152, v{vOff}')
    e(f'v_lshl_add_u32 v{vOff}, v{vCc}, 4, v{vOff}')
    XR = 36
    xl = []
    for i in range(12):
        xl.append(E.vm(f'buffer_load_dwordx4 {vr(XR+4*i)}, v{vOff}, {sr(srdX)}, 0 offen offset:{96*i}'))
    if Opt.kvpf == 2:
        e(f's_cmp_lt_u32 s{sWave}, 6')
        e(f's_cselect_b32 s{srdW2}, s{sK}, s{sV}')
        e(f's_cselect_b32 s{srdW2+1}, s{sK+1}, s{sV+1}')
        e(f's_and_b32 s{srdW2+1}, s{srdW2+1}, 0xffff')
        e(f's_and_b32 s{sT0}, s{sWave}, 1')
        e(f's_lshl_b32 s{sT1}, s{sMT}, 1')
        e(f's_add_u32 s{sT0}, s{sT0}, s{sT1}')
        e(f's_mul_i32 s{sT0}, s{sT0}, {20*1152}')
        e(f's_lshl_b32 s{sT1}, s{sFS}, 7')
        e(f's_add_u32 s10, s{sT0}, s{sT1}')
        e(f's_add_u32 s10, s10, {1024*1152}')
        e(f's_cmp_lt_u32 s{sWave}, 4')
        e('s_cselect_b32 s10, 0x40000000, s10')
        e('s_mov_b64 exec, 0xfffff')
        E.vm(f'buffer_load_dword v{vDum}, v{vT+7}, {sr(srdW2)}, s10 offen{Opt.nt}')
        e('s_mov_b64 exec, -1')
    srd(E, srdW1, sW1, D*F*2)
    srd(E, srdW2, sW2, D*F*2)
    srd(E, srdB1, sB1, F*2)
    srd(E, srdWS, sWS, WS_BYTES)
    if Opt.w1b:
        e(f's_and_b32 s{sT0}, s{sWave}, 3')
        e(f's_mul_i32 s{sT0}, s{sT0}, {28*26}')
        e(f's_mul_i32 s{sT1}, s{sMT}, 28')
        e(f's_add_u32 s{sT0}, s{sT0}, s{sT1}')
        e(f'v_add_u32 v{a}, s{sT0}, v{vLane}')
        e(f'v_mul_u32_u24 v{b}, 13108, v{a}')
        e(f'v_lshrrev_b32 v{b}, 16, v{b}')
        e(f'v_mul_u32_u24 v{c}, 5, v{b}')
        e(f'v_sub_u32 v{c}, v{a}, v{c}')
        e(f'v_mul_u32_u24 v{b}, 9216, v{b}')
        e(f'v_lshl_add_u32 v{vT+6}, v{c}, 7, v{b}')
    e(f'v_cmp_gt_u32 vcc, 12, v{vLane}')
    e(f's_mul_i32 s{sT0}, s{sWave}, {12*26}')
    e(f's_mul_i32 s{sT1}, s{sMT}, 12')
    e(f's_add_u32 s{sT0}, s{sT0}, s{sT1}')
    e(f'v_add_u32 v{a}, s{sT0}, v{vLane}')
    e(f'v_lshrrev_b32 v{b}, 2, v{a}')
    e(f'v_and_b32 v{c}, 3, v{a}')
    e(f'v_mul_u32_u24 v{b}, 9216, v{b}')
    e(f'v_lshl_add_u32 v{b}, v{c}, 7, v{b}')
    e(f'v_cndmask_b32 v{b}, -1, v{b}, vcc')
    e(f's_mul_i32 s{sT0}, s{sFS}, 1152')
    E.vm(f'buffer_load_dword v{vDum}, v{b}, {sr(srdW1)}, s{sT0} offen{Opt.nt}')
    e(f's_and_b32 s{sWi}, s{sWave}, 3')
    e(f's_lshr_b32 s{sT0}, s{sWave}, 2')
    e(f's_xor_b32 s{sT0}, s{sT0}, s{sFS}')
    e(f's_and_b32 s{sT0}, s{sT0}, 1')
    e(f's_xor_b32 s{sT0}, s{sT0}, 1')
    e(f's_lshl_b32 s{sLine2}, s{sT0}, 2')
    e(f's_add_u32 s{sLine2}, s{sLine2}, s{sWi}')
    e(f's_and_b32 s{sT0}, s{sFS}, 1')
    e(f's_lshl_b32 s{sT0}, s{sT0}, 2')
    e(f's_lshr_b32 s{sFin}, s{sFS}, 1')
    e(f's_add_u32 s{sFin}, s{sFin}, s{sT0}')
    flag_addrs(E, sFlA, sFlO)
    e(f'v_mov_b32 v{a}, s{sFlA}')
    e(f'v_writelane_b32 v{a}, s{sFlO}, 1')
    e('s_mov_b64 exec, 3')
    fl = [E.vm(f'buffer_load_dword v{vFlOld}, v{a}, {sr(srdWS)}, 0 offen{SC}')]
    e('s_mov_b64 exec, -1')
    e(f'v_lshlrev_b32 v{b}, 2, v{vLane}')
    flag_base(E, sT0)
    e(f's_lshl_b32 s{sT1}, s{sFin}, 8')
    e(f's_add_u32 s{sT1}, s{sT1}, s{sT0}')
    e(f's_add_u32 s{sT0}, s{sT0}, {8*FLB}')
    e(f's_cmp_ge_u32 s{sWave}, 4')
    e('s_cbranch_scc1 Lnoold')
    e(f'buffer_load_dword v0, v{b}, {sr(srdWS)}, s{sT1} offen{SC}')
    e(f'buffer_load_dword v{vOld2}, v{b}, {sr(srdWS)}, s{sT0} offen{SC}')
    e('Lnoold:')
    if Opt.code_pf:
        e(f's_getpc_b64 s[10:11]')
        e('Lpc:')
        e(f's_mul_i32 s{sT0}, s{sMT}, 8*((Lmlp_end-Lpc+26*1024-1)/(26*1024))')
        e(f's_mul_i32 s{sT1}, s{sWave}, (Lmlp_end-Lpc+26*1024-1)/(26*1024)')
        e(f's_add_u32 s{sT0}, s{sT0}, s{sT1}')
        e(f'v_add_u32 v{a}, s{sT0}, v{vLane}')
        e(f'v_lshlrev_b32 v{a}, 7, v{a}')
        e(f'v_min_u32 v{a}, Lmlp_end-Lpc-4, v{a}')
        e(f'v_cmp_gt_u32 vcc, (Lmlp_end-Lpc+26*1024-1)/(26*1024), v{vLane}')
        e('s_and_saveexec_b64 s[12:13], vcc')
        E.vm(f'global_load_dword v{vDum}, v{a}, s[10:11]')
        e('s_mov_b64 exec, s[12:13]')
    e(f'v_lshrrev_b32 v{d}, 4, v{vLane}')
    e(f's_mul_i32 s{sT0}, s{sFS}, 1152')
    e(f'v_lshl_add_u32 v{b}, v{d}, 3, s{sT0}')
    e(f's_lshl_b32 s{sT1}, s{sWave}, 7')
    bl = []
    for i in range(4):
        bl.append(E.vm(f'buffer_load_dwordx2 {vr(vBraw+2*i,2)}, v{b}, {sr(srdB1)}, s{sT1} offen offset:{32*i}'))
    e(f's_lshl_b32 s{sT1}, s{sWi}, 5')
    bl.append(E.vm(f'buffer_load_dwordx2 {vr(vBraw+8,2)}, v{b}, {sr(srdB1)}, s{sT1} offen offset:1024'))
    if Opt.w1b:
        e(f's_mul_i32 s{sT0}, s{sFS}, 1152')
        e(f's_add_u32 s{sT0}, s{sT0}, 512')
        e(f's_cmp_lt_u32 s{sWave}, 4')
        e(f's_cselect_b32 s{sT0}, 0x40000000, s{sT0}')
        e('s_mov_b64 exec, 0xfffffff')
        E.vm(f'buffer_load_dword v{vDum}, v{vT+6}, {sr(srdW1)}, s{sT0} offen')
        e('s_mov_b64 exec, -1')
    oddb = ODDB
    e(f'v_lshlrev_b32 v{vX0}, 4, v{vLane}')
    e(f'v_add_u32 v{vX1}, 46080, v{vX0}')
    e(f's_lshl_b32 s{sRing}, s{sWi}, 14')
    e(f's_add_u32 s{sRing}, s{sRing}, {XA_BYTES}')
    e(f's_lshr_b32 s{sT1}, s{sWave}, 2')
    e(f's_lshl_b32 s{sT1}, s{sT1}, 12')
    e(f's_add_u32 s15, s{sRing}, s{sT1}')
    e(f's_lshl_b32 s{sOddM}, s{sWi}, 10')
    e(f's_add_u32 s{sOddM}, s{sOddM}, {oddb}')
    e(f'v_lshrrev_b32 v{a}, 2, v{vLane}')
    e(f'v_and_b32 v{c}, 3, v{vLane}')
    e(f'v_lshlrev_b32 v{b}, 7, v{a}')
    e(f'v_lshl_add_u32 v{b}, v{c}, 3, v{b}')
    e(f'v_bfe_u32 v{c}, v{vLane}, 3, 2')
    e(f'v_lshl_add_u32 v{b}, v{c}, 5, v{b}')
    for t in range(4):
        e(f'v_xor_b32 v{vWt[t]}, {32*t}, v{b}')
        e(f'v_add_u32 v{vWt[t]}, s{sRing}, v{vWt[t]}')
    e(f's_lshl_b32 s{sT0}, s{sWi}, 5')
    e(f'v_xor_b32 v{vWo}, s{sT0}, v{b}')
    e(f'v_add_u32 v{vWo}, {oddb}, v{vWo}')
    e(f'v_lshrrev_b32 v{a}, 3, v{vLane}')
    e(f'v_and_b32 v{c}, 7, v{vLane}')
    e(f'v_and_b32 v{b}, 6, v{a}')
    e(f'v_xor_b32 v{c}, v{c}, v{b}')
    e(f'v_mul_u32_u24 v{d}, 1152, v{a}')
    e(f'v_lshl_add_u32 v{d}, v{c}, 4, v{d}')
    e(f's_mul_i32 s{sT0}, s{sFS}, 663552')
    e(f's_lshl_b32 s{sT1}, s{sLine2}, 7')
    e(f's_add_u32 s{sT1}, s{sT1}, s{sT0}')
    e(f'v_add_u32 v{vD2a}, s{sT1}, v{d}')
    e(f'v_add_u32 v{vD2b}, {8*1152-1024}, v{vD2a}')
    e(f's_mul_i32 s{sT1}, s{sWi}, {8*1152}')
    e(f's_add_u32 s{sT1}, s{sT1}, s{sT0}')
    e(f's_add_u32 s{sT1}, s{sT1}, 1024')
    e(f'v_add_u32 v{vDo}, s{sT1}, v{d}')
    e(f'v_and_b32 v{b}, 4, v{a}')
    e(f'v_add_u32 v{b}, v{b}, v{a}')
    e(f'v_mul_u32_u24 v{d}, 9216, v{b}')
    e(f'v_lshl_add_u32 v{d}, v{c}, 4, v{d}')
    e(f's_mul_i32 s{sT0}, s{sFS}, 1152')
    e(f's_lshl_b32 s{sT1}, s{sWave}, 7')
    e(f's_add_u32 s{sT1}, s{sT1}, s{sT0}')
    e(f'v_add_u32 v{vD1a}, s{sT1}, v{d}')
    e(f'v_add_u32 v{vD1b}, {16*9216-1024}, v{vD1a}')
    e(f's_cmp_lt_u32 s{sWave}, 4')
    e('s_cbranch_scc1 Lodd_p')
    e(f's_and_b32 s{sT1}, s{sWi}, 1')
    e(f's_mul_i32 s{sT1}, s{sT1}, {16*9216}')
    e(f's_add_u32 s{sT0}, s{sT0}, s{sT1}')
    e(f's_lshr_b32 s{sT1}, s{sWi}, 1')
    e(f's_mul_i32 s{sT1}, s{sT1}, {4*9216}')
    e(f's_add_u32 s{sT0}, s{sT0}, s{sT1}')
    e(f's_add_u32 s{sT0}, s{sT0}, 1024')
    e(f'v_add_u32 v{vDo}, s{sT0}, v{d}')
    e('Lodd_p:')
    e(f's_and_b32 s{sT0}, s{sWave}, 4')
    e(f's_add_u32 s{sT0}, s{sT0}, s{sWave}')
    e(f's_mul_i32 s{sT0}, s{sT0}, 5120')
    e(f'v_add_u32 v{vAW}, s{sT0}, v{vX0}')
    e(f's_lshr_b32 s{sT0}, s{sWi}, 1')
    e(f's_mul_i32 s{sT0}, s{sT0}, 5120')
    e(f's_and_b32 s{sT1}, s{sWi}, 1')
    e(f's_lshl_b32 s{sT1}, s{sT1}, 3')
    e(f's_add_u32 s{sT0}, s{sT0}, s{sT1}')
    e(f's_add_u32 s{sT0}, s{sT0}, {16*5120}')
    e(f'v_add_u32 v{vAWo}, s{sT0}, v{vX0}')
    e(f's_mul_i32 s{sT0}, s{sFS}, {PSTRIDE}')
    e(f's_mul_i32 s10, s{sMT}, {5*18432}')
    e(f's_add_u32 s{sT0}, s{sT0}, s10')
    e(f's_lshl_b32 s10, s{sLine2}, 11')
    e(f's_add_u32 s10, s10, s{sT0}')
    e(f'v_add_u32 v{vP}, s10, v{vX0}')
    e(f's_lshl_b32 s10, s{sWi}, 9')
    e(f's_add_u32 s10, s10, s{sT0}')
    e(f's_add_u32 s10, s10, {16*1024}')
    e(f'v_lshl_add_u32 v{vPo}, v{vLane}, 3, s10')
    e(f's_mov_b32 s{sC}, {RSQRT2}')
    e(f's_mov_b32 s{sSpin}, 0')
    e(f'v_and_b32 v{a}, 3, v{vLane}')
    e(f'v_lshlrev_b32 v{a}, 2, v{a}')
    e(f'v_add_u32 v{vSA}, {STW}, v{a}')
    e(f'v_add_u32 v{vSB}, {STW+16}, v{a}')
    e(f's_lshl_b32 s{sT0}, s{sWave}, 2')
    e(f's_add_u32 s{sT0}, s{sT0}, {STW}')
    e(f'v_mov_b32 v{vSW}, s{sT0}')
    vSw, vSr, vFe, vFo = 184, 185, 186, 187
    e(f's_lshl_b32 s{sT0}, s{sWave}, 9')
    e(f's_add_u32 s{sT0}, s{sT0}, {ODDB + ODDOFF[4]}')
    e(f'v_lshl_add_u32 v{vSw}, v{vLane}, 3, s{sT0}')
    e(f'v_mul_u32_u24 v{vSr}, 48, v{vR}')
    e(f'v_add_u32 v{vSr}, s{sT0}, v{vSr}')
    e(f'v_lshrrev_b32 v{a}, 4, v{vSl}')
    e(f'v_and_b32 v{b}, 15, v{vSl}')
    e(f'v_lshlrev_b32 v{a}, 10, v{a}')
    e(f'v_lshl_add_u32 v{a}, v{b}, 6, v{a}')
    e(f'v_lshrrev_b32 v{d}, 2, v{b}')
    e(f'v_and_b32 v{d}, 2, v{d}')
    for (dst, add) in ((vFe, 0), (vFo, 6)):
        e(f'v_add_u32 v{b}, {add}, v{vCc}')
        e(f'v_lshrrev_b32 v{c}, 2, v{b}')
        e(f'v_mul_u32_u24 v{c}, 5120, v{c}')
        e(f'v_and_b32 v{b}, 3, v{b}')
        e(f'v_xor_b32 v{b}, v{b}, v{d}')
        e(f'v_lshl_add_u32 v{c}, v{b}, 4, v{c}')
        e(f'v_add_u32 v{dst}, v{a}, v{c}')
    e(f'v_and_b32 v{a}, 15, v{vLane}')
    e(f'v_lshrrev_b32 v{b}, 4, v{vLane}')
    e(f'v_lshrrev_b32 v{c}, 2, v{a}')
    e(f'v_and_b32 v{c}, 2, v{c}')
    e(f'v_xor_b32 v{b}, v{b}, v{c}')
    e(f'v_lshlrev_b32 v{vXg0}, 6, v{a}')
    e(f'v_lshl_add_u32 v{vXg0}, v{b}, 4, v{vXg0}')
    e(f'v_add_u32 v{vXg1}, 46080, v{vXg0}')
    return dict(fl=fl, vR=vR, XR=XR, xl=xl, bl=bl, vSw=vSw, vSr=vSr, vFe=vFe, vFo=vFo, vCc=vCc)

def rowsum(E, P, vs, tmp):
    E.lg(f'ds_write_b32 v{P["vSw"]}, v{vs}')
    E.all_lg()
    for i in range(3):
        E.lg(f'ds_read_b64 {vr(tmp+2*i,2)}, v{P["vSr"]} offset:{8*i}')
    E.all_lg()
    E.e(f'v_add_f32 v{tmp}, v{tmp}, v{tmp+1}')
    E.e(f'v_add_f32 v{tmp+2}, v{tmp+2}, v{tmp+3}')
    E.e(f'v_add_f32 v{tmp+4}, v{tmp+4}, v{tmp+5}')
    E.e(f'v_add_f32 v{tmp}, v{tmp}, v{tmp+2}')
    E.e(f'v_add_f32 v{vs}, v{tmp}, v{tmp+4}')

def bf16r(E, v):
    E.e(f'v_cvt_pk_bf16_f32 v{v}, v{v}, v{v}')
    E.e(f'v_and_b32 v{v}, 0xffff0000, v{v}')

def mlp_ln(E, P, ts, prefill):
    e = E.e
    XR = P['XR']
    XT = 84
    S1, S2, PV, TD = 188, 192, 196, 198
    for i in range(12):
        E.need(P['xl'][i])
        for j in range(4):
            r = XR + 4*i + j
            t = XT + 2*(4*i + j)
            e(f'v_lshlrev_b32 v{t}, 16, v{r}')
            e(f'v_and_b32 v{t+1}, 0xffff0000, v{r}')
            if i == 0 and j == 0: e(f'v_mov_b32 v{PV}, v{t}')
            k = 2*(j & 1); d = TD + k
            first = i == 0 and j < 2
            dd = S1 + k if first else d
            e(f'v_pk_add_f32 {vr(dd,2)}, {vr(t,2)}, {vr(PV,2)} op_sel_hi:[1,0] neg_lo:[0,1] neg_hi:[0,1]')
            if first:
                e(f'v_pk_mul_f32 {vr(S2+k,2)}, {vr(dd,2)}, {vr(dd,2)}')
            else:
                e(f'v_pk_add_f32 {vr(S1+k,2)}, {vr(S1+k,2)}, {vr(d,2)}')
                e(f'v_pk_fma_f32 {vr(S2+k,2)}, {vr(d,2)}, {vr(d,2)}, {vr(S2+k,2)}')
    ts.stamp(E)
    e(f'v_pk_add_f32 {vr(S1,2)}, {vr(S1,2)}, {vr(S1+2,2)}')
    e(f'v_pk_add_f32 {vr(S2,2)}, {vr(S2,2)}, {vr(S2+2,2)}')
    e(f'v_add_f32 v{S1}, v{S1}, v{S1+1}')
    e(f'v_add_f32 v{S2}, v{S2}, v{S2+1}')
    e(f'v_mul_f32 v{S1+1}, 0x3c2aaaab, v{S1}')
    e(f'v_add_f32 v{TD}, v{PV}, v{S1+1}')
    e(f'v_fma_f32 v{TD+1}, -v{S1}, v{S1+1}, v{S2}')
    E.lg(f'ds_write_b64 v{P["vSw"]}, {vr(TD,2)}')
    prefill()
    E.all_lg()
    G = 200
    for i in range(3):
        E.lg(f'ds_read_b128 {vr(G+4*i)}, v{P["vSr"]} offset:{16*i}')
    E.all_lg()
    vMu, vM = 192, 194
    e(f'v_pk_add_f32 {vr(S1,2)}, {vr(G,2)}, {vr(G+2,2)}')
    e(f'v_pk_add_f32 {vr(S1+2,2)}, {vr(G+4,2)}, {vr(G+6,2)}')
    e(f'v_pk_add_f32 {vr(TD,2)}, {vr(G+8,2)}, {vr(G+10,2)}')
    e(f'v_pk_add_f32 {vr(S1,2)}, {vr(S1,2)}, {vr(S1+2,2)}')
    e(f'v_pk_add_f32 {vr(S1,2)}, {vr(S1,2)}, {vr(TD,2)}')
    e(f'v_mul_f32 v{vMu}, 0x3e2aaaab, v{S1}')
    for i in range(6): e(f'v_sub_f32 v{G+2*i}, v{G+2*i}, v{vMu}')
    e(f'v_mul_f32 v{TD}, v{G}, v{G}')
    e(f'v_mul_f32 v{TD+1}, v{G+2}, v{G+2}')
    for i in range(2, 6): e(f'v_fmac_f32 v{TD + (i & 1)}, v{G+2*i}, v{G+2*i}')
    e(f'v_add_f32 v{TD}, v{TD}, v{TD+1}')
    vV = S1
    e(f'v_mul_f32 v{vV}, 0x3ae38e39, v{S1+1}')
    e(f'v_fmac_f32 v{vV}, 0x3e2aaaab, v{TD}')
    e(f'v_mov_b32 v{vM}, v{vMu}')
    e(f'v_max_f32 v{vV}, 0, v{vV}')
    bf16r(E, vM)
    bf16r(E, vV)
    e(f'v_add_f32 v{vV}, 0x3727c5ac, v{vV}')
    bf16r(E, vV)
    e(f'v_sqrt_f32 v{vV}, v{vV}')
    e('s_nop 0')
    bf16r(E, vV)
    e(f'v_rcp_f32 v{vM+1}, v{vV}')
    tmp = 200
    e(f's_cmp_lg_u32 s{sWave}, 0')
    e('s_cbranch_scc1 Lnoz')
    e(f'v_mov_b32 v{tmp}, 0')
    e(f'ds_write_b32 v{vSA}, v{tmp}')
    e(f'ds_write_b32 v{vSB}, v{tmp}')
    e('Lnoz:')
    e('s_mov_b32 exec_hi, 0x0fffffff')
    e(f'v_cmp_eq_u32 vcc, 0, v{P["vCc"]}')
    e(f's_lshl_b32 s{sT0}, s{sWave}, 8')
    e(f's_add_u32 s{sT0}, s{sT0}, {SCR}')
    e(f'v_lshl_add_u32 v{tmp+1}, v{P["vR"]}, 3, s{sT0}')
    e('s_and_saveexec_b64 s[12:13], vcc')
    E.lg(f'ds_write_b64 v{tmp+1}, {vr(vM,2)}')
    e('s_mov_b64 exec, s[12:13]')
    e(f'v_mul_f32 v{vMu}, {hex(LOG2E) if Opt.fold else "1.0"}, v{vM+1}')
    e(f'v_mul_f32 v{vMu+1}, v{vM}, v{vMu}')
    for i in range(12):
        for j in range(4):
            t = XT + 2*(4*i + j)
            e(f'v_pk_fma_f32 {vr(t,2)}, {vr(t,2)}, {vr(vMu,2)}, {vr(vMu,2)} op_sel:[0,0,1] op_sel_hi:[1,0,1] neg_lo:[0,0,1] neg_hi:[0,0,1]')
        for j in range(4):
            t = XT + 2*(4*i + j)
            e(f'v_cvt_pk_bf16_f32 v{XR+4*i+j}, v{t}, v{t+1}')
        base = P['vFe'] if i % 2 == 0 else P['vFo']
        m = i // 2
        if m == 4 :
            e(f'v_add_u32 v{base}, {4*15360}, v{base}')
        off = (m % 4) * 15360
        E.lg(f'ds_write_b128 v{base}, {vr(XR+4*i)} offset:{off}')
    e('s_mov_b32 exec_hi, -1')

sD_ = 11
def mlp_prefill(E):
    ids = []
    E.e(f's_cmp_ge_u32 s{sWave}, 4')
    E.e('s_cbranch_scc1 Lnopre')
    for n in range(4):
        E.e(f's_add_u32 m0, s{sRing}, {((n + 2) % 4)*2048}')
        E.e(f's_mov_b32 s{sD_}, {(n // 2)*32*9216 + (n % 2)*4*9216}')
        E.vm(f'buffer_load_dwordx4 v{vD1a}, {sr(srdW1)}, s{sD_} offen lds')
        ids.append(E.vm(f'buffer_load_dwordx4 v{vD1b}, {sr(srdW1)}, s{sD_} offen offset:1024 lds'))
    E.e('s_branch Lpre_done')
    E.e('Lnopre:')
    if Opt.qpf:
        e = E.e
        a, b, c = vT, vT+1, vT+2
        e(f's_mul_i32 s{sT0}, s{sWi}, {28*26}')
        e(f's_mul_i32 s{sT1}, s{sMT}, 28')
        e(f's_add_u32 s{sT0}, s{sT0}, s{sT1}')
        e(f'v_add_u32 v{a}, s{sT0}, v{vLane}')
        e(f'v_mul_u32_u24 v{b}, 13108, v{a}')
        e(f'v_lshrrev_b32 v{b}, 16, v{b}')
        e(f'v_mul_u32_u24 v{c}, 5, v{b}')
        e(f'v_sub_u32 v{c}, v{a}, v{c}')
        e(f'v_mul_u32_u24 v{b}, 9216, v{b}')
        e(f'v_lshl_add_u32 v{b}, v{c}, 7, v{b}')
        e(f's_mul_i32 s{sT0}, s{sFS}, 1152')
        e(f's_add_u32 s{sT0}, s{sT0}, 512')
        e('s_mov_b64 exec, 0xfffffff')
        e(f'buffer_load_dword v{vDum}, v{b}, {sr(srdW1)}, s{sT0} offen{Opt.nt}')
        e('s_mov_b64 exec, -1')
    E.e('Lpre_done:')
    return ids

KORD = [0, 2, 4, 6, 1, 3, 5, 7, 8, 10, 12, 14, 9, 11, 13, 15, 16, 17]
stubs = []
def mlp_main(E, cls, P, ts, pre_ids):
    e = E.e
    isP = cls == 'P'
    R = ODDR
    vSown = vSA if isP else vSB
    steps, groups, pairs, odds = [], [], [], []
    for gm in (1, 2):
        for k in range(18):
            kx = k if gm == 1 else KORD[k]
            hasodd = (gm == 1) != isP
            st = dict(gm=gm, k=k, x=k, g0=len(groups), odd=hasodd, xr={})
            rs = 9216 if gm == 1 else 1152
            hb = 4 if gm == 1 else 16
            st['pa'] = len(pairs)
            for h in range(2):
                pairs.append(dict(gm=gm, soff=kx*32*rs + h*hb*rs, reads=[], id=None))
            if hasodd:
                st['oi'] = len(odds); odds.append(dict(gm=gm, soff=kx*32*rs, id=None, reads=[]))
            for t in range(5 if hasodd else 4):
                groups.append(dict(step=len(steps), t=t, w=[]))
            st['ng'] = len(groups) - st['g0']
            steps.append(st)
    NG = len(groups); NM = 5*NG
    own, flo = ((0, 2) if isP else (4, 2))
    lastuse = {}
    deep = (not isP) and Opt.qdeep
    for n, p in enumerate(pairs):
        s_, h = divmod(n, 2); k = s_ % 18
        isflo = (k % 2 == 0) and (k > 0 or (isP and s_ == 0))
        p['slot'] = (flo if isflo else own) + h
        if deep and s_ >= 18 + 4:
            p['slot'] = [2, 0, 6, 4][(k - 4) % 4] + h
        p['prev'] = lastuse.get(p['slot']); lastuse[p['slot']] = n
    nxt = {p['prev']: n for n, p in enumerate(pairs) if p['prev'] is not None}
    pre = [[] for _ in range(NM)]
    gaps = [[] for _ in range(NM)]
    def stepm(s): return 5*steps[s]['g0'] if s < len(steps) else NM
    so0 = 18 if isP else 0
    PB, QB = 6, 3
    pbase = PB if isP else QB
    obase = 18 if isP else 0

    def wait_status(name, vaddr, thr, pre_id=None, part=0, vv=vS):
        if pre_id is None:
            vv = vS2
            pre_id = E.lg(f'ds_read_b32 v{vv}, v{vaddr}')
        if part != 2:
            E.need(pre_id)
            e(f'v_cmp_gt_u32 vcc, {thr}, v{vv}')
        if part == 1: return
        e(f's_cbranch_vccnz Lw{name}')
        e(f'Lr{name}:')
        stubs.extend([f'Lw{name}:', f'ds_read_b32 v{vv}, v{vaddr}', f's_add_u32 s{sSpin}, s{sSpin}, 1', f's_cmp_gt_u32 s{sSpin}, 0x100000', f's_cbranch_scc1 Lr{name}',
                      's_waitcnt lgkmcnt(0)', f'v_cmp_gt_u32 vcc, {thr}, v{vv}', f's_cbranch_vccz Lr{name}', 's_sleep 1', f's_branch Lw{name}'])
    def publish(val):
        e(f'v_mov_b32 v{vPg}, {val}')
        E.lg(f'ds_write_b32 v{vSW}, v{vPg}')
    def p_m0(n): e(f's_add_u32 m0, s{sRing}, {pairs[n]["slot"]*2048}')
    def p_so(n): e(f's_mov_b32 s{sD_}, {pairs[n]["soff"]}')
    def p_ld(n, i):
        it = pairs[n]
        if it['prev'] is not None and i == 0:
            assert len(pairs[it['prev']]['reads']) == 4
            E.need(*pairs[it['prev']]['reads'])
        va, sd = ((vD1a, vD1b), srdW1) if it['gm'] == 1 else ((vD2a, vD2b), srdW2)
        if Opt.x_nodma:
            e('s_nop 0'); x = ('vm', 0)
        else:
            x = E.vm(f'buffer_load_dwordx4 v{va[i]}, {sr(sd)}, s{sD_} offen{" offset:1024" if i else ""} lds')
        if i: it['id'] = x
    def p_all(n): p_m0(n); p_so(n); p_ld(n, 0); p_ld(n, 1)
    def o_m0(n): e(f's_add_u32 m0, s{sOddM}, {ODDOFF[(obase + n) % R]}')
    def o_so(n): e(f's_mov_b32 s{sD_}, {odds[n]["soff"]}')
    def o_ld(n):
        sd = srdW1 if odds[n]['gm'] == 1 else srdW2
        if Opt.x_nodma:
            e('s_nop 0'); odds[n]['id'] = ('vm', 0)
        else:
            odds[n]['id'] = E.vm(f'buffer_load_dwordx4 v{vDo}, {sr(sd)}, s{sD_} offen lds')
    def wreg(s, t): return vWF + 20*(s % 2) + 4*t
    def do_wread(s, t, h):
        st = steps[s]; g = st['g0'] + t
        if t < 4:
            n = st['pa'] + h
            E.need(pairs[n]['id'])
            i = E.lg(f'ds_read_b64_tr_b16 {vr(wreg(s,t)+2*h,2)}, v{vWt[t]} offset:{pairs[n]["slot"]*2048}')
            pairs[n]['reads'].append(i)
        else:
            n = st['oi']
            i = E.lg(f'ds_read_b64_tr_b16 {vr(wreg(s,t)+2*h,2)}, v{vWo} offset:{ODDOFF[(obase + n) % R] + h*2048}')
            odds[n]['reads'].append(i)
        groups[g]['w'].append(i)
    def do_xread(s, rt):
        idx = steps[s]['x']*5 + rt
        b0, b1 = (vX0, vX1) if steps[s]['gm'] == 2 else (vXg0, vXg1)
        vb, off = (b0, idx*1024) if idx < 45 else (b1, (idx-45)*1024)
        steps[s]['xr'][rt] = E.lg(f'ds_read_b128 {vr(vXF + 20*(s % 2) + 4*rt)}, v{vb} offset:{off}')

    TN = dict(Wa=[0,1,3,4], Wb=[10,11,13,14], X=[5,6,8,9,15], DA=[12,17], DAs=[8,9], DB=[2,7], DBs=[-2,-1], lg=19)
    TO = dict(Wa=[0,1,3,4], Wb=[14,15,16,18], X=[8,9,11,19,20], DA=[12,17], DAs=[8,9], DB=[2,7], DBs=[-2,-2], lg=24,
              Wo=[5,6], Sr=10, Pv=11, Sw=13, Cm=19, Br=21, Do=22, Dos=[18,20])
    if Opt.tmpl == 1:
        TO = dict(Wa=[0,1,3,4], Wb=[9,10,11,13], X=[14,15,16,18,19], DA=[17,22], DAs=[13,14], DB=[2,7], DBs=[-2,-2], lg=24,
                  Wo=[5,6], Sr=-4, Pv=18, Sw=20, Cm=8, Br=10, Do=12, Dos=[8,9])
    if Opt.tmpl == 2:
        TO = dict(Wa=[0,1,3,4], Wb=[13,14,15,16], X=[5,6,8,9,10], DA=[17,22], DAs=[13,14], DB=[7,12], DBs=[3,4], lg=24,
                  Wo=[18,19], Sr=11, Pv=5, Sw=20, Cm=21, Br=23, Do=27, Dos=[23,24], lag=1)
    manual = set()
    def at(s, g, f):
        if steps[s]['k'] == 0 and g < 0: pre[stepm(s)].append(f)
        else: gaps[stepm(s) + g].append(f)
    sread = {}
    gated = {26: QB+18, 30: QB+19, 34: QB+20} if isP else {}
    for s in range(36):
        st = steps[s]; T = TO if st['odd'] else TN; k = st['k']
        if k < 17:
            for h, key in ((0, 'Wa'), (1, 'Wb')):
                for t in range(4): at(s, T[key][t], lambda s=s, t=t, h=h: do_wread(s+1, t, h))
            if s+1 in gated:
                at(s, -4, lambda s=s: sread.__setitem__(('g', s), E.lg(f'ds_read_b32 v{vS2}, v{vSB}')))
                at(s, 3, lambda s=s: wait_status(f'Pg{s}', vSB, gated[s+1], sread[('g', s)], part=1, vv=vS2))
                at(s, 5, lambda s=s: (wait_status(f'Pg{s}', vSB, gated[s+1], sread[('g', s)], part=2, vv=vS2), ts.stamp(E)))
            for rt in range(5): at(s, T['X'][rt], lambda s=s, rt=rt: do_xread(s+1, rt))
            at(s, T['lg'], lambda s=s: E.need(*([steps[s+1]['xr'][0]] + groups[steps[s+1]['g0']]['w'])))
        def place(n, D, Ds):
            at(s, Ds[0], lambda n=n: p_m0(n)); at(s, Ds[1], lambda n=n: p_so(n))
            at(s, D[0], lambda n=n: p_ld(n, 0)); at(s, D[1], lambda n=n: p_ld(n, 1))
            manual.discard(n)
        def ok(n):
            return n is not None and not (pairs[n]['slot'] in (flo, flo+1) and (n // 36) != (pairs[n]['prev'] // 36))
        if k < 17 and ok(nxt.get(steps[s+1]['pa'])): place(nxt[steps[s+1]['pa']], T['DA'], T['DAs'])
        if k >= 1 and ok(nxt.get(st['pa'] + 1)): place(nxt[st['pa'] + 1], T['DB'], T['DBs'])
        if st['odd']:
            if k < 17:
                for h in range(2): at(s, T['Wo'][h], lambda s=s, h=h: do_wread(s+1, 4, h))
            if k < 16 and not Opt.x_nochk:
                at(s, T['Sr'], lambda k=k: sread.__setitem__(k, E.lg(f'ds_read_b32 v{vS}, v{vSown}')))
                at(s, T['Cm'], lambda k=k: wait_status(f'{cls}o{k}', vSown, pbase + k - 1, sread[k], part=1))
                at(s, T['Br'], lambda k=k: wait_status(f'{cls}o{k}', vSown, pbase + k - 1, sread[k], part=2))
            if k + R < 18:
                n = k + R
                at(s, T['Dos'][0], lambda n=n: o_m0(n)); at(s, T['Dos'][1], lambda n=n: o_so(n)); at(s, T['Do'], lambda n=n: o_ld(n))
            def pub(k=k, s=s, T=T):
                ids = list(steps[s]['xr'].values()) + pairs[steps[s]['pa']]['reads'] + pairs[steps[s]['pa']+1]['reads']
                if T.get('lag'):
                    ids += odds[k]['reads']
                elif k + 1 < 18: ids += odds[k+1]['reads']
                ids.append(odds[min(k + R - 2, 17)]['id'])
                E.need(*ids)
                E.lg(f'ds_write_b32 v{vSW}, v{vPg}')
            if not (Opt.x_nopub and (k not in (3, 7, 14, 16, 17))):
                at(s, T['Pv'], lambda k=k: e(f'v_mov_b32 v{vPg}, {pbase + k}')); at(s, T['Sw'], pub)
    if deep:
        at(19, 16, lambda: wait_status('Qe', vSA, PB + 17))
        for i, n in enumerate((46, 47, 48, 49)):
            at(20 + i // 2, 7 if i % 2 == 0 else 17, lambda n=n: p_all(n))
    if not isP:
        at(Opt.qsig, 15, lambda: e(f'v_mov_b32 v{vPg}, {QB + 21}'))
        at(Opt.qsig, 16, lambda: E.lg(f'ds_write_b32 v{vSW}, v{vPg}'))
    if isP:
        at(16, 0, lambda: e(f'v_mov_b32 v{vPg}, 1'))
        at(16, 2, lambda: (E.need(*(pairs[32]['reads'] + pairs[33]['reads'])), E.lg(f'ds_write_b32 v{vSW}, v{vPg}')))

    if isP:
        TL = Tail(E, ts)
    def mish_quad(src, dst, tb):
        T = [tb+i for i in range(4)]
        I = range(4)
        o = []
        if Opt.fold:
            o += [f'v_exp_f32 v{T[i]}, v{src+i}' for i in I]
        else:
            o += [f'v_mul_f32 v{T[i]}, {hex(LOG2E)}, v{src+i}' for i in I]
            o += [f'v_exp_f32 v{T[i]}, v{T[i]}' for i in I]
        o += [f'v_fma_f32 v{T[i]}, v{T[i]}, s{sC}, s{sC}' for i in I]
        o += [f'v_fma_f32 v{T[i]}, v{T[i]}, v{T[i]}, 0.5' for i in I]
        o += [f'v_rcp_f32 v{T[i]}, v{T[i]}' for i in I]
        o += [f'v_fma_f32 v{T[i]}, -v{src+i}, v{T[i]}, v{src+i}' for i in I]
        o += [f'v_cvt_pk_bf16_f32 v{dst}, v{T[0]}, v{T[1]}', f'v_cvt_pk_bf16_f32 v{dst+1}, v{T[2]}, v{T[3]}']
        if Opt.x_nomish: o = o[-2:]
        if Opt.mnop >= 0:
            o2 = []; acc = 0
            for op in o:
                o2.append(op)
                acc += 8 if ('exp' in op or 'rcp' in op) else 4
                if acc >= 8:
                    o2.append(f's_nop {Opt.mnop}'); acc = 0
            o = o2
        return o
    def mish_rt(hf, rt):
        a0, a1 = vAcc + 40*hf + 4*rt, vAcc + 40*hf + 20 + 4*rt
        for o in mish_quad(a0, a0, vT): e(o)
        for o in mish_quad(a1, a0+2, vT+4): e(o)
    def wr(hf, rt):
        if Opt.x_nowr: return ('lg', 0)
        return E.lg(f'ds_write_b128 v{vAW}, {vr(vAcc + 40*hf + 4*rt)} offset:{hf*20480 + rt*1024}')
    def w_stage_ops(s0):
        L = [(lambda t=t, h=h: do_wread(s0, t, h)) for h in range(2) for t in range(4)]
        for n in (steps[s0+1]['pa'], steps[s0+1]['pa'] + 1):
            L += [lambda n=n: (p_m0(n), p_so(n), p_ld(n, 0)), lambda n=n: p_ld(n, 1)]
        return L
    def w_stage(s0):
        for f in w_stage_ops(s0): f()
    side = []
    def valu_phase():
        clk = E.clock; E.clock = None
        ts.stamp(E)
        e('s_setprio 0')
        if isP:
            publish(2)
            e('s_nop 4')
            w = []
            for rt in range(Opt.pw0): mish_rt(0, rt)
            wait_status('Pa', vSA, 2)
            wait_status('Pb', vSB, QB + 3)
            pend = [(0, rt) for rt in range(Opt.pw0)]
            def mish_w(hf, rt):
                a0, a1 = vAcc + 40*hf + 4*rt, vAcc + 40*hf + 20 + 4*rt
                for (src, dst, tb) in ((a0, a0, vT), (a1, a0+2, vT+4)):
                    ops = mish_quad(src, dst, tb)
                    for i, o in enumerate(ops):
                        e(o)
                        if pend and pend[0][0] <= allowed[0] and i == len(ops) // 2: w.append(wr(*pend.pop(0)))
                        if side and i in (3, len(ops) - 4): side.pop(0)()
                pend.append((hf, rt))
            allowed = [0]
            for rt in range(Opt.pw0, 5): mish_w(0, rt)
            side.extend(w_stage_ops(18))
            for rt in range(5):
                if rt == Opt.pw1:
                    wait_status('Pb2', vSB, QB + 7); allowed[0] = 1
                mish_w(1, rt)
            assert not side
            for x in pend: w.append(wr(*x))
            ts.stamp(E)
            E.need(*w)
            publish(3)
            wait_status('Pc0', vSB, QB + 14)
            for n in range(3):
                o_m0(n); o_so(n); o_ld(n)
            E.need(odds[2]['id'])
            publish(4)
            wait_status('Pd', vSA, 4)
            for h in range(2): do_wread(18, 4, h)
            for rt in range(5): do_xread(18, rt)
            E.need(*odds[0]['reads'])
            publish(5)
            wait_status('Pc3', vSB, QB + 16)
            p_all(40); p_all(41)
            for n in range(3, R):
                o_m0(n); o_so(n); o_ld(n)
        else:
            e('s_nop 7')
            for rt in range(2): mish_rt(0, rt)
            wait_status('Qa', vSB, QB + 17)
            wait_status('Qp', vSA, 2)
            w = [wr(0, 0), wr(0, 1)]
            for rt in range(2, 5):
                mish_rt(0, rt); w.append(wr(0, rt))
            E.need(*w); publish(QB + 18)
            w = []
            for rt in range(5):
                mish_rt(1, rt); w.append(wr(1, rt))
            E.need(*w); publish(QB + 19)
            w = []
            for rt in range(5):
                a0 = vAcc + 80 + 4*rt
                for o in mish_quad(a0, a0, vT + 4*(rt & 1)): e(o)
                w.append(E.lg(f'ds_write_b64 v{vAWo}, {vr(a0,2)} offset:{rt*1024}'))
            E.need(*w); publish(QB + 20)
            ts.stamp(E)
            for f in w_stage_ops(18):
                f(); e('s_sleep 1')
            wait_status('Qc', vSB, QB + 20)
            wait_status('Qd', vSA, 3)
            for rt in range(5): do_xread(18, rt)
            wait_status('Qb', vSA, PB + 16)
            p_all(40); p_all(41)
        e('s_setprio 1')
        ts.stamp(E)
        E.clock = clk
    if not isP:
        pre[0].append(lambda: ts.val(E, sSpin)); pre[stepm(18)].append(lambda: ts.val(E, sSpin))
    pre[stepm(18)].insert(0, valu_phase)
    if Opt.fine:
        lo_, st_ = [int(x) for x in Opt.fine.split(',')]
        for i in range(13):
            if lo_ + i*st_ < 36: pre[stepm(lo_ + i*st_)].append(lambda: ts.stamp(E, True))

    if isP:
        for n in range(4): pairs[n]['id'] = pre_ids[n]
    def small_setup():
        E.need(*P['bl'])
        for i in range(4 if isP else 5):
            r = vBraw + 2*i; d = vAcc + 20*i + 16
            e(f'v_lshlrev_b32 v{d}, 16, v{r}')
            e(f'v_and_b32 v{d+1}, 0xffff0000, v{r}')
            e(f'v_lshlrev_b32 v{d+2}, 16, v{r+1}')
            e(f'v_and_b32 v{d+3}, 0xffff0000, v{r+1}')
            if Opt.fold:
                for j in range(4): e(f'v_mul_f32 v{d+j}, {hex(LOG2E)}, v{d+j}')
        E.need(*P['fl'])
        e(f'v_readlane_b32 s{sFlA+3}, v{vFlOld}, 0')
        e(f'v_readlane_b32 s{sFlO+3}, v{vFlOld}, 1')
    if isP: small_setup()
    if Opt.x_warm:
        a, b, c = vT, vT+1, vT+2
        e(f's_mul_i32 s{sT0}, s{sMT}, 200')
        e(f's_mul_i32 s{sT1}, s{sWi}, 50')
        e(f's_add_u32 s{sT0}, s{sT0}, s{sT1}')
        e(f'v_add_u32 v{a}, s{sT0}, v{vLane}')
        if isP:
            e(f'v_mul_u32_u24 v{b}, 7282, v{a}')
            e(f'v_lshrrev_b32 v{b}, 16, v{b}')
            e(f'v_mul_u32_u24 v{c}, 9, v{b}')
            e(f'v_sub_u32 v{c}, v{a}, v{c}')
            e(f'v_mul_u32_u24 v{b}, 9216, v{b}')
            e(f'v_lshl_add_u32 v{b}, v{c}, 7, v{b}')
            e(f's_mul_i32 s{sT0}, s{sFS}, 1152')
            E.vm(f'buffer_load_dword v{vDum}, v{b}, {sr(srdW1)}, s{sT0} offen{Opt.nt}')
        else:
            e(f'v_lshlrev_b32 v{b}, 7, v{a}')
            e(f's_mul_i32 s{sT0}, s{sFS}, 663552')
            E.vm(f'buffer_load_dword v{vDum}, v{b}, {sr(srdW2)}, s{sT0} offen')
        E.all_vm()
        for i in range(3): e('s_sleep 127')
    if isP:
        for h in range(2):
            for t in range(4): do_wread(0, t, h)
        p_all(4); p_all(5)
        poison(E)
    e('s_waitcnt lgkmcnt(0)'); E.lg_done = E.lg_n - 1
    ts.stamp(E)
    e('s_barrier')
    e(f's_setprio {3 if isP else 2}')
    for rt in range(5): do_xread(0, rt)
    if not isP:
        small_setup()
        if Opt.qpf: e('s_waitcnt vmcnt(0)'); e('s_sleep 8')
        for n in range(2): p_all(n)
        for n in range(R):
            o_m0(n); o_so(n); o_ld(n)
        w_stage(0)
        E.need(odds[R-1]['id'])
        publish(1)
        wait_status('Qr', vSB, 1)
        for h in range(2): do_wread(0, 4, h)
        E.need(*odds[0]['reads'])
        publish(2)
        wait_status('Qs', vSA, 1)
        p_all(4); p_all(5)
    for m in range(NM):
        g, rt = divmod(m, 5)
        G = groups[g]; s = G['step']; st = steps[s]
        E.clock = m
        for f in pre[m]: f()
        assert len(G['w']) == 2, (cls, m, g)
        E.need(*(G['w'] + [st['xr'][rt]]))
        ab = vAcc + 20*G['t']; d = ab + 4*rt
        c = vr(d)
        if st['k'] == 0: c = vr(ab + 16) if st['gm'] == 1 else '0'
        e(f'v_mfma_f32_16x16x32_bf16 {vr(d)}, {vr(wreg(s, G["t"]))}, {vr(vXF + 20*(s % 2) + 4*rt)}, {c}')
        for f in gaps[m]: f()
    assert all(p['id'] for p in pairs) and all(len(p['reads']) == 4 for p in pairs)
    E.clock = None
    ts.stamp(E)
    e('s_setprio 0')
    e('s_nop 6')
    def pack(u, rt):
        a0, a1 = vAcc + 40*u + 4*rt, vAcc + 40*u + 20 + 4*rt
        e(f'v_cvt_pk_bf16_f32 v{a0}, v{a0}, v{a0+1}')
        e(f'v_cvt_pk_bf16_f32 v{a0+1}, v{a0+2}, v{a0+3}')
        e(f'v_cvt_pk_bf16_f32 v{a0+2}, v{a1}, v{a1+1}')
        e(f'v_cvt_pk_bf16_f32 v{a0+3}, v{a1+2}, v{a1+3}')
        return a0
    if not isP:
        e(f's_cmp_eq_u32 s{sLine2}, s{sFin}')
        e('s_cbranch_scc1 Lq_own')
        for u in range(2):
            for rt in range(5):
                a0 = pack(u, rt)
                e(f's_mov_b32 s{sT0}, {rt*18432}')
                e(f'buffer_store_dwordx4 {vr(a0)}, v{vP}, {sr(srdWS)}, s{sT0} offen offset:{u*1024}{SC}')
        e('s_branch Lq_end')
        e('Lq_own:')
        e(f'v_add_u32 v{vT}, s{sRing}, v{vX0}')
        for u in range(2):
            for rt in range(5):
                a0 = pack(u, rt)
                e(f'ds_write_b128 v{vT}, {vr(a0)} offset:{(5*u + rt)*1024}')
        e('s_waitcnt lgkmcnt(0)')
        e('Lq_end:')
        publish(QB + 22)
        if Opt.ts:
            e('s_waitcnt vmcnt(0)')
            ts.stamp(E)
            ts.flush(E, vT)
        e('s_endpgm')
        return
    sts = []
    def st_main(u, rt):
        a0 = pack(u, rt)
        e(f's_mov_b32 s{sT0}, {rt*18432}')
        if len(sts) >= Opt.sthr: E.need(sts[-Opt.sthr])
        sts.append(E.vm(f'buffer_store_dwordx4 {vr(a0)}, v{vP}, {sr(srdWS)}, s{sT0} offen offset:{u*1024}{SC}'))
    def st_odd(rt):
        a0 = vAcc + 80 + 4*rt
        e(f'v_cvt_pk_bf16_f32 v{a0}, v{a0}, v{a0+1}')
        e(f'v_cvt_pk_bf16_f32 v{a0+1}, v{a0+2}, v{a0+3}')
        e(f's_mov_b32 s{sT0}, {rt*18432}')
        if len(sts) >= Opt.sthr: E.need(sts[-Opt.sthr])
        sts.append(E.vm(f'buffer_store_dwordx2 {vr(a0,2)}, v{vPo}, {sr(srdWS)}, s{sT0} offen{SC}'))
    todo = [(lambda u=u, rt=rt: st_main(u, rt)) for u in range(2) for rt in range(5)] + [(lambda rt=rt: st_odd(rt)) for rt in range(5)]
    for f in todo: f()
    TL.setup()
    e(f'v_mov_b32 v{vT}, 0')
    e(f's_add_u32 s{sFlA+3}, s{sFlA+3}, 1')
    e(f's_add_u32 s{sFlO+3}, s{sFlO+3}, 1')
    e(f'v_mov_b32 v{vT+1}, s{sFlA+3}')
    e(f'v_mov_b32 v{vT+2}, s{sFlO+3}')
    e('s_mov_b64 exec, 1')
    E.need(*sts[:10])
    E.vm(f'buffer_store_dword v{vT+1}, v{vT}, {sr(srdWS)}, s{sFlA} offen{SC}')
    E.need(*sts)
    E.vm(f'buffer_store_dword v{vT+2}, v{vT}, {sr(srdWS)}, s{sFlO} offen{SC}')
    e('s_mov_b64 exec, -1')
    ts.stamp(E)
    TL.run(lambda: wait_status('Pt', vSB, QB + 21))

def gpoll(E, name, vcur, vadr, sb, vold, mask, have=False, sleep=None):
    e = E.e
    e('s_mov_b32 s10, 0')
    if have: e(f's_branch L{name}_c')
    e(f'L{name}:')
    e(f'buffer_load_dword v{vcur}, v{vadr}, {sr(srdWS)}, s{sb} offen{SC}')
    e('s_waitcnt vmcnt(0)')
    e(f'L{name}_c:')
    e(f'v_cmp_ne_u32 vcc, v{vcur}, v{vold}')
    e(f's_and_b64 s[12:13], vcc, s[{mask}:{mask+1}]')
    e(f's_cmp_eq_u64 s[12:13], s[{mask}:{mask+1}]')
    e(f's_cbranch_scc1 L{name}_ok')
    e(f's_sleep {sleep or Opt.psleep}')
    e('s_add_u32 s10, s10, 1')
    e('s_cmp_lt_u32 s10, 0x20000')
    e(f's_cbranch_scc1 L{name}')
    e(f'L{name}_ok:')
    if not have: E.vm_done = E.vm_n - 1

def late_block_soff(E, dst, b_expr_reg):
    pass

def block_ur(E, s_):
    e = E.e
    e(f's_add_u32 s13, s{sWi}, {4*s_}')
    e(f's_lshl_b32 s14, s{sFin}, 1')
    e('s_cmp_ge_u32 s13, 5')
    e(f's_cselect_b32 s{sT0}, 5, 0')
    e('s_addc_u32 s14, s14, 0')
    e(f's_sub_u32 s15, s13, s{sT0}')

def piece_off(E, dst, u, r):
    e = E.e
    e(f's_mul_i32 s{dst}, s{sMT}, 5')
    e(f's_add_u32 s{dst}, s{dst}, s{r}')
    e(f's_mul_i32 s{dst}, s{dst}, 18432')
    e(f's_lshl_b32 s{sT1}, s{u}, 10')
    e(f's_add_u32 s{dst}, s{dst}, s{sT1}')

def late_slabs(E, d0):
    for k in range(3):
        E.e(f's_add_u32 s{d0+k}, s{sFS}, {2*(k+1)}')
        E.e(f's_and_b32 s{d0+k}, s{d0+k}, 7')
        E.e(f's_mul_i32 s{d0+k}, s{d0+k}, {PSTRIDE}')

def poison(E):
    e = E.e
    for i in range(4): e(f'v_mov_b32 v{228+i}, -1')
    late_slabs(E, 64)
    ids = []
    for s_ in range(3):
        block_ur(E, s_)
        piece_off(E, 12, 14, 15)
        if s_ == 2:
            e('s_cmp_ge_u32 s13, 10')
            e('s_cselect_b32 s12, 0x40000000, s12')
        for k in range(3):
            e(f's_add_u32 s{sT0}, s12, s{64+k}')
            if len(ids) >= Opt.pthr: E.need(ids[-Opt.pthr])
            ids.append(E.vm(f'buffer_store_dwordx4 v[228:231], v{vX0}, {sr(srdWS)}, s{sT0} offen{SC}'))

class Tail:
    def __init__(self, E, ts):
        self.E, self.ts = E, ts
    def slot_addr(self, d, u, r):
        e = self.E.e
        e(f's_min_u32 s{sT0}, s{r}, 4')
        e(f's_lshl_b32 s{sT0}, s{sT0}, 4')
        e(f'v_add_u32 v8, s{sT0}, v4')
        e('v_mul_u32_u24 v9, 205, v8')
        e('v_lshrrev_b32 v9, 11, v9')
        e('v_mul_u32_u24 v9, 176, v9')
        e('v_lshl_add_u32 v9, v8, 3, v9')
        e(f'v_add_u32 v9, {SCR}, v9')
        d['st'] = self.E.lg(f'ds_read_b64 {vr(d["ST"],2)}, v9')
        e(f's_mul_i32 s{sT0}, s{sMT}, 80')
        e(f'v_add_u32 v8, s{sT0}, v8')
        e(f'v_mul_u32_u24 v{d["xa"]}, 1152, v8')
        e(f'v_lshl_add_u32 v{d["xa"]}, v6, 5, v{d["xa"]}')
        e(f'v_lshl_add_u32 v{d["xa"]}, v5, 4, v{d["xa"]}')
        e(f's_lshl_b32 s{sT0}, s{u}, 6')
        e(f'v_add_u32 v{d["xa"]}, s{sT0}, v{d["xa"]}')
        e(f'v_lshlrev_b32 v{d["ya"]}, 4, v8')
        e(f'v_lshl_add_u32 v{d["ya"]}, v5, 15, v{d["ya"]}')
        e(f'v_lshl_add_u32 v{d["ya"]}, v6, 16, v{d["ya"]}')
        e(f's_lshl_b32 s{sT0}, s{u}, 17')
        e(f's_add_u32 s{sT0}, s{sT0}, {WS_Y}')
        e(f'v_add_u32 v{d["ya"]}, s{sT0}, v{d["ya"]}')
        piece_off(self.E, d['sP'], u, r)
    sME, sMY, sMO, sMYO = 30, 32, 28, 40
    sFb, sFo = 26, 27
    vFa, vCur, vCur2 = 236, 237, 238
    def sample0(self):
        e = self.E.e
        e(f'v_lshlrev_b32 v{self.vFa}, 2, v{vLane}')
        flag_base(self.E, self.sFo)
    def sample1(self):
        e = self.E.e
        e(f's_lshl_b32 s{self.sFb}, s{sFin}, 8')
        e(f's_add_u32 s{self.sFb}, s{self.sFb}, s{self.sFo}')
        self.f1 = self.E.vm(f'buffer_load_dword v{self.vCur}, v{self.vFa}, {sr(srdWS)}, s{self.sFb} offen{SC}')
    def sample2(self):
        self.E.e(f's_add_u32 s{self.sFo}, s{self.sFo}, {8*FLB}')
        self.f2 = self.E.vm(f'buffer_load_dword v{self.vCur2}, v{self.vFa}, {sr(srdWS)}, s{self.sFo} offen{SC}')
    def poll2(self, name, m1, m2, have):
        E = self.E; e = E.e
        e('s_mov_b32 s10, 0')
        if have: e(f's_branch L{name}_c')
        e(f'L{name}:')
        e(f'buffer_load_dword v{self.vCur}, v{self.vFa}, {sr(srdWS)}, s{self.sFb} offen{SC}')
        e(f'buffer_load_dword v{self.vCur2}, v{self.vFa}, {sr(srdWS)}, s{self.sFo} offen{SC}')
        e('s_waitcnt vmcnt(0)')
        e(f'L{name}_c:')
        e(f'v_cmp_eq_u32 vcc, v{self.vCur}, v0')
        e(f'v_cmp_eq_u32 s[12:13], v{self.vCur2}, v{vOld2}')
        e(f's_and_b64 vcc, vcc, s[{m1}:{m1+1}]')
        e(f's_and_b64 s[12:13], s[12:13], s[{m2}:{m2+1}]')
        e('s_or_b64 s[12:13], s[12:13], vcc')
        e(f's_cbranch_scc0 L{name}_ok')
        e(f's_sleep {Opt.esleep}')
        e('s_add_u32 s10, s10, 1')
        e('s_cmp_lt_u32 s10, 0x20000')
        e(f's_cbranch_scc1 L{name}')
        e(f'L{name}_ok:')
        if not have: E.vm_done = E.vm_n - 1
    def setup(self):
        E = self.E; e = E.e
        srd(E, srdB1, sOUT, S*D*2)
        e(f's_mov_b32 s{self.sME}, 0x10101010')
        e(f's_and_b32 s{sT0}, s{sFS}, 1')
        e(f's_lshl_b32 s{sT0}, s{sT0}, 2')
        e(f's_lshr_b32 s{self.sME}, s{self.sME}, s{sT0}')
        e(f's_mov_b32 s{self.sME+1}, 0')
        e('s_mov_b32 s43, 0')
        e(f's_mov_b64 s[{self.sMO}:{self.sMO+1}], 0')
        e(f'v_lshlrev_b32 v{self.vFa}, 2, v{vLane}')
        flag_base(E, self.sFo)
        e(f's_lshl_b32 s{self.sFb}, s{sFin}, 8')
        e(f's_add_u32 s{self.sFb}, s{self.sFb}, s{self.sFo}')
        e(f's_add_u32 s{self.sFo}, s{self.sFo}, {8*FLB}')
        e('s_mov_b32 s32, 0x3f80')
        e('s_mov_b32 s33, 0x3f800000')
        e('s_mov_b32 s40, 0x3f317218' if Opt.fold else 's_mov_b32 s40, 1.0')
        e('v_and_b32 v4, 15, v1')
        e('v_lshrrev_b32 v5, 4, v1')
        e('v_and_b32 v6, 1, v5')
        e('v_lshrrev_b32 v5, 1, v5')
        e('v_lshlrev_b32 v7, 4, v1')
        self.sl = []
        for s_ in range(3):
            B = 36 + 24*s_; W = 116 + 40*s_
            d = dict(XR=B, YR=B, ST=B+4, xa=B+6, ya=B+7, X=B+8, N=B+16, EP=W, LP=W+16, SUM=W+32, sP=34+s_, sB=37+s_)
            self.sl.append(d)
            block_ur(E, s_)
            e(f's_lshl_b32 s{d["sB"]}, s13, 10')
            if s_ == 2:
                e(f's_cmp_lt_u32 s{sWi}, 2')
                e('s_cbranch_scc1 Ls3_done')
                e(f's_sub_u32 s{sT0}, s{sWi}, 2')
                e(f's_lshl_b32 s{sT0}, s{sT0}, 3')
                e(f's_add_u32 s{sT0}, s{sT0}, s{sFS}')
                e(f's_cmp_ge_u32 s{sT0}, 5')
                e(f's_cselect_b32 s{sT1}, 5, 0')
                e('s_cselect_b32 s14, 17, 16')
                e(f's_sub_u32 s15, s{sT0}, s{sT1}')
                e('s_cmp_lt_u32 s15, 5')
                e(f's_cselect_b32 s{self.sMO}, -1, 0')
                e('s_cselect_b32 s43, 0xff, 0')
                e('Ls3_done:')
                e('s_mov_b32 s42, s15')
            self.slot_addr(d, 14, 15)
            d['xl'] = E.vm(f'buffer_load_dwordx4 {vr(d["XR"])}, v{d["xa"]}, {sr(srdX)}, 0 offen')
        late_slabs(E, 64)
        e(f's_and_b32 s67, s{sFS}, 1')
        e('s_xor_b32 s67, s67, 1')
        e(f's_mul_i32 s67, s67, {PSTRIDE}')
    def unpack(self, dst, src, n=4):
        for j in range(n):
            self.E.e(f'v_lshlrev_b32 v{dst+2*j}, 16, v{src+j}')
            self.E.e(f'v_and_b32 v{dst+2*j+1}, 0xffff0000, v{src+j}')
    def add(self, d, src, first, pk):
        e = self.E.e; SUM = d['SUM']; T = vT
        if Opt.dot:
            for j in range(8):
                e(f'v_dot2_f32_bf16 v{SUM+j}, v{src + j//2}, s{32 + (j & 1)}, {"0" if first else f"v{SUM+j}"}')
            return
        self.unpack(SUM if first else T, src)
        if first: return
        if pk:
            for j in range(4): e(f'v_pk_add_f32 {vr(SUM+2*j,2)}, {vr(SUM+2*j,2)}, {vr(T+2*j,2)}')
        else:
            for j in range(8): e(f'v_add_f32 v{SUM+j}, v{SUM+j}, v{T+j}')
    def xn(self, d):
        E = self.E; e = E.e; T = vT
        X, N = d['X'], d['N']
        E.need(d['st'], d['xl'])
        self.unpack(X, d['XR'])
        def rnd(b):
            for j in range(4): e(f'v_cvt_pk_bf16_f32 v{T+j}, v{b+2*j}, v{b+2*j+1}')
            self.unpack(b, T)
        for i in range(8): e(f'v_sub_f32 v{N+i}, v{X+i}, v{d["ST"]}')
        rnd(N)
        for i in range(8): e(f'v_mul_f32 v{N+i}, v{N+i}, v{d["ST"]+1}')
        rnd(N)
    def tterm(self, d):
        E = self.E; e = E.e; T = vT
        E.need(d['yl'])
        self.unpack(T, d['YR'])
        for i in range(8): e(f'v_fma_f32 v{d["N"]+i}, v{d["N"]+i}, v{T+i}, v{d["X"]+i}')
    def final(self, d, so='0'):
        E = self.E; e = E.e
        SUM, N, X = d['SUM'], d['N'], d['X']
        e('s_nop 2')
        for j in range(4): e(f'v_permlane16_swap_b32 v{SUM+j}, v{SUM+4+j}')
        for i in range(8): e(f'v_fma_f32 v{N+i}, v{SUM+i}, s40, v{N+i}')
        for j in range(4): e(f'v_cvt_pk_bf16_f32 v{X+j}, v{N+2*j}, v{N+2*j+1}')
        E.vm(f'buffer_store_dwordx4 {vr(X)}, v{d["xa"]}, {sr(srdB1)}, {so} offen')
    def run(self, gate1):
        E = self.E; e = E.e; ts = self.ts; sl = self.sl
        for d in sl: self.xn(d)
        gate1()
        self.poll2('pe', self.sME, self.sMO, False)
        e(f's_mov_b32 s{self.sME}, 0')
        e(f's_mov_b32 s{self.sME+1}, 0x55')
        e(f's_mov_b32 s{self.sMO}, 0')
        e(f's_mov_b32 s{self.sMO+1}, s43')
        ts.stamp(E)
        tsn = ts.n
        e(f's_cmp_ge_u32 s{sWi}, 2')
        e('s_cbranch_scc1 Ltail2')
        st0 = E.state()
        for nreg in (3, 2):
            ts.n = tsn
            if nreg == 2:
                e('Ltail2:'); E.set_state(st0)
            reg = sl[:nreg]
            for d in reg:
                d['el'] = []
                e(f's_add_u32 s{sT0}, s{d["sP"]}, s67')
                for i in range(4):
                    if i: e(f's_add_u32 s{sT0}, s{sT0}, {2*PSTRIDE}')
                    d['el'].append(E.vm(f'buffer_load_dwordx4 {vr(d["EP"]+4*i)}, v7, {sr(srdWS)}, s{sT0} offen{SC}'))
            if nreg == 2:
                d = sl[2]
                e('s_cmp_ge_u32 s42, 5')
                e(f's_cselect_b32 s{sT0}, 0x40000000, s{d["sP"]}')
                e('s_cselect_b32 s42, 0x40000000, 0')
                e('v_lshlrev_b32 v10, 3, v1')
                ol = []
                for p in range(8):
                    if p: e(f's_add_u32 s{sT0}, s{sT0}, {PSTRIDE}')
                    r = d['EP'] + 4*p
                    E.vm(f'buffer_load_dwordx2 {vr(r,2)}, v10, {sr(srdWS)}, s{sT0} offen{SC}')
                    ol.append(E.vm(f'buffer_load_dwordx2 {vr(r+2,2)}, v10, {sr(srdWS)}, s{sT0} offen offset:512{SC}'))
            for d in reg:
                for i in range(4):
                    E.need(d['el'][i]); self.add(d, d['EP'] + 4*i, i == 0, False)
            if nreg == 2:
                d = sl[2]
                for p in range(8):
                    E.need(ol[p]); self.add(d, d['EP'] + 4*p, p == 0, False)
            self.poll2(f'py{nreg}', self.sME, self.sMO, True)
            for d in sl:
                d['yl'] = E.vm(f'buffer_load_dwordx4 {vr(d["YR"])}, v{d["ya"]}, {sr(srdWS)}, 0 offen{SC}')
            e(f'Lg2w{nreg}:')
            e(f'ds_read_b32 v{vS2}, v{vSB}')
            e('s_waitcnt lgkmcnt(0)')
            e(f'v_cmp_gt_u32 vcc, {3 + 22}, v{vS2}')
            e(f's_cbranch_vccz Lg2k{nreg}')
            e('s_sleep 1')
            e(f's_branch Lg2w{nreg}')
            e(f'Lg2k{nreg}:')
            ts.stamp(E)
            e('s_setprio 3')
            e('s_mov_b32 s10, 0')
            e(f's_lshr_b32 s{sT0}, s{sFS}, 1')
            e(f's_lshl_b32 s{sT0}, s{sT0}, 14')
            e(f's_add_u32 s{sT0}, s{sT0}, {XA_BYTES}')
            e(f'v_add_u32 v10, s{sT0}, v7')
            for d in reg:
                e(f'v_add_u32 v11, s{d["sB"]}, v10')
                d['ol'] = E.lg(f'ds_read_b128 {vr(d["LP"]+12)}, v11')
            e(f'Llate{nreg}:')
            for d in reg:
                for k in range(3):
                    e(f's_add_u32 s{sT0}, s{d["sP"]}, s{64+k}')
                    e(f'buffer_load_dwordx4 {vr(d["LP"]+4*k)}, v7, {sr(srdWS)}, s{sT0} offen{SC}')
            e('s_cmp_lg_u32 s10, 0')
            e(f's_cbranch_scc1 Llw{nreg}')
            for d in reg:
                E.need(d['ol']); self.add(d, d['LP'] + 12, False, True)
            e(f's_waitcnt vmcnt({3*nreg})')
            E.vm_done = E.vm_n - 1
            for d in sl: self.tterm(d)
            e(f'Llw{nreg}:')
            e('v_mov_b32 v10, 0')
            n = 3*nreg
            for di, d in enumerate(reg):
                for k in range(3):
                    n -= 1
                    e(f's_waitcnt vmcnt({n})')
                    r = d['LP'] + 4*k
                    e(f'v_max3_u32 v10, v10, v{r}, v{r+1}')
                    e(f'v_max3_u32 v10, v10, v{r+2}, v{r+3}')
            e('v_cmp_eq_u32 vcc, -1, v10')
            e(f's_cbranch_vccz Llok{nreg}')
            e('s_add_u32 s10, s10, 1')
            e('s_cmp_lt_u32 s10, 0x8000')
            e(f's_cbranch_scc1 Llate{nreg}')
            e(f'Llok{nreg}:')
            E.vm_done = E.vm_n - 1
            for d in reg:
                for k in range(3): self.add(d, d['LP'] + 4*k, False, True)
                self.final(d)
            if nreg == 2: self.final(sl[2], 's42')
            if Opt.ts:
                E.all_vm()
                ts.stamp(E)
                ts.flush(E, vT)
            e('s_endpgm')

RS = 4672
HS = 4160
HS2 = 2112
HB0 = 0
HB1 = HB0 + 4*4*HS
KVB = HB1 + 4*2*HS2
assert KVB + 16*RS <= LDS_BYTES - 64 and KVB % 256 == 0
def conv(E):
    e = E.e
    ts = TS(); ts.conv = True
    ts.stamp(E)
    sCT, sCh, sHB, sIt, sIdx = 10, 11, 6, 9, 5
    sMode, sLoc, sHsel, sWi_, sHS = 12, 13, 14, 42, 43
    e(f's_cmp_eq_u32 s{sIdx}, 5')
    e('s_cbranch_scc1 Lhelper')
    e(f's_lshl_b32 s{sCT}, s{sFS}, 2')
    e(f's_add_u32 s{sCT}, s{sCT}, s{sIdx}')
    e(f's_and_b32 s{sWi_}, s{sWave}, 3')
    e(f's_mov_b32 s{sMode}, 0')
    e(f's_mov_b32 s{sHsel}, 0')
    e(f's_lshl_b32 s{sLoc}, s{sWi_}, 2')
    e(f's_cmp_lt_u32 s{sIdx}, 4')
    e('s_cbranch_scc1 Lconv_go')
    e(f's_lshr_b32 s{sCT}, s{sFS}, 1')
    e(f's_add_u32 s{sCT}, s{sCT}, 32')
    e(f's_mov_b32 s{sMode}, 1')
    e(f's_and_b32 s{sHsel}, s{sFS}, 1')
    e(f's_lshl_b32 s{sLoc}, s{sHsel}, 2')
    e(f's_add_u32 s{sLoc}, s{sLoc}, s{sWi_}')
    e(f's_lshl_b32 s{sLoc}, s{sLoc}, 1')
    if Opt.cdelay: e(f's_sleep {Opt.cdelay}')
    e('Lconv_go:')
    srd(E, srdSSMK, sSSMK, D*S*2)
    e(f's_lshl_b32 s{sCh}, s{sCT}, 4')
    e(f's_add_u32 s{sCh}, s{sCh}, s{sLoc}')
    e(f'v_lshlrev_b32 v12, 7, v{vLane}')
    e(f's_lshl_b32 s15, s{sCh}, 12')
    e(f's_cmp_ge_u32 s{sWave}, 4')
    e('s_cbranch_scc1 Lconv_nw')
    e('s_mov_b32 exec_hi, 0')
    e(f'buffer_load_dword v15, v12, {sr(srdSSMK)}, s15 offen{Opt.nt}')
    e('s_mov_b32 exec_hi, -1')
    e('s_branch Lconv_nw2')
    e('Lconv_nw:')
    e('s_getpc_b64 s[64:65]')
    e('Lcpc:')
    e(f's_lshl_b32 s{sT0}, s{sIdx}, 2')
    e(f's_add_u32 s{sT0}, s{sT0}, s{sWi_}')
    e(f's_mul_i32 s{sT0}, s{sT0}, 128*((Lhelper-Lcpc+20*128-1)/(20*128))')
    e(f'v_add_u32 v13, s{sT0}, v12')
    e('v_min_u32 v13, Lhelper-Lcpc-4, v13')
    e(f'v_cmp_gt_u32 vcc, (Lhelper-Lcpc+20*128-1)/(20*128), v{vLane}')
    e('s_and_saveexec_b64 s[66:67], vcc')
    e('global_load_dword v15, v13, s[64:65]')
    e('s_mov_b64 exec, s[66:67]')
    e('Lconv_nw2:')
    vZ = 244
    for i in range(4): e(f'v_mov_b32 v{vZ+i}, 0')
    e(f's_mul_i32 s{sHB}, s{sWi_}, {4*HS}')
    e(f's_add_u32 s{sHB}, s{sHB}, {HB0}')
    e(f's_mul_i32 s{sT0}, s{sWi_}, {2*HS2}')
    e(f's_add_u32 s{sT0}, s{sT0}, {HB1}')
    e(f's_movk_i32 s{sT1}, {HS2}')
    e(f's_cmp_ge_u32 s{sWave}, 4')
    e(f's_cselect_b32 s{sHB}, s{sT0}, s{sHB}')
    e(f's_cselect_b32 s{sHS}, s{sT1}, {HS}')
    e(f's_cselect_b32 s{sT0}, 3, 7')
    e('v_lshrrev_b32 v13, 5, v0')
    e(f'v_mul_u32_u24 v13, {RS}, v13')
    e('v_and_b32 v14, 31, v0')
    e('v_lshl_add_u32 v13, v14, 4, v13')
    e(f'v_add_u32 v13, {KVB}, v13')
    E.lg(f'ds_write_b128 v13, {vr(vZ)} offset:4096')
    e(f'v_and_b32 v13, s{sT0}, v{vLane}')
    e('v_lshrrev_b32 v14, 1, v13')
    e(f'v_mul_lo_u32 v14, v14, s{sHS}')
    e('v_and_b32 v13, 1, v13')
    e('v_lshl_add_u32 v13, v13, 4, v14')
    e(f'v_add_u32 v13, s{sHB}, v13')
    E.lg(f'ds_write_b128 v13, {vr(vZ)}')
    vCn = 240
    e(f'v_mov_b32 v{vCn}, {LDS_BYTES-64}')
    E.lg(f'ds_write_b128 v{vCn}, {vr(vZ)}')
    for o_ in (16, 32, 48): E.lg(f'ds_write_b128 v{vCn}, {vr(vZ)} offset:{o_}')
    vPr, vHa = 243, 250
    e(f's_lshl_b32 s{sT0}, s{sWi_}, 2')
    e(f'v_add_u32 v{vPr}, s{sT0}, v{vCn}')
    sHBA, sChA = 101, 100
    e(f's_mul_i32 s{sHBA}, s{sWi_}, {4*HS}')
    e(f's_add_u32 s{sT0}, s{sHBA}, {HS}')
    e(f'v_mov_b32 v{vHa}, s{sT0}')
    e(f's_mov_b32 s{sChA}, s{sCh}')
    srd(E, srdK, sK, S*D*2)
    srd(E, srdV, sV, S*D*2)
    vRg, vHf, b0, b1, b2 = 2, 3, 4, 5, 6
    e(f'v_lshrrev_b32 v{vRg}, 1, v0')
    e(f'v_and_b32 v{vHf}, 1, v0')
    e(f'v_mul_u32_u24 v{b1}, {8*1152}, v{vRg}')
    e(f'v_lshl_add_u32 v{b1}, v{vHf}, 4, v{b1}')
    e(f's_lshl_b32 s{sT0}, s{sCT}, 5')
    e(f'v_add_u32 v{b1}, s{sT0}, v{b1}')
    e(f'v_subrev_u32 v{b0}, 3456, v{b1}')
    e(f'v_add_u32 v{b2}, 4608, v{b1}')
    KR, VR, SKR, SKF = 16, 60, 92, 108
    srd(E, srdSHK, sSHK, D*4*2)
    e(f's_lshl_b32 s{sT0}, s{sCT}, 7')
    e(f'v_lshlrev_b32 v7, 6, v{vHf}')
    skl = [E.vm(f'buffer_load_dwordx4 {vr(SKR+4*i)}, v7, {sr(srdSHK)}, s{sT0} offen offset:{16*i}') for i in range(4)]
    srd(E, srdSSMD, sSSMD, D*2)
    srd(E, srdWS, sWS, WS_BYTES)
    vL16 = 8
    vH0, vDv, vDraw = 9, 10, 248
    e(f'v_lshlrev_b32 v{vL16}, 4, v{vLane}')
    def hload(np_, buf, hs=None):
        e(f's_lshl_b32 s{sT0}, s{sCh}, 12')
        e(f's_add_u32 m0, s{sHB}, {32 + buf*2*HS}')
        e(f's_add_u32 s{sT1}, s{sT0}, 2')
        ids = []
        for i in range(np_):
            if i == 2 and hs is None:
                e(f's_cmp_ge_u32 s{sWave}, 4'); e('s_cbranch_scc1 Lh0a')
            ids.append(E.vm(f'buffer_load_dwordx4 v{vL16}, {sr(srdSSMK)}, s{sT0} offen offset:{1024*i} lds'))
        if hs is None:
            e('Lh0a:')
            e(f's_add_u32 m0, m0, s{sHS}')
        else:
            e(f's_add_u32 m0, m0, {hs}')
        e('s_nop 0')
        for i in range(np_):
            if i == 2 and hs is None:
                e(f's_cmp_ge_u32 s{sWave}, 4'); e('s_cbranch_scc1 Lh0b')
            ids.append(E.vm(f'buffer_load_dwordx4 v{vL16}, {sr(srdSSMK)}, s{sT1} offen offset:{1024*i} lds'))
        if hs is None: e('Lh0b:')
        ids.append(E.vm(f'buffer_load_ushort v{vH0 + 2*buf}, v{vZ}, {sr(srdSSMK)}, s{sT0} offen'))
        return ids
    def hloadA(buf):
        e(f's_add_u32 s{sChA}, s{sChA}, 1')
        e(f's_lshl_b32 s{sT0}, s{sChA}, 12')
        e(f's_add_u32 m0, s{sHBA}, {32 + buf*2*HS}')
        e(f's_add_u32 s{sT1}, s{sT0}, 2')
        for i in range(4): e(f'buffer_load_dwordx4 v{vL16}, {sr(srdSSMK)}, s{sT0} offen offset:{1024*i} lds')
        e(f's_add_u32 m0, m0, {HS}')
        e('s_nop 0')
        for i in range(4): e(f'buffer_load_dwordx4 v{vL16}, {sr(srdSSMK)}, s{sT1} offen offset:{1024*i} lds')
        e(f'buffer_load_ushort v11, v{vZ}, {sr(srdSSMK)}, s{sT0} offen')
    def hreadyA(buf, val):
        e(f'ds_write_b16 v{vHa}, v11 offset:{30 + buf*2*HS}')
        e(f'v_mov_b32 v251, {val}')
        e('s_waitcnt lgkmcnt(0)')
        e(f'ds_write_b32 v{vPr}, v251 offset:32')
    uid = [0]
    def onlyB(f, full=False):
        uid[0] += 1
        e(f's_cmp_lt_u32 s{sWave}, 4'); e(f's_cbranch_scc1 LoB{uid[0]}')
        if full:
            e(f's_cmp_lg_u32 s{sMode}, 0'); e(f's_cbranch_scc1 LoB{uid[0]}')
        f()
        e(f'LoB{uid[0]}:')
    e(f's_lshl_b32 s{sT0}, s{sCh}, 1')
    E.vm(f'buffer_load_dwordx2 {vr(vDraw,2)}, v{vZ}, {sr(srdSSMD)}, s{sT0} offen')
    vFo_, vFa_ = 241, 242
    e(f'v_mul_u32_u24 v{vFa_}, {9*FLB}, v{vLane}')
    e(f's_lshr_b32 s{sT0}, s{sCT}, 2')
    e(f's_lshl_b32 s{sT0}, s{sT0}, 8')
    e(f's_and_b32 s{sT1}, s{sCT}, 3')
    e(f's_lshl_b32 s{sT1}, s{sT1}, 1')
    e(f's_add_u32 s{sT1}, s{sT1}, s{sHsel}')
    e(f's_lshl_b32 s{sT1}, s{sT1}, 2')
    e(f's_add_u32 s{sT0}, s{sT0}, s{sT1}')
    e(f's_add_u32 s{sT0}, s{sT0}, {WS_FL + 128}')
    e(f'v_add_u32 v{vFa_}, s{sT0}, v{vFa_}')
    E.all_lg()
    e('s_barrier')
    def cpoll(name, off, thr=4, va=None):
        e(f'L{name}:')
        e(f'ds_read_b32 v252, v{va or vCn} offset:{off}')
        e('s_waitcnt lgkmcnt(0)')
        e(f'v_readfirstlane_b32 s{sT0}, v252')
        e(f's_cmp_ge_u32 s{sT0}, {thr}')
        e(f's_cbranch_scc1 L{name}_ok')
        e('s_sleep 2')
        e(f's_branch L{name}')
        e(f'L{name}_ok:')
    e(f's_cmp_lt_u32 s{sWave}, 4')
    e('s_cbranch_scc1 Lconv_a')
    cpoll('cpollb', 8)
    hloadA(1)
    e(f's_cmp_lg_u32 s{sMode}, 0')
    e('s_cbranch_scc1 Lconv_ld')
    e('s_add_u32 s15, s15, 8192')
    e(f'buffer_load_dword v15, v12, {sr(srdSSMK)}, s15 offen')
    e('s_branch Lconv_ld')
    e('Lconv_a:')
    e(f's_cmp_lg_u32 s{sMode}, 0')
    e('s_cbranch_scc1 Lconv_ld')
    e('s_waitcnt vmcnt(0)')
    e('Lconv_ld:')
    ts.stamp(E)
    kl, vl = [], []
    for j in range(3, 11):
        bb, off = (b1, (j-3)*1152) if j < 7 else (b2, (j-7)*1152)
        kl.append(E.vm(f'buffer_load_dwordx4 {vr(KR+4*j)}, v{bb}, {sr(srdK)}, 0 offen offset:{off}'))
    def sig1():
        e('s_waitcnt vmcnt(8)')
        e(f's_lshl_b32 s{sT0}, s{sMode}, 1')
        e(f's_add_u32 s{sT0}, s{sT0}, 1')
        hreadyA(1, f's{sT0}')
    onlyB(sig1)
    for j in range(8):
        bb, off = (b1, j*1152) if j < 4 else (b2, (j-4)*1152)
        vl.append(E.vm(f'buffer_load_dwordx4 {vr(VR+4*j)}, v{bb}, {sr(srdV)}, 0 offen offset:{off}'))
    e('s_mov_b32 exec_lo, 0x00030003')
    e('s_mov_b32 exec_hi, 0x00030003')
    for j in range(3):
        kl.append(E.vm(f'buffer_load_dwordx4 {vr(KR+4*j)}, v{b0}, {sr(srdK)}, 0 offen offset:{j*1152}'))
    e('s_mov_b64 exec, -1')
    vmn = E.vm_n
    hload(4, 0)
    E.vm_n = vmn + 5
    e('v_mov_b32 v12, 1')
    e('s_mov_b64 exec, 1')
    E.lg(f'ds_add_u32 v{vCn}, v12 offset:8')
    e(f's_mov_b64 exec, {(1 << NMT) - 1}')
    e(f's_cmp_eq_u32 s{sWave}, 7')
    e(f's_cselect_b32 s{sT0}, 0, 0x40000000')
    E.vm(f'buffer_load_dword v{vFo_}, v{vFa_}, {sr(srdWS)}, s{sT0} offen{SC}')
    e('s_mov_b64 exec, -1')
    vKW = 14
    e(f'v_mul_u32_u24 v{vKW}, {8*RS}, v{vHf}')
    e(f'v_lshlrev_b32 v12, 4, v{vRg}')
    e(f'v_sub_u32 v{vKW}, v{vKW}, v12')
    e(f'v_add_u32 v{vKW}, {KVB + 4080}, v{vKW}')
    onlyB(lambda: (cpoll('cpa1', 48, 1, vPr), hloadA(0), e('s_waitcnt vmcnt(0)'), hreadyA(0, 2)), True)
    E.need(*(kl + vl + skl))
    ts.stamp(E)
    for j in range(3):
        for m in range(4):
            e(f'v_mov_b32_dpp v{KR+4*j+m}, v{KR+4*(j+8)+m} row_shr:2 row_mask:0xf bank_mask:0xf')
    for i in range(16):
        e(f'v_lshlrev_b32 v{SKF+2*i}, 16, v{SKR+i}')
        e(f'v_and_b32 v{SKF+2*i+1}, 0xffff0000, v{SKR+i}')
    KF, AC, PK = 144, 156, 164
    for ch in range(8):
        m, hi = divmod(ch, 2)
        def unp(d, s_):
            e(f'v_and_b32 v{d}, 0xffff0000, v{s_}' if hi else f'v_lshlrev_b32 v{d}, 16, v{s_}')
        for j in range(11): unp(KF+j, KR+4*j+m)
        for s_ in range(8): e(f'v_mul_f32 v{AC+s_}, v{KF+s_}, v{SKF+4*ch+3}')
        for tap in (2, 1, 0):
            for s_ in range(8): e(f'v_fmac_f32 v{AC+s_}, v{KF+s_+3-tap}, v{SKF+4*ch+tap}')
        for s_ in range(8): unp(KF+s_, VR+4*s_+m)
        for s_ in range(8): e(f'v_mul_f32 v{AC+s_}, v{AC+s_}, v{KF+s_}')
        pk = PK + 4*(ch & 1)
        for mm in range(4): e(f'v_cvt_pk_bf16_f32 v{pk+mm}, v{AC+7-2*mm}, v{AC+6-2*mm}')
        E.lg(f'ds_write_b128 v{vKW}, {vr(pk)} offset:{ch*RS}')
        if ch == Opt.h3at: onlyB(lambda: (cpoll('cpa2', 48, 2, vPr), hloadA(1)), True)
    onlyB(lambda: (e('s_waitcnt vmcnt(0)'), hreadyA(1, 3)), True)
    vA = [2, 3, 4, 5]; vB, vE, vHh = 6, 7, 12
    e(f'v_and_b32 v12, 15, v{vLane}')
    e(f'v_lshrrev_b32 v13, 4, v{vLane}')
    e(f'v_and_b32 v14, 1, v12')
    e(f'v_add_u32 v{vA[0]}, v12, v14')
    e(f'v_lshl_add_u32 v{vA[0]}, v13, 3, v{vA[0]}')
    e(f'v_lshlrev_b32 v{vA[0]}, 1, v{vA[0]}')
    e(f'v_xor_b32 v14, 1, v14')
    e(f'v_mul_lo_u32 v14, v14, s{sHS}')
    e(f'v_add3_u32 v{vA[0]}, v{vA[0]}, v14, s{sHB}')
    for i in range(1, 4): e(f'v_add_u32 v{vA[i]}, {1024*i}, v{vA[0]}')
    e(f's_mul_i32 s{sT0}, s{sLoc}, {RS}')
    e(f'v_lshlrev_b32 v14, 5, v12')
    e(f'v_lshlrev_b32 v{vB}, 4, v13')
    e(f'v_sub_u32 v{vB}, v{vB}, v14')
    e(f'v_add_u32 v{vB}, {KVB + 480}, v{vB}')
    e(f'v_add_u32 v{vB}, s{sT0}, v{vB}')
    e(f'v_lshl_add_u32 v14, v13, 3, v14')
    e(f'v_sub_u32 v{vE}, {KVB + 504}, v14')
    e(f'v_add_u32 v{vE}, s{sT0}, v{vE}')
    e(f's_add_u32 s{sT0}, s{sHB}, s{sHS}')
    e(f'v_mov_b32 v{vHh}, s{sT0}')
    e(f's_and_b32 s{sT0}, s{sWave}, 4')
    e(f'v_add_u32 v13, s{sT0}, v{vCn}')
    e('v_mov_b32 v14, 1')
    E.all_lg()
    e('s_mov_b64 exec, 1')
    e('ds_add_u32 v13, v14')
    e('s_mov_b64 exec, -1')
    ts.stamp(E)
    cpoll('cpoll0', 0)
    AF, BF, ACC0 = 16, 80, 112
    def w2pf():
        e(f's_mov_b32 s{srdK}, s{sW2}')
        e(f's_and_b32 s{srdK+1}, s{sW2+1}, 0xffff')
        e(f's_add_u32 s{sT0}, s{sFS}, 1')
        e(f's_mul_i32 s{sT0}, s{sT0}, 663552')
        e(f's_cmp_eq_u32 s{sMode}, 0')
        e(f's_cselect_b32 s{srdK+2}, s{sT0}, 0')
        e(f's_mov_b32 s{srdK+3}, 0x20000')
        e(f's_mul_i32 s15, s{sFS}, 663552')
        e(f's_lshl_b32 s{sT1}, s{sIdx}, 2')
        e(f's_add_u32 s{sT1}, s{sT1}, s{sWi_}')
        e(f's_mul_i32 s{sT1}, s{sT1}, {16*1152}')
        e(f's_add_u32 s15, s15, s{sT1}')
        e(f's_and_b32 s{sT1}, s{sFS}, 1')
        e(f's_lshl_b32 s{sT1}, s{sT1}, 9')
        e(f's_add_u32 s15, s15, s{sT1}')
        e(f'v_lshrrev_b32 v13, 2, v{vLane}')
        e('v_mul_u32_u24 v13, 1152, v13')
        e(f'v_and_b32 v14, 3, v{vLane}')
        e('v_lshl_add_u32 v13, v14, 7, v13')
    def w2one():
        e(f'buffer_load_dword v15, v13, {sr(srdK)}, s15 offen')
        e(f's_add_u32 s15, s15, {256*1152}')
    def cpass(us, nE, ACC, boff, zero, hook=None, vhook=None):
        aid, bid = {}, {}
        def aread(v, ee, h):
            r = AF + 32*(v % 2) + 4*ee + 2*h
            o = (512*(ee & 1) + 64*(7-v) + 8*h) // 4
            aid.setdefault((v, ee), []).append(E.lg(f'ds_read2_b32 {vr(r,2)}, v{vA[ee >> 1]} offset0:{o} offset1:{o+1}'))
        def bread(v, u):
            bid[(v, u)] = E.lg(f'ds_read_b128 {vr(BF + 16*(v % 2) + 4*(u & 3))}, v{vB} offset:{boff + 512*(7-u) + 64*(7-v)}')
        def reads(v):
            L = [lambda: bread(v, us[0])]
            for ee in range(nE):
                L += [lambda ee=ee: aread(v, ee, 0), lambda ee=ee: aread(v, ee, 1)]
            L += [(lambda u=u: bread(v, u)) for u in us[1:]]
            return L
        for f in reads(0): f()
        nm = sum(8-u for u in us)
        for v in range(8):
            fill = reads(v+1) if v < 7 else []
            nf = len(fill); cnt = 0; done = 0
            for u in us:
                for w in range(u, 8):
                    E.need(*(aid[(v, w-u)] + [bid[(v, u)]]))
                    c = '0' if (zero and v == 0 and u == us[0]) else vr(ACC+4*w)
                    e(f'v_mfma_f32_16x16x32_bf16 {vr(ACC+4*w)}, {vr(AF + 32*(v % 2) + 4*(w-u))}, {vr(BF + 16*(v % 2) + 4*(u & 3))}, {c}')
                    cnt += 1
                    while fill and done < cnt * nf / max(nm - 2, 1):
                        fill.pop(0)(); done += 1
                    if hook and v == 7 and u == us[1] and w == u: hook()
                    if vhook and v in vhook[0] and cnt == nm - 1: vhook[1]()
            assert not fill
    def epi(ws_, ACC, off, plain_from):
        KVR, TT = 16, 40
        kr = {w: E.lg(f'ds_read_b64 {vr(KVR+2*w,2)}, v{vE} offset:{off + 512*(7-w)}') for w in ws_}
        e('s_nop 3')
        for w in ws_:
            E.need(kr[w])
            a = ACC + 4*w; t = TT + 4*(w & 1)
            e(f'v_lshlrev_b32 v{t+3}, 16, v{KVR+2*w}')
            e(f'v_and_b32 v{t+2}, 0xffff0000, v{KVR+2*w}')
            e(f'v_lshlrev_b32 v{t+1}, 16, v{KVR+2*w+1}')
            e(f'v_and_b32 v{t}, 0xffff0000, v{KVR+2*w+1}')
            for r in range(4):
                e(f'v_add_f32 v{a+r}, v{a+r}, v{t+r}' if w >= plain_from else f'v_fmac_f32 v{a+r}, v{t+r}, v{vDv}')
            e(f'v_cvt_pk_bf16_f32 v{KVR+2*w}, v{a+3}, v{a+2}')
            e(f'v_cvt_pk_bf16_f32 v{KVR+2*w+1}, v{a+1}, v{a}')
            E.lg(f'ds_write_b64 v{vE}, {vr(KVR+2*w,2)} offset:{off + 512*(7-w)}')
    def setD(c):
        r = vDraw + c // 2
        e(f'v_and_b32 v{vDv}, 0xffff0000, v{r}' if c & 1 else f'v_lshlrev_b32 v{vDv}, 16, v{r}')
    e(f's_cmp_ge_u32 s{sWave}, 4')
    e('s_cbranch_scc1 Lconv_B')
    tsn = ts.n
    w2pf()
    e(f's_cmp_eq_u32 s{sMode}, 0')
    e('s_cbranch_scc1 LcA0')
    e(f'v_subrev_u32 v{vB}, {2*RS}, v{vB}')
    e(f'v_subrev_u32 v{vE}, {2*RS}, v{vE}')
    e('s_waitcnt vmcnt(0)')
    e(f'v_mov_b32 v{vDraw+1}, v{vDraw}')
    e('s_branch LcA2')
    for c in range(4):
        e(f'LcA{c}:')
        buf = c & 1
        if c in (0, 2):
            if c == 2:
                e(f's_cmp_eq_u32 s{sMode}, 0'); e('s_cbranch_scc1 LcAx2')
            e('s_waitcnt vmcnt(0)')
            e(f'ds_write_b16 v{vHh}, v{vH0} offset:30')
            e('s_waitcnt lgkmcnt(0)')
            if c == 2:
                e('s_branch Lcph2_ok'); e('LcAx2:')
        if c > 0: cpoll(f'cph{c}', 32, c, vPr)
        E.reset()
        ts.stamp(E)
        def prog(c=c):
            e(f'v_mov_b32 v251, {c + 1}')
            E.lg(f'ds_write_b32 v{vPr}, v251 offset:48')
        vh = (1, 3, 5) if c == Opt.w2at else None
        cpass([0, 1, 2, 3], 8, ACC0 + 32*c, c*RS, True, prog if c < 2 else None, (vh, w2one) if vh else None)
        if c < 3:
            d = 2*HS if buf == 0 else -2*HS
            for i in range(4):
                e(f'v_add_u32 v{vA[i]}, {2*HS}, v{vA[i]}' if buf == 0 else f'v_subrev_u32 v{vA[i]}, {2*HS}, v{vA[i]}')
    E.all_lg()
    cpoll('cpoll1', 4)
    ts.stamp(E)
    cpass([4, 5, 6, 7], 4, ACC0 + 96, 3*RS, False)
    setD(3)
    epi(range(8), ACC0 + 96, 3*RS, 8)
    e(f's_cmp_lg_u32 s{sMode}, 0')
    e('s_cbranch_scc1 LcAe2')
    for c in range(3):
        e(f'LcAe{c}:')
        cpoll(f'cpe{c}', 16, c + 1, vPr)
        E.reset()
        setD(c)
        epi(range(8), ACC0 + 32*c, c*RS, 4)
    e('s_branch Lconv_fin')
    e('Lconv_B:')
    tsA = ts.n; ts.n = tsn
    cpoll('cpoll2', 4)
    if Opt.cprio: e('s_setprio 1')
    e(f's_lshl_b32 s{sIt}, s{sMode}, 1')
    e('LcB:')
    e('s_waitcnt vmcnt(0) lgkmcnt(0)')
    E.reset()
    w0 = E.lg(f'ds_write_b16 v{vHh}, v{vH0} offset:30')
    e(f'v_lshlrev_b32 v{vDv}, 16, v{vDraw}')
    e(f'v_alignbit_b32 v{vDraw}, v{vDraw+1}, v{vDraw}, 16')
    e(f'v_lshrrev_b32 v{vDraw+1}, 16, v{vDraw+1}')
    E.need(w0)
    def refill():
        e(f's_cmp_ge_u32 s{sIt}, 2')
        e('s_cbranch_scc1 LcB_nr')
        e(f's_add_u32 s{sCh}, s{sCh}, 1')
        hload(2, 0, HS2)
        e('LcB_nr:')
    cpass([4, 5, 6, 7], 4, ACC0, 0, True, refill)
    epi(range(4, 8), ACC0, 0, 8)
    e(f's_add_u32 s{sIt}, s{sIt}, 1')
    e(f'v_mov_b32 v14, s{sIt}')
    E.all_lg()
    e(f'ds_write_b32 v{vPr}, v14 offset:16')
    e(f'v_add_u32 v{vB}, {RS}, v{vB}')
    e(f'v_add_u32 v{vE}, {RS}, v{vE}')
    e(f's_cmp_lt_u32 s{sIt}, 3')
    e('s_cbranch_scc1 LcB')
    while ts.n < tsA: ts.stamp(E)
    e('Lconv_fin:')
    e('s_waitcnt vmcnt(0) lgkmcnt(0)')
    E.reset()
    ts.stamp(E)
    e('s_barrier')
    e(f'v_lshrrev_b32 v2, 5, v{vLane}')
    e(f'v_lshrrev_b32 v3, 2, v{vLane}')
    e('v_and_b32 v3, 3, v3')
    e('v_lshl_add_u32 v3, v2, 3, v3')
    e(f'v_mul_u32_u24 v3, {RS}, v3')
    e(f'v_and_b32 v4, 16, v{vLane}')
    e('v_lshl_add_u32 v3, v4, 1, v3')
    e(f'v_and_b32 v5, 3, v{vLane}')
    e('v_lshl_add_u32 v3, v5, 3, v3')
    e(f's_lshl_b32 s{sT0}, s{sWave}, 9')
    e(f's_add_u32 s{sT0}, s{sT0}, {KVB}')
    e(f'v_add_u32 v3, s{sT0}, v3')
    e(f'v_and_b32 v5, 31, v{vLane}')
    e(f's_lshl_b32 s{sT0}, s{sWave}, 8')
    e(f'v_add_u32 v5, s{sT0}, v5')
    e(f'v_sub_u32 v5, {2047-224}, v5')
    e('v_lshlrev_b32 v5, 4, v5')
    e('v_lshl_add_u32 v5, v2, 15, v5')
    e(f's_lshl_b32 s{sT0}, s{sCT}, 16')
    e(f's_add_u32 s{sT0}, s{sT0}, {WS_Y}')
    e(f's_add_u32 s{sT1}, s{sT0}, 4096')
    rd = []
    for blk in range(8):
        r = 16 + 4*blk
        i0 = E.lg(f'ds_read_b64_tr_b16 {vr(r,2)}, v3 offset:{64*blk}')
        i1 = E.lg(f'ds_read_b64_tr_b16 {vr(r+2,2)}, v3 offset:{64*blk + 4*RS}')
        rd.append([i0, i1])
    E.all_lg()
    e(f's_cmp_eq_u32 s{sMode}, 0')
    e('s_cbranch_scc1 Lconv_st')
    e(f's_sub_u32 exec_lo, s{sHsel}, 1')
    e(f's_sub_u32 exec_hi, 0, s{sHsel}')
    e('Lconv_st:')
    for blk in range(8):
        E.vm(f'buffer_store_dwordx4 {vr(16+4*blk)}, v5, {sr(srdWS)}, s{sT0} offen offset:{(7-blk)*512}{SC}')
    e('s_mov_b64 exec, -1')
    E.all_vm()
    e('s_barrier')
    e(f's_cmp_lg_u32 s{sWave}, 7')
    e('s_cbranch_scc1 Lconv_end')
    e(f'v_add_u32 v{vFo_}, 1, v{vFo_}')
    e(f's_mov_b64 exec, {(1 << NMT) - 1}')
    e(f'buffer_store_dword v{vFo_}, v{vFa_}, {sr(srdWS)}, 0 offen{SC}')
    e('s_mov_b64 exec, -1')
    e('Lconv_end:')
    if Opt.ts:
        ts.stamp(E)
        ts.flush(E, 60)
    e('s_endpgm')
    e('Lhelper:')
    srd(E, srdW2, sW2, D*F*2)
    e(f's_mul_i32 s{sT0}, s{sFS}, 663552')
    e(f's_and_b32 s10, s{sFS}, 1')
    e('s_xor_b32 s10, s10, 1')
    e('s_lshl_b32 s10, s10, 2')
    if Opt.hdelay: e(f's_sleep {Opt.hdelay}')
    for i in range(6):
        e(f'v_add_u32 v2, {512*i}, v0')
        e('v_mul_u32_u24 v3, 13108, v2')
        e('v_lshrrev_b32 v3, 16, v3')
        e('v_mul_u32_u24 v4, 5, v3')
        e('v_sub_u32 v4, v2, v4')
        e('v_cmp_eq_u32 vcc, 4, v4')
        e('v_add_u32 v4, s10, v4')
        e('v_min_u32 v3, 575, v3')
        e('v_cndmask_b32 v4, v4, 8, vcc')
        e('v_mul_u32_u24 v3, 1152, v3')
        e('v_lshl_add_u32 v3, v4, 7, v3')
        e(f'buffer_load_dword v8, v3, {sr(srdW2)}, s{sT0} offen')
        e('s_barrier')
    if Opt.ts:
        e('s_waitcnt vmcnt(0)')
        srd(E, srdWS, sWS, WS_BYTES)
        ts.n = 1; ts.stamp(E); ts.flush(E, 60); e('s_mov_b64 exec, -1')
    if Opt.tlbw:
        srd(E, srdWS, sWS, WS_BYTES)
        srd(E, srdB1, sOUT, S*D*2)
        e('v_lshlrev_b32 v2, 16, v0')
        e(f'buffer_load_dword v14, v2, {sr(srdWS)}, 0 offen{SC}')
        e(f'buffer_load_dword v15, v2, {sr(srdB1)}, 0 offen')
    e('s_waitcnt vmcnt(0)')
    e('s_endpgm')

def k1(E):
    e = E.e
    e('.p2align 8')
    e(f'.type {KNAME},@function')
    e(f'{KNAME}:')
    e(f's_cmp_ge_u32 s2, {NWG}')
    e('s_cbranch_scc1 Lk1_exit')
    TS().rt0(E)
    e('s_load_dwordx16 s[16:31], s[0:1], 0')
    e('s_load_dwordx8 s[32:39], s[0:1], 64')
    e('s_load_dwordx2 s[40:41], s[0:1], 96')
    e(f'v_and_b32 v{vLane}, 63, v0')
    e('v_lshrrev_b32 v2, 6, v0')
    e(f's_and_b32 s{sFS}, s2, 7')
    e(f'v_readfirstlane_b32 s{sWave}, v2')
    e(f's_lshr_b32 s{sMT}, s2, 3')
    e(f's_cmp_lt_u32 s{sMT}, {IDX_MLP0}')
    e('s_waitcnt lgkmcnt(0)')
    e('s_cbranch_scc1 Lconv')
    if Opt.nomlp: e('s_endpgm')
    ts = TS()
    ts.stamp(E)
    P = mlp_prologue(E, ts)
    pre_ids = []
    mlp_ln(E, P, ts, lambda: pre_ids.extend(mlp_prefill(E)))
    st = E.state(); tsn = ts.n
    e(f's_cmp_ge_u32 s{sWave}, 4')
    e('s_cbranch_scc1 LmlpB')
    mlp_main(E, 'P', P, ts, pre_ids)
    e('LmlpB:')
    E.set_state(st); ts.n = tsn
    E.vm_n -= 8 - (1 if Opt.qpf else 0)
    mlp_main(E, 'Q', P, ts, pre_ids)
    for l in stubs: e(l)
    e('Lmlp_end:')
    e('Lconv:')
    E.reset()
    conv(E)
    e('Lk1_exit:')
    e('s_endpgm')

def desc(name, vg, sg):
    return f'''.p2align 6
.amdhsa_kernel {name}
  .amdhsa_next_free_vgpr {vg}
  .amdhsa_next_free_sgpr {sg}
  .amdhsa_accum_offset {vg}
  .amdhsa_group_segment_fixed_size 0
  .amdhsa_kernarg_size 104
  .amdhsa_user_sgpr_count 2
  .amdhsa_user_sgpr_kernarg_segment_ptr 1
  .amdhsa_system_sgpr_workgroup_id_x 1
.end_amdhsa_kernel
'''

def build():
    E = Em()
    e = E.e
    head = HDR + f'; @launch grid=({NWG},1,1) block=(512,1,1) lds={LDS_BYTES}\n'
    head += f'.amdgcn_target "amdgcn-amd-amdhsa--gfx950"\n.text\n.globl {KNAME}\n'
    k1(E)
    tail = '.section .rodata,"a"\n' + desc(KNAME, 256, 102)
    return head + E.text() + tail

if __name__ == '__main__':
    out = sys.argv[1] if len(sys.argv) > 1 else 'cdna_kernels/' + NAME + '.s'
    for a in sys.argv[2:]:
        k, v = a.split('=', 1)
        cur = getattr(Opt, k)
        setattr(Opt, k, type(cur)(int(v)) if isinstance(cur, (bool, int)) else v)
    Em.lgmerge = Opt.lgmerge
    t = build()
    open(out, 'w').write(t)
    print(out, len(t), 'bytes', t.count('\n'), 'lines')
```

```python
import sys
from em import Em, vr, sr

NAME = 'parallel_sum__ssm_conv_h3__dense_activation_mish__prompt'
HDR = open('cdna_kernels/' + NAME + '.s.ref').read().split('; Override launch')[0]

S, D, F = 2048, 576, 4608
NMT = 26
N_MLP = NMT * 8
N_CONV = 36
NWG = 256
IDX_MLP0 = 6
PSTRIDE = 130 * 18432
WS_P = 0
WS_Y = 20 << 20
WS_ST = 24 << 20
WS_TS = 28 << 20
WS_FL = 26 << 20
KNAME = NAME + '_kernel'
WS_BYTES = 32 << 20
LDS_BYTES = 163840
XA_BYTES = 92160
LOG2E = 0x3fb8aa3b
RSQRT2 = 0x3f3504f3

class Opt:
    ts = False
    dlat = 18
    dma_delay = 6
    wlead = 4
    xlead = 10
    cap = 2
    lgmerge = 7
    oddR = 3
    dspace = 4
    psleep = 1
    fine = ''
    x_warm = 0
    x_nochk = 0
    budget = 12
    wcost = 4
    force = 2
    x_qidle = 0
    x_nolgw = 0
    x_novmw = 0
    wrate = 1
    wslack = 1
    mnop = -1
    fold = 1
    qdeep = 1
    egate = 24
    pw0 = 3
    pw1 = 2
    qsig = 27
    edelay = 0
    pthr = 9
    esleep = 2
    tmpl = 0
    x_nopub = 0
    cprio = 0
    spin = 0
    x_nowr = 0
    x_pq = 0
    sthr = 15
    milp = 4
    cph = 12
    pph = 7
    wph = 0
    code_pf = True
    w2pf = 1
    qpf = 0
    bwait = 0
    w2at = 2
    w1b = 1
    hdelay = 100
    rt = 0
    cdelay = 100
    snake = 1
    ntkv = ' nt'
    bq = 0
    ntkv2 = ''
    x_noconv = 0
    hkv = 1
    x_noex = 0
    nb = 2
    h3at = 3
    prom = 0
    promf = ' sc1'
    hpf = True
    lnts = False
    kvpf = 1
    nomlp = False
    dbg = 0
    tlbw = True
    bgate = 8
    x_nodma = 0
    nt = ''
    dot = 1
    x_nomish = 0

sQ, sK, sV, sSHK, sSSMK, sSSMD, sW1 = 16, 18, 20, 22, 24, 26, 30
sB1, sW2, sOUT, sDBG, sWS = 32, 34, 36, 38, 40
srdX, srdW1, srdW2, srdB1, srdWS = 44, 48, 52, 56, 60
srdK, srdV, srdSHK, srdSSMK, srdSSMD = 44, 48, 52, 56, 64
sWave, sFS, sMT, sRing, sT0, sT1, sC = 3, 4, 5, 6, 7, 8, 9
sTS = 68
sWi, sLine2, sOddM, sFlA, sFlO, sFin = 18, 19, 20, 21, 22, 23
sXcd, sI, sWr = 14, 15, 42
SC = ' sc1'
vLane = 1

def srd(E, d, p, nbytes):
    E.e(f's_mov_b32 s{d}, s{p}')
    E.e(f's_and_b32 s{d+1}, s{p+1}, 0xffff')
    E.e(f's_mov_b32 s{d+2}, {nbytes}')
    E.e(f's_mov_b32 s{d+3}, 0x20000')

class TS:
    def __init__(self): self.n = 0
    def stamp(self, E, fine=False):
        if Opt.ts and (bool(Opt.fine) == fine or self.n == 0 or getattr(self, 'conv', False)):
            assert self.n < 14
            E.e(f'{"s_memrealtime" if Opt.rt else "s_memtime"} s[{sTS+2*self.n}:{sTS+2*self.n+1}]')
            self.n += 1
    def val(self, E, sreg):
        if Opt.ts and Opt.spin:
            E.e(f's_add_u32 s{sTS+2*self.n}, s{sreg}, s{sTS}')
            self.n += 1
    def stamp2(self, E, sIt):
        if Opt.ts:
            TS.uid = getattr(TS, 'uid', 0) + 1
            u = TS.uid
            E.e(f's_cmp_lg_u32 s{sIt}, 0')
            E.e(f's_cbranch_scc1 Lts{u}a')
            self.stamp(E)
            E.e(f's_branch Lts{u}b')
            E.e(f'Lts{u}a:')
            self.stamp(E)
            E.e(f'Lts{u}b:')
    def rt0(self, E):
        if Opt.ts: E.e(f's_memrealtime s[{sTS+28}:{sTS+29}]')
    def flush(self, E, vtmp):
        if not Opt.ts: return
        E.e(f's_memrealtime s[{sTS+30}:{sTS+31}]')
        E.e('s_waitcnt lgkmcnt(0)')
        E.e(f's_lshl_b32 s{sT0}, s2, 3')
        E.e(f's_add_u32 s{sT0}, s{sT0}, s{sWave}')
        E.e(f's_lshl_b32 s{sT0}, s{sT0}, 6')
        E.e(f's_add_u32 s{sT0}, s{sT0}, {WS_TS}')
        E.e(f'v_mov_b32 v{vtmp}, 0')
        for i in list(range(self.n)) + [14, 15]:
            E.e(f'v_writelane_b32 v{vtmp}, s{sTS+2*i}, {i}')
        E.e(f'v_lshlrev_b32 v{vtmp+1}, 2, v{vLane}')
        E.e('s_mov_b64 exec, 0xffff')
        E.e(f'buffer_store_dword v{vtmp}, v{vtmp+1}, {sr(srdWS)}, s{sT0} offen')
        if Opt.dbg:
            TS.uid = getattr(TS, 'uid', 0) + 1
            u = TS.uid
            srd(E, 44, sDBG, 256)
            E.e('s_mov_b64 exec, 1')
            E.e(f's_not_b32 s{sT1}, s{sTS+28}')
            E.e(f'v_mov_b32 v{vtmp+2}, s{sT1}')
            E.e(f'v_mov_b32 v{vtmp+3}, s{sTS+30}')
            E.e(f'buffer_atomic_umax v{vtmp+2}, v{vtmp+1}, s[44:47], 0 offen offset:56')
            E.e(f'buffer_atomic_umax v{vtmp+3}, v{vtmp+1}, s[44:47], 0 offen offset:60')
            E.e(f's_cmp_lg_u32 s2, {Opt.dbg}')
            E.e(f's_cbranch_scc1 Ldbg{u}')
            E.e(f's_cmp_lg_u32 s{sWave}, 5')
            E.e(f's_cbranch_scc1 Ldbg{u}')
            E.e('s_mov_b64 exec, 0x3fff')
            E.e(f'v_readlane_b32 s{sT1}, v{vtmp}, 0')
            E.e('s_nop 1')
            E.e(f'v_subrev_u32 v{vtmp}, s{sT1}, v{vtmp}')
            E.e(f'buffer_store_dword v{vtmp}, v{vtmp+1}, s[44:47], 0 offen')
            E.e(f'Ldbg{u}:')

vX0, vX1, vXg0, vXg1 = 2, 3, 4, 5
vWt = [6, 7, 8, 9]
vWo = 10
vD1a, vD1b, vD2a, vD2b, vDo = 11, 12, 13, 14, 15
vAW, vAWo, vP, vPo = 16, 17, 18, 19
vSA, vSB, vSW, vS, vPg = 20, 21, 22, 23, 24
vOld2, vDum, vS2 = 25, 26, 27
sSpin = 100
vT = 28
vXF = 36
vWF = 76
vAcc = 116
vBraw = 216
vFlOld = 226
SCR = LDS_BYTES - 2048
STW = SCR + 128
FLB = 256

ODDB = XA_BYTES + 12288
ODDR = 5
ODDOFF = [0, 16384, 32768, 49152, 53248]
assert ODDB + ODDOFF[4] + 4096 <= SCR

def flag_base(E, dst):
    E.e(f's_mul_i32 s{dst}, s{sMT}, {9*FLB}')
    E.e(f's_add_u32 s{dst}, s{dst}, {WS_FL}')

def flag_addrs(E, rA, rO):
    e = E.e
    flag_base(E, sT0)
    e(f's_lshl_b32 s{sT1}, s{sFS}, 4')
    e(f's_add_u32 s{sT0}, s{sT0}, s{sT1}')
    e(f's_lshl_b32 s{rA}, s{sLine2}, 8')
    e(f's_add_u32 s{rA}, s{rA}, s{sT0}')
    e(f's_lshl_b32 s{rO}, s{sWi}, 2')
    e(f's_add_u32 s{rO}, s{rO}, s{sT0}')
    e(f's_add_u32 s{rO}, s{rO}, {8*FLB}')

def mlp_prologue(E, ts):
    e = E.e
    a, b, c, d = vT, vT+1, vT+2, vT+3
    e(f's_sub_u32 s{sMT}, s{sMT}, {IDX_MLP0}')
    def kvpf_issue():
        e('s_mov_b64 exec, 0x3ff')
        E.vm(f'buffer_load_dword v{vDum}, v{vT+7}, {sr(srdW2)}, s10 offen{Opt.ntkv}')
        e('s_mov_b64 exec, -1')
    if Opt.kvpf:
        e(f's_cmp_lt_u32 s{sWave}, 4')
        e(f's_cselect_b32 s{srdW2}, s{sK}, s{sV}')
        e(f's_cselect_b32 s{srdW2+1}, s{sK+1}, s{sV+1}')
        e(f's_and_b32 s{srdW2+1}, s{srdW2+1}, 0xffff')
        e(f's_mov_b32 s{srdW2+2}, {S*D*2}')
        e(f's_mov_b32 s{srdW2+3}, 0x20000')
        e(f's_and_b32 s{sT0}, s{sWave}, 3')
        e(f's_lshl_b32 s{sT1}, s{sMT}, 2')
        e(f's_add_u32 s{sT0}, s{sT0}, s{sT1}')
        e(f's_mul_i32 s{sT0}, s{sT0}, {10*1152}')
        e(f's_lshl_b32 s{sT1}, s{sFS}, 7')
        e(f's_add_u32 s10, s{sT0}, s{sT1}')
        e(f'v_mul_u32_u24 v{vT+7}, 1152, v{vLane}')
        kvpf_issue()
        if Opt.kvpf == 3:
            e(f's_add_u32 s10, s10, {1024*1152}')
            e('s_mov_b64 exec, 0x3ff')
            E.vm(f'buffer_load_dword v{vDum}, v{vT+7}, {sr(srdW2)}, s10 offen{Opt.ntkv2}')
            e('s_mov_b64 exec, -1')
    srd(E, srdX, sQ, S*D*2)
    vR, vCc, vOff, vSl = 180, 181, 182, 183
    e(f'v_mul_u32_u24 v{vR}, 43, v{vLane}')
    e(f'v_lshrrev_b32 v{vR}, 8, v{vR}')
    e(f'v_mul_u32_u24 v{vCc}, 6, v{vR}')
    e(f'v_sub_u32 v{vCc}, v{vLane}, v{vCc}')
    e(f's_mul_i32 s{sT0}, s{sWave}, 10')
    e(f'v_add_u32 v{vSl}, s{sT0}, v{vR}')
    e(f's_mul_i32 s{sT1}, s{sMT}, 80')
    e(f'v_add_u32 v{vOff}, s{sT1}, v{vSl}')
    e(f'v_mul_u32_u24 v{vOff}, 1152, v{vOff}')
    e(f'v_lshl_add_u32 v{vOff}, v{vCc}, 4, v{vOff}')
    XR = 36
    xl = []
    for i in range(12):
        xl.append(E.vm(f'buffer_load_dwordx4 {vr(XR+4*i)}, v{vOff}, {sr(srdX)}, 0 offen offset:{96*i}'))
    if Opt.kvpf == 2:
        e(f's_cmp_lt_u32 s{sWave}, 6')
        e(f's_cselect_b32 s{srdW2}, s{sK}, s{sV}')
        e(f's_cselect_b32 s{srdW2+1}, s{sK+1}, s{sV+1}')
        e(f's_and_b32 s{srdW2+1}, s{srdW2+1}, 0xffff')
        e(f's_and_b32 s{sT0}, s{sWave}, 1')
        e(f's_lshl_b32 s{sT1}, s{sMT}, 1')
        e(f's_add_u32 s{sT0}, s{sT0}, s{sT1}')
        e(f's_mul_i32 s{sT0}, s{sT0}, {20*1152}')
        e(f's_lshl_b32 s{sT1}, s{sFS}, 7')
        e(f's_add_u32 s10, s{sT0}, s{sT1}')
        e(f's_add_u32 s10, s10, {1024*1152}')
        e(f's_cmp_lt_u32 s{sWave}, 4')
        e('s_cselect_b32 s10, 0x40000000, s10')
        e('s_mov_b64 exec, 0xfffff')
        E.vm(f'buffer_load_dword v{vDum}, v{vT+7}, {sr(srdW2)}, s10 offen{Opt.ntkv}')
        e('s_mov_b64 exec, -1')
    srd(E, srdW1, sW1, D*F*2)
    srd(E, srdW2, sW2, D*F*2)
    srd(E, srdB1, sB1, F*2)
    srd(E, srdWS, sWS, WS_BYTES)
    if Opt.w1b:
        e(f's_and_b32 s{sT0}, s{sWave}, 3')
        e(f's_mul_i32 s{sT0}, s{sT0}, {28*26}')
        e(f's_mul_i32 s{sT1}, s{sMT}, 28')
        e(f's_add_u32 s{sT0}, s{sT0}, s{sT1}')
        e(f'v_add_u32 v{a}, s{sT0}, v{vLane}')
        e(f'v_mul_u32_u24 v{b}, 13108, v{a}')
        e(f'v_lshrrev_b32 v{b}, 16, v{b}')
        e(f'v_mul_u32_u24 v{c}, 5, v{b}')
        e(f'v_sub_u32 v{c}, v{a}, v{c}')
        e(f'v_mul_u32_u24 v{b}, 9216, v{b}')
        e(f'v_lshl_add_u32 v{vT+6}, v{c}, 7, v{b}')
    e(f'v_cmp_gt_u32 vcc, 12, v{vLane}')
    e(f's_mul_i32 s{sT0}, s{sWave}, {12*26}')
    e(f's_mul_i32 s{sT1}, s{sMT}, 12')
    e(f's_add_u32 s{sT0}, s{sT0}, s{sT1}')
    e(f'v_add_u32 v{a}, s{sT0}, v{vLane}')
    e(f'v_lshrrev_b32 v{b}, 2, v{a}')
    e(f'v_and_b32 v{c}, 3, v{a}')
    e(f'v_mul_u32_u24 v{b}, 9216, v{b}')
    e(f'v_lshl_add_u32 v{b}, v{c}, 7, v{b}')
    e(f'v_cndmask_b32 v{b}, -1, v{b}, vcc')
    e(f's_mul_i32 s{sT0}, s{sFS}, 1152')
    E.vm(f'buffer_load_dword v{vDum}, v{b}, {sr(srdW1)}, s{sT0} offen{Opt.nt}')
    e(f's_and_b32 s{sWi}, s{sWave}, 3')
    e(f's_lshr_b32 s{sT0}, s{sWave}, 2')
    e(f's_xor_b32 s{sT0}, s{sT0}, s{sFS}')
    e(f's_and_b32 s{sT0}, s{sT0}, 1')
    e(f's_xor_b32 s{sT0}, s{sT0}, 1')
    e(f's_lshl_b32 s{sLine2}, s{sT0}, 2')
    e(f's_add_u32 s{sLine2}, s{sLine2}, s{sWi}')
    e(f's_and_b32 s{sT0}, s{sFS}, 1')
    e(f's_lshl_b32 s{sT0}, s{sT0}, 2')
    e(f's_lshr_b32 s{sFin}, s{sFS}, 1')
    e(f's_add_u32 s{sFin}, s{sFin}, s{sT0}')
    flag_addrs(E, sFlA, sFlO)
    e(f'v_mov_b32 v{a}, s{sFlA}')
    e(f'v_writelane_b32 v{a}, s{sFlO}, 1')
    e('s_mov_b64 exec, 3')
    fl = [E.vm(f'buffer_load_dword v{vFlOld}, v{a}, {sr(srdWS)}, 0 offen{SC}')]
    e('s_mov_b64 exec, -1')
    e(f'v_lshlrev_b32 v{b}, 2, v{vLane}')
    flag_base(E, sT0)
    e(f's_lshl_b32 s{sT1}, s{sFin}, 8')
    e(f's_add_u32 s{sT1}, s{sT1}, s{sT0}')
    e(f's_add_u32 s{sT0}, s{sT0}, {8*FLB}')
    e(f's_cmp_ge_u32 s{sWave}, 4')
    e('s_cbranch_scc1 Lnoold')
    e(f'buffer_load_dword v0, v{b}, {sr(srdWS)}, s{sT1} offen{SC}')
    e(f'buffer_load_dword v{vOld2}, v{b}, {sr(srdWS)}, s{sT0} offen{SC}')
    e('Lnoold:')
    e(f'v_lshrrev_b32 v{d}, 4, v{vLane}')
    e(f's_mul_i32 s{sT0}, s{sFS}, 1152')
    e(f'v_lshl_add_u32 v{b}, v{d}, 3, s{sT0}')
    e(f's_lshl_b32 s{sT1}, s{sWave}, 7')
    bl = []
    for i in range(4):
        bl.append(E.vm(f'buffer_load_dwordx2 {vr(vBraw+2*i,2)}, v{b}, {sr(srdB1)}, s{sT1} offen offset:{32*i}'))
    e(f's_lshl_b32 s{sT1}, s{sWi}, 5')
    bl.append(E.vm(f'buffer_load_dwordx2 {vr(vBraw+8,2)}, v{b}, {sr(srdB1)}, s{sT1} offen offset:1024'))
    if Opt.w1b:
        e(f's_mul_i32 s{sT0}, s{sFS}, 1152')
        e(f's_add_u32 s{sT0}, s{sT0}, 512')
        e(f's_cmp_lt_u32 s{sWave}, 4')
        e(f's_cselect_b32 s{sT0}, 0x40000000, s{sT0}')
        e('s_mov_b64 exec, 0xfffffff')
        E.vm(f'buffer_load_dword v{vDum}, v{vT+6}, {sr(srdW1)}, s{sT0} offen')
        e('s_mov_b64 exec, -1')
    oddb = ODDB
    e(f'v_lshlrev_b32 v{vX0}, 4, v{vLane}')
    e(f'v_add_u32 v{vX1}, 46080, v{vX0}')
    e(f's_lshl_b32 s{sRing}, s{sWi}, 14')
    e(f's_add_u32 s{sRing}, s{sRing}, {XA_BYTES}')
    e(f's_lshr_b32 s{sT1}, s{sWave}, 2')
    e(f's_lshl_b32 s{sT1}, s{sT1}, 12')
    e(f's_add_u32 s15, s{sRing}, s{sT1}')
    e(f's_lshl_b32 s{sOddM}, s{sWi}, 10')
    e(f's_add_u32 s{sOddM}, s{sOddM}, {oddb}')
    e(f'v_lshrrev_b32 v{a}, 2, v{vLane}')
    e(f'v_and_b32 v{c}, 3, v{vLane}')
    e(f'v_lshlrev_b32 v{b}, 7, v{a}')
    e(f'v_lshl_add_u32 v{b}, v{c}, 3, v{b}')
    e(f'v_bfe_u32 v{c}, v{vLane}, 3, 2')
    e(f'v_lshl_add_u32 v{b}, v{c}, 5, v{b}')
    for t in range(4):
        e(f'v_xor_b32 v{vWt[t]}, {32*t}, v{b}')
        e(f'v_add_u32 v{vWt[t]}, s{sRing}, v{vWt[t]}')
    e(f's_lshl_b32 s{sT0}, s{sWi}, 5')
    e(f'v_xor_b32 v{vWo}, s{sT0}, v{b}')
    e(f'v_add_u32 v{vWo}, {oddb}, v{vWo}')
    e(f'v_lshrrev_b32 v{a}, 3, v{vLane}')
    e(f'v_and_b32 v{c}, 7, v{vLane}')
    e(f'v_and_b32 v{b}, 6, v{a}')
    e(f'v_xor_b32 v{c}, v{c}, v{b}')
    e(f'v_mul_u32_u24 v{d}, 1152, v{a}')
    e(f'v_lshl_add_u32 v{d}, v{c}, 4, v{d}')
    e(f's_mul_i32 s{sT0}, s{sFS}, 663552')
    e(f's_lshl_b32 s{sT1}, s{sLine2}, 7')
    e(f's_add_u32 s{sT1}, s{sT1}, s{sT0}')
    e(f'v_add_u32 v{vD2a}, s{sT1}, v{d}')
    e(f'v_add_u32 v{vD2b}, {8*1152-1024}, v{vD2a}')
    e(f's_mul_i32 s{sT1}, s{sWi}, {8*1152}')
    e(f's_add_u32 s{sT1}, s{sT1}, s{sT0}')
    e(f's_add_u32 s{sT1}, s{sT1}, 1024')
    e(f'v_add_u32 v{vDo}, s{sT1}, v{d}')
    e(f'v_and_b32 v{b}, 4, v{a}')
    e(f'v_add_u32 v{b}, v{b}, v{a}')
    e(f'v_mul_u32_u24 v{d}, 9216, v{b}')
    e(f'v_lshl_add_u32 v{d}, v{c}, 4, v{d}')
    e(f's_mul_i32 s{sT0}, s{sFS}, 1152')
    e(f's_lshl_b32 s{sT1}, s{sWave}, 7')
    e(f's_add_u32 s{sT1}, s{sT1}, s{sT0}')
    e(f'v_add_u32 v{vD1a}, s{sT1}, v{d}')
    e(f'v_add_u32 v{vD1b}, {16*9216-1024}, v{vD1a}')
    e(f's_cmp_lt_u32 s{sWave}, 4')
    e('s_cbranch_scc1 Lodd_p')
    e(f's_and_b32 s{sT1}, s{sWi}, 1')
    e(f's_mul_i32 s{sT1}, s{sT1}, {16*9216}')
    e(f's_add_u32 s{sT0}, s{sT0}, s{sT1}')
    e(f's_lshr_b32 s{sT1}, s{sWi}, 1')
    e(f's_mul_i32 s{sT1}, s{sT1}, {4*9216}')
    e(f's_add_u32 s{sT0}, s{sT0}, s{sT1}')
    e(f's_add_u32 s{sT0}, s{sT0}, 1024')
    e(f'v_add_u32 v{vDo}, s{sT0}, v{d}')
    e('Lodd_p:')
    e(f's_and_b32 s{sT0}, s{sWave}, 4')
    e(f's_add_u32 s{sT0}, s{sT0}, s{sWave}')
    e(f's_mul_i32 s{sT0}, s{sT0}, 5120')
    e(f'v_add_u32 v{vAW}, s{sT0}, v{vX0}')
    e(f's_lshr_b32 s{sT0}, s{sWi}, 1')
    e(f's_mul_i32 s{sT0}, s{sT0}, 5120')
    e(f's_and_b32 s{sT1}, s{sWi}, 1')
    e(f's_lshl_b32 s{sT1}, s{sT1}, 3')
    e(f's_add_u32 s{sT0}, s{sT0}, s{sT1}')
    e(f's_add_u32 s{sT0}, s{sT0}, {16*5120}')
    e(f'v_add_u32 v{vAWo}, s{sT0}, v{vX0}')
    e(f's_mul_i32 s{sT0}, s{sFS}, {PSTRIDE}')
    e(f's_mul_i32 s10, s{sMT}, {5*18432}')
    e(f's_add_u32 s{sT0}, s{sT0}, s10')
    e(f's_lshl_b32 s10, s{sLine2}, 11')
    e(f's_add_u32 s10, s10, s{sT0}')
    e(f'v_add_u32 v{vP}, s10, v{vX0}')
    e(f's_lshl_b32 s10, s{sWi}, 9')
    e(f's_add_u32 s10, s10, s{sT0}')
    e(f's_add_u32 s10, s10, {16*1024}')
    e(f'v_lshl_add_u32 v{vPo}, v{vLane}, 3, s10')
    e(f's_mov_b32 s{sC}, {RSQRT2}')
    e(f's_mov_b32 s{sSpin}, 0')
    e(f'v_and_b32 v{a}, 3, v{vLane}')
    e(f'v_lshlrev_b32 v{a}, 2, v{a}')
    e(f'v_add_u32 v{vSA}, {STW}, v{a}')
    e(f'v_add_u32 v{vSB}, {STW+16}, v{a}')
    e(f's_lshl_b32 s{sT0}, s{sWave}, 2')
    e(f's_add_u32 s{sT0}, s{sT0}, {STW}')
    e(f'v_mov_b32 v{vSW}, s{sT0}')
    vSw, vSr, vFe, vFo = 184, 185, 186, 187
    e(f's_lshl_b32 s{sT0}, s{sWave}, 9')
    e(f's_add_u32 s{sT0}, s{sT0}, {ODDB + ODDOFF[4]}')
    e(f'v_lshl_add_u32 v{vSw}, v{vLane}, 3, s{sT0}')
    e(f'v_mul_u32_u24 v{vSr}, 48, v{vR}')
    e(f'v_add_u32 v{vSr}, s{sT0}, v{vSr}')
    e(f'v_lshrrev_b32 v{a}, 4, v{vSl}')
    e(f'v_and_b32 v{b}, 15, v{vSl}')
    e(f'v_lshlrev_b32 v{a}, 10, v{a}')
    e(f'v_lshl_add_u32 v{a}, v{b}, 6, v{a}')
    e(f'v_lshrrev_b32 v{d}, 2, v{b}')
    e(f'v_and_b32 v{d}, 2, v{d}')
    for (dst, add) in ((vFe, 0), (vFo, 6)):
        e(f'v_add_u32 v{b}, {add}, v{vCc}')
        e(f'v_lshrrev_b32 v{c}, 2, v{b}')
        e(f'v_mul_u32_u24 v{c}, 5120, v{c}')
        e(f'v_and_b32 v{b}, 3, v{b}')
        e(f'v_xor_b32 v{b}, v{b}, v{d}')
        e(f'v_lshl_add_u32 v{c}, v{b}, 4, v{c}')
        e(f'v_add_u32 v{dst}, v{a}, v{c}')
    e(f'v_and_b32 v{a}, 15, v{vLane}')
    e(f'v_lshrrev_b32 v{b}, 4, v{vLane}')
    e(f'v_lshrrev_b32 v{c}, 2, v{a}')
    e(f'v_and_b32 v{c}, 2, v{c}')
    e(f'v_xor_b32 v{b}, v{b}, v{c}')
    e(f'v_lshlrev_b32 v{vXg0}, 6, v{a}')
    e(f'v_lshl_add_u32 v{vXg0}, v{b}, 4, v{vXg0}')
    e(f'v_add_u32 v{vXg1}, 46080, v{vXg0}')
    return dict(fl=fl, vR=vR, XR=XR, xl=xl, bl=bl, vSw=vSw, vSr=vSr, vFe=vFe, vFo=vFo, vCc=vCc)

def rowsum(E, P, vs, tmp):
    E.lg(f'ds_write_b32 v{P["vSw"]}, v{vs}')
    E.all_lg()
    for i in range(3):
        E.lg(f'ds_read_b64 {vr(tmp+2*i,2)}, v{P["vSr"]} offset:{8*i}')
    E.all_lg()
    E.e(f'v_add_f32 v{tmp}, v{tmp}, v{tmp+1}')
    E.e(f'v_add_f32 v{tmp+2}, v{tmp+2}, v{tmp+3}')
    E.e(f'v_add_f32 v{tmp+4}, v{tmp+4}, v{tmp+5}')
    E.e(f'v_add_f32 v{tmp}, v{tmp}, v{tmp+2}')
    E.e(f'v_add_f32 v{vs}, v{tmp}, v{tmp+4}')

def bf16r(E, v):
    E.e(f'v_cvt_pk_bf16_f32 v{v}, v{v}, v{v}')
    E.e(f'v_and_b32 v{v}, 0xffff0000, v{v}')

def mlp_ln(E, P, ts, prefill):
    e = E.e
    XR = P['XR']
    XT = 84
    S1, S2, PV, TD = 188, 192, 196, 198
    for i in range(12):
        E.need(P['xl'][i])
        for j in range(4):
            r = XR + 4*i + j
            t = XT + 2*(4*i + j)
            e(f'v_lshlrev_b32 v{t}, 16, v{r}')
            e(f'v_and_b32 v{t+1}, 0xffff0000, v{r}')
            if i == 0 and j == 0: e(f'v_mov_b32 v{PV}, v{t}')
            k = 2*(j & 1); d = TD + k
            first = i == 0 and j < 2
            dd = S1 + k if first else d
            e(f'v_pk_add_f32 {vr(dd,2)}, {vr(t,2)}, {vr(PV,2)} op_sel_hi:[1,0] neg_lo:[0,1] neg_hi:[0,1]')
            if first:
                e(f'v_pk_mul_f32 {vr(S2+k,2)}, {vr(dd,2)}, {vr(dd,2)}')
            else:
                e(f'v_pk_add_f32 {vr(S1+k,2)}, {vr(S1+k,2)}, {vr(d,2)}')
                e(f'v_pk_fma_f32 {vr(S2+k,2)}, {vr(d,2)}, {vr(d,2)}, {vr(S2+k,2)}')
    ts.stamp(E)
    e(f'v_pk_add_f32 {vr(S1,2)}, {vr(S1,2)}, {vr(S1+2,2)}')
    e(f'v_pk_add_f32 {vr(S2,2)}, {vr(S2,2)}, {vr(S2+2,2)}')
    e(f'v_add_f32 v{S1}, v{S1}, v{S1+1}')
    e(f'v_add_f32 v{S2}, v{S2}, v{S2+1}')
    e(f'v_mul_f32 v{S1+1}, 0x3c2aaaab, v{S1}')
    e(f'v_add_f32 v{TD}, v{PV}, v{S1+1}')
    e(f'v_fma_f32 v{TD+1}, -v{S1}, v{S1+1}, v{S2}')
    E.lg(f'ds_write_b64 v{P["vSw"]}, {vr(TD,2)}')
    prefill()
    E.all_lg()
    G = 200
    for i in range(3):
        E.lg(f'ds_read_b128 {vr(G+4*i)}, v{P["vSr"]} offset:{16*i}')
    E.all_lg()
    vMu, vM = 192, 194
    e(f'v_pk_add_f32 {vr(S1,2)}, {vr(G,2)}, {vr(G+2,2)}')
    e(f'v_pk_add_f32 {vr(S1+2,2)}, {vr(G+4,2)}, {vr(G+6,2)}')
    e(f'v_pk_add_f32 {vr(TD,2)}, {vr(G+8,2)}, {vr(G+10,2)}')
    e(f'v_pk_add_f32 {vr(S1,2)}, {vr(S1,2)}, {vr(S1+2,2)}')
    e(f'v_pk_add_f32 {vr(S1,2)}, {vr(S1,2)}, {vr(TD,2)}')
    e(f'v_mul_f32 v{vMu}, 0x3e2aaaab, v{S1}')
    for i in range(6): e(f'v_sub_f32 v{G+2*i}, v{G+2*i}, v{vMu}')
    e(f'v_mul_f32 v{TD}, v{G}, v{G}')
    e(f'v_mul_f32 v{TD+1}, v{G+2}, v{G+2}')
    for i in range(2, 6): e(f'v_fmac_f32 v{TD + (i & 1)}, v{G+2*i}, v{G+2*i}')
    e(f'v_add_f32 v{TD}, v{TD}, v{TD+1}')
    vV = S1
    e(f'v_mul_f32 v{vV}, 0x3ae38e39, v{S1+1}')
    e(f'v_fmac_f32 v{vV}, 0x3e2aaaab, v{TD}')
    e(f'v_mov_b32 v{vM}, v{vMu}')
    e(f'v_max_f32 v{vV}, 0, v{vV}')
    bf16r(E, vM)
    bf16r(E, vV)
    e(f'v_add_f32 v{vV}, 0x3727c5ac, v{vV}')
    bf16r(E, vV)
    e(f'v_sqrt_f32 v{vV}, v{vV}')
    e('s_nop 0')
    bf16r(E, vV)
    e(f'v_rcp_f32 v{vM+1}, v{vV}')
    tmp = 200
    e(f's_cmp_lg_u32 s{sWave}, 0')
    e('s_cbranch_scc1 Lnoz')
    e(f'v_mov_b32 v{tmp}, 0')
    e(f'ds_write_b32 v{vSA}, v{tmp}')
    e(f'ds_write_b32 v{vSB}, v{tmp}')
    e('Lnoz:')
    e('s_mov_b32 exec_hi, 0x0fffffff')
    e(f'v_cmp_eq_u32 vcc, 0, v{P["vCc"]}')
    e(f's_lshl_b32 s{sT0}, s{sWave}, 8')
    e(f's_add_u32 s{sT0}, s{sT0}, {SCR}')
    e(f'v_lshl_add_u32 v{tmp+1}, v{P["vR"]}, 3, s{sT0}')
    e('s_and_saveexec_b64 s[12:13], vcc')
    E.lg(f'ds_write_b64 v{tmp+1}, {vr(vM,2)}')
    e('s_mov_b64 exec, s[12:13]')
    e(f'v_mul_f32 v{vMu}, {hex(LOG2E) if Opt.fold else "1.0"}, v{vM+1}')
    e(f'v_mul_f32 v{vMu+1}, v{vM}, v{vMu}')
    for i in range(12):
        for j in range(4):
            t = XT + 2*(4*i + j)
            e(f'v_pk_fma_f32 {vr(t,2)}, {vr(t,2)}, {vr(vMu,2)}, {vr(vMu,2)} op_sel:[0,0,1] op_sel_hi:[1,0,1] neg_lo:[0,0,1] neg_hi:[0,0,1]')
        for j in range(4):
            t = XT + 2*(4*i + j)
            e(f'v_cvt_pk_bf16_f32 v{XR+4*i+j}, v{t}, v{t+1}')
        base = P['vFe'] if i % 2 == 0 else P['vFo']
        m = i // 2
        if m == 4 :
            e(f'v_add_u32 v{base}, {4*15360}, v{base}')
        off = (m % 4) * 15360
        E.lg(f'ds_write_b128 v{base}, {vr(XR+4*i)} offset:{off}')
    e('s_mov_b32 exec_hi, -1')

sD_ = 11
def mlp_prefill(E):
    ids = []
    E.e(f's_cmp_ge_u32 s{sWave}, 4')
    E.e('s_cbranch_scc1 Lnopre')
    for n in range(4):
        E.e(f's_add_u32 m0, s{sRing}, {((n + 2) % 4)*2048}')
        E.e(f's_mov_b32 s{sD_}, {(n // 2)*32*9216 + (n % 2)*4*9216}')
        E.vm(f'buffer_load_dwordx4 v{vD1a}, {sr(srdW1)}, s{sD_} offen lds')
        ids.append(E.vm(f'buffer_load_dwordx4 v{vD1b}, {sr(srdW1)}, s{sD_} offen offset:1024 lds'))
    E.e('s_branch Lpre_done')
    E.e('Lnopre:')
    if Opt.qpf:
        e = E.e
        a, b, c = vT, vT+1, vT+2
        e(f's_mul_i32 s{sT0}, s{sWi}, {28*26}')
        e(f's_mul_i32 s{sT1}, s{sMT}, 28')
        e(f's_add_u32 s{sT0}, s{sT0}, s{sT1}')
        e(f'v_add_u32 v{a}, s{sT0}, v{vLane}')
        e(f'v_mul_u32_u24 v{b}, 13108, v{a}')
        e(f'v_lshrrev_b32 v{b}, 16, v{b}')
        e(f'v_mul_u32_u24 v{c}, 5, v{b}')
        e(f'v_sub_u32 v{c}, v{a}, v{c}')
        e(f'v_mul_u32_u24 v{b}, 9216, v{b}')
        e(f'v_lshl_add_u32 v{b}, v{c}, 7, v{b}')
        e(f's_mul_i32 s{sT0}, s{sFS}, 1152')
        e(f's_add_u32 s{sT0}, s{sT0}, 512')
        e('s_mov_b64 exec, 0xfffffff')
        e(f'buffer_load_dword v{vDum}, v{b}, {sr(srdW1)}, s{sT0} offen{Opt.nt}')
        e('s_mov_b64 exec, -1')
    E.e('Lpre_done:')
    return ids

KORD = [0, 2, 4, 6, 1, 3, 5, 7, 8, 10, 12, 14, 9, 11, 13, 15, 16, 17]
stubs = []
def mlp_main(E, cls, P, ts, pre_ids):
    e = E.e
    isP = cls == 'P'
    R = ODDR
    vSown = vSA if isP else vSB
    steps, groups, pairs, odds = [], [], [], []
    for gm in (1, 2):
        for k in range(18):
            kx = k if gm == 1 else KORD[k]
            hasodd = (gm == 1) != isP
            st = dict(gm=gm, k=k, x=k, g0=len(groups), odd=hasodd, xr={})
            rs = 9216 if gm == 1 else 1152
            hb = 4 if gm == 1 else 16
            st['pa'] = len(pairs)
            for h in range(2):
                pairs.append(dict(gm=gm, soff=kx*32*rs + h*hb*rs, reads=[], id=None))
            if hasodd:
                st['oi'] = len(odds); odds.append(dict(gm=gm, soff=kx*32*rs, id=None, reads=[]))
            for t in range(5 if hasodd else 4):
                groups.append(dict(step=len(steps), t=t, w=[]))
            st['ng'] = len(groups) - st['g0']
            steps.append(st)
    NG = len(groups); NM = 5*NG
    own, flo = ((0, 2) if isP else (4, 2))
    lastuse = {}
    deep = (not isP) and Opt.qdeep
    for n, p in enumerate(pairs):
        s_, h = divmod(n, 2); k = s_ % 18
        isflo = (k % 2 == 0) and (k > 0 or (isP and s_ == 0))
        p['slot'] = (flo if isflo else own) + h
        if deep and s_ >= 18 + 4:
            p['slot'] = [2, 0, 6, 4][(k - 4) % 4] + h
        p['prev'] = lastuse.get(p['slot']); lastuse[p['slot']] = n
    nxt = {p['prev']: n for n, p in enumerate(pairs) if p['prev'] is not None}
    pre = [[] for _ in range(NM)]
    gaps = [[] for _ in range(NM)]
    def stepm(s): return 5*steps[s]['g0'] if s < len(steps) else NM
    so0 = 18 if isP else 0
    PB, QB = 6, 3
    pbase = PB if isP else QB
    obase = 18 if isP else 0

    def wait_status(name, vaddr, thr, pre_id=None, part=0, vv=vS):
        if pre_id is None:
            vv = vS2
            pre_id = E.lg(f'ds_read_b32 v{vv}, v{vaddr}')
        if part != 2:
            E.need(pre_id)
            e(f'v_cmp_gt_u32 vcc, {thr}, v{vv}')
        if part == 1: return
        e(f's_cbranch_vccnz Lw{name}')
        e(f'Lr{name}:')
        stubs.extend([f'Lw{name}:', f'ds_read_b32 v{vv}, v{vaddr}', f's_add_u32 s{sSpin}, s{sSpin}, 1', f's_cmp_gt_u32 s{sSpin}, 0x100000', f's_cbranch_scc1 Lr{name}',
                      's_waitcnt lgkmcnt(0)', f'v_cmp_gt_u32 vcc, {thr}, v{vv}', f's_cbranch_vccz Lr{name}', 's_sleep 1', f's_branch Lw{name}'])
    def publish(val):
        e(f'v_mov_b32 v{vPg}, {val}')
        E.lg(f'ds_write_b32 v{vSW}, v{vPg}')
    def p_m0(n): e(f's_add_u32 m0, s{sRing}, {pairs[n]["slot"]*2048}')
    def p_so(n): e(f's_mov_b32 s{sD_}, {pairs[n]["soff"]}')
    def p_ld(n, i):
        it = pairs[n]
        if it['prev'] is not None and i == 0:
            assert len(pairs[it['prev']]['reads']) == 4
            E.need(*pairs[it['prev']]['reads'])
        va, sd = ((vD1a, vD1b), srdW1) if it['gm'] == 1 else ((vD2a, vD2b), srdW2)
        if Opt.x_nodma:
            e('s_nop 0'); x = ('vm', 0)
        else:
            x = E.vm(f'buffer_load_dwordx4 v{va[i]}, {sr(sd)}, s{sD_} offen{" offset:1024" if i else ""} lds')
        if i: it['id'] = x
    def p_all(n): p_m0(n); p_so(n); p_ld(n, 0); p_ld(n, 1)
    def o_m0(n): e(f's_add_u32 m0, s{sOddM}, {ODDOFF[(obase + n) % R]}')
    def o_so(n): e(f's_mov_b32 s{sD_}, {odds[n]["soff"]}')
    def o_ld(n):
        sd = srdW1 if odds[n]['gm'] == 1 else srdW2
        if Opt.x_nodma:
            e('s_nop 0'); odds[n]['id'] = ('vm', 0)
        else:
            odds[n]['id'] = E.vm(f'buffer_load_dwordx4 v{vDo}, {sr(sd)}, s{sD_} offen lds')
    def wreg(s, t): return vWF + 20*(s % 2) + 4*t
    def do_wread(s, t, h):
        st = steps[s]; g = st['g0'] + t
        if t < 4:
            n = st['pa'] + h
            E.need(pairs[n]['id'])
            i = E.lg(f'ds_read_b64_tr_b16 {vr(wreg(s,t)+2*h,2)}, v{vWt[t]} offset:{pairs[n]["slot"]*2048}')
            pairs[n]['reads'].append(i)
        else:
            n = st['oi']
            i = E.lg(f'ds_read_b64_tr_b16 {vr(wreg(s,t)+2*h,2)}, v{vWo} offset:{ODDOFF[(obase + n) % R] + h*2048}')
            odds[n]['reads'].append(i)
        groups[g]['w'].append(i)
    def do_xread(s, rt):
        idx = steps[s]['x']*5 + rt
        b0, b1 = (vX0, vX1) if steps[s]['gm'] == 2 else (vXg0, vXg1)
        vb, off = (b0, idx*1024) if idx < 45 else (b1, (idx-45)*1024)
        steps[s]['xr'][rt] = E.lg(f'ds_read_b128 {vr(vXF + 20*(s % 2) + 4*rt)}, v{vb} offset:{off}')

    TN = dict(Wa=[0,1,3,4], Wb=[10,11,13,14], X=[5,6,8,9,15], DA=[12,17], DAs=[8,9], DB=[2,7], DBs=[-2,-1], lg=19)
    TO = dict(Wa=[0,1,3,4], Wb=[14,15,16,18], X=[8,9,11,19,20], DA=[12,17], DAs=[8,9], DB=[2,7], DBs=[-2,-2], lg=24,
              Wo=[5,6], Sr=10, Pv=11, Sw=13, Cm=19, Br=21, Do=22, Dos=[18,20])
    if Opt.tmpl == 1:
        TO = dict(Wa=[0,1,3,4], Wb=[9,10,11,13], X=[14,15,16,18,19], DA=[17,22], DAs=[13,14], DB=[2,7], DBs=[-2,-2], lg=24,
                  Wo=[5,6], Sr=-4, Pv=18, Sw=20, Cm=8, Br=10, Do=12, Dos=[8,9])
    if Opt.tmpl == 2:
        TO = dict(Wa=[0,1,3,4], Wb=[13,14,15,16], X=[5,6,8,9,10], DA=[17,22], DAs=[13,14], DB=[7,12], DBs=[3,4], lg=24,
                  Wo=[18,19], Sr=11, Pv=5, Sw=20, Cm=21, Br=23, Do=27, Dos=[23,24], lag=1)
    manual = set()
    def at(s, g, f):
        if steps[s]['k'] == 0 and g < 0: pre[stepm(s)].append(f)
        else: gaps[stepm(s) + g].append(f)
    sread = {}
    gated = {26: QB+18, 30: QB+19, 34: QB+20} if isP else {}
    for s in range(36):
        st = steps[s]; T = TO if st['odd'] else TN; k = st['k']
        if k < 17:
            for h, key in ((0, 'Wa'), (1, 'Wb')):
                for t in range(4): at(s, T[key][t], lambda s=s, t=t, h=h: do_wread(s+1, t, h))
            if s+1 in gated:
                at(s, -4, lambda s=s: sread.__setitem__(('g', s), E.lg(f'ds_read_b32 v{vS2}, v{vSB}')))
                at(s, 3, lambda s=s: wait_status(f'Pg{s}', vSB, gated[s+1], sread[('g', s)], part=1, vv=vS2))
                at(s, 5, lambda s=s: (wait_status(f'Pg{s}', vSB, gated[s+1], sread[('g', s)], part=2, vv=vS2), ts.stamp(E)))
            for rt in range(5): at(s, T['X'][rt], lambda s=s, rt=rt: do_xread(s+1, rt))
            at(s, T['lg'], lambda s=s: E.need(*([steps[s+1]['xr'][0]] + groups[steps[s+1]['g0']]['w'])))
        def place(n, D, Ds):
            at(s, Ds[0], lambda n=n: p_m0(n)); at(s, Ds[1], lambda n=n: p_so(n))
            at(s, D[0], lambda n=n: p_ld(n, 0)); at(s, D[1], lambda n=n: p_ld(n, 1))
            manual.discard(n)
        def ok(n):
            return n is not None and not (pairs[n]['slot'] in (flo, flo+1) and (n // 36) != (pairs[n]['prev'] // 36))
        if k < 17 and ok(nxt.get(steps[s+1]['pa'])): place(nxt[steps[s+1]['pa']], T['DA'], T['DAs'])
        if k >= 1 and ok(nxt.get(st['pa'] + 1)): place(nxt[st['pa'] + 1], T['DB'], T['DBs'])
        if st['odd']:
            if k < 17:
                for h in range(2): at(s, T['Wo'][h], lambda s=s, h=h: do_wread(s+1, 4, h))
            if k < 16 and not Opt.x_nochk:
                at(s, T['Sr'], lambda k=k: sread.__setitem__(k, E.lg(f'ds_read_b32 v{vS}, v{vSown}')))
                at(s, T['Cm'], lambda k=k: wait_status(f'{cls}o{k}', vSown, pbase + k - 1, sread[k], part=1))
                at(s, T['Br'], lambda k=k: wait_status(f'{cls}o{k}', vSown, pbase + k - 1, sread[k], part=2))
            if k + R < 18:
                n = k + R
                at(s, T['Dos'][0], lambda n=n: o_m0(n)); at(s, T['Dos'][1], lambda n=n: o_so(n)); at(s, T['Do'], lambda n=n: o_ld(n))
            def pub(k=k, s=s, T=T):
                ids = list(steps[s]['xr'].values()) + pairs[steps[s]['pa']]['reads'] + pairs[steps[s]['pa']+1]['reads']
                if T.get('lag'):
                    ids += odds[k]['reads']
                elif k + 1 < 18: ids += odds[k+1]['reads']
                ids.append(odds[min(k + R - 2, 17)]['id'])
                E.need(*ids)
                E.lg(f'ds_write_b32 v{vSW}, v{vPg}')
            if not (Opt.x_nopub and (k not in (3, 7, 14, 16, 17))):
                at(s, T['Pv'], lambda k=k: e(f'v_mov_b32 v{vPg}, {pbase + k}')); at(s, T['Sw'], pub)
    if deep:
        at(19, 16, lambda: wait_status('Qe', vSA, PB + 17))
        for i, n in enumerate((46, 47, 48, 49)):
            at(20 + i // 2, 7 if i % 2 == 0 else 17, lambda n=n: p_all(n))
    if not isP:
        at(Opt.qsig, 15, lambda: e(f'v_mov_b32 v{vPg}, {QB + 21}'))
        at(Opt.qsig, 16, lambda: E.lg(f'ds_write_b32 v{vSW}, v{vPg}'))
    if isP:
        at(16, 0, lambda: e(f'v_mov_b32 v{vPg}, 1'))
        at(16, 2, lambda: (E.need(*(pairs[32]['reads'] + pairs[33]['reads'])), E.lg(f'ds_write_b32 v{vSW}, v{vPg}')))

    if isP:
        TL = Tail(E, ts)
    def mish_quad(src, dst, tb):
        T = [tb+i for i in range(4)]
        I = range(4)
        o = []
        if Opt.fold:
            o += [f'v_exp_f32 v{T[i]}, v{src+i}' for i in I]
        else:
            o += [f'v_mul_f32 v{T[i]}, {hex(LOG2E)}, v{src+i}' for i in I]
            o += [f'v_exp_f32 v{T[i]}, v{T[i]}' for i in I]
        o += [f'v_fma_f32 v{T[i]}, v{T[i]}, s{sC}, s{sC}' for i in I]
        o += [f'v_fma_f32 v{T[i]}, v{T[i]}, v{T[i]}, 0.5' for i in I]
        o += [f'v_rcp_f32 v{T[i]}, v{T[i]}' for i in I]
        o += [f'v_fma_f32 v{T[i]}, -v{src+i}, v{T[i]}, v{src+i}' for i in I]
        o += [f'v_cvt_pk_bf16_f32 v{dst}, v{T[0]}, v{T[1]}', f'v_cvt_pk_bf16_f32 v{dst+1}, v{T[2]}, v{T[3]}']
        if Opt.x_nomish: o = o[-2:]
        if Opt.mnop >= 0:
            o2 = []; acc = 0
            for op in o:
                o2.append(op)
                acc += 8 if ('exp' in op or 'rcp' in op) else 4
                if acc >= 8:
                    o2.append(f's_nop {Opt.mnop}'); acc = 0
            o = o2
        return o
    def mish_rt(hf, rt):
        a0, a1 = vAcc + 40*hf + 4*rt, vAcc + 40*hf + 20 + 4*rt
        for o in mish_quad(a0, a0, vT): e(o)
        for o in mish_quad(a1, a0+2, vT+4): e(o)
    def wr(hf, rt):
        if Opt.x_nowr: return ('lg', 0)
        return E.lg(f'ds_write_b128 v{vAW}, {vr(vAcc + 40*hf + 4*rt)} offset:{hf*20480 + rt*1024}')
    def w_stage_ops(s0):
        L = [(lambda t=t, h=h: do_wread(s0, t, h)) for h in range(2) for t in range(4)]
        for n in (steps[s0+1]['pa'], steps[s0+1]['pa'] + 1):
            L += [lambda n=n: (p_m0(n), p_so(n), p_ld(n, 0)), lambda n=n: p_ld(n, 1)]
        return L
    def w_stage(s0):
        for f in w_stage_ops(s0): f()
    side = []
    def valu_phase():
        clk = E.clock; E.clock = None
        ts.stamp(E)
        e('s_setprio 0')
        if isP:
            publish(2)
            e('s_nop 4')
            w = []
            for rt in range(Opt.pw0): mish_rt(0, rt)
            wait_status('Pa', vSA, 2)
            wait_status('Pb', vSB, QB + 3)
            pend = [(0, rt) for rt in range(Opt.pw0)]
            def mish_w(hf, rt):
                a0, a1 = vAcc + 40*hf + 4*rt, vAcc + 40*hf + 20 + 4*rt
                for (src, dst, tb) in ((a0, a0, vT), (a1, a0+2, vT+4)):
                    ops = mish_quad(src, dst, tb)
                    for i, o in enumerate(ops):
                        e(o)
                        if pend and pend[0][0] <= allowed[0] and i == len(ops) // 2: w.append(wr(*pend.pop(0)))
                        if side and i in (3, len(ops) - 4): side.pop(0)()
                pend.append((hf, rt))
            allowed = [0]
            for rt in range(Opt.pw0, 5): mish_w(0, rt)
            side.extend(w_stage_ops(18))
            for rt in range(5):
                if rt == Opt.pw1:
                    wait_status('Pb2', vSB, QB + 7); allowed[0] = 1
                mish_w(1, rt)
            assert not side
            for x in pend: w.append(wr(*x))
            ts.stamp(E)
            E.need(*w)
            publish(3)
            wait_status('Pc0', vSB, QB + 14)
            for n in range(3):
                o_m0(n); o_so(n); o_ld(n)
            E.need(odds[2]['id'])
            publish(4)
            wait_status('Pd', vSA, 4)
            for h in range(2): do_wread(18, 4, h)
            for rt in range(5): do_xread(18, rt)
            E.need(*odds[0]['reads'])
            publish(5)
            wait_status('Pc3', vSB, QB + 16)
            p_all(40); p_all(41)
            for n in range(3, R):
                o_m0(n); o_so(n); o_ld(n)
        else:
            e('s_nop 7')
            for rt in range(2): mish_rt(0, rt)
            wait_status('Qa', vSB, QB + 17)
            wait_status('Qp', vSA, 2)
            w = [wr(0, 0), wr(0, 1)]
            for rt in range(2, 5):
                mish_rt(0, rt); w.append(wr(0, rt))
            E.need(*w); publish(QB + 18)
            w = []
            for rt in range(5):
                mish_rt(1, rt); w.append(wr(1, rt))
            E.need(*w); publish(QB + 19)
            w = []
            for rt in range(5):
                a0 = vAcc + 80 + 4*rt
                for o in mish_quad(a0, a0, vT + 4*(rt & 1)): e(o)
                w.append(E.lg(f'ds_write_b64 v{vAWo}, {vr(a0,2)} offset:{rt*1024}'))
            E.need(*w); publish(QB + 20)
            ts.stamp(E)
            for f in w_stage_ops(18):
                f(); e('s_sleep 1')
            wait_status('Qc', vSB, QB + 20)
            wait_status('Qd', vSA, 3)
            for rt in range(5): do_xread(18, rt)
            wait_status('Qb', vSA, PB + 16)
            p_all(40); p_all(41)
        e('s_setprio 1')
        ts.stamp(E)
        E.clock = clk
    if not isP:
        pre[0].append(lambda: ts.val(E, sSpin)); pre[stepm(18)].append(lambda: ts.val(E, sSpin))
    pre[stepm(18)].insert(0, valu_phase)
    if Opt.fine:
        lo_, st_ = [int(x) for x in Opt.fine.split(',')]
        for i in range(13):
            if lo_ + i*st_ < 36: pre[stepm(lo_ + i*st_)].append(lambda: ts.stamp(E, True))

    if isP:
        for n in range(4): pairs[n]['id'] = pre_ids[n]
    def small_setup():
        E.need(*P['bl'])
        for i in range(4 if isP else 5):
            r = vBraw + 2*i; d = vAcc + 20*i + 16
            e(f'v_lshlrev_b32 v{d}, 16, v{r}')
            e(f'v_and_b32 v{d+1}, 0xffff0000, v{r}')
            e(f'v_lshlrev_b32 v{d+2}, 16, v{r+1}')
            e(f'v_and_b32 v{d+3}, 0xffff0000, v{r+1}')
            if Opt.fold:
                for j in range(4): e(f'v_mul_f32 v{d+j}, {hex(LOG2E)}, v{d+j}')
        E.need(*P['fl'])
        e(f'v_readlane_b32 s{sFlA+3}, v{vFlOld}, 0')
        e(f'v_readlane_b32 s{sFlO+3}, v{vFlOld}, 1')
    if isP: small_setup()
    if Opt.x_warm:
        a, b, c = vT, vT+1, vT+2
        e(f's_mul_i32 s{sT0}, s{sMT}, 200')
        e(f's_mul_i32 s{sT1}, s{sWi}, 50')
        e(f's_add_u32 s{sT0}, s{sT0}, s{sT1}')
        e(f'v_add_u32 v{a}, s{sT0}, v{vLane}')
        if isP:
            e(f'v_mul_u32_u24 v{b}, 7282, v{a}')
            e(f'v_lshrrev_b32 v{b}, 16, v{b}')
            e(f'v_mul_u32_u24 v{c}, 9, v{b}')
            e(f'v_sub_u32 v{c}, v{a}, v{c}')
            e(f'v_mul_u32_u24 v{b}, 9216, v{b}')
            e(f'v_lshl_add_u32 v{b}, v{c}, 7, v{b}')
            e(f's_mul_i32 s{sT0}, s{sFS}, 1152')
            E.vm(f'buffer_load_dword v{vDum}, v{b}, {sr(srdW1)}, s{sT0} offen{Opt.nt}')
        else:
            e(f'v_lshlrev_b32 v{b}, 7, v{a}')
            e(f's_mul_i32 s{sT0}, s{sFS}, 663552')
            E.vm(f'buffer_load_dword v{vDum}, v{b}, {sr(srdW2)}, s{sT0} offen')
        E.all_vm()
        for i in range(3): e('s_sleep 127')
    if isP:
        for h in range(2):
            for t in range(4): do_wread(0, t, h)
        p_all(4); p_all(5)
        poison(E)
    e('s_waitcnt lgkmcnt(0)'); E.lg_done = E.lg_n - 1
    ts.stamp(E)
    e('s_barrier')
    e(f's_setprio {3 if isP else 2}')
    for rt in range(5): do_xread(0, rt)
    if not isP:
        small_setup()
        if Opt.qpf: e('s_waitcnt vmcnt(0)'); e('s_sleep 8')
        for n in range(2): p_all(n)
        for n in range(R):
            o_m0(n); o_so(n); o_ld(n)
        w_stage(0)
        E.need(odds[R-1]['id'])
        publish(1)
        wait_status('Qr', vSB, 1)
        for h in range(2): do_wread(0, 4, h)
        E.need(*odds[0]['reads'])
        publish(2)
        wait_status('Qs', vSA, 1)
        p_all(4); p_all(5)
    for m in range(NM):
        g, rt = divmod(m, 5)
        G = groups[g]; s = G['step']; st = steps[s]
        if Opt.snake and G['t'] % 2 and not (st['k'] == 0 and st['gm'] == 1): rt = 4 - rt
        E.clock = m
        for f in pre[m]: f()
        assert len(G['w']) == 2, (cls, m, g)
        E.need(*(G['w'] + [st['xr'][rt]]))
        ab = vAcc + 20*G['t']; d = ab + 4*rt
        c = vr(d)
        if st['k'] == 0: c = vr(ab + 16) if st['gm'] == 1 else '0'
        e(f'v_mfma_f32_16x16x32_bf16 {vr(d)}, {vr(wreg(s, G["t"]))}, {vr(vXF + 20*(s % 2) + 4*rt)}, {c}')
        for f in gaps[m]: f()
    assert all(p['id'] for p in pairs) and all(len(p['reads']) == 4 for p in pairs)
    E.clock = None
    ts.stamp(E)
    if Opt.x_noex:
        e('s_endpgm'); return
    e('s_setprio 0')
    e('s_nop 6')
    def pack(u, rt):
        a0, a1 = vAcc + 40*u + 4*rt, vAcc + 40*u + 20 + 4*rt
        e(f'v_cvt_pk_bf16_f32 v{a0}, v{a0}, v{a0+1}')
        e(f'v_cvt_pk_bf16_f32 v{a0+1}, v{a0+2}, v{a0+3}')
        e(f'v_cvt_pk_bf16_f32 v{a0+2}, v{a1}, v{a1+1}')
        e(f'v_cvt_pk_bf16_f32 v{a0+3}, v{a1+2}, v{a1+3}')
        return a0
    if not isP:
        e(f's_cmp_eq_u32 s{sLine2}, s{sFin}')
        e('s_cbranch_scc1 Lq_own')
        for u in range(2):
            for rt in range(5):
                a0 = pack(u, rt)
                e(f's_mov_b32 s{sT0}, {rt*18432}')
                e(f'buffer_store_dwordx4 {vr(a0)}, v{vP}, {sr(srdWS)}, s{sT0} offen offset:{u*1024}{SC}')
        e('s_branch Lq_end')
        e('Lq_own:')
        e(f'v_add_u32 v{vT}, s{sRing}, v{vX0}')
        for u in range(2):
            for rt in range(5):
                a0 = pack(u, rt)
                e(f'ds_write_b128 v{vT}, {vr(a0)} offset:{(5*u + rt)*1024}')
        e('s_waitcnt lgkmcnt(0)')
        e('Lq_end:')
        publish(QB + 22)
        if Opt.ts:
            e('s_waitcnt vmcnt(0)')
            ts.stamp(E)
            ts.flush(E, vT)
        e('s_endpgm')
        return
    sts = []
    def st_main(u, rt):
        a0 = pack(u, rt)
        e(f's_mov_b32 s{sT0}, {rt*18432}')
        if len(sts) >= Opt.sthr: E.need(sts[-Opt.sthr])
        sts.append(E.vm(f'buffer_store_dwordx4 {vr(a0)}, v{vP}, {sr(srdWS)}, s{sT0} offen offset:{u*1024}{SC}'))
    def st_odd(rt):
        a0 = vAcc + 80 + 4*rt
        e(f'v_cvt_pk_bf16_f32 v{a0}, v{a0}, v{a0+1}')
        e(f'v_cvt_pk_bf16_f32 v{a0+1}, v{a0+2}, v{a0+3}')
        e(f's_mov_b32 s{sT0}, {rt*18432}')
        if len(sts) >= Opt.sthr: E.need(sts[-Opt.sthr])
        sts.append(E.vm(f'buffer_store_dwordx2 {vr(a0,2)}, v{vPo}, {sr(srdWS)}, s{sT0} offen{SC}'))
    todo = [(lambda u=u, rt=rt: st_main(u, rt)) for u in range(2) for rt in range(5)] + [(lambda rt=rt: st_odd(rt)) for rt in range(5)]
    for f in todo: f()
    TL.setup()
    e(f'v_mov_b32 v{vT}, 0')
    e(f's_add_u32 s{sFlA+3}, s{sFlA+3}, 1')
    e(f's_add_u32 s{sFlO+3}, s{sFlO+3}, 1')
    e(f'v_mov_b32 v{vT+1}, s{sFlA+3}')
    e(f'v_mov_b32 v{vT+2}, s{sFlO+3}')
    e('s_mov_b64 exec, 1')
    E.need(*sts[:10])
    E.vm(f'buffer_store_dword v{vT+1}, v{vT}, {sr(srdWS)}, s{sFlA} offen{SC}')
    E.need(*sts)
    E.vm(f'buffer_store_dword v{vT+2}, v{vT}, {sr(srdWS)}, s{sFlO} offen{SC}')
    e('s_mov_b64 exec, -1')
    ts.stamp(E)
    TL.run(lambda: wait_status('Pt', vSB, QB + 21))

def gpoll(E, name, vcur, vadr, sb, vold, mask, have=False, sleep=None):
    e = E.e
    e('s_mov_b32 s10, 0')
    if have: e(f's_branch L{name}_c')
    e(f'L{name}:')
    e(f'buffer_load_dword v{vcur}, v{vadr}, {sr(srdWS)}, s{sb} offen{SC}')
    e('s_waitcnt vmcnt(0)')
    e(f'L{name}_c:')
    e(f'v_cmp_ne_u32 vcc, v{vcur}, v{vold}')
    e(f's_and_b64 s[12:13], vcc, s[{mask}:{mask+1}]')
    e(f's_cmp_eq_u64 s[12:13], s[{mask}:{mask+1}]')
    e(f's_cbranch_scc1 L{name}_ok')
    e(f's_sleep {sleep or Opt.psleep}')
    e('s_add_u32 s10, s10, 1')
    e('s_cmp_lt_u32 s10, 0x20000')
    e(f's_cbranch_scc1 L{name}')
    e(f'L{name}_ok:')
    if not have: E.vm_done = E.vm_n - 1

def late_block_soff(E, dst, b_expr_reg):
    pass

def block_ur(E, s_):
    e = E.e
    e(f's_add_u32 s13, s{sWi}, {4*s_}')
    e(f's_lshl_b32 s14, s{sFin}, 1')
    e('s_cmp_ge_u32 s13, 5')
    e(f's_cselect_b32 s{sT0}, 5, 0')
    e('s_addc_u32 s14, s14, 0')
    e(f's_sub_u32 s15, s13, s{sT0}')

def piece_off(E, dst, u, r):
    e = E.e
    e(f's_mul_i32 s{dst}, s{sMT}, 5')
    e(f's_add_u32 s{dst}, s{dst}, s{r}')
    e(f's_mul_i32 s{dst}, s{dst}, 18432')
    e(f's_lshl_b32 s{sT1}, s{u}, 10')
    e(f's_add_u32 s{dst}, s{dst}, s{sT1}')

def late_slabs(E, d0):
    for k in range(3):
        E.e(f's_add_u32 s{d0+k}, s{sFS}, {2*(k+1)}')
        E.e(f's_and_b32 s{d0+k}, s{d0+k}, 7')
        E.e(f's_mul_i32 s{d0+k}, s{d0+k}, {PSTRIDE}')

def poison(E):
    e = E.e
    for i in range(4): e(f'v_mov_b32 v{228+i}, -1')
    late_slabs(E, 64)
    ids = []
    for s_ in range(3):
        block_ur(E, s_)
        piece_off(E, 12, 14, 15)
        if s_ == 2:
            e('s_cmp_ge_u32 s13, 10')
            e('s_cselect_b32 s12, 0x40000000, s12')
        for k in range(3):
            e(f's_add_u32 s{sT0}, s12, s{64+k}')
            if len(ids) >= Opt.pthr: E.need(ids[-Opt.pthr])
            ids.append(E.vm(f'buffer_store_dwordx4 v[228:231], v{vX0}, {sr(srdWS)}, s{sT0} offen{SC}'))

class Tail:
    def __init__(self, E, ts):
        self.E, self.ts = E, ts
    def slot_addr(self, d, u, r):
        e = self.E.e
        e(f's_min_u32 s{sT0}, s{r}, 4')
        e(f's_lshl_b32 s{sT0}, s{sT0}, 4')
        e(f'v_add_u32 v8, s{sT0}, v4')
        e('v_mul_u32_u24 v9, 205, v8')
        e('v_lshrrev_b32 v9, 11, v9')
        e('v_mul_u32_u24 v9, 176, v9')
        e('v_lshl_add_u32 v9, v8, 3, v9')
        e(f'v_add_u32 v9, {SCR}, v9')
        d['st'] = self.E.lg(f'ds_read_b64 {vr(d["ST"],2)}, v9')
        e(f's_mul_i32 s{sT0}, s{sMT}, 80')
        e(f'v_add_u32 v8, s{sT0}, v8')
        e(f'v_mul_u32_u24 v{d["xa"]}, 1152, v8')
        e(f'v_lshl_add_u32 v{d["xa"]}, v6, 5, v{d["xa"]}')
        e(f'v_lshl_add_u32 v{d["xa"]}, v5, 4, v{d["xa"]}')
        e(f's_lshl_b32 s{sT0}, s{u}, 6')
        e(f'v_add_u32 v{d["xa"]}, s{sT0}, v{d["xa"]}')
        e(f'v_lshlrev_b32 v{d["ya"]}, 4, v8')
        e(f'v_lshl_add_u32 v{d["ya"]}, v5, 15, v{d["ya"]}')
        e(f'v_lshl_add_u32 v{d["ya"]}, v6, 16, v{d["ya"]}')
        e(f's_lshl_b32 s{sT0}, s{u}, 17')
        e(f's_add_u32 s{sT0}, s{sT0}, {WS_Y}')
        e(f'v_add_u32 v{d["ya"]}, s{sT0}, v{d["ya"]}')
        piece_off(self.E, d['sP'], u, r)
    sME, sMY, sMO, sMYO = 30, 32, 28, 40
    sFb, sFo = 26, 27
    vFa, vCur, vCur2 = 236, 237, 238
    def sample0(self):
        e = self.E.e
        e(f'v_lshlrev_b32 v{self.vFa}, 2, v{vLane}')
        flag_base(self.E, self.sFo)
    def sample1(self):
        e = self.E.e
        e(f's_lshl_b32 s{self.sFb}, s{sFin}, 8')
        e(f's_add_u32 s{self.sFb}, s{self.sFb}, s{self.sFo}')
        self.f1 = self.E.vm(f'buffer_load_dword v{self.vCur}, v{self.vFa}, {sr(srdWS)}, s{self.sFb} offen{SC}')
    def sample2(self):
        self.E.e(f's_add_u32 s{self.sFo}, s{self.sFo}, {8*FLB}')
        self.f2 = self.E.vm(f'buffer_load_dword v{self.vCur2}, v{self.vFa}, {sr(srdWS)}, s{self.sFo} offen{SC}')
    def poll2(self, name, m1, m2, have):
        E = self.E; e = E.e
        e('s_mov_b32 s10, 0')
        if have: e(f's_branch L{name}_c')
        e(f'L{name}:')
        e(f'buffer_load_dword v{self.vCur}, v{self.vFa}, {sr(srdWS)}, s{self.sFb} offen{SC}')
        e(f'buffer_load_dword v{self.vCur2}, v{self.vFa}, {sr(srdWS)}, s{self.sFo} offen{SC}')
        e('s_waitcnt vmcnt(0)')
        e(f'L{name}_c:')
        e(f'v_cmp_eq_u32 vcc, v{self.vCur}, v0')
        e(f'v_cmp_eq_u32 s[12:13], v{self.vCur2}, v{vOld2}')
        e(f's_and_b64 vcc, vcc, s[{m1}:{m1+1}]')
        e(f's_and_b64 s[12:13], s[12:13], s[{m2}:{m2+1}]')
        e('s_or_b64 s[12:13], s[12:13], vcc')
        e(f's_cbranch_scc0 L{name}_ok')
        e(f's_sleep {Opt.esleep}')
        e('s_add_u32 s10, s10, 1')
        e('s_cmp_lt_u32 s10, 0x20000')
        e(f's_cbranch_scc1 L{name}')
        e(f'L{name}_ok:')
        if not have: E.vm_done = E.vm_n - 1
    def setup(self):
        E = self.E; e = E.e
        srd(E, srdB1, sOUT, S*D*2)
        e(f's_mov_b32 s{self.sME}, 0x10101010')
        e(f's_and_b32 s{sT0}, s{sFS}, 1')
        e(f's_lshl_b32 s{sT0}, s{sT0}, 2')
        e(f's_lshr_b32 s{self.sME}, s{self.sME}, s{sT0}')
        e(f's_mov_b32 s{self.sME+1}, 0')
        e('s_mov_b32 s43, 0')
        e(f's_mov_b64 s[{self.sMO}:{self.sMO+1}], 0')
        e(f'v_lshlrev_b32 v{self.vFa}, 2, v{vLane}')
        flag_base(E, self.sFo)
        e(f's_lshl_b32 s{self.sFb}, s{sFin}, 8')
        e(f's_add_u32 s{self.sFb}, s{self.sFb}, s{self.sFo}')
        e(f's_add_u32 s{self.sFo}, s{self.sFo}, {8*FLB}')
        e('s_mov_b32 s32, 0x3f80')
        e('s_mov_b32 s33, 0x3f800000')
        e('s_mov_b32 s40, 0x3f317218' if Opt.fold else 's_mov_b32 s40, 1.0')
        e('v_and_b32 v4, 15, v1')
        e('v_lshrrev_b32 v5, 4, v1')
        e('v_and_b32 v6, 1, v5')
        e('v_lshrrev_b32 v5, 1, v5')
        e('v_lshlrev_b32 v7, 4, v1')
        self.sl = []
        for s_ in range(3):
            B = 36 + 24*s_; W = 116 + 40*s_
            d = dict(XR=B, YR=B, ST=B+4, xa=B+6, ya=B+7, X=B+8, N=B+16, EP=W, LP=W+16, SUM=W+32, sP=34+s_, sB=37+s_)
            self.sl.append(d)
            block_ur(E, s_)
            e(f's_lshl_b32 s{d["sB"]}, s13, 10')
            if s_ == 2:
                e(f's_cmp_lt_u32 s{sWi}, 2')
                e('s_cbranch_scc1 Ls3_done')
                e(f's_sub_u32 s{sT0}, s{sWi}, 2')
                e(f's_lshl_b32 s{sT0}, s{sT0}, 3')
                e(f's_add_u32 s{sT0}, s{sT0}, s{sFS}')
                e(f's_cmp_ge_u32 s{sT0}, 5')
                e(f's_cselect_b32 s{sT1}, 5, 0')
                e('s_cselect_b32 s14, 17, 16')
                e(f's_sub_u32 s15, s{sT0}, s{sT1}')
                e('s_cmp_lt_u32 s15, 5')
                e(f's_cselect_b32 s{self.sMO}, -1, 0')
                e('s_cselect_b32 s43, 0xff, 0')
                e('Ls3_done:')
                e('s_mov_b32 s42, s15')
            self.slot_addr(d, 14, 15)
            d['xl'] = E.vm(f'buffer_load_dwordx4 {vr(d["XR"])}, v{d["xa"]}, {sr(srdX)}, 0 offen')
        late_slabs(E, 64)
        e(f's_and_b32 s67, s{sFS}, 1')
        e('s_xor_b32 s67, s67, 1')
        e(f's_mul_i32 s67, s67, {PSTRIDE}')
    def unpack(self, dst, src, n=4):
        for j in range(n):
            self.E.e(f'v_lshlrev_b32 v{dst+2*j}, 16, v{src+j}')
            self.E.e(f'v_and_b32 v{dst+2*j+1}, 0xffff0000, v{src+j}')
    def add(self, d, src, first, pk):
        e = self.E.e; SUM = d['SUM']; T = vT
        if Opt.dot:
            for j in range(8):
                e(f'v_dot2_f32_bf16 v{SUM+j}, v{src + j//2}, s{32 + (j & 1)}, {"0" if first else f"v{SUM+j}"}')
            return
        self.unpack(SUM if first else T, src)
        if first: return
        if pk:
            for j in range(4): e(f'v_pk_add_f32 {vr(SUM+2*j,2)}, {vr(SUM+2*j,2)}, {vr(T+2*j,2)}')
        else:
            for j in range(8): e(f'v_add_f32 v{SUM+j}, v{SUM+j}, v{T+j}')
    def xn(self, d):
        E = self.E; e = E.e; T = vT
        X, N = d['X'], d['N']
        E.need(d['st'], d['xl'])
        self.unpack(X, d['XR'])
        def rnd(b):
            for j in range(4): e(f'v_cvt_pk_bf16_f32 v{T+j}, v{b+2*j}, v{b+2*j+1}')
            self.unpack(b, T)
        for i in range(8): e(f'v_sub_f32 v{N+i}, v{X+i}, v{d["ST"]}')
        rnd(N)
        for i in range(8): e(f'v_mul_f32 v{N+i}, v{N+i}, v{d["ST"]+1}')
        rnd(N)
    def tterm(self, d):
        E = self.E; e = E.e; T = vT
        E.need(d['yl'])
        self.unpack(T, d['YR'])
        for i in range(8): e(f'v_fma_f32 v{d["N"]+i}, v{d["N"]+i}, v{T+i}, v{d["X"]+i}')
    def final(self, d, so='0'):
        E = self.E; e = E.e
        SUM, N, X = d['SUM'], d['N'], d['X']
        e('s_nop 2')
        for j in range(4): e(f'v_permlane16_swap_b32 v{SUM+j}, v{SUM+4+j}')
        for i in range(8): e(f'v_fma_f32 v{N+i}, v{SUM+i}, s40, v{N+i}')
        for j in range(4): e(f'v_cvt_pk_bf16_f32 v{X+j}, v{N+2*j}, v{N+2*j+1}')
        E.vm(f'buffer_store_dwordx4 {vr(X)}, v{d["xa"]}, {sr(srdB1)}, {so} offen')
    def run(self, gate1):
        E = self.E; e = E.e; ts = self.ts; sl = self.sl
        for d in sl: self.xn(d)
        gate1()
        self.poll2('pe', self.sME, self.sMO, False)
        e(f's_mov_b32 s{self.sME}, 0')
        e(f's_mov_b32 s{self.sME+1}, {0 if Opt.x_noconv else 0x55}')
        e(f's_mov_b32 s{self.sMO}, 0')
        e(f's_mov_b32 s{self.sMO+1}, {0 if Opt.x_noconv else "s43"}')
        ts.stamp(E)
        tsn = ts.n
        e(f's_cmp_ge_u32 s{sWi}, 2')
        e('s_cbranch_scc1 Ltail2')
        st0 = E.state()
        for nreg in (3, 2):
            ts.n = tsn
            if nreg == 2:
                e('Ltail2:'); E.set_state(st0)
            reg = sl[:nreg]
            for d in reg:
                d['el'] = []
                e(f's_add_u32 s{sT0}, s{d["sP"]}, s67')
                for i in range(4):
                    if i: e(f's_add_u32 s{sT0}, s{sT0}, {2*PSTRIDE}')
                    d['el'].append(E.vm(f'buffer_load_dwordx4 {vr(d["EP"]+4*i)}, v7, {sr(srdWS)}, s{sT0} offen{SC}'))
            if nreg == 2:
                d = sl[2]
                e('s_cmp_ge_u32 s42, 5')
                e(f's_cselect_b32 s{sT0}, 0x40000000, s{d["sP"]}')
                e('s_cselect_b32 s42, 0x40000000, 0')
                e('v_lshlrev_b32 v10, 3, v1')
                ol = []
                for p in range(8):
                    if p: e(f's_add_u32 s{sT0}, s{sT0}, {PSTRIDE}')
                    r = d['EP'] + 4*p
                    E.vm(f'buffer_load_dwordx2 {vr(r,2)}, v10, {sr(srdWS)}, s{sT0} offen{SC}')
                    ol.append(E.vm(f'buffer_load_dwordx2 {vr(r+2,2)}, v10, {sr(srdWS)}, s{sT0} offen offset:512{SC}'))
            for d in reg:
                for i in range(4):
                    E.need(d['el'][i]); self.add(d, d['EP'] + 4*i, i == 0, False)
            if nreg == 2:
                d = sl[2]
                for p in range(8):
                    E.need(ol[p]); self.add(d, d['EP'] + 4*p, p == 0, False)
            self.poll2(f'py{nreg}', self.sME, self.sMO, True)
            for d in sl:
                d['yl'] = E.vm(f'buffer_load_dwordx4 {vr(d["YR"])}, v{d["ya"]}, {sr(srdWS)}, 0 offen{SC}')
            e(f'Lg2w{nreg}:')
            e(f'ds_read_b32 v{vS2}, v{vSB}')
            e('s_waitcnt lgkmcnt(0)')
            e(f'v_cmp_gt_u32 vcc, {3 + 22}, v{vS2}')
            e(f's_cbranch_vccz Lg2k{nreg}')
            e('s_sleep 1')
            e(f's_branch Lg2w{nreg}')
            e(f'Lg2k{nreg}:')
            ts.stamp(E)
            e('s_setprio 3')
            e('s_mov_b32 s10, 0')
            e(f's_lshr_b32 s{sT0}, s{sFS}, 1')
            e(f's_lshl_b32 s{sT0}, s{sT0}, 14')
            e(f's_add_u32 s{sT0}, s{sT0}, {XA_BYTES}')
            e(f'v_add_u32 v10, s{sT0}, v7')
            for d in reg:
                e(f'v_add_u32 v11, s{d["sB"]}, v10')
                d['ol'] = E.lg(f'ds_read_b128 {vr(d["LP"]+12)}, v11')
            e(f'Llate{nreg}:')
            for d in reg:
                for k in range(3):
                    e(f's_add_u32 s{sT0}, s{d["sP"]}, s{64+k}')
                    e(f'buffer_load_dwordx4 {vr(d["LP"]+4*k)}, v7, {sr(srdWS)}, s{sT0} offen{SC}')
            e('s_cmp_lg_u32 s10, 0')
            e(f's_cbranch_scc1 Llw{nreg}')
            for d in reg:
                E.need(d['ol']); self.add(d, d['LP'] + 12, False, True)
            e(f's_waitcnt vmcnt({3*nreg})')
            E.vm_done = E.vm_n - 1
            for d in sl: self.tterm(d)
            e(f'Llw{nreg}:')
            e('v_mov_b32 v10, 0')
            n = 3*nreg
            for di, d in enumerate(reg):
                for k in range(3):
                    n -= 1
                    e(f's_waitcnt vmcnt({n})')
                    r = d['LP'] + 4*k
                    e(f'v_max3_u32 v10, v10, v{r}, v{r+1}')
                    e(f'v_max3_u32 v10, v10, v{r+2}, v{r+3}')
            e('v_cmp_eq_u32 vcc, -1, v10')
            e(f's_cbranch_vccz Llok{nreg}')
            e('s_add_u32 s10, s10, 1')
            e('s_cmp_lt_u32 s10, 0x8000')
            e(f's_cbranch_scc1 Llate{nreg}')
            e(f'Llok{nreg}:')
            E.vm_done = E.vm_n - 1
            for d in reg:
                for k in range(3): self.add(d, d['LP'] + 4*k, False, True)
                self.final(d)
            if nreg == 2: self.final(sl[2], 's42')
            if Opt.ts:
                E.all_vm()
                ts.stamp(E)
                ts.flush(E, vT)
            e('s_endpgm')

RS = 4672
HS = 4160
HS2 = 2112
HB0 = 0
HB1 = HB0 + 4*4*HS
KVB = HB1 + 4*2*HS2
assert KVB + 16*RS <= LDS_BYTES - 64 and KVB % 256 == 0
def conv(E):
    e = E.e
    ts = TS(); ts.conv = True
    ts.stamp(E)
    sCT, sCh, sHB, sIt, sIdx = 10, 11, 6, 9, 5
    sMode, sLoc, sHsel, sWi_, sHS = 12, 13, 14, 42, 43
    e(f's_cmp_eq_u32 s{sIdx}, 5')
    e('s_cbranch_scc1 Lhelper')
    if Opt.x_noconv: e('s_endpgm')
    e(f's_lshl_b32 s{sCT}, s{sFS}, 2')
    e(f's_add_u32 s{sCT}, s{sCT}, s{sIdx}')
    e(f's_and_b32 s{sWi_}, s{sWave}, 3')
    e(f's_mov_b32 s{sMode}, 0')
    e(f's_mov_b32 s{sHsel}, 0')
    e(f's_lshl_b32 s{sLoc}, s{sWi_}, 2')
    e(f's_cmp_lt_u32 s{sIdx}, 4')
    e('s_cbranch_scc1 Lconv_go')
    e(f's_lshr_b32 s{sCT}, s{sFS}, 1')
    e(f's_add_u32 s{sCT}, s{sCT}, 32')
    e(f's_mov_b32 s{sMode}, 1')
    e(f's_and_b32 s{sHsel}, s{sFS}, 1')
    e(f's_lshl_b32 s{sLoc}, s{sHsel}, 2')
    e(f's_add_u32 s{sLoc}, s{sLoc}, s{sWi_}')
    e(f's_lshl_b32 s{sLoc}, s{sLoc}, 1')
    if Opt.cdelay: e(f's_sleep {Opt.cdelay}')
    e('Lconv_go:')
    srd(E, srdSSMK, sSSMK, D*S*2)
    e(f's_lshl_b32 s{sCh}, s{sCT}, 4')
    e(f's_add_u32 s{sCh}, s{sCh}, s{sLoc}')
    e(f'v_lshlrev_b32 v12, 7, v{vLane}')
    e(f's_lshl_b32 s15, s{sCh}, 12')
    e(f's_and_b32 s{sT0}, s{sWave}, 4')
    e(f's_lshl_b32 s{sT0}, s{sT0}, 10')
    e(f's_add_u32 s{sT0}, s{sT0}, s15')
    e('s_mov_b32 exec_hi, 0')
    e(f'buffer_load_dword v15, v12, {sr(srdSSMK)}, s{sT0} offen')
    e('s_mov_b32 exec_hi, -1')
    vZ = 244
    for i in range(4): e(f'v_mov_b32 v{vZ+i}, 0')
    e(f's_mul_i32 s{sHB}, s{sWi_}, {4*HS}')
    e(f's_add_u32 s{sHB}, s{sHB}, {HB0}')
    e(f's_mul_i32 s{sT0}, s{sWi_}, {2*HS2}')
    e(f's_add_u32 s{sT0}, s{sT0}, {HB1}')
    e(f's_movk_i32 s{sT1}, {HS2}')
    e(f's_cmp_ge_u32 s{sWave}, 4')
    e(f's_cselect_b32 s{sHB}, s{sT0}, s{sHB}')
    e(f's_cselect_b32 s{sHS}, s{sT1}, {HS}')
    e(f's_cselect_b32 s{sT0}, 3, 7')
    e('v_lshrrev_b32 v13, 5, v0')
    e(f'v_mul_u32_u24 v13, {RS}, v13')
    e('v_and_b32 v14, 31, v0')
    e('v_lshl_add_u32 v13, v14, 4, v13')
    e(f'v_add_u32 v13, {KVB}, v13')
    E.lg(f'ds_write_b128 v13, {vr(vZ)} offset:4096')
    e(f'v_and_b32 v13, s{sT0}, v{vLane}')
    e('v_lshrrev_b32 v14, 1, v13')
    e(f'v_mul_lo_u32 v14, v14, s{sHS}')
    e('v_and_b32 v13, 1, v13')
    e('v_lshl_add_u32 v13, v13, 4, v14')
    e(f'v_add_u32 v13, s{sHB}, v13')
    E.lg(f'ds_write_b128 v13, {vr(vZ)}')
    vCn = 240
    e(f'v_mov_b32 v{vCn}, {LDS_BYTES-64}')
    E.lg(f'ds_write_b128 v{vCn}, {vr(vZ)}')
    for o_ in (16, 32, 48): E.lg(f'ds_write_b128 v{vCn}, {vr(vZ)} offset:{o_}')
    vPr, vHa = 243, 250
    e(f's_lshl_b32 s{sT0}, s{sWi_}, 2')
    e(f'v_add_u32 v{vPr}, s{sT0}, v{vCn}')
    sHBA, sChA = 101, 100
    e(f's_mul_i32 s{sHBA}, s{sWi_}, {4*HS}')
    e(f's_add_u32 s{sT0}, s{sHBA}, {HS}')
    e(f'v_mov_b32 v{vHa}, s{sT0}')
    e(f's_mov_b32 s{sChA}, s{sCh}')
    srd(E, srdK, sK, S*D*2)
    srd(E, srdV, sV, S*D*2)
    vRg, vHf, b0, b1, b2 = 2, 3, 4, 5, 6
    e(f'v_lshrrev_b32 v{vRg}, 1, v0')
    e(f'v_and_b32 v{vHf}, 1, v0')
    e(f'v_mul_u32_u24 v{b1}, {8*1152}, v{vRg}')
    e(f'v_lshl_add_u32 v{b1}, v{vHf}, 4, v{b1}')
    e(f's_lshl_b32 s{sT0}, s{sCT}, 5')
    e(f'v_add_u32 v{b1}, s{sT0}, v{b1}')
    e(f'v_subrev_u32 v{b0}, 3456, v{b1}')
    e(f'v_add_u32 v{b2}, 4608, v{b1}')
    KR, VR, SKR, SKF = 16, 60, 92, 108
    srd(E, srdSHK, sSHK, D*4*2)
    e(f's_lshl_b32 s{sT0}, s{sCT}, 7')
    e(f'v_lshlrev_b32 v7, 6, v{vHf}')
    skl = [E.vm(f'buffer_load_dwordx4 {vr(SKR+4*i)}, v7, {sr(srdSHK)}, s{sT0} offen offset:{16*i}') for i in range(4)]
    srd(E, srdSSMD, sSSMD, D*2)
    srd(E, srdWS, sWS, WS_BYTES)
    vL16 = 8
    vH0, vDv, vDraw = 9, 10, 248
    e(f'v_lshlrev_b32 v{vL16}, 4, v{vLane}')
    def hload(np_, buf, hs=None):
        e(f's_lshl_b32 s{sT0}, s{sCh}, 12')
        e(f's_add_u32 m0, s{sHB}, {32 + buf*2*HS}')
        e(f's_add_u32 s{sT1}, s{sT0}, 2')
        ids = []
        for i in range(np_):
            if i == 2 and hs is None:
                e(f's_cmp_ge_u32 s{sWave}, 4'); e('s_cbranch_scc1 Lh0a')
            ids.append(E.vm(f'buffer_load_dwordx4 v{vL16}, {sr(srdSSMK)}, s{sT0} offen offset:{1024*i} lds'))
        if hs is None:
            e('Lh0a:')
            e(f's_add_u32 m0, m0, s{sHS}')
        else:
            e(f's_add_u32 m0, m0, {hs}')
        e('s_nop 0')
        for i in range(np_):
            if i == 2 and hs is None:
                e(f's_cmp_ge_u32 s{sWave}, 4'); e('s_cbranch_scc1 Lh0b')
            ids.append(E.vm(f'buffer_load_dwordx4 v{vL16}, {sr(srdSSMK)}, s{sT1} offen offset:{1024*i} lds'))
        if hs is None: e('Lh0b:')
        ids.append(E.vm(f'buffer_load_ushort v{vH0 + 2*buf}, v{vZ}, {sr(srdSSMK)}, s{sT0} offen'))
        return ids
    def hloadA(buf):
        e(f's_add_u32 s{sChA}, s{sChA}, 1')
        e(f's_lshl_b32 s{sT0}, s{sChA}, 12')
        e(f's_add_u32 m0, s{sHBA}, {32 + buf*2*HS}')
        e(f's_add_u32 s{sT1}, s{sT0}, 2')
        for i in range(4): e(f'buffer_load_dwordx4 v{vL16}, {sr(srdSSMK)}, s{sT0} offen offset:{1024*i} lds')
        e(f's_add_u32 m0, m0, {HS}')
        e('s_nop 0')
        for i in range(4): e(f'buffer_load_dwordx4 v{vL16}, {sr(srdSSMK)}, s{sT1} offen offset:{1024*i} lds')
        e(f'buffer_load_ushort v11, v{vZ}, {sr(srdSSMK)}, s{sT0} offen')
    def hreadyA(buf, val):
        e(f'ds_write_b16 v{vHa}, v11 offset:{30 + buf*2*HS}')
        e(f'v_mov_b32 v251, {val}')
        e('s_waitcnt lgkmcnt(0)')
        e(f'ds_write_b32 v{vPr}, v251 offset:32')
    uid = [0]
    def onlyB(f, full=False):
        uid[0] += 1
        e(f's_cmp_lt_u32 s{sWave}, 4'); e(f's_cbranch_scc1 LoB{uid[0]}')
        if full:
            e(f's_cmp_lg_u32 s{sMode}, 0'); e(f's_cbranch_scc1 LoB{uid[0]}')
        f()
        e(f'LoB{uid[0]}:')
    e(f's_lshl_b32 s{sT0}, s{sCh}, 1')
    E.vm(f'buffer_load_dwordx2 {vr(vDraw,2)}, v{vZ}, {sr(srdSSMD)}, s{sT0} offen')
    vFo_, vFa_ = 241, 242
    e(f'v_mul_u32_u24 v{vFa_}, {9*FLB}, v{vLane}')
    e(f's_lshr_b32 s{sT0}, s{sCT}, 2')
    e(f's_lshl_b32 s{sT0}, s{sT0}, 8')
    e(f's_and_b32 s{sT1}, s{sCT}, 3')
    e(f's_lshl_b32 s{sT1}, s{sT1}, 1')
    e(f's_add_u32 s{sT1}, s{sT1}, s{sHsel}')
    e(f's_lshl_b32 s{sT1}, s{sT1}, 2')
    e(f's_add_u32 s{sT0}, s{sT0}, s{sT1}')
    e(f's_add_u32 s{sT0}, s{sT0}, {WS_FL + 128}')
    e(f'v_add_u32 v{vFa_}, s{sT0}, v{vFa_}')
    E.all_lg()
    e('s_barrier')
    def cpoll(name, off, thr=4, va=None):
        e(f'L{name}:')
        e(f'ds_read_b32 v252, v{va or vCn} offset:{off}')
        e('s_waitcnt lgkmcnt(0)')
        e(f'v_readfirstlane_b32 s{sT0}, v252')
        e(f's_cmp_ge_u32 s{sT0}, {thr}')
        e(f's_cbranch_scc1 L{name}_ok')
        e('s_sleep 2')
        e(f's_branch L{name}')
        e(f'L{name}_ok:')
    e(f's_cmp_lt_u32 s{sWave}, 4')
    e('s_cbranch_scc1 Lconv_a')
    cpoll('cpollb', 8)
    hloadA(1)
    e('s_branch Lconv_ld')
    e('Lconv_a:')
    e(f's_cmp_lg_u32 s{sMode}, 0')
    e('s_cbranch_scc1 Lconv_ld')
    e('s_waitcnt vmcnt(0)')
    e('Lconv_ld:')
    ts.stamp(E)
    kl, vl = [], []
    for j in range(3, 11):
        bb, off = (b1, (j-3)*1152) if j < 7 else (b2, (j-7)*1152)
        kl.append(E.vm(f'buffer_load_dwordx4 {vr(KR+4*j)}, v{bb}, {sr(srdK)}, 0 offen offset:{off}'))
    def sig1():
        e('s_waitcnt vmcnt(8)')
        e(f's_lshl_b32 s{sT0}, s{sMode}, 1')
        e(f's_add_u32 s{sT0}, s{sT0}, 1')
        hreadyA(1, f's{sT0}')
    onlyB(sig1)
    for j in range(8):
        bb, off = (b1, j*1152) if j < 4 else (b2, (j-4)*1152)
        vl.append(E.vm(f'buffer_load_dwordx4 {vr(VR+4*j)}, v{bb}, {sr(srdV)}, 0 offen offset:{off}'))
    e('s_mov_b32 exec_lo, 0x00030003')
    e('s_mov_b32 exec_hi, 0x00030003')
    for j in range(3):
        kl.append(E.vm(f'buffer_load_dwordx4 {vr(KR+4*j)}, v{b0}, {sr(srdK)}, 0 offen offset:{j*1152}'))
    e('s_mov_b64 exec, -1')
    vmn = E.vm_n
    hload(4, 0)
    E.vm_n = vmn + 5
    e('s_add_u32 s15, s15, 8192')
    e(f's_lshl_b32 s{sT0}, s{sMode}, 2')
    e(f's_add_u32 s{sT0}, s{sT0}, 4')
    e(f's_cmp_lt_u32 s{sWave}, s{sT0}')
    e('s_cselect_b32 s15, 0x40000000, s15')
    E.vm(f'buffer_load_dword v15, v12, {sr(srdSSMK)}, s15 offen')
    e('v_mov_b32 v12, 1')
    e('s_mov_b64 exec, 1')
    E.lg(f'ds_add_u32 v{vCn}, v12 offset:8')
    e(f's_mov_b64 exec, {(1 << NMT) - 1}')
    e(f's_cmp_eq_u32 s{sWave}, 7')
    e(f's_cselect_b32 s{sT0}, 0, 0x40000000')
    E.vm(f'buffer_load_dword v{vFo_}, v{vFa_}, {sr(srdWS)}, s{sT0} offen{SC}')
    e('s_mov_b64 exec, -1')
    vKW = 14
    e(f'v_mul_u32_u24 v{vKW}, {8*RS}, v{vHf}')
    e(f'v_lshlrev_b32 v12, 4, v{vRg}')
    e(f'v_sub_u32 v{vKW}, v{vKW}, v12')
    e(f'v_add_u32 v{vKW}, {KVB + 4080}, v{vKW}')
    E.need(*(kl + vl + skl))
    ts.stamp(E)
    for j in range(3):
        for m in range(4):
            e(f'v_mov_b32_dpp v{KR+4*j+m}, v{KR+4*(j+8)+m} row_shr:2 row_mask:0xf bank_mask:0xf')
    for i in range(16):
        e(f'v_lshlrev_b32 v{SKF+2*i}, 16, v{SKR+i}')
        e(f'v_and_b32 v{SKF+2*i+1}, 0xffff0000, v{SKR+i}')
    KF, AC, PK = 144, 156, 164
    for ch in range(8):
        m, hi = divmod(ch, 2)
        def unp(d, s_):
            e(f'v_and_b32 v{d}, 0xffff0000, v{s_}' if hi else f'v_lshlrev_b32 v{d}, 16, v{s_}')
        for j in range(11): unp(KF+j, KR+4*j+m)
        for s_ in range(8): e(f'v_mul_f32 v{AC+s_}, v{KF+s_}, v{SKF+4*ch+3}')
        for tap in (2, 1, 0):
            for s_ in range(8): e(f'v_fmac_f32 v{AC+s_}, v{KF+s_+3-tap}, v{SKF+4*ch+tap}')
        for s_ in range(8): unp(KF+s_, VR+4*s_+m)
        for s_ in range(8): e(f'v_mul_f32 v{AC+s_}, v{AC+s_}, v{KF+s_}')
        pk = PK + 4*(ch & 1)
        for mm in range(4): e(f'v_cvt_pk_bf16_f32 v{pk+mm}, v{AC+7-2*mm}, v{AC+6-2*mm}')
        E.lg(f'ds_write_b128 v{vKW}, {vr(pk)} offset:{ch*RS}')
        if ch == Opt.h3at: onlyB(lambda: (cpoll('cpa1', 48, 1, vPr), hloadA(0)), True)
    onlyB(lambda: (e('s_waitcnt vmcnt(0)'), hreadyA(0, 2)), True)
    vA = [2, 3, 4, 5]; vB, vE, vHh = 6, 7, 12
    e(f'v_and_b32 v12, 15, v{vLane}')
    e(f'v_lshrrev_b32 v13, 4, v{vLane}')
    e(f'v_and_b32 v14, 1, v12')
    e(f'v_add_u32 v{vA[0]}, v12, v14')
    e(f'v_lshl_add_u32 v{vA[0]}, v13, 3, v{vA[0]}')
    e(f'v_lshlrev_b32 v{vA[0]}, 1, v{vA[0]}')
    e(f'v_xor_b32 v14, 1, v14')
    e(f'v_mul_lo_u32 v14, v14, s{sHS}')
    e(f'v_add3_u32 v{vA[0]}, v{vA[0]}, v14, s{sHB}')
    for i in range(1, 4): e(f'v_add_u32 v{vA[i]}, {1024*i}, v{vA[0]}')
    e(f's_mul_i32 s{sT0}, s{sLoc}, {RS}')
    e(f'v_lshlrev_b32 v14, 5, v12')
    e(f'v_lshlrev_b32 v{vB}, 4, v13')
    e(f'v_sub_u32 v{vB}, v{vB}, v14')
    e(f'v_add_u32 v{vB}, {KVB + 480}, v{vB}')
    e(f'v_add_u32 v{vB}, s{sT0}, v{vB}')
    e(f'v_lshl_add_u32 v14, v13, 3, v14')
    e(f'v_sub_u32 v{vE}, {KVB + 504}, v14')
    e(f'v_add_u32 v{vE}, s{sT0}, v{vE}')
    e(f's_add_u32 s{sT0}, s{sHB}, s{sHS}')
    e(f'v_mov_b32 v{vHh}, s{sT0}')
    e(f's_and_b32 s{sT0}, s{sWave}, 4')
    e(f'v_add_u32 v13, s{sT0}, v{vCn}')
    e('v_mov_b32 v14, 1')
    E.all_lg()
    e('s_mov_b64 exec, 1')
    e('ds_add_u32 v13, v14')
    e('s_mov_b64 exec, -1')
    ts.stamp(E)
    cpoll('cpoll0', 0)
    AF, BF, ACC0 = 16, 80, 112
    def w2pf():
        e(f's_mov_b32 s{srdK}, s{sW2}')
        e(f's_and_b32 s{srdK+1}, s{sW2+1}, 0xffff')
        e(f's_add_u32 s{sT0}, s{sFS}, 1')
        e(f's_mul_i32 s{sT0}, s{sT0}, 663552')
        e(f's_cmp_eq_u32 s{sMode}, 0')
        e(f's_cselect_b32 s{srdK+2}, s{sT0}, 0')
        e(f's_mov_b32 s{srdK+3}, 0x20000')
        e(f's_mul_i32 s15, s{sFS}, 663552')
        e(f's_lshl_b32 s{sT1}, s{sIdx}, 2')
        e(f's_add_u32 s{sT1}, s{sT1}, s{sWi_}')
        e(f's_mul_i32 s{sT1}, s{sT1}, {16*1152}')
        e(f's_add_u32 s15, s15, s{sT1}')
        e(f's_and_b32 s{sT1}, s{sFS}, 1')
        e(f's_lshl_b32 s{sT1}, s{sT1}, 9')
        e(f's_add_u32 s15, s15, s{sT1}')
        e(f'v_lshrrev_b32 v13, 2, v{vLane}')
        e('v_mul_u32_u24 v13, 1152, v13')
        e(f'v_and_b32 v14, 3, v{vLane}')
        e('v_lshl_add_u32 v13, v14, 7, v13')
    def w2one():
        e(f'buffer_load_dword v15, v13, {sr(srdK)}, s15 offen')
        e(f's_add_u32 s15, s15, {256*1152}')
    def cpass(us, nE, ACC, boff, zero, hook=None, vhook=None):
        aid, bid = {}, {}
        full = len(us) == 8
        def breg(v, u): return BF + 4*u if full else BF + 16*(v % 2) + 4*(u & 3)
        def aread(v, ee, h):
            r = AF + 32*(v % 2) + 4*ee + 2*h
            o = (512*(ee & 1) + 64*(7-v) + 8*h) // 4
            aid.setdefault((v, ee), []).append(E.lg(f'ds_read2_b32 {vr(r,2)}, v{vA[ee >> 1]} offset0:{o} offset1:{o+1}'))
        def bread(v, u):
            bid[(v, u)] = E.lg(f'ds_read_b128 {vr(breg(v, u))}, v{vB} offset:{boff + 512*(7-u) + 64*(7-v)}')
        def reads(v):
            L = [] if (full and v) else [lambda: bread(v, us[0])]
            for ee in range(nE):
                L += [lambda ee=ee: aread(v, ee, 0), lambda ee=ee: aread(v, ee, 1)]
            if not (full and v): L += [(lambda u=u: bread(v, u)) for u in us[1:]]
            return L
        for f in reads(0): f()
        nm = sum(8-u for u in us)
        for v in range(8):
            fill = reads(v+1) if v < 7 else []
            nf = len(fill); cnt = 0; done = 0
            for u in us:
                for w in range(u, 8):
                    E.need(*(aid[(v, w-u)] + [bid[(v, u)]]))
                    c = '0' if (zero and v == 0 and u == us[0]) else vr(ACC+4*w)
                    e(f'v_mfma_f32_16x16x32_bf16 {vr(ACC+4*w)}, {vr(AF + 32*(v % 2) + 4*(w-u))}, {vr(breg(v, u))}, {c}')
                    cnt += 1
                    if full and w == 7 and v < 7: bread(v+1, u)
                    while fill and done < cnt * nf / max(nm - 2, 1):
                        fill.pop(0)(); done += 1
                    if hook and v == 7 and u == us[1] and w == u: hook()
                    if vhook and v in vhook[0] and cnt == nm - 1: vhook[1]()
            assert not fill
    def epi(ws_, ACC, off, plain_from):
        KVR, TT = 16, 40
        kr = {w: E.lg(f'ds_read_b64 {vr(KVR+2*w,2)}, v{vE} offset:{off + 512*(7-w)}') for w in ws_}
        e('s_nop 3')
        for w in ws_:
            E.need(kr[w])
            a = ACC + 4*w; t = TT + 4*(w & 1)
            e(f'v_lshlrev_b32 v{t+3}, 16, v{KVR+2*w}')
            e(f'v_and_b32 v{t+2}, 0xffff0000, v{KVR+2*w}')
            e(f'v_lshlrev_b32 v{t+1}, 16, v{KVR+2*w+1}')
            e(f'v_and_b32 v{t}, 0xffff0000, v{KVR+2*w+1}')
            for r in range(4):
                e(f'v_add_f32 v{a+r}, v{a+r}, v{t+r}' if w >= plain_from else f'v_fmac_f32 v{a+r}, v{t+r}, v{vDv}')
            e(f'v_cvt_pk_bf16_f32 v{KVR+2*w}, v{a+3}, v{a+2}')
            e(f'v_cvt_pk_bf16_f32 v{KVR+2*w+1}, v{a+1}, v{a}')
            E.lg(f'ds_write_b64 v{vE}, {vr(KVR+2*w,2)} offset:{off + 512*(7-w)}')
    def setD(c):
        r = vDraw + c // 2
        e(f'v_and_b32 v{vDv}, 0xffff0000, v{r}' if c & 1 else f'v_lshlrev_b32 v{vDv}, 16, v{r}')
    e(f's_cmp_ge_u32 s{sWave}, 4')
    e('s_cbranch_scc1 Lconv_B')
    tsn = ts.n
    w2pf()
    e(f's_cmp_eq_u32 s{sMode}, 0')
    e('s_cbranch_scc1 LcA0')
    e(f'v_subrev_u32 v{vB}, {2*RS}, v{vB}')
    e(f'v_subrev_u32 v{vE}, {2*RS}, v{vE}')
    e('s_waitcnt vmcnt(0)')
    e(f'v_mov_b32 v{vDraw+1}, v{vDraw}')
    e('s_branch LcA2')
    for c in range(4):
        e(f'LcA{c}:')
        buf = c & 1
        if c in (0, 2):
            if c == 2:
                e(f's_cmp_eq_u32 s{sMode}, 0'); e('s_cbranch_scc1 LcAx2')
            e('s_waitcnt vmcnt(0)')
            e(f'ds_write_b16 v{vHh}, v{vH0} offset:30')
            e('s_waitcnt lgkmcnt(0)')
            if c == 2:
                e('s_branch Lcph2_ok'); e('LcAx2:')
        if c > 0: cpoll(f'cph{c}', 32, c, vPr)
        E.reset()
        ts.stamp(E)
        def prog(c=c):
            e(f'v_mov_b32 v251, {c + 1}')
            E.lg(f'ds_write_b32 v{vPr}, v251 offset:48')
        vh = (1, 3, 5) if c == Opt.w2at else None
        if c == 2:
            e(f's_cmp_eq_u32 s{sMode}, 0'); e('s_cbranch_scc1 LcA2f')
            cpass([0, 1, 2, 3], 8, ACC0 + 32*c, c*RS, True)
            e('s_branch LcA2d')
            e('LcA2f:')
            E.reset()
        if c >= 2: cpoll(f'cpoll1{c}', 4)
        cpass([0, 1, 2, 3] if c < 2 else list(range(8)), 8, ACC0 + 32*c, c*RS, True, prog if c < 2 else None, (vh, w2one) if vh else None)
        if c >= 2:
            setD(c)
            epi(range(8), ACC0 + 32*c, c*RS, 8)
        if c == 2: e('LcA2d:')
        if c < 3:
            for i in range(4):
                e(f'v_add_u32 v{vA[i]}, {2*HS}, v{vA[i]}' if buf == 0 else f'v_subrev_u32 v{vA[i]}, {2*HS}, v{vA[i]}')
    ts.stamp(E)
    e(f's_cmp_lg_u32 s{sMode}, 0')
    e('s_cbranch_scc1 LcAe2')
    for c in range(3):
        if c == 2: e('s_branch Lconv_fin')
        e(f'LcAe{c}:')
        cpoll(f'cpe{c}', 16, c + 1, vPr)
        E.reset()
        setD(c)
        epi(range(8), ACC0 + 32*c, c*RS, 4)
    e('s_branch Lconv_fin')
    e('Lconv_B:')
    tsA = ts.n; ts.n = tsn
    e(f's_cmp_lg_u32 s{sMode}, 0')
    e('s_cbranch_scc1 LcBh3')
    cpoll('cpa2', 48, 2, vPr)
    hloadA(1)
    e('s_waitcnt vmcnt(0)')
    hreadyA(1, 3)
    e('LcBh3:')
    cpoll('cpoll2', 4)
    if Opt.cprio: e('s_setprio 1')
    e(f's_lshl_b32 s{sIt}, s{sMode}, 1')
    e('LcB:')
    e('s_waitcnt vmcnt(0) lgkmcnt(0)')
    E.reset()
    w0 = E.lg(f'ds_write_b16 v{vHh}, v{vH0} offset:30')
    e(f'v_lshlrev_b32 v{vDv}, 16, v{vDraw}')
    e(f'v_alignbit_b32 v{vDraw}, v{vDraw+1}, v{vDraw}, 16')
    e(f'v_lshrrev_b32 v{vDraw+1}, 16, v{vDraw+1}')
    E.need(w0)
    def refill():
        e(f's_cmp_ge_u32 s{sIt}, {Opt.nb - 1}')
        e('s_cbranch_scc1 LcB_nr')
        e(f's_add_u32 s{sCh}, s{sCh}, 1')
        hload(2, 0, HS2)
        e('LcB_nr:')
    cpass([4, 5, 6, 7], 4, ACC0, 0, True, refill)
    epi(range(4, 8), ACC0, 0, 8)
    e(f's_add_u32 s{sIt}, s{sIt}, 1')
    e(f'v_mov_b32 v14, s{sIt}')
    E.all_lg()
    e(f'ds_write_b32 v{vPr}, v14 offset:16')
    e(f'v_add_u32 v{vB}, {RS}, v{vB}')
    e(f'v_add_u32 v{vE}, {RS}, v{vE}')
    e(f's_cmp_lt_u32 s{sIt}, {Opt.nb}')
    e('s_cbranch_scc1 LcB')
    while ts.n < tsA: ts.stamp(E)
    e('Lconv_fin:')
    e('s_waitcnt vmcnt(0) lgkmcnt(0)')
    E.reset()
    ts.stamp(E)
    e('s_barrier')
    e(f'v_lshrrev_b32 v2, 5, v{vLane}')
    e(f'v_lshrrev_b32 v3, 2, v{vLane}')
    e('v_and_b32 v3, 3, v3')
    e('v_lshl_add_u32 v3, v2, 3, v3')
    e(f'v_mul_u32_u24 v3, {RS}, v3')
    e(f'v_and_b32 v4, 16, v{vLane}')
    e('v_lshl_add_u32 v3, v4, 1, v3')
    e(f'v_and_b32 v5, 3, v{vLane}')
    e('v_lshl_add_u32 v3, v5, 3, v3')
    e(f's_lshl_b32 s{sT0}, s{sWave}, 9')
    e(f's_add_u32 s{sT0}, s{sT0}, {KVB}')
    e(f'v_add_u32 v3, s{sT0}, v3')
    e(f'v_and_b32 v5, 31, v{vLane}')
    e(f's_lshl_b32 s{sT0}, s{sWave}, 8')
    e(f'v_add_u32 v5, s{sT0}, v5')
    e(f'v_sub_u32 v5, {2047-224}, v5')
    e('v_lshlrev_b32 v5, 4, v5')
    e('v_lshl_add_u32 v5, v2, 15, v5')
    e(f's_lshl_b32 s{sT0}, s{sCT}, 16')
    e(f's_add_u32 s{sT0}, s{sT0}, {WS_Y}')
    e(f's_add_u32 s{sT1}, s{sT0}, 4096')
    rd = []
    for blk in range(8):
        r = 16 + 4*blk
        i0 = E.lg(f'ds_read_b64_tr_b16 {vr(r,2)}, v3 offset:{64*blk}')
        i1 = E.lg(f'ds_read_b64_tr_b16 {vr(r+2,2)}, v3 offset:{64*blk + 4*RS}')
        rd.append([i0, i1])
    E.all_lg()
    e(f's_cmp_eq_u32 s{sMode}, 0')
    e('s_cbranch_scc1 Lconv_st')
    e(f's_sub_u32 exec_lo, s{sHsel}, 1')
    e(f's_sub_u32 exec_hi, 0, s{sHsel}')
    e('Lconv_st:')
    for blk in range(8):
        E.vm(f'buffer_store_dwordx4 {vr(16+4*blk)}, v5, {sr(srdWS)}, s{sT0} offen offset:{(7-blk)*512}{SC}')
    e('s_mov_b64 exec, -1')
    E.all_vm()
    e('s_barrier')
    e(f's_cmp_lg_u32 s{sWave}, 7')
    e('s_cbranch_scc1 Lconv_end')
    e(f'v_add_u32 v{vFo_}, 1, v{vFo_}')
    e(f's_mov_b64 exec, {(1 << NMT) - 1}')
    e(f'buffer_store_dword v{vFo_}, v{vFa_}, {sr(srdWS)}, 0 offen{SC}')
    e('s_mov_b64 exec, -1')
    e('Lconv_end:')
    if Opt.ts:
        ts.stamp(E)
        ts.flush(E, 60)
    e('s_endpgm')
    e('Lhelper:')
    srd(E, srdW2, sW2, D*F*2)
    e(f's_mul_i32 s{sT0}, s{sFS}, 663552')
    e(f's_and_b32 s10, s{sFS}, 1')
    e('s_xor_b32 s10, s10, 1')
    e('s_lshl_b32 s10, s10, 2')
    if Opt.hkv:
        srd(E, srdK, sK, S*D*2)
        srd(E, srdV, sV, S*D*2)
        e(f's_lshl_b32 s{sT1}, s{sFS}, 7')
        e(f's_add_u32 s{sT1}, s{sT1}, {1024*1152}')
        e('v_mul_u32_u24 v5, 1152, v0')
        for i in range(2):
            e(f'buffer_load_dword v8, v5, {sr(srdK)}, s{sT1} offen{Opt.ntkv}')
            e(f'buffer_load_dword v8, v5, {sr(srdV)}, s{sT1} offen{Opt.ntkv}')
            if i == 0: e(f's_add_u32 s{sT1}, s{sT1}, {512*1152}')
        e('s_barrier')
    elif Opt.hdelay: e(f's_sleep {Opt.hdelay}')
    for i in range(6):
        e(f'v_add_u32 v2, {512*i}, v0')
        e('v_mul_u32_u24 v3, 13108, v2')
        e('v_lshrrev_b32 v3, 16, v3')
        e('v_mul_u32_u24 v4, 5, v3')
        e('v_sub_u32 v4, v2, v4')
        e('v_cmp_eq_u32 vcc, 4, v4')
        e('v_add_u32 v4, s10, v4')
        e('v_min_u32 v3, 575, v3')
        e('v_cndmask_b32 v4, v4, 8, vcc')
        e('v_mul_u32_u24 v3, 1152, v3')
        e('v_lshl_add_u32 v3, v4, 7, v3')
        e(f'buffer_load_dword v8, v3, {sr(srdW2)}, s{sT0} offen')
        e('s_barrier')
    if Opt.ts:
        e('s_waitcnt vmcnt(0)')
        srd(E, srdWS, sWS, WS_BYTES)
        ts.n = 1; ts.stamp(E); ts.flush(E, 60); e('s_mov_b64 exec, -1')
    if Opt.tlbw:
        srd(E, srdWS, sWS, WS_BYTES)
        srd(E, srdB1, sOUT, S*D*2)
        e('v_lshlrev_b32 v2, 16, v0')
        e(f'buffer_load_dword v14, v2, {sr(srdWS)}, 0 offen{SC}')
        e(f'buffer_load_dword v15, v2, {sr(srdB1)}, 0 offen')
    e('s_waitcnt vmcnt(0)')
    e('s_endpgm')

def k1(E):
    e = E.e
    e('.p2align 8')
    e(f'.type {KNAME},@function')
    e(f'{KNAME}:')
    e(f's_cmp_ge_u32 s2, {NWG}')
    e('s_cbranch_scc1 Lk1_exit')
    TS().rt0(E)
    e('s_load_dwordx16 s[16:31], s[0:1], 0')
    e('s_load_dwordx8 s[32:39], s[0:1], 64')
    e('s_load_dwordx2 s[40:41], s[0:1], 96')
    e(f'v_and_b32 v{vLane}, 63, v0')
    e('v_lshrrev_b32 v2, 6, v0')
    e(f's_and_b32 s{sFS}, s2, 7')
    e(f'v_readfirstlane_b32 s{sWave}, v2')
    e(f's_lshr_b32 s{sMT}, s2, 3')
    if Opt.code_pf:
        e('s_getpc_b64 s[10:11]')
        e('Lpc:')
        e(f'v_lshl_add_u32 v3, v0, 5, s{sMT}')
        e('v_lshlrev_b32 v3, 7, v3')
        e('v_cmp_gt_u32 vcc, Lk1_exit-Lpc, v3')
        e('s_and_saveexec_b64 s[12:13], vcc')
        e('s_cbranch_execz Lnocpf')
        e(f'global_load_dword v{vDum}, v3, s[10:11]')
        e('Lnocpf:')
        e('s_mov_b64 exec, s[12:13]')
    e(f's_cmp_lt_u32 s{sMT}, {IDX_MLP0}')
    e('s_waitcnt lgkmcnt(0)')
    e('s_cbranch_scc1 Lconv')
    if Opt.nomlp: e('s_endpgm')
    ts = TS()
    ts.stamp(E)
    P = mlp_prologue(E, ts)
    pre_ids = []
    mlp_ln(E, P, ts, lambda: pre_ids.extend(mlp_prefill(E)))
    st = E.state(); tsn = ts.n
    e(f's_cmp_ge_u32 s{sWave}, 4')
    e('s_cbranch_scc1 LmlpB')
    mlp_main(E, 'P', P, ts, pre_ids)
    e('LmlpB:')
    E.set_state(st); ts.n = tsn
    E.vm_n -= 8 - (1 if Opt.qpf else 0)
    mlp_main(E, 'Q', P, ts, pre_ids)
    for l in stubs: e(l)
    e('Lmlp_end:')
    e('Lconv:')
    E.reset()
    conv(E)
    e('Lk1_exit:')
    e('s_endpgm')

def desc(name, vg, sg):
    return f'''.p2align 6
.amdhsa_kernel {name}
  .amdhsa_next_free_vgpr {vg}
  .amdhsa_next_free_sgpr {sg}
  .amdhsa_accum_offset {vg}
  .amdhsa_group_segment_fixed_size 0
  .amdhsa_kernarg_size 104
  .amdhsa_user_sgpr_count 2
  .amdhsa_user_sgpr_kernarg_segment_ptr 1
  .amdhsa_system_sgpr_workgroup_id_x 1
.end_amdhsa_kernel
'''

def build():
    E = Em()
    e = E.e
    head = HDR + f'; @launch grid=({NWG},1,1) block=(512,1,1) lds={LDS_BYTES}\n'
    head += f'.amdgcn_target "amdgcn-amd-amdhsa--gfx950"\n.text\n.globl {KNAME}\n'
    k1(E)
    tail = '.section .rodata,"a"\n' + desc(KNAME, 256, 102)
    return head + E.text() + tail

if __name__ == '__main__':
    out = sys.argv[1] if len(sys.argv) > 1 else 'cdna_kernels/' + NAME + '.s'
    for a in sys.argv[2:]:
        k, v = a.split('=', 1)
        cur = getattr(Opt, k)
        setattr(Opt, k, type(cur)(int(v)) if isinstance(cur, (bool, int)) else v)
    Em.lgmerge = Opt.lgmerge
    t = build()
    open(out, 'w').write(t)
    print(out, len(t), 'bytes', t.count('\n'), 'lines')
```

```python
import sys
from em import Em, vr, sr

NAME = 'parallel_sum__ssm_conv_h3__dense_activation_mish__prompt'
HDR = open('cdna_kernels/' + NAME + '.s.ref').read().split('; Override launch')[0]

S, D, F = 2048, 576, 4608
NMT = 26
N_MLP = NMT * 8
N_CONV = 36
NWG = 256
IDX_MLP0 = 6
PSTRIDE = 130 * 18432
WS_P = 0
WS_Y = 20 << 20
WS_ST = 24 << 20
WS_TS = 28 << 20
WS_FL = 26 << 20
KNAME = NAME + '_kernel'
WS_BYTES = 32 << 20
LDS_BYTES = 163840
XA_BYTES = 92160
LOG2E = 0x3fb8aa3b
RSQRT2 = 0x3f3504f3

class Opt:
    ts = False
    dlat = 18
    dma_delay = 6
    wlead = 4
    xlead = 10
    cap = 2
    lgmerge = 7
    oddR = 3
    dspace = 4
    psleep = 1
    fine = ''
    x_warm = 0
    x_nochk = 0
    budget = 12
    wcost = 4
    force = 2
    x_qidle = 0
    x_nolgw = 0
    x_novmw = 0
    wrate = 1
    wslack = 1
    mnop = -1
    fold = 1
    qdeep = 1
    egate = 24
    pw0 = 3
    pw1 = 2
    qsig = 27
    edelay = 0
    pthr = 9
    esleep = 2
    tmpl = 0
    x_nopub = 0
    cprio = 0
    spin = 0
    x_nowr = 0
    x_pq = 0
    sthr = 15
    milp = 4
    cph = 12
    pph = 7
    wph = 0
    code_pf = True
    w2pf = 1
    qpf = 0
    bwait = 0
    w2at = 2
    w1b = 1
    hdelay = 100
    rt = 0
    cdelay = 100
    snake = 1
    ntkv = ' nt'
    bq = 0
    ntkv2 = ''
    x_noconv = 0
    d_sleep = 0
    d_mfma = 0
    d_end = 0
    x_noex = 0
    nb = 2
    h3at = 3
    prom = 0
    promf = ' sc1'
    hpf = True
    lnts = False
    kvpf = 1
    nomlp = False
    dbg = 0
    tlbw = True
    bgate = 8
    x_nodma = 0
    nt = ''
    dot = 1
    x_nomish = 0

sQ, sK, sV, sSHK, sSSMK, sSSMD, sW1 = 16, 18, 20, 22, 24, 26, 30
sB1, sW2, sOUT, sDBG, sWS = 32, 34, 36, 38, 40
srdX, srdW1, srdW2, srdB1, srdWS = 44, 48, 52, 56, 60
srdK, srdV, srdSHK, srdSSMK, srdSSMD = 44, 48, 52, 56, 64
sWave, sFS, sMT, sRing, sT0, sT1, sC = 3, 4, 5, 6, 7, 8, 9
sTS = 68
sWi, sLine2, sOddM, sFlA, sFlO, sFin = 18, 19, 20, 21, 22, 23
sXcd, sI, sWr = 14, 15, 42
SC = ' sc1'
vLane = 1

def srd(E, d, p, nbytes):
    E.e(f's_mov_b32 s{d}, s{p}')
    E.e(f's_and_b32 s{d+1}, s{p+1}, 0xffff')
    E.e(f's_mov_b32 s{d+2}, {nbytes}')
    E.e(f's_mov_b32 s{d+3}, 0x20000')

class TS:
    def __init__(self): self.n = 0
    def stamp(self, E, fine=False):
        if Opt.ts and (bool(Opt.fine) == fine or self.n == 0 or getattr(self, 'conv', False)):
            assert self.n < 14
            E.e(f'{"s_memrealtime" if Opt.rt else "s_memtime"} s[{sTS+2*self.n}:{sTS+2*self.n+1}]')
            self.n += 1
    def val(self, E, sreg):
        if Opt.ts and Opt.spin:
            E.e(f's_add_u32 s{sTS+2*self.n}, s{sreg}, s{sTS}')
            self.n += 1
    def stamp2(self, E, sIt):
        if Opt.ts:
            TS.uid = getattr(TS, 'uid', 0) + 1
            u = TS.uid
            E.e(f's_cmp_lg_u32 s{sIt}, 0')
            E.e(f's_cbranch_scc1 Lts{u}a')
            self.stamp(E)
            E.e(f's_branch Lts{u}b')
            E.e(f'Lts{u}a:')
            self.stamp(E)
            E.e(f'Lts{u}b:')
    def rt0(self, E):
        if Opt.ts: E.e(f's_memrealtime s[{sTS+28}:{sTS+29}]')
    def flush(self, E, vtmp):
        if not Opt.ts: return
        E.e(f's_memrealtime s[{sTS+30}:{sTS+31}]')
        E.e('s_waitcnt lgkmcnt(0)')
        E.e(f's_lshl_b32 s{sT0}, s2, 3')
        E.e(f's_add_u32 s{sT0}, s{sT0}, s{sWave}')
        E.e(f's_lshl_b32 s{sT0}, s{sT0}, 6')
        E.e(f's_add_u32 s{sT0}, s{sT0}, {WS_TS}')
        E.e(f'v_mov_b32 v{vtmp}, 0')
        for i in list(range(self.n)) + [14, 15]:
            E.e(f'v_writelane_b32 v{vtmp}, s{sTS+2*i}, {i}')
        E.e(f'v_lshlrev_b32 v{vtmp+1}, 2, v{vLane}')
        E.e('s_mov_b64 exec, 0xffff')
        E.e(f'buffer_store_dword v{vtmp}, v{vtmp+1}, {sr(srdWS)}, s{sT0} offen')
        if Opt.dbg:
            TS.uid = getattr(TS, 'uid', 0) + 1
            u = TS.uid
            srd(E, 44, sDBG, 256)
            E.e('s_mov_b64 exec, 1')
            E.e(f's_not_b32 s{sT1}, s{sTS+28}')
            E.e(f'v_mov_b32 v{vtmp+2}, s{sT1}')
            E.e(f'v_mov_b32 v{vtmp+3}, s{sTS+30}')
            E.e(f'buffer_atomic_umax v{vtmp+2}, v{vtmp+1}, s[44:47], 0 offen offset:56')
            E.e(f'buffer_atomic_umax v{vtmp+3}, v{vtmp+1}, s[44:47], 0 offen offset:60')
            E.e(f's_cmp_lg_u32 s2, {Opt.dbg}')
            E.e(f's_cbranch_scc1 Ldbg{u}')
            E.e(f's_cmp_lg_u32 s{sWave}, 5')
            E.e(f's_cbranch_scc1 Ldbg{u}')
            E.e('s_mov_b64 exec, 0x3fff')
            E.e(f'v_readlane_b32 s{sT1}, v{vtmp}, 0')
            E.e('s_nop 1')
            E.e(f'v_subrev_u32 v{vtmp}, s{sT1}, v{vtmp}')
            E.e(f'buffer_store_dword v{vtmp}, v{vtmp+1}, s[44:47], 0 offen')
            E.e(f'Ldbg{u}:')

vX0, vX1, vXg0, vXg1 = 2, 3, 4, 5
vWt = [6, 7, 8, 9]
vWo = 10
vD1a, vD1b, vD2a, vD2b, vDo = 11, 12, 13, 14, 15
vAW, vAWo, vP, vPo = 16, 17, 18, 19
vSA, vSB, vSW, vS, vPg = 20, 21, 22, 23, 24
vOld2, vDum, vS2 = 25, 26, 27
sSpin = 100
vT = 28
vXF = 36
vWF = 76
vAcc = 116
vBraw = 216
vFlOld = 226
SCR = LDS_BYTES - 2048
STW = SCR + 128
FLB = 256

ODDB = XA_BYTES + 12288
ODDR = 5
ODDOFF = [0, 16384, 32768, 49152, 53248]
assert ODDB + ODDOFF[4] + 4096 <= SCR

def flag_base(E, dst):
    E.e(f's_mul_i32 s{dst}, s{sMT}, {9*FLB}')
    E.e(f's_add_u32 s{dst}, s{dst}, {WS_FL}')

def flag_addrs(E, rA, rO):
    e = E.e
    flag_base(E, sT0)
    e(f's_lshl_b32 s{sT1}, s{sFS}, 4')
    e(f's_add_u32 s{sT0}, s{sT0}, s{sT1}')
    e(f's_lshl_b32 s{rA}, s{sLine2}, 8')
    e(f's_add_u32 s{rA}, s{rA}, s{sT0}')
    e(f's_lshl_b32 s{rO}, s{sWi}, 2')
    e(f's_add_u32 s{rO}, s{rO}, s{sT0}')
    e(f's_add_u32 s{rO}, s{rO}, {8*FLB}')

def mlp_prologue(E, ts):
    e = E.e
    a, b, c, d = vT, vT+1, vT+2, vT+3
    e(f's_sub_u32 s{sMT}, s{sMT}, {IDX_MLP0}')
    def kvpf_issue():
        e('s_mov_b64 exec, 0x3ff')
        E.vm(f'buffer_load_dword v{vDum}, v{vT+7}, {sr(srdW2)}, s10 offen{Opt.ntkv}')
        e('s_mov_b64 exec, -1')
    if Opt.kvpf:
        e(f's_cmp_lt_u32 s{sWave}, 4')
        e(f's_cselect_b32 s{srdW2}, s{sK}, s{sV}')
        e(f's_cselect_b32 s{srdW2+1}, s{sK+1}, s{sV+1}')
        e(f's_and_b32 s{srdW2+1}, s{srdW2+1}, 0xffff')
        e(f's_mov_b32 s{srdW2+2}, {S*D*2}')
        e(f's_mov_b32 s{srdW2+3}, 0x20000')
        e(f's_and_b32 s{sT0}, s{sWave}, 3')
        e(f's_lshl_b32 s{sT1}, s{sMT}, 2')
        e(f's_add_u32 s{sT0}, s{sT0}, s{sT1}')
        e(f's_mul_i32 s{sT0}, s{sT0}, {10*1152}')
        e(f's_lshl_b32 s{sT1}, s{sFS}, 7')
        e(f's_add_u32 s10, s{sT0}, s{sT1}')
        e(f'v_mul_u32_u24 v{vT+7}, 1152, v{vLane}')
        kvpf_issue()
        if Opt.kvpf == 3:
            e(f's_add_u32 s10, s10, {1024*1152}')
            e('s_mov_b64 exec, 0x3ff')
            E.vm(f'buffer_load_dword v{vDum}, v{vT+7}, {sr(srdW2)}, s10 offen{Opt.ntkv2}')
            e('s_mov_b64 exec, -1')
    srd(E, srdX, sQ, S*D*2)
    vR, vCc, vOff, vSl = 180, 181, 182, 183
    e(f'v_mul_u32_u24 v{vR}, 43, v{vLane}')
    e(f'v_lshrrev_b32 v{vR}, 8, v{vR}')
    e(f'v_mul_u32_u24 v{vCc}, 6, v{vR}')
    e(f'v_sub_u32 v{vCc}, v{vLane}, v{vCc}')
    e(f's_mul_i32 s{sT0}, s{sWave}, 10')
    e(f'v_add_u32 v{vSl}, s{sT0}, v{vR}')
    e(f's_mul_i32 s{sT1}, s{sMT}, 80')
    e(f'v_add_u32 v{vOff}, s{sT1}, v{vSl}')
    e(f'v_mul_u32_u24 v{vOff}, 1152, v{vOff}')
    e(f'v_lshl_add_u32 v{vOff}, v{vCc}, 4, v{vOff}')
    XR = 36
    xl = []
    for i in range(12):
        xl.append(E.vm(f'buffer_load_dwordx4 {vr(XR+4*i)}, v{vOff}, {sr(srdX)}, 0 offen offset:{96*i}'))
    if Opt.kvpf == 2:
        e(f's_cmp_lt_u32 s{sWave}, 6')
        e(f's_cselect_b32 s{srdW2}, s{sK}, s{sV}')
        e(f's_cselect_b32 s{srdW2+1}, s{sK+1}, s{sV+1}')
        e(f's_and_b32 s{srdW2+1}, s{srdW2+1}, 0xffff')
        e(f's_and_b32 s{sT0}, s{sWave}, 1')
        e(f's_lshl_b32 s{sT1}, s{sMT}, 1')
        e(f's_add_u32 s{sT0}, s{sT0}, s{sT1}')
        e(f's_mul_i32 s{sT0}, s{sT0}, {20*1152}')
        e(f's_lshl_b32 s{sT1}, s{sFS}, 7')
        e(f's_add_u32 s10, s{sT0}, s{sT1}')
        e(f's_add_u32 s10, s10, {1024*1152}')
        e(f's_cmp_lt_u32 s{sWave}, 4')
        e('s_cselect_b32 s10, 0x40000000, s10')
        e('s_mov_b64 exec, 0xfffff')
        E.vm(f'buffer_load_dword v{vDum}, v{vT+7}, {sr(srdW2)}, s10 offen{Opt.ntkv}')
        e('s_mov_b64 exec, -1')
    srd(E, srdW1, sW1, D*F*2)
    srd(E, srdW2, sW2, D*F*2)
    srd(E, srdB1, sB1, F*2)
    srd(E, srdWS, sWS, WS_BYTES)
    if Opt.w1b:
        e(f's_and_b32 s{sT0}, s{sWave}, 3')
        e(f's_mul_i32 s{sT0}, s{sT0}, {28*26}')
        e(f's_mul_i32 s{sT1}, s{sMT}, 28')
        e(f's_add_u32 s{sT0}, s{sT0}, s{sT1}')
        e(f'v_add_u32 v{a}, s{sT0}, v{vLane}')
        e(f'v_mul_u32_u24 v{b}, 13108, v{a}')
        e(f'v_lshrrev_b32 v{b}, 16, v{b}')
        e(f'v_mul_u32_u24 v{c}, 5, v{b}')
        e(f'v_sub_u32 v{c}, v{a}, v{c}')
        e(f'v_mul_u32_u24 v{b}, 9216, v{b}')
        e(f'v_lshl_add_u32 v{vT+6}, v{c}, 7, v{b}')
    e(f'v_cmp_gt_u32 vcc, 12, v{vLane}')
    e(f's_mul_i32 s{sT0}, s{sWave}, {12*26}')
    e(f's_mul_i32 s{sT1}, s{sMT}, 12')
    e(f's_add_u32 s{sT0}, s{sT0}, s{sT1}')
    e(f'v_add_u32 v{a}, s{sT0}, v{vLane}')
    e(f'v_lshrrev_b32 v{b}, 2, v{a}')
    e(f'v_and_b32 v{c}, 3, v{a}')
    e(f'v_mul_u32_u24 v{b}, 9216, v{b}')
    e(f'v_lshl_add_u32 v{b}, v{c}, 7, v{b}')
    e(f'v_cndmask_b32 v{b}, -1, v{b}, vcc')
    e(f's_mul_i32 s{sT0}, s{sFS}, 1152')
    E.vm(f'buffer_load_dword v{vDum}, v{b}, {sr(srdW1)}, s{sT0} offen{Opt.nt}')
    e(f's_and_b32 s{sWi}, s{sWave}, 3')
    e(f's_lshr_b32 s{sT0}, s{sWave}, 2')
    e(f's_xor_b32 s{sT0}, s{sT0}, s{sFS}')
    e(f's_and_b32 s{sT0}, s{sT0}, 1')
    e(f's_xor_b32 s{sT0}, s{sT0}, 1')
    e(f's_lshl_b32 s{sLine2}, s{sT0}, 2')
    e(f's_add_u32 s{sLine2}, s{sLine2}, s{sWi}')
    e(f's_and_b32 s{sT0}, s{sFS}, 1')
    e(f's_lshl_b32 s{sT0}, s{sT0}, 2')
    e(f's_lshr_b32 s{sFin}, s{sFS}, 1')
    e(f's_add_u32 s{sFin}, s{sFin}, s{sT0}')
    flag_addrs(E, sFlA, sFlO)
    e(f'v_mov_b32 v{a}, s{sFlA}')
    e(f'v_writelane_b32 v{a}, s{sFlO}, 1')
    e('s_mov_b64 exec, 3')
    fl = [E.vm(f'buffer_load_dword v{vFlOld}, v{a}, {sr(srdWS)}, 0 offen{SC}')]
    e('s_mov_b64 exec, -1')
    e(f'v_lshlrev_b32 v{b}, 2, v{vLane}')
    flag_base(E, sT0)
    e(f's_lshl_b32 s{sT1}, s{sFin}, 8')
    e(f's_add_u32 s{sT1}, s{sT1}, s{sT0}')
    e(f's_add_u32 s{sT0}, s{sT0}, {8*FLB}')
    e(f's_cmp_ge_u32 s{sWave}, 4')
    e('s_cbranch_scc1 Lnoold')
    e(f'buffer_load_dword v0, v{b}, {sr(srdWS)}, s{sT1} offen{SC}')
    e(f'buffer_load_dword v{vOld2}, v{b}, {sr(srdWS)}, s{sT0} offen{SC}')
    e('Lnoold:')
    e(f'v_lshrrev_b32 v{d}, 4, v{vLane}')
    e(f's_mul_i32 s{sT0}, s{sFS}, 1152')
    e(f'v_lshl_add_u32 v{b}, v{d}, 3, s{sT0}')
    e(f's_lshl_b32 s{sT1}, s{sWave}, 7')
    bl = []
    for i in range(4):
        bl.append(E.vm(f'buffer_load_dwordx2 {vr(vBraw+2*i,2)}, v{b}, {sr(srdB1)}, s{sT1} offen offset:{32*i}'))
    e(f's_lshl_b32 s{sT1}, s{sWi}, 5')
    bl.append(E.vm(f'buffer_load_dwordx2 {vr(vBraw+8,2)}, v{b}, {sr(srdB1)}, s{sT1} offen offset:1024'))
    if Opt.w1b:
        e(f's_mul_i32 s{sT0}, s{sFS}, 1152')
        e(f's_add_u32 s{sT0}, s{sT0}, 512')
        e(f's_cmp_lt_u32 s{sWave}, 4')
        e(f's_cselect_b32 s{sT0}, 0x40000000, s{sT0}')
        e('s_mov_b64 exec, 0xfffffff')
        E.vm(f'buffer_load_dword v{vDum}, v{vT+6}, {sr(srdW1)}, s{sT0} offen')
        e('s_mov_b64 exec, -1')
    oddb = ODDB
    e(f'v_lshlrev_b32 v{vX0}, 4, v{vLane}')
    e(f'v_add_u32 v{vX1}, 46080, v{vX0}')
    e(f's_lshl_b32 s{sRing}, s{sWi}, 14')
    e(f's_add_u32 s{sRing}, s{sRing}, {XA_BYTES}')
    e(f's_lshr_b32 s{sT1}, s{sWave}, 2')
    e(f's_lshl_b32 s{sT1}, s{sT1}, 12')
    e(f's_add_u32 s15, s{sRing}, s{sT1}')
    e(f's_lshl_b32 s{sOddM}, s{sWi}, 10')
    e(f's_add_u32 s{sOddM}, s{sOddM}, {oddb}')
    e(f'v_lshrrev_b32 v{a}, 2, v{vLane}')
    e(f'v_and_b32 v{c}, 3, v{vLane}')
    e(f'v_lshlrev_b32 v{b}, 7, v{a}')
    e(f'v_lshl_add_u32 v{b}, v{c}, 3, v{b}')
    e(f'v_bfe_u32 v{c}, v{vLane}, 3, 2')
    e(f'v_lshl_add_u32 v{b}, v{c}, 5, v{b}')
    for t in range(4):
        e(f'v_xor_b32 v{vWt[t]}, {32*t}, v{b}')
        e(f'v_add_u32 v{vWt[t]}, s{sRing}, v{vWt[t]}')
    e(f's_lshl_b32 s{sT0}, s{sWi}, 5')
    e(f'v_xor_b32 v{vWo}, s{sT0}, v{b}')
    e(f'v_add_u32 v{vWo}, {oddb}, v{vWo}')
    e(f'v_lshrrev_b32 v{a}, 3, v{vLane}')
    e(f'v_and_b32 v{c}, 7, v{vLane}')
    e(f'v_and_b32 v{b}, 6, v{a}')
    e(f'v_xor_b32 v{c}, v{c}, v{b}')
    e(f'v_mul_u32_u24 v{d}, 1152, v{a}')
    e(f'v_lshl_add_u32 v{d}, v{c}, 4, v{d}')
    e(f's_mul_i32 s{sT0}, s{sFS}, 663552')
    e(f's_lshl_b32 s{sT1}, s{sLine2}, 7')
    e(f's_add_u32 s{sT1}, s{sT1}, s{sT0}')
    e(f'v_add_u32 v{vD2a}, s{sT1}, v{d}')
    e(f'v_add_u32 v{vD2b}, {8*1152-1024}, v{vD2a}')
    e(f's_mul_i32 s{sT1}, s{sWi}, {8*1152}')
    e(f's_add_u32 s{sT1}, s{sT1}, s{sT0}')
    e(f's_add_u32 s{sT1}, s{sT1}, 1024')
    e(f'v_add_u32 v{vDo}, s{sT1}, v{d}')
    e(f'v_and_b32 v{b}, 4, v{a}')
    e(f'v_add_u32 v{b}, v{b}, v{a}')
    e(f'v_mul_u32_u24 v{d}, 9216, v{b}')
    e(f'v_lshl_add_u32 v{d}, v{c}, 4, v{d}')
    e(f's_mul_i32 s{sT0}, s{sFS}, 1152')
    e(f's_lshl_b32 s{sT1}, s{sWave}, 7')
    e(f's_add_u32 s{sT1}, s{sT1}, s{sT0}')
    e(f'v_add_u32 v{vD1a}, s{sT1}, v{d}')
    e(f'v_add_u32 v{vD1b}, {16*9216-1024}, v{vD1a}')
    e(f's_cmp_lt_u32 s{sWave}, 4')
    e('s_cbranch_scc1 Lodd_p')
    e(f's_and_b32 s{sT1}, s{sWi}, 1')
    e(f's_mul_i32 s{sT1}, s{sT1}, {16*9216}')
    e(f's_add_u32 s{sT0}, s{sT0}, s{sT1}')
    e(f's_lshr_b32 s{sT1}, s{sWi}, 1')
    e(f's_mul_i32 s{sT1}, s{sT1}, {4*9216}')
    e(f's_add_u32 s{sT0}, s{sT0}, s{sT1}')
    e(f's_add_u32 s{sT0}, s{sT0}, 1024')
    e(f'v_add_u32 v{vDo}, s{sT0}, v{d}')
    e('Lodd_p:')
    e(f's_and_b32 s{sT0}, s{sWave}, 4')
    e(f's_add_u32 s{sT0}, s{sT0}, s{sWave}')
    e(f's_mul_i32 s{sT0}, s{sT0}, 5120')
    e(f'v_add_u32 v{vAW}, s{sT0}, v{vX0}')
    e(f's_lshr_b32 s{sT0}, s{sWi}, 1')
    e(f's_mul_i32 s{sT0}, s{sT0}, 5120')
    e(f's_and_b32 s{sT1}, s{sWi}, 1')
    e(f's_lshl_b32 s{sT1}, s{sT1}, 3')
    e(f's_add_u32 s{sT0}, s{sT0}, s{sT1}')
    e(f's_add_u32 s{sT0}, s{sT0}, {16*5120}')
    e(f'v_add_u32 v{vAWo}, s{sT0}, v{vX0}')
    e(f's_mul_i32 s{sT0}, s{sFS}, {PSTRIDE}')
    e(f's_mul_i32 s10, s{sMT}, {5*18432}')
    e(f's_add_u32 s{sT0}, s{sT0}, s10')
    e(f's_lshl_b32 s10, s{sLine2}, 11')
    e(f's_add_u32 s10, s10, s{sT0}')
    e(f'v_add_u32 v{vP}, s10, v{vX0}')
    e(f's_lshl_b32 s10, s{sWi}, 9')
    e(f's_add_u32 s10, s10, s{sT0}')
    e(f's_add_u32 s10, s10, {16*1024}')
    e(f'v_lshl_add_u32 v{vPo}, v{vLane}, 3, s10')
    e(f's_mov_b32 s{sC}, {RSQRT2}')
    e(f's_mov_b32 s{sSpin}, 0')
    e(f'v_and_b32 v{a}, 3, v{vLane}')
    e(f'v_lshlrev_b32 v{a}, 2, v{a}')
    e(f'v_add_u32 v{vSA}, {STW}, v{a}')
    e(f'v_add_u32 v{vSB}, {STW+16}, v{a}')
    e(f's_lshl_b32 s{sT0}, s{sWave}, 2')
    e(f's_add_u32 s{sT0}, s{sT0}, {STW}')
    e(f'v_mov_b32 v{vSW}, s{sT0}')
    vSw, vSr, vFe, vFo = 184, 185, 186, 187
    e(f's_lshl_b32 s{sT0}, s{sWave}, 9')
    e(f's_add_u32 s{sT0}, s{sT0}, {ODDB + ODDOFF[4]}')
    e(f'v_lshl_add_u32 v{vSw}, v{vLane}, 3, s{sT0}')
    e(f'v_mul_u32_u24 v{vSr}, 48, v{vR}')
    e(f'v_add_u32 v{vSr}, s{sT0}, v{vSr}')
    e(f'v_lshrrev_b32 v{a}, 4, v{vSl}')
    e(f'v_and_b32 v{b}, 15, v{vSl}')
    e(f'v_lshlrev_b32 v{a}, 10, v{a}')
    e(f'v_lshl_add_u32 v{a}, v{b}, 6, v{a}')
    e(f'v_lshrrev_b32 v{d}, 2, v{b}')
    e(f'v_and_b32 v{d}, 2, v{d}')
    for (dst, add) in ((vFe, 0), (vFo, 6)):
        e(f'v_add_u32 v{b}, {add}, v{vCc}')
        e(f'v_lshrrev_b32 v{c}, 2, v{b}')
        e(f'v_mul_u32_u24 v{c}, 5120, v{c}')
        e(f'v_and_b32 v{b}, 3, v{b}')
        e(f'v_xor_b32 v{b}, v{b}, v{d}')
        e(f'v_lshl_add_u32 v{c}, v{b}, 4, v{c}')
        e(f'v_add_u32 v{dst}, v{a}, v{c}')
    e(f'v_and_b32 v{a}, 15, v{vLane}')
    e(f'v_lshrrev_b32 v{b}, 4, v{vLane}')
    e(f'v_lshrrev_b32 v{c}, 2, v{a}')
    e(f'v_and_b32 v{c}, 2, v{c}')
    e(f'v_xor_b32 v{b}, v{b}, v{c}')
    e(f'v_lshlrev_b32 v{vXg0}, 6, v{a}')
    e(f'v_lshl_add_u32 v{vXg0}, v{b}, 4, v{vXg0}')
    e(f'v_add_u32 v{vXg1}, 46080, v{vXg0}')
    return dict(fl=fl, vR=vR, XR=XR, xl=xl, bl=bl, vSw=vSw, vSr=vSr, vFe=vFe, vFo=vFo, vCc=vCc)

def rowsum(E, P, vs, tmp):
    E.lg(f'ds_write_b32 v{P["vSw"]}, v{vs}')
    E.all_lg()
    for i in range(3):
        E.lg(f'ds_read_b64 {vr(tmp+2*i,2)}, v{P["vSr"]} offset:{8*i}')
    E.all_lg()
    E.e(f'v_add_f32 v{tmp}, v{tmp}, v{tmp+1}')
    E.e(f'v_add_f32 v{tmp+2}, v{tmp+2}, v{tmp+3}')
    E.e(f'v_add_f32 v{tmp+4}, v{tmp+4}, v{tmp+5}')
    E.e(f'v_add_f32 v{tmp}, v{tmp}, v{tmp+2}')
    E.e(f'v_add_f32 v{vs}, v{tmp}, v{tmp+4}')

def bf16r(E, v):
    E.e(f'v_cvt_pk_bf16_f32 v{v}, v{v}, v{v}')
    E.e(f'v_and_b32 v{v}, 0xffff0000, v{v}')

def mlp_ln(E, P, ts, prefill):
    e = E.e
    XR = P['XR']
    XT = 84
    S1, S2, PV, TD = 188, 192, 196, 198
    for i in range(12):
        E.need(P['xl'][i])
        for j in range(4):
            r = XR + 4*i + j
            t = XT + 2*(4*i + j)
            e(f'v_lshlrev_b32 v{t}, 16, v{r}')
            e(f'v_and_b32 v{t+1}, 0xffff0000, v{r}')
            if i == 0 and j == 0: e(f'v_mov_b32 v{PV}, v{t}')
            k = 2*(j & 1); d = TD + k
            first = i == 0 and j < 2
            dd = S1 + k if first else d
            e(f'v_pk_add_f32 {vr(dd,2)}, {vr(t,2)}, {vr(PV,2)} op_sel_hi:[1,0] neg_lo:[0,1] neg_hi:[0,1]')
            if first:
                e(f'v_pk_mul_f32 {vr(S2+k,2)}, {vr(dd,2)}, {vr(dd,2)}')
            else:
                e(f'v_pk_add_f32 {vr(S1+k,2)}, {vr(S1+k,2)}, {vr(d,2)}')
                e(f'v_pk_fma_f32 {vr(S2+k,2)}, {vr(d,2)}, {vr(d,2)}, {vr(S2+k,2)}')
    ts.stamp(E)
    e(f'v_pk_add_f32 {vr(S1,2)}, {vr(S1,2)}, {vr(S1+2,2)}')
    e(f'v_pk_add_f32 {vr(S2,2)}, {vr(S2,2)}, {vr(S2+2,2)}')
    e(f'v_add_f32 v{S1}, v{S1}, v{S1+1}')
    e(f'v_add_f32 v{S2}, v{S2}, v{S2+1}')
    e(f'v_mul_f32 v{S1+1}, 0x3c2aaaab, v{S1}')
    e(f'v_add_f32 v{TD}, v{PV}, v{S1+1}')
    e(f'v_fma_f32 v{TD+1}, -v{S1}, v{S1+1}, v{S2}')
    E.lg(f'ds_write_b64 v{P["vSw"]}, {vr(TD,2)}')
    prefill()
    E.all_lg()
    G = 200
    for i in range(3):
        E.lg(f'ds_read_b128 {vr(G+4*i)}, v{P["vSr"]} offset:{16*i}')
    E.all_lg()
    vMu, vM = 192, 194
    e(f'v_pk_add_f32 {vr(S1,2)}, {vr(G,2)}, {vr(G+2,2)}')
    e(f'v_pk_add_f32 {vr(S1+2,2)}, {vr(G+4,2)}, {vr(G+6,2)}')
    e(f'v_pk_add_f32 {vr(TD,2)}, {vr(G+8,2)}, {vr(G+10,2)}')
    e(f'v_pk_add_f32 {vr(S1,2)}, {vr(S1,2)}, {vr(S1+2,2)}')
    e(f'v_pk_add_f32 {vr(S1,2)}, {vr(S1,2)}, {vr(TD,2)}')
    e(f'v_mul_f32 v{vMu}, 0x3e2aaaab, v{S1}')
    for i in range(6): e(f'v_sub_f32 v{G+2*i}, v{G+2*i}, v{vMu}')
    e(f'v_mul_f32 v{TD}, v{G}, v{G}')
    e(f'v_mul_f32 v{TD+1}, v{G+2}, v{G+2}')
    for i in range(2, 6): e(f'v_fmac_f32 v{TD + (i & 1)}, v{G+2*i}, v{G+2*i}')
    e(f'v_add_f32 v{TD}, v{TD}, v{TD+1}')
    vV = S1
    e(f'v_mul_f32 v{vV}, 0x3ae38e39, v{S1+1}')
    e(f'v_fmac_f32 v{vV}, 0x3e2aaaab, v{TD}')
    e(f'v_mov_b32 v{vM}, v{vMu}')
    e(f'v_max_f32 v{vV}, 0, v{vV}')
    bf16r(E, vM)
    bf16r(E, vV)
    e(f'v_add_f32 v{vV}, 0x3727c5ac, v{vV}')
    bf16r(E, vV)
    e(f'v_sqrt_f32 v{vV}, v{vV}')
    e('s_nop 0')
    bf16r(E, vV)
    e(f'v_rcp_f32 v{vM+1}, v{vV}')
    tmp = 200
    e(f's_cmp_lg_u32 s{sWave}, 0')
    e('s_cbranch_scc1 Lnoz')
    e(f'v_mov_b32 v{tmp}, 0')
    e(f'ds_write_b32 v{vSA}, v{tmp}')
    e(f'ds_write_b32 v{vSB}, v{tmp}')
    e('Lnoz:')
    e('s_mov_b32 exec_hi, 0x0fffffff')
    e(f'v_cmp_eq_u32 vcc, 0, v{P["vCc"]}')
    e(f's_lshl_b32 s{sT0}, s{sWave}, 8')
    e(f's_add_u32 s{sT0}, s{sT0}, {SCR}')
    e(f'v_lshl_add_u32 v{tmp+1}, v{P["vR"]}, 3, s{sT0}')
    e('s_and_saveexec_b64 s[12:13], vcc')
    E.lg(f'ds_write_b64 v{tmp+1}, {vr(vM,2)}')
    e('s_mov_b64 exec, s[12:13]')
    e(f'v_mul_f32 v{vMu}, {hex(LOG2E) if Opt.fold else "1.0"}, v{vM+1}')
    e(f'v_mul_f32 v{vMu+1}, v{vM}, v{vMu}')
    for i in range(12):
        for j in range(4):
            t = XT + 2*(4*i + j)
            e(f'v_pk_fma_f32 {vr(t,2)}, {vr(t,2)}, {vr(vMu,2)}, {vr(vMu,2)} op_sel:[0,0,1] op_sel_hi:[1,0,1] neg_lo:[0,0,1] neg_hi:[0,0,1]')
        for j in range(4):
            t = XT + 2*(4*i + j)
            e(f'v_cvt_pk_bf16_f32 v{XR+4*i+j}, v{t}, v{t+1}')
        base = P['vFe'] if i % 2 == 0 else P['vFo']
        m = i // 2
        if m == 4 :
            e(f'v_add_u32 v{base}, {4*15360}, v{base}')
        off = (m % 4) * 15360
        E.lg(f'ds_write_b128 v{base}, {vr(XR+4*i)} offset:{off}')
    e('s_mov_b32 exec_hi, -1')

sD_ = 11
def mlp_prefill(E):
    ids = []
    E.e(f's_cmp_ge_u32 s{sWave}, 4')
    E.e('s_cbranch_scc1 Lnopre')
    for n in range(4):
        E.e(f's_add_u32 m0, s{sRing}, {((n + 2) % 4)*2048}')
        E.e(f's_mov_b32 s{sD_}, {(n // 2)*32*9216 + (n % 2)*4*9216}')
        E.vm(f'buffer_load_dwordx4 v{vD1a}, {sr(srdW1)}, s{sD_} offen lds')
        ids.append(E.vm(f'buffer_load_dwordx4 v{vD1b}, {sr(srdW1)}, s{sD_} offen offset:1024 lds'))
    E.e('s_branch Lpre_done')
    E.e('Lnopre:')
    if Opt.qpf:
        e = E.e
        a, b, c = vT, vT+1, vT+2
        e(f's_mul_i32 s{sT0}, s{sWi}, {28*26}')
        e(f's_mul_i32 s{sT1}, s{sMT}, 28')
        e(f's_add_u32 s{sT0}, s{sT0}, s{sT1}')
        e(f'v_add_u32 v{a}, s{sT0}, v{vLane}')
        e(f'v_mul_u32_u24 v{b}, 13108, v{a}')
        e(f'v_lshrrev_b32 v{b}, 16, v{b}')
        e(f'v_mul_u32_u24 v{c}, 5, v{b}')
        e(f'v_sub_u32 v{c}, v{a}, v{c}')
        e(f'v_mul_u32_u24 v{b}, 9216, v{b}')
        e(f'v_lshl_add_u32 v{b}, v{c}, 7, v{b}')
        e(f's_mul_i32 s{sT0}, s{sFS}, 1152')
        e(f's_add_u32 s{sT0}, s{sT0}, 512')
        e('s_mov_b64 exec, 0xfffffff')
        e(f'buffer_load_dword v{vDum}, v{b}, {sr(srdW1)}, s{sT0} offen{Opt.nt}')
        e('s_mov_b64 exec, -1')
    E.e('Lpre_done:')
    return ids

KORD = [0, 2, 4, 6, 1, 3, 5, 7, 8, 10, 12, 14, 9, 11, 13, 15, 16, 17]
stubs = []
def mlp_main(E, cls, P, ts, pre_ids):
    e = E.e
    isP = cls == 'P'
    R = ODDR
    vSown = vSA if isP else vSB
    steps, groups, pairs, odds = [], [], [], []
    for gm in (1, 2):
        for k in range(18):
            kx = k if gm == 1 else KORD[k]
            hasodd = (gm == 1) != isP
            st = dict(gm=gm, k=k, x=k, g0=len(groups), odd=hasodd, xr={})
            rs = 9216 if gm == 1 else 1152
            hb = 4 if gm == 1 else 16
            st['pa'] = len(pairs)
            for h in range(2):
                pairs.append(dict(gm=gm, soff=kx*32*rs + h*hb*rs, reads=[], id=None))
            if hasodd:
                st['oi'] = len(odds); odds.append(dict(gm=gm, soff=kx*32*rs, id=None, reads=[]))
            for t in range(5 if hasodd else 4):
                groups.append(dict(step=len(steps), t=t, w=[]))
            st['ng'] = len(groups) - st['g0']
            steps.append(st)
    NG = len(groups); NM = 5*NG
    own, flo = ((0, 2) if isP else (4, 2))
    lastuse = {}
    deep = (not isP) and Opt.qdeep
    for n, p in enumerate(pairs):
        s_, h = divmod(n, 2); k = s_ % 18
        isflo = (k % 2 == 0) and (k > 0 or (isP and s_ == 0))
        p['slot'] = (flo if isflo else own) + h
        if deep and s_ >= 18 + 4:
            p['slot'] = [2, 0, 6, 4][(k - 4) % 4] + h
        p['prev'] = lastuse.get(p['slot']); lastuse[p['slot']] = n
    nxt = {p['prev']: n for n, p in enumerate(pairs) if p['prev'] is not None}
    pre = [[] for _ in range(NM)]
    gaps = [[] for _ in range(NM)]
    def stepm(s): return 5*steps[s]['g0'] if s < len(steps) else NM
    so0 = 18 if isP else 0
    PB, QB = 6, 3
    pbase = PB if isP else QB
    obase = 18 if isP else 0

    def wait_status(name, vaddr, thr, pre_id=None, part=0, vv=vS):
        if pre_id is None:
            vv = vS2
            pre_id = E.lg(f'ds_read_b32 v{vv}, v{vaddr}')
        if part != 2:
            E.need(pre_id)
            e(f'v_cmp_gt_u32 vcc, {thr}, v{vv}')
        if part == 1: return
        e(f's_cbranch_vccnz Lw{name}')
        e(f'Lr{name}:')
        stubs.extend([f'Lw{name}:', f'ds_read_b32 v{vv}, v{vaddr}', f's_add_u32 s{sSpin}, s{sSpin}, 1', f's_cmp_gt_u32 s{sSpin}, 0x100000', f's_cbranch_scc1 Lr{name}',
                      's_waitcnt lgkmcnt(0)', f'v_cmp_gt_u32 vcc, {thr}, v{vv}', f's_cbranch_vccz Lr{name}', 's_sleep 1', f's_branch Lw{name}'])
    def publish(val):
        e(f'v_mov_b32 v{vPg}, {val}')
        E.lg(f'ds_write_b32 v{vSW}, v{vPg}')
    def p_m0(n): e(f's_add_u32 m0, s{sRing}, {pairs[n]["slot"]*2048}')
    def p_so(n): e(f's_mov_b32 s{sD_}, {pairs[n]["soff"]}')
    def p_ld(n, i):
        it = pairs[n]
        if it['prev'] is not None and i == 0:
            assert len(pairs[it['prev']]['reads']) == 4
            E.need(*pairs[it['prev']]['reads'])
        va, sd = ((vD1a, vD1b), srdW1) if it['gm'] == 1 else ((vD2a, vD2b), srdW2)
        if Opt.x_nodma:
            e('s_nop 0'); x = ('vm', 0)
        else:
            x = E.vm(f'buffer_load_dwordx4 v{va[i]}, {sr(sd)}, s{sD_} offen{" offset:1024" if i else ""} lds')
        if i: it['id'] = x
    def p_all(n): p_m0(n); p_so(n); p_ld(n, 0); p_ld(n, 1)
    def o_m0(n): e(f's_add_u32 m0, s{sOddM}, {ODDOFF[(obase + n) % R]}')
    def o_so(n): e(f's_mov_b32 s{sD_}, {odds[n]["soff"]}')
    def o_ld(n):
        sd = srdW1 if odds[n]['gm'] == 1 else srdW2
        if Opt.x_nodma:
            e('s_nop 0'); odds[n]['id'] = ('vm', 0)
        else:
            odds[n]['id'] = E.vm(f'buffer_load_dwordx4 v{vDo}, {sr(sd)}, s{sD_} offen lds')
    def wreg(s, t): return vWF + 20*(s % 2) + 4*t
    def do_wread(s, t, h):
        st = steps[s]; g = st['g0'] + t
        if t < 4:
            n = st['pa'] + h
            E.need(pairs[n]['id'])
            i = E.lg(f'ds_read_b64_tr_b16 {vr(wreg(s,t)+2*h,2)}, v{vWt[t]} offset:{pairs[n]["slot"]*2048}')
            pairs[n]['reads'].append(i)
        else:
            n = st['oi']
            i = E.lg(f'ds_read_b64_tr_b16 {vr(wreg(s,t)+2*h,2)}, v{vWo} offset:{ODDOFF[(obase + n) % R] + h*2048}')
            odds[n]['reads'].append(i)
        groups[g]['w'].append(i)
    def do_xread(s, rt):
        idx = steps[s]['x']*5 + rt
        b0, b1 = (vX0, vX1) if steps[s]['gm'] == 2 else (vXg0, vXg1)
        vb, off = (b0, idx*1024) if idx < 45 else (b1, (idx-45)*1024)
        steps[s]['xr'][rt] = E.lg(f'ds_read_b128 {vr(vXF + 20*(s % 2) + 4*rt)}, v{vb} offset:{off}')

    TN = dict(Wa=[0,1,3,4], Wb=[10,11,13,14], X=[5,6,8,9,15], DA=[12,17], DAs=[8,9], DB=[2,7], DBs=[-2,-1], lg=19)
    TO = dict(Wa=[0,1,3,4], Wb=[14,15,16,18], X=[8,9,11,19,20], DA=[12,17], DAs=[8,9], DB=[2,7], DBs=[-2,-2], lg=24,
              Wo=[5,6], Sr=10, Pv=11, Sw=13, Cm=19, Br=21, Do=22, Dos=[18,20])
    if Opt.tmpl == 1:
        TO = dict(Wa=[0,1,3,4], Wb=[9,10,11,13], X=[14,15,16,18,19], DA=[17,22], DAs=[13,14], DB=[2,7], DBs=[-2,-2], lg=24,
                  Wo=[5,6], Sr=-4, Pv=18, Sw=20, Cm=8, Br=10, Do=12, Dos=[8,9])
    if Opt.tmpl == 2:
        TO = dict(Wa=[0,1,3,4], Wb=[13,14,15,16], X=[5,6,8,9,10], DA=[17,22], DAs=[13,14], DB=[7,12], DBs=[3,4], lg=24,
                  Wo=[18,19], Sr=11, Pv=5, Sw=20, Cm=21, Br=23, Do=27, Dos=[23,24], lag=1)
    manual = set()
    def at(s, g, f):
        if steps[s]['k'] == 0 and g < 0: pre[stepm(s)].append(f)
        else: gaps[stepm(s) + g].append(f)
    sread = {}
    gated = {26: QB+18, 30: QB+19, 34: QB+20} if isP else {}
    for s in range(36):
        st = steps[s]; T = TO if st['odd'] else TN; k = st['k']
        if k < 17:
            for h, key in ((0, 'Wa'), (1, 'Wb')):
                for t in range(4): at(s, T[key][t], lambda s=s, t=t, h=h: do_wread(s+1, t, h))
            if s+1 in gated:
                at(s, -4, lambda s=s: sread.__setitem__(('g', s), E.lg(f'ds_read_b32 v{vS2}, v{vSB}')))
                at(s, 3, lambda s=s: wait_status(f'Pg{s}', vSB, gated[s+1], sread[('g', s)], part=1, vv=vS2))
                at(s, 5, lambda s=s: (wait_status(f'Pg{s}', vSB, gated[s+1], sread[('g', s)], part=2, vv=vS2), ts.stamp(E)))
            for rt in range(5): at(s, T['X'][rt], lambda s=s, rt=rt: do_xread(s+1, rt))
            at(s, T['lg'], lambda s=s: E.need(*([steps[s+1]['xr'][0]] + groups[steps[s+1]['g0']]['w'])))
        def place(n, D, Ds):
            at(s, Ds[0], lambda n=n: p_m0(n)); at(s, Ds[1], lambda n=n: p_so(n))
            at(s, D[0], lambda n=n: p_ld(n, 0)); at(s, D[1], lambda n=n: p_ld(n, 1))
            manual.discard(n)
        def ok(n):
            return n is not None and not (pairs[n]['slot'] in (flo, flo+1) and (n // 36) != (pairs[n]['prev'] // 36))
        if k < 17 and ok(nxt.get(steps[s+1]['pa'])): place(nxt[steps[s+1]['pa']], T['DA'], T['DAs'])
        if k >= 1 and ok(nxt.get(st['pa'] + 1)): place(nxt[st['pa'] + 1], T['DB'], T['DBs'])
        if st['odd']:
            if k < 17:
                for h in range(2): at(s, T['Wo'][h], lambda s=s, h=h: do_wread(s+1, 4, h))
            if k < 16 and not Opt.x_nochk:
                at(s, T['Sr'], lambda k=k: sread.__setitem__(k, E.lg(f'ds_read_b32 v{vS}, v{vSown}')))
                at(s, T['Cm'], lambda k=k: wait_status(f'{cls}o{k}', vSown, pbase + k - 1, sread[k], part=1))
                at(s, T['Br'], lambda k=k: wait_status(f'{cls}o{k}', vSown, pbase + k - 1, sread[k], part=2))
            if k + R < 18:
                n = k + R
                at(s, T['Dos'][0], lambda n=n: o_m0(n)); at(s, T['Dos'][1], lambda n=n: o_so(n)); at(s, T['Do'], lambda n=n: o_ld(n))
            def pub(k=k, s=s, T=T):
                ids = list(steps[s]['xr'].values()) + pairs[steps[s]['pa']]['reads'] + pairs[steps[s]['pa']+1]['reads']
                if T.get('lag'):
                    ids += odds[k]['reads']
                elif k + 1 < 18: ids += odds[k+1]['reads']
                ids.append(odds[min(k + R - 2, 17)]['id'])
                E.need(*ids)
                E.lg(f'ds_write_b32 v{vSW}, v{vPg}')
            if not (Opt.x_nopub and (k not in (3, 7, 14, 16, 17))):
                at(s, T['Pv'], lambda k=k: e(f'v_mov_b32 v{vPg}, {pbase + k}')); at(s, T['Sw'], pub)
    if deep:
        at(19, 16, lambda: wait_status('Qe', vSA, PB + 17))
        for i, n in enumerate((46, 47, 48, 49)):
            at(20 + i // 2, 7 if i % 2 == 0 else 17, lambda n=n: p_all(n))
    if not isP:
        at(Opt.qsig, 15, lambda: e(f'v_mov_b32 v{vPg}, {QB + 21}'))
        at(Opt.qsig, 16, lambda: E.lg(f'ds_write_b32 v{vSW}, v{vPg}'))
    if isP:
        at(16, 0, lambda: e(f'v_mov_b32 v{vPg}, 1'))
        at(16, 2, lambda: (E.need(*(pairs[32]['reads'] + pairs[33]['reads'])), E.lg(f'ds_write_b32 v{vSW}, v{vPg}')))

    if isP:
        TL = Tail(E, ts)
    def mish_quad(src, dst, tb):
        T = [tb+i for i in range(4)]
        I = range(4)
        o = []
        if Opt.fold:
            o += [f'v_exp_f32 v{T[i]}, v{src+i}' for i in I]
        else:
            o += [f'v_mul_f32 v{T[i]}, {hex(LOG2E)}, v{src+i}' for i in I]
            o += [f'v_exp_f32 v{T[i]}, v{T[i]}' for i in I]
        o += [f'v_fma_f32 v{T[i]}, v{T[i]}, s{sC}, s{sC}' for i in I]
        o += [f'v_fma_f32 v{T[i]}, v{T[i]}, v{T[i]}, 0.5' for i in I]
        o += [f'v_rcp_f32 v{T[i]}, v{T[i]}' for i in I]
        o += [f'v_fma_f32 v{T[i]}, -v{src+i}, v{T[i]}, v{src+i}' for i in I]
        o += [f'v_cvt_pk_bf16_f32 v{dst}, v{T[0]}, v{T[1]}', f'v_cvt_pk_bf16_f32 v{dst+1}, v{T[2]}, v{T[3]}']
        if Opt.x_nomish: o = o[-2:]
        if Opt.mnop >= 0:
            o2 = []; acc = 0
            for op in o:
                o2.append(op)
                acc += 8 if ('exp' in op or 'rcp' in op) else 4
                if acc >= 8:
                    o2.append(f's_nop {Opt.mnop}'); acc = 0
            o = o2
        return o
    def mish_rt(hf, rt):
        a0, a1 = vAcc + 40*hf + 4*rt, vAcc + 40*hf + 20 + 4*rt
        for o in mish_quad(a0, a0, vT): e(o)
        for o in mish_quad(a1, a0+2, vT+4): e(o)
    def wr(hf, rt):
        if Opt.x_nowr: return ('lg', 0)
        return E.lg(f'ds_write_b128 v{vAW}, {vr(vAcc + 40*hf + 4*rt)} offset:{hf*20480 + rt*1024}')
    def w_stage_ops(s0):
        L = [(lambda t=t, h=h: do_wread(s0, t, h)) for h in range(2) for t in range(4)]
        for n in (steps[s0+1]['pa'], steps[s0+1]['pa'] + 1):
            L += [lambda n=n: (p_m0(n), p_so(n), p_ld(n, 0)), lambda n=n: p_ld(n, 1)]
        return L
    def w_stage(s0):
        for f in w_stage_ops(s0): f()
    side = []
    def valu_phase():
        clk = E.clock; E.clock = None
        ts.stamp(E)
        e('s_setprio 0')
        if isP:
            publish(2)
            e('s_nop 4')
            w = []
            for rt in range(Opt.pw0): mish_rt(0, rt)
            wait_status('Pa', vSA, 2)
            wait_status('Pb', vSB, QB + 3)
            pend = [(0, rt) for rt in range(Opt.pw0)]
            def mish_w(hf, rt):
                a0, a1 = vAcc + 40*hf + 4*rt, vAcc + 40*hf + 20 + 4*rt
                for (src, dst, tb) in ((a0, a0, vT), (a1, a0+2, vT+4)):
                    ops = mish_quad(src, dst, tb)
                    for i, o in enumerate(ops):
                        e(o)
                        if pend and pend[0][0] <= allowed[0] and i == len(ops) // 2: w.append(wr(*pend.pop(0)))
                        if side and i in (3, len(ops) - 4): side.pop(0)()
                pend.append((hf, rt))
            allowed = [0]
            for rt in range(Opt.pw0, 5): mish_w(0, rt)
            side.extend(w_stage_ops(18))
            for rt in range(5):
                if rt == Opt.pw1:
                    wait_status('Pb2', vSB, QB + 7); allowed[0] = 1
                mish_w(1, rt)
            assert not side
            for x in pend: w.append(wr(*x))
            ts.stamp(E)
            E.need(*w)
            publish(3)
            wait_status('Pc0', vSB, QB + 14)
            for n in range(3):
                o_m0(n); o_so(n); o_ld(n)
            E.need(odds[2]['id'])
            publish(4)
            wait_status('Pd', vSA, 4)
            for h in range(2): do_wread(18, 4, h)
            for rt in range(5): do_xread(18, rt)
            E.need(*odds[0]['reads'])
            publish(5)
            wait_status('Pc3', vSB, QB + 16)
            p_all(40); p_all(41)
            for n in range(3, R):
                o_m0(n); o_so(n); o_ld(n)
        else:
            e('s_nop 7')
            for rt in range(2): mish_rt(0, rt)
            wait_status('Qa', vSB, QB + 17)
            wait_status('Qp', vSA, 2)
            w = [wr(0, 0), wr(0, 1)]
            for rt in range(2, 5):
                mish_rt(0, rt); w.append(wr(0, rt))
            E.need(*w); publish(QB + 18)
            w = []
            for rt in range(5):
                mish_rt(1, rt); w.append(wr(1, rt))
            E.need(*w); publish(QB + 19)
            w = []
            for rt in range(5):
                a0 = vAcc + 80 + 4*rt
                for o in mish_quad(a0, a0, vT + 4*(rt & 1)): e(o)
                w.append(E.lg(f'ds_write_b64 v{vAWo}, {vr(a0,2)} offset:{rt*1024}'))
            E.need(*w); publish(QB + 20)
            ts.stamp(E)
            for f in w_stage_ops(18):
                f(); e('s_sleep 1')
            wait_status('Qc', vSB, QB + 20)
            wait_status('Qd', vSA, 3)
            for rt in range(5): do_xread(18, rt)
            wait_status('Qb', vSA, PB + 16)
            p_all(40); p_all(41)
        e('s_setprio 1')
        ts.stamp(E)
        E.clock = clk
    if not isP:
        pre[0].append(lambda: ts.val(E, sSpin)); pre[stepm(18)].append(lambda: ts.val(E, sSpin))
    pre[stepm(18)].insert(0, valu_phase)
    if Opt.fine:
        lo_, st_ = [int(x) for x in Opt.fine.split(',')]
        for i in range(13):
            if lo_ + i*st_ < 36: pre[stepm(lo_ + i*st_)].append(lambda: ts.stamp(E, True))

    if isP:
        for n in range(4): pairs[n]['id'] = pre_ids[n]
    def small_setup():
        E.need(*P['bl'])
        for i in range(4 if isP else 5):
            r = vBraw + 2*i; d = vAcc + 20*i + 16
            e(f'v_lshlrev_b32 v{d}, 16, v{r}')
            e(f'v_and_b32 v{d+1}, 0xffff0000, v{r}')
            e(f'v_lshlrev_b32 v{d+2}, 16, v{r+1}')
            e(f'v_and_b32 v{d+3}, 0xffff0000, v{r+1}')
            if Opt.fold:
                for j in range(4): e(f'v_mul_f32 v{d+j}, {hex(LOG2E)}, v{d+j}')
        E.need(*P['fl'])
        e(f'v_readlane_b32 s{sFlA+3}, v{vFlOld}, 0')
        e(f'v_readlane_b32 s{sFlO+3}, v{vFlOld}, 1')
    if isP: small_setup()
    if Opt.x_warm:
        a, b, c = vT, vT+1, vT+2
        e(f's_mul_i32 s{sT0}, s{sMT}, 200')
        e(f's_mul_i32 s{sT1}, s{sWi}, 50')
        e(f's_add_u32 s{sT0}, s{sT0}, s{sT1}')
        e(f'v_add_u32 v{a}, s{sT0}, v{vLane}')
        if isP:
            e(f'v_mul_u32_u24 v{b}, 7282, v{a}')
            e(f'v_lshrrev_b32 v{b}, 16, v{b}')
            e(f'v_mul_u32_u24 v{c}, 9, v{b}')
            e(f'v_sub_u32 v{c}, v{a}, v{c}')
            e(f'v_mul_u32_u24 v{b}, 9216, v{b}')
            e(f'v_lshl_add_u32 v{b}, v{c}, 7, v{b}')
            e(f's_mul_i32 s{sT0}, s{sFS}, 1152')
            E.vm(f'buffer_load_dword v{vDum}, v{b}, {sr(srdW1)}, s{sT0} offen{Opt.nt}')
        else:
            e(f'v_lshlrev_b32 v{b}, 7, v{a}')
            e(f's_mul_i32 s{sT0}, s{sFS}, 663552')
            E.vm(f'buffer_load_dword v{vDum}, v{b}, {sr(srdW2)}, s{sT0} offen')
        E.all_vm()
        for i in range(3): e('s_sleep 127')
    if isP:
        for h in range(2):
            for t in range(4): do_wread(0, t, h)
        p_all(4); p_all(5)
        poison(E)
    e('s_waitcnt lgkmcnt(0)'); E.lg_done = E.lg_n - 1
    ts.stamp(E)
    e('s_barrier')
    e(f's_setprio {3 if isP else 2}')
    for rt in range(5): do_xread(0, rt)
    if not isP:
        small_setup()
        if Opt.qpf: e('s_waitcnt vmcnt(0)'); e('s_sleep 8')
        for n in range(2): p_all(n)
        for n in range(R):
            o_m0(n); o_so(n); o_ld(n)
        w_stage(0)
        E.need(odds[R-1]['id'])
        publish(1)
        wait_status('Qr', vSB, 1)
        for h in range(2): do_wread(0, 4, h)
        E.need(*odds[0]['reads'])
        publish(2)
        wait_status('Qs', vSA, 1)
        p_all(4); p_all(5)
    if isP and Opt.d_mfma:
        e('s_waitcnt lgkmcnt(0)')
        e(f's_mov_b32 s12, {Opt.d_mfma}')
        e('Ldm:')
        for i in range(20):
            e(f'v_mfma_f32_16x16x32_bf16 {vr(232 + 4*(i % 5))}, {vr(wreg(0, i // 5))}, {vr(vXF + 4*(i % 5))}, 0')
        e('s_sub_u32 s12, s12, 1'); e('s_cmp_lg_u32 s12, 0'); e('s_cbranch_scc1 Ldm')
    for m in range(NM):
        g, rt = divmod(m, 5)
        G = groups[g]; s = G['step']; st = steps[s]
        if Opt.snake and G['t'] % 2 and not (st['k'] == 0 and st['gm'] == 1): rt = 4 - rt
        E.clock = m
        for f in pre[m]: f()
        assert len(G['w']) == 2, (cls, m, g)
        E.need(*(G['w'] + [st['xr'][rt]]))
        ab = vAcc + 20*G['t']; d = ab + 4*rt
        c = vr(d)
        if st['k'] == 0: c = vr(ab + 16) if st['gm'] == 1 else '0'
        e(f'v_mfma_f32_16x16x32_bf16 {vr(d)}, {vr(wreg(s, G["t"]))}, {vr(vXF + 20*(s % 2) + 4*rt)}, {c}')
        for f in gaps[m]: f()
    assert all(p['id'] for p in pairs) and all(len(p['reads']) == 4 for p in pairs)
    E.clock = None
    ts.stamp(E)
    if Opt.x_noex:
        e('s_endpgm'); return
    e('s_setprio 0')
    e('s_nop 6')
    def pack(u, rt):
        a0, a1 = vAcc + 40*u + 4*rt, vAcc + 40*u + 20 + 4*rt
        e(f'v_cvt_pk_bf16_f32 v{a0}, v{a0}, v{a0+1}')
        e(f'v_cvt_pk_bf16_f32 v{a0+1}, v{a0+2}, v{a0+3}')
        e(f'v_cvt_pk_bf16_f32 v{a0+2}, v{a1}, v{a1+1}')
        e(f'v_cvt_pk_bf16_f32 v{a0+3}, v{a1+2}, v{a1+3}')
        return a0
    if not isP:
        e(f's_cmp_eq_u32 s{sLine2}, s{sFin}')
        e('s_cbranch_scc1 Lq_own')
        for u in range(2):
            for rt in range(5):
                a0 = pack(u, rt)
                e(f's_mov_b32 s{sT0}, {rt*18432}')
                e(f'buffer_store_dwordx4 {vr(a0)}, v{vP}, {sr(srdWS)}, s{sT0} offen offset:{u*1024}{SC}')
        e('s_branch Lq_end')
        e('Lq_own:')
        e(f'v_add_u32 v{vT}, s{sRing}, v{vX0}')
        for u in range(2):
            for rt in range(5):
                a0 = pack(u, rt)
                e(f'ds_write_b128 v{vT}, {vr(a0)} offset:{(5*u + rt)*1024}')
        e('s_waitcnt lgkmcnt(0)')
        e('Lq_end:')
        publish(QB + 22)
        if Opt.ts:
            e('s_waitcnt vmcnt(0)')
            ts.stamp(E)
            ts.flush(E, vT)
        e('s_endpgm')
        return
    sts = []
    def st_main(u, rt):
        a0 = pack(u, rt)
        e(f's_mov_b32 s{sT0}, {rt*18432}')
        if len(sts) >= Opt.sthr: E.need(sts[-Opt.sthr])
        sts.append(E.vm(f'buffer_store_dwordx4 {vr(a0)}, v{vP}, {sr(srdWS)}, s{sT0} offen offset:{u*1024}{SC}'))
    def st_odd(rt):
        a0 = vAcc + 80 + 4*rt
        e(f'v_cvt_pk_bf16_f32 v{a0}, v{a0}, v{a0+1}')
        e(f'v_cvt_pk_bf16_f32 v{a0+1}, v{a0+2}, v{a0+3}')
        e(f's_mov_b32 s{sT0}, {rt*18432}')
        if len(sts) >= Opt.sthr: E.need(sts[-Opt.sthr])
        sts.append(E.vm(f'buffer_store_dwordx2 {vr(a0,2)}, v{vPo}, {sr(srdWS)}, s{sT0} offen{SC}'))
    todo = [(lambda u=u, rt=rt: st_main(u, rt)) for u in range(2) for rt in range(5)] + [(lambda rt=rt: st_odd(rt)) for rt in range(5)]
    for f in todo: f()
    TL.setup()
    e(f'v_mov_b32 v{vT}, 0')
    e(f's_add_u32 s{sFlA+3}, s{sFlA+3}, 1')
    e(f's_add_u32 s{sFlO+3}, s{sFlO+3}, 1')
    e(f'v_mov_b32 v{vT+1}, s{sFlA+3}')
    e(f'v_mov_b32 v{vT+2}, s{sFlO+3}')
    e('s_mov_b64 exec, 1')
    E.need(*sts[:10])
    E.vm(f'buffer_store_dword v{vT+1}, v{vT}, {sr(srdWS)}, s{sFlA} offen{SC}')
    E.need(*sts)
    E.vm(f'buffer_store_dword v{vT+2}, v{vT}, {sr(srdWS)}, s{sFlO} offen{SC}')
    e('s_mov_b64 exec, -1')
    ts.stamp(E)
    TL.run(lambda: wait_status('Pt', vSB, QB + 21))

def gpoll(E, name, vcur, vadr, sb, vold, mask, have=False, sleep=None):
    e = E.e
    e('s_mov_b32 s10, 0')
    if have: e(f's_branch L{name}_c')
    e(f'L{name}:')
    e(f'buffer_load_dword v{vcur}, v{vadr}, {sr(srdWS)}, s{sb} offen{SC}')
    e('s_waitcnt vmcnt(0)')
    e(f'L{name}_c:')
    e(f'v_cmp_ne_u32 vcc, v{vcur}, v{vold}')
    e(f's_and_b64 s[12:13], vcc, s[{mask}:{mask+1}]')
    e(f's_cmp_eq_u64 s[12:13], s[{mask}:{mask+1}]')
    e(f's_cbranch_scc1 L{name}_ok')
    e(f's_sleep {sleep or Opt.psleep}')
    e('s_add_u32 s10, s10, 1')
    e('s_cmp_lt_u32 s10, 0x20000')
    e(f's_cbranch_scc1 L{name}')
    e(f'L{name}_ok:')
    if not have: E.vm_done = E.vm_n - 1

def late_block_soff(E, dst, b_expr_reg):
    pass

def block_ur(E, s_):
    e = E.e
    e(f's_add_u32 s13, s{sWi}, {4*s_}')
    e(f's_lshl_b32 s14, s{sFin}, 1')
    e('s_cmp_ge_u32 s13, 5')
    e(f's_cselect_b32 s{sT0}, 5, 0')
    e('s_addc_u32 s14, s14, 0')
    e(f's_sub_u32 s15, s13, s{sT0}')

def piece_off(E, dst, u, r):
    e = E.e
    e(f's_mul_i32 s{dst}, s{sMT}, 5')
    e(f's_add_u32 s{dst}, s{dst}, s{r}')
    e(f's_mul_i32 s{dst}, s{dst}, 18432')
    e(f's_lshl_b32 s{sT1}, s{u}, 10')
    e(f's_add_u32 s{dst}, s{dst}, s{sT1}')

def late_slabs(E, d0):
    for k in range(3):
        E.e(f's_add_u32 s{d0+k}, s{sFS}, {2*(k+1)}')
        E.e(f's_and_b32 s{d0+k}, s{d0+k}, 7')
        E.e(f's_mul_i32 s{d0+k}, s{d0+k}, {PSTRIDE}')

def poison(E):
    e = E.e
    for i in range(4): e(f'v_mov_b32 v{228+i}, -1')
    late_slabs(E, 64)
    ids = []
    for s_ in range(3):
        block_ur(E, s_)
        piece_off(E, 12, 14, 15)
        if s_ == 2:
            e('s_cmp_ge_u32 s13, 10')
            e('s_cselect_b32 s12, 0x40000000, s12')
        for k in range(3):
            e(f's_add_u32 s{sT0}, s12, s{64+k}')
            if len(ids) >= Opt.pthr: E.need(ids[-Opt.pthr])
            ids.append(E.vm(f'buffer_store_dwordx4 v[228:231], v{vX0}, {sr(srdWS)}, s{sT0} offen{SC}'))

class Tail:
    def __init__(self, E, ts):
        self.E, self.ts = E, ts
    def slot_addr(self, d, u, r):
        e = self.E.e
        e(f's_min_u32 s{sT0}, s{r}, 4')
        e(f's_lshl_b32 s{sT0}, s{sT0}, 4')
        e(f'v_add_u32 v8, s{sT0}, v4')
        e('v_mul_u32_u24 v9, 205, v8')
        e('v_lshrrev_b32 v9, 11, v9')
        e('v_mul_u32_u24 v9, 176, v9')
        e('v_lshl_add_u32 v9, v8, 3, v9')
        e(f'v_add_u32 v9, {SCR}, v9')
        d['st'] = self.E.lg(f'ds_read_b64 {vr(d["ST"],2)}, v9')
        e(f's_mul_i32 s{sT0}, s{sMT}, 80')
        e(f'v_add_u32 v8, s{sT0}, v8')
        e(f'v_mul_u32_u24 v{d["xa"]}, 1152, v8')
        e(f'v_lshl_add_u32 v{d["xa"]}, v6, 5, v{d["xa"]}')
        e(f'v_lshl_add_u32 v{d["xa"]}, v5, 4, v{d["xa"]}')
        e(f's_lshl_b32 s{sT0}, s{u}, 6')
        e(f'v_add_u32 v{d["xa"]}, s{sT0}, v{d["xa"]}')
        e(f'v_lshlrev_b32 v{d["ya"]}, 4, v8')
        e(f'v_lshl_add_u32 v{d["ya"]}, v5, 15, v{d["ya"]}')
        e(f'v_lshl_add_u32 v{d["ya"]}, v6, 16, v{d["ya"]}')
        e(f's_lshl_b32 s{sT0}, s{u}, 17')
        e(f's_add_u32 s{sT0}, s{sT0}, {WS_Y}')
        e(f'v_add_u32 v{d["ya"]}, s{sT0}, v{d["ya"]}')
        piece_off(self.E, d['sP'], u, r)
    sME, sMY, sMO, sMYO = 30, 32, 28, 40
    sFb, sFo = 26, 27
    vFa, vCur, vCur2 = 236, 237, 238
    def sample0(self):
        e = self.E.e
        e(f'v_lshlrev_b32 v{self.vFa}, 2, v{vLane}')
        flag_base(self.E, self.sFo)
    def sample1(self):
        e = self.E.e
        e(f's_lshl_b32 s{self.sFb}, s{sFin}, 8')
        e(f's_add_u32 s{self.sFb}, s{self.sFb}, s{self.sFo}')
        self.f1 = self.E.vm(f'buffer_load_dword v{self.vCur}, v{self.vFa}, {sr(srdWS)}, s{self.sFb} offen{SC}')
    def sample2(self):
        self.E.e(f's_add_u32 s{self.sFo}, s{self.sFo}, {8*FLB}')
        self.f2 = self.E.vm(f'buffer_load_dword v{self.vCur2}, v{self.vFa}, {sr(srdWS)}, s{self.sFo} offen{SC}')
    def poll2(self, name, m1, m2, have):
        E = self.E; e = E.e
        e('s_mov_b32 s10, 0')
        if have: e(f's_branch L{name}_c')
        e(f'L{name}:')
        e(f'buffer_load_dword v{self.vCur}, v{self.vFa}, {sr(srdWS)}, s{self.sFb} offen{SC}')
        e(f'buffer_load_dword v{self.vCur2}, v{self.vFa}, {sr(srdWS)}, s{self.sFo} offen{SC}')
        e('s_waitcnt vmcnt(0)')
        e(f'L{name}_c:')
        e(f'v_cmp_eq_u32 vcc, v{self.vCur}, v0')
        e(f'v_cmp_eq_u32 s[12:13], v{self.vCur2}, v{vOld2}')
        e(f's_and_b64 vcc, vcc, s[{m1}:{m1+1}]')
        e(f's_and_b64 s[12:13], s[12:13], s[{m2}:{m2+1}]')
        e('s_or_b64 s[12:13], s[12:13], vcc')
        e(f's_cbranch_scc0 L{name}_ok')
        e(f's_sleep {Opt.esleep}')
        e('s_add_u32 s10, s10, 1')
        e('s_cmp_lt_u32 s10, 0x20000')
        e(f's_cbranch_scc1 L{name}')
        e(f'L{name}_ok:')
        if not have: E.vm_done = E.vm_n - 1
    def setup(self):
        E = self.E; e = E.e
        srd(E, srdB1, sOUT, S*D*2)
        e(f's_mov_b32 s{self.sME}, 0x10101010')
        e(f's_and_b32 s{sT0}, s{sFS}, 1')
        e(f's_lshl_b32 s{sT0}, s{sT0}, 2')
        e(f's_lshr_b32 s{self.sME}, s{self.sME}, s{sT0}')
        e(f's_mov_b32 s{self.sME+1}, 0')
        e('s_mov_b32 s43, 0')
        e(f's_mov_b64 s[{self.sMO}:{self.sMO+1}], 0')
        e(f'v_lshlrev_b32 v{self.vFa}, 2, v{vLane}')
        flag_base(E, self.sFo)
        e(f's_lshl_b32 s{self.sFb}, s{sFin}, 8')
        e(f's_add_u32 s{self.sFb}, s{self.sFb}, s{self.sFo}')
        e(f's_add_u32 s{self.sFo}, s{self.sFo}, {8*FLB}')
        e('s_mov_b32 s32, 0x3f80')
        e('s_mov_b32 s33, 0x3f800000')
        e('s_mov_b32 s40, 0x3f317218' if Opt.fold else 's_mov_b32 s40, 1.0')
        e('v_and_b32 v4, 15, v1')
        e('v_lshrrev_b32 v5, 4, v1')
        e('v_and_b32 v6, 1, v5')
        e('v_lshrrev_b32 v5, 1, v5')
        e('v_lshlrev_b32 v7, 4, v1')
        self.sl = []
        for s_ in range(3):
            B = 36 + 24*s_; W = 116 + 40*s_
            d = dict(XR=B, YR=B, ST=B+4, xa=B+6, ya=B+7, X=B+8, N=B+16, EP=W, LP=W+16, SUM=W+32, sP=34+s_, sB=37+s_)
            self.sl.append(d)
            block_ur(E, s_)
            e(f's_lshl_b32 s{d["sB"]}, s13, 10')
            if s_ == 2:
                e(f's_cmp_lt_u32 s{sWi}, 2')
                e('s_cbranch_scc1 Ls3_done')
                e(f's_sub_u32 s{sT0}, s{sWi}, 2')
                e(f's_lshl_b32 s{sT0}, s{sT0}, 3')
                e(f's_add_u32 s{sT0}, s{sT0}, s{sFS}')
                e(f's_cmp_ge_u32 s{sT0}, 5')
                e(f's_cselect_b32 s{sT1}, 5, 0')
                e('s_cselect_b32 s14, 17, 16')
                e(f's_sub_u32 s15, s{sT0}, s{sT1}')
                e('s_cmp_lt_u32 s15, 5')
                e(f's_cselect_b32 s{self.sMO}, -1, 0')
                e('s_cselect_b32 s43, 0xff, 0')
                e('Ls3_done:')
                e('s_mov_b32 s42, s15')
            self.slot_addr(d, 14, 15)
            d['xl'] = E.vm(f'buffer_load_dwordx4 {vr(d["XR"])}, v{d["xa"]}, {sr(srdX)}, 0 offen')
        late_slabs(E, 64)
        e(f's_and_b32 s67, s{sFS}, 1')
        e('s_xor_b32 s67, s67, 1')
        e(f's_mul_i32 s67, s67, {PSTRIDE}')
    def unpack(self, dst, src, n=4):
        for j in range(n):
            self.E.e(f'v_lshlrev_b32 v{dst+2*j}, 16, v{src+j}')
            self.E.e(f'v_and_b32 v{dst+2*j+1}, 0xffff0000, v{src+j}')
    def add(self, d, src, first, pk):
        e = self.E.e; SUM = d['SUM']; T = vT
        if Opt.dot:
            for j in range(8):
                e(f'v_dot2_f32_bf16 v{SUM+j}, v{src + j//2}, s{32 + (j & 1)}, {"0" if first else f"v{SUM+j}"}')
            return
        self.unpack(SUM if first else T, src)
        if first: return
        if pk:
            for j in range(4): e(f'v_pk_add_f32 {vr(SUM+2*j,2)}, {vr(SUM+2*j,2)}, {vr(T+2*j,2)}')
        else:
            for j in range(8): e(f'v_add_f32 v{SUM+j}, v{SUM+j}, v{T+j}')
    def xn(self, d):
        E = self.E; e = E.e; T = vT
        X, N = d['X'], d['N']
        E.need(d['st'], d['xl'])
        self.unpack(X, d['XR'])
        def rnd(b):
            for j in range(4): e(f'v_cvt_pk_bf16_f32 v{T+j}, v{b+2*j}, v{b+2*j+1}')
            self.unpack(b, T)
        for i in range(8): e(f'v_sub_f32 v{N+i}, v{X+i}, v{d["ST"]}')
        rnd(N)
        for i in range(8): e(f'v_mul_f32 v{N+i}, v{N+i}, v{d["ST"]+1}')
        rnd(N)
    def tterm(self, d):
        E = self.E; e = E.e; T = vT
        E.need(d['yl'])
        self.unpack(T, d['YR'])
        for i in range(8): e(f'v_fma_f32 v{d["N"]+i}, v{d["N"]+i}, v{T+i}, v{d["X"]+i}')
    def final(self, d, so='0'):
        E = self.E; e = E.e
        SUM, N, X = d['SUM'], d['N'], d['X']
        e('s_nop 2')
        for j in range(4): e(f'v_permlane16_swap_b32 v{SUM+j}, v{SUM+4+j}')
        for i in range(8): e(f'v_fma_f32 v{N+i}, v{SUM+i}, s40, v{N+i}')
        for j in range(4): e(f'v_cvt_pk_bf16_f32 v{X+j}, v{N+2*j}, v{N+2*j+1}')
        E.vm(f'buffer_store_dwordx4 {vr(X)}, v{d["xa"]}, {sr(srdB1)}, {so} offen')
    def run(self, gate1):
        E = self.E; e = E.e; ts = self.ts; sl = self.sl
        for d in sl: self.xn(d)
        gate1()
        self.poll2('pe', self.sME, self.sMO, False)
        e(f's_mov_b32 s{self.sME}, 0')
        e(f's_mov_b32 s{self.sME+1}, {0 if Opt.x_noconv else 0x55}')
        e(f's_mov_b32 s{self.sMO}, 0')
        e(f's_mov_b32 s{self.sMO+1}, {0 if Opt.x_noconv else "s43"}')
        ts.stamp(E)
        tsn = ts.n
        e(f's_cmp_ge_u32 s{sWi}, 2')
        e('s_cbranch_scc1 Ltail2')
        st0 = E.state()
        for nreg in (3, 2):
            ts.n = tsn
            if nreg == 2:
                e('Ltail2:'); E.set_state(st0)
            reg = sl[:nreg]
            for d in reg:
                d['el'] = []
                e(f's_add_u32 s{sT0}, s{d["sP"]}, s67')
                for i in range(4):
                    if i: e(f's_add_u32 s{sT0}, s{sT0}, {2*PSTRIDE}')
                    d['el'].append(E.vm(f'buffer_load_dwordx4 {vr(d["EP"]+4*i)}, v7, {sr(srdWS)}, s{sT0} offen{SC}'))
            if nreg == 2:
                d = sl[2]
                e('s_cmp_ge_u32 s42, 5')
                e(f's_cselect_b32 s{sT0}, 0x40000000, s{d["sP"]}')
                e('s_cselect_b32 s42, 0x40000000, 0')
                e('v_lshlrev_b32 v10, 3, v1')
                ol = []
                for p in range(8):
                    if p: e(f's_add_u32 s{sT0}, s{sT0}, {PSTRIDE}')
                    r = d['EP'] + 4*p
                    E.vm(f'buffer_load_dwordx2 {vr(r,2)}, v10, {sr(srdWS)}, s{sT0} offen{SC}')
                    ol.append(E.vm(f'buffer_load_dwordx2 {vr(r+2,2)}, v10, {sr(srdWS)}, s{sT0} offen offset:512{SC}'))
            for d in reg:
                for i in range(4):
                    E.need(d['el'][i]); self.add(d, d['EP'] + 4*i, i == 0, False)
            if nreg == 2:
                d = sl[2]
                for p in range(8):
                    E.need(ol[p]); self.add(d, d['EP'] + 4*p, p == 0, False)
            self.poll2(f'py{nreg}', self.sME, self.sMO, True)
            for d in sl:
                d['yl'] = E.vm(f'buffer_load_dwordx4 {vr(d["YR"])}, v{d["ya"]}, {sr(srdWS)}, 0 offen{SC}')
            e(f'Lg2w{nreg}:')
            e(f'ds_read_b32 v{vS2}, v{vSB}')
            e('s_waitcnt lgkmcnt(0)')
            e(f'v_cmp_gt_u32 vcc, {3 + 22}, v{vS2}')
            e(f's_cbranch_vccz Lg2k{nreg}')
            e('s_sleep 1')
            e(f's_branch Lg2w{nreg}')
            e(f'Lg2k{nreg}:')
            ts.stamp(E)
            e('s_setprio 3')
            e('s_mov_b32 s10, 0')
            e(f's_lshr_b32 s{sT0}, s{sFS}, 1')
            e(f's_lshl_b32 s{sT0}, s{sT0}, 14')
            e(f's_add_u32 s{sT0}, s{sT0}, {XA_BYTES}')
            e(f'v_add_u32 v10, s{sT0}, v7')
            for d in reg:
                e(f'v_add_u32 v11, s{d["sB"]}, v10')
                d['ol'] = E.lg(f'ds_read_b128 {vr(d["LP"]+12)}, v11')
            e(f'Llate{nreg}:')
            for d in reg:
                for k in range(3):
                    e(f's_add_u32 s{sT0}, s{d["sP"]}, s{64+k}')
                    e(f'buffer_load_dwordx4 {vr(d["LP"]+4*k)}, v7, {sr(srdWS)}, s{sT0} offen{SC}')
            e('s_cmp_lg_u32 s10, 0')
            e(f's_cbranch_scc1 Llw{nreg}')
            for d in reg:
                E.need(d['ol']); self.add(d, d['LP'] + 12, False, True)
            e(f's_waitcnt vmcnt({3*nreg})')
            E.vm_done = E.vm_n - 1
            for d in sl: self.tterm(d)
            e(f'Llw{nreg}:')
            e('v_mov_b32 v10, 0')
            n = 3*nreg
            for di, d in enumerate(reg):
                for k in range(3):
                    n -= 1
                    e(f's_waitcnt vmcnt({n})')
                    r = d['LP'] + 4*k
                    e(f'v_max3_u32 v10, v10, v{r}, v{r+1}')
                    e(f'v_max3_u32 v10, v10, v{r+2}, v{r+3}')
            e('v_cmp_eq_u32 vcc, -1, v10')
            e(f's_cbranch_vccz Llok{nreg}')
            e('s_add_u32 s10, s10, 1')
            e('s_cmp_lt_u32 s10, 0x8000')
            e(f's_cbranch_scc1 Llate{nreg}')
            e(f'Llok{nreg}:')
            E.vm_done = E.vm_n - 1
            for d in reg:
                for k in range(3): self.add(d, d['LP'] + 4*k, False, True)
                self.final(d)
            if nreg == 2: self.final(sl[2], 's42')
            if Opt.ts:
                E.all_vm()
                ts.stamp(E)
                ts.flush(E, vT)
            e('s_endpgm')

RS = 4672
HS = 4160
HS2 = 2112
HB0 = 0
HB1 = HB0 + 4*4*HS
KVB = HB1 + 4*2*HS2
assert KVB + 16*RS <= LDS_BYTES - 64 and KVB % 256 == 0
def conv(E):
    e = E.e
    ts = TS(); ts.conv = True
    ts.stamp(E)
    sCT, sCh, sHB, sIt, sIdx = 10, 11, 6, 9, 5
    sMode, sLoc, sHsel, sWi_, sHS = 12, 13, 14, 42, 43
    e(f's_cmp_eq_u32 s{sIdx}, 5')
    e('s_cbranch_scc1 Lhelper')
    if Opt.x_noconv: e('s_endpgm')
    e(f's_lshl_b32 s{sCT}, s{sFS}, 2')
    e(f's_add_u32 s{sCT}, s{sCT}, s{sIdx}')
    e(f's_and_b32 s{sWi_}, s{sWave}, 3')
    e(f's_mov_b32 s{sMode}, 0')
    e(f's_mov_b32 s{sHsel}, 0')
    e(f's_lshl_b32 s{sLoc}, s{sWi_}, 2')
    e(f's_cmp_lt_u32 s{sIdx}, 4')
    e('s_cbranch_scc1 Lconv_go')
    e(f's_lshr_b32 s{sCT}, s{sFS}, 1')
    e(f's_add_u32 s{sCT}, s{sCT}, 32')
    e(f's_mov_b32 s{sMode}, 1')
    e(f's_and_b32 s{sHsel}, s{sFS}, 1')
    e(f's_lshl_b32 s{sLoc}, s{sHsel}, 2')
    e(f's_add_u32 s{sLoc}, s{sLoc}, s{sWi_}')
    e(f's_lshl_b32 s{sLoc}, s{sLoc}, 1')
    if Opt.cdelay: e(f's_sleep {Opt.cdelay}')
    e('Lconv_go:')
    srd(E, srdSSMK, sSSMK, D*S*2)
    e(f's_lshl_b32 s{sCh}, s{sCT}, 4')
    e(f's_add_u32 s{sCh}, s{sCh}, s{sLoc}')
    e(f'v_lshlrev_b32 v12, 7, v{vLane}')
    e(f's_lshl_b32 s15, s{sCh}, 12')
    e(f's_cmp_ge_u32 s{sWave}, 4')
    e('s_cbranch_scc1 Lconv_nw')
    e('s_mov_b32 exec_hi, 0')
    e(f'buffer_load_dword v15, v12, {sr(srdSSMK)}, s15 offen{Opt.nt}')
    e('s_mov_b32 exec_hi, -1')
    e('Lconv_nw:')
    vZ = 244
    for i in range(4): e(f'v_mov_b32 v{vZ+i}, 0')
    e(f's_mul_i32 s{sHB}, s{sWi_}, {4*HS}')
    e(f's_add_u32 s{sHB}, s{sHB}, {HB0}')
    e(f's_mul_i32 s{sT0}, s{sWi_}, {2*HS2}')
    e(f's_add_u32 s{sT0}, s{sT0}, {HB1}')
    e(f's_movk_i32 s{sT1}, {HS2}')
    e(f's_cmp_ge_u32 s{sWave}, 4')
    e(f's_cselect_b32 s{sHB}, s{sT0}, s{sHB}')
    e(f's_cselect_b32 s{sHS}, s{sT1}, {HS}')
    e(f's_cselect_b32 s{sT0}, 3, 7')
    e('v_lshrrev_b32 v13, 5, v0')
    e(f'v_mul_u32_u24 v13, {RS}, v13')
    e('v_and_b32 v14, 31, v0')
    e('v_lshl_add_u32 v13, v14, 4, v13')
    e(f'v_add_u32 v13, {KVB}, v13')
    E.lg(f'ds_write_b128 v13, {vr(vZ)} offset:4096')
    e(f'v_and_b32 v13, s{sT0}, v{vLane}')
    e('v_lshrrev_b32 v14, 1, v13')
    e(f'v_mul_lo_u32 v14, v14, s{sHS}')
    e('v_and_b32 v13, 1, v13')
    e('v_lshl_add_u32 v13, v13, 4, v14')
    e(f'v_add_u32 v13, s{sHB}, v13')
    E.lg(f'ds_write_b128 v13, {vr(vZ)}')
    vCn = 240
    e(f'v_mov_b32 v{vCn}, {LDS_BYTES-64}')
    E.lg(f'ds_write_b128 v{vCn}, {vr(vZ)}')
    for o_ in (16, 32, 48): E.lg(f'ds_write_b128 v{vCn}, {vr(vZ)} offset:{o_}')
    vPr, vHa = 243, 250
    e(f's_lshl_b32 s{sT0}, s{sWi_}, 2')
    e(f'v_add_u32 v{vPr}, s{sT0}, v{vCn}')
    sHBA, sChA = 101, 100
    e(f's_mul_i32 s{sHBA}, s{sWi_}, {4*HS}')
    e(f's_add_u32 s{sT0}, s{sHBA}, {HS}')
    e(f'v_mov_b32 v{vHa}, s{sT0}')
    e(f's_mov_b32 s{sChA}, s{sCh}')
    srd(E, srdK, sK, S*D*2)
    srd(E, srdV, sV, S*D*2)
    vRg, vHf, b0, b1, b2 = 2, 3, 4, 5, 6
    e(f'v_lshrrev_b32 v{vRg}, 1, v0')
    e(f'v_and_b32 v{vHf}, 1, v0')
    e(f'v_mul_u32_u24 v{b1}, {8*1152}, v{vRg}')
    e(f'v_lshl_add_u32 v{b1}, v{vHf}, 4, v{b1}')
    e(f's_lshl_b32 s{sT0}, s{sCT}, 5')
    e(f'v_add_u32 v{b1}, s{sT0}, v{b1}')
    e(f'v_subrev_u32 v{b0}, 3456, v{b1}')
    e(f'v_add_u32 v{b2}, 4608, v{b1}')
    KR, VR, SKR, SKF = 16, 60, 92, 108
    srd(E, srdSHK, sSHK, D*4*2)
    e(f's_lshl_b32 s{sT0}, s{sCT}, 7')
    e(f'v_lshlrev_b32 v7, 6, v{vHf}')
    skl = [E.vm(f'buffer_load_dwordx4 {vr(SKR+4*i)}, v7, {sr(srdSHK)}, s{sT0} offen offset:{16*i}') for i in range(4)]
    srd(E, srdSSMD, sSSMD, D*2)
    srd(E, srdWS, sWS, WS_BYTES)
    vL16 = 8
    vH0, vDv, vDraw = 9, 10, 248
    e(f'v_lshlrev_b32 v{vL16}, 4, v{vLane}')
    def hload(np_, buf, hs=None):
        e(f's_lshl_b32 s{sT0}, s{sCh}, 12')
        e(f's_add_u32 m0, s{sHB}, {32 + buf*2*HS}')
        e(f's_add_u32 s{sT1}, s{sT0}, 2')
        ids = []
        for i in range(np_):
            if i == 2 and hs is None:
                e(f's_cmp_ge_u32 s{sWave}, 4'); e('s_cbranch_scc1 Lh0a')
            ids.append(E.vm(f'buffer_load_dwordx4 v{vL16}, {sr(srdSSMK)}, s{sT0} offen offset:{1024*i} lds'))
        if hs is None:
            e('Lh0a:')
            e(f's_add_u32 m0, m0, s{sHS}')
        else:
            e(f's_add_u32 m0, m0, {hs}')
        e('s_nop 0')
        for i in range(np_):
            if i == 2 and hs is None:
                e(f's_cmp_ge_u32 s{sWave}, 4'); e('s_cbranch_scc1 Lh0b')
            ids.append(E.vm(f'buffer_load_dwordx4 v{vL16}, {sr(srdSSMK)}, s{sT1} offen offset:{1024*i} lds'))
        if hs is None: e('Lh0b:')
        ids.append(E.vm(f'buffer_load_ushort v{vH0 + 2*buf}, v{vZ}, {sr(srdSSMK)}, s{sT0} offen'))
        return ids
    def hloadA(buf):
        e(f's_add_u32 s{sChA}, s{sChA}, 1')
        e(f's_lshl_b32 s{sT0}, s{sChA}, 12')
        e(f's_add_u32 m0, s{sHBA}, {32 + buf*2*HS}')
        e(f's_add_u32 s{sT1}, s{sT0}, 2')
        for i in range(4): e(f'buffer_load_dwordx4 v{vL16}, {sr(srdSSMK)}, s{sT0} offen offset:{1024*i} lds')
        e(f's_add_u32 m0, m0, {HS}')
        e('s_nop 0')
        for i in range(4): e(f'buffer_load_dwordx4 v{vL16}, {sr(srdSSMK)}, s{sT1} offen offset:{1024*i} lds')
        e(f'buffer_load_ushort v11, v{vZ}, {sr(srdSSMK)}, s{sT0} offen')
    def hreadyA(buf, val):
        e(f'ds_write_b16 v{vHa}, v11 offset:{30 + buf*2*HS}')
        e(f'v_mov_b32 v251, {val}')
        e('s_waitcnt lgkmcnt(0)')
        e(f'ds_write_b32 v{vPr}, v251 offset:32')
    uid = [0]
    def onlyB(f, full=False):
        uid[0] += 1
        e(f's_cmp_lt_u32 s{sWave}, 4'); e(f's_cbranch_scc1 LoB{uid[0]}')
        if full:
            e(f's_cmp_lg_u32 s{sMode}, 0'); e(f's_cbranch_scc1 LoB{uid[0]}')
        f()
        e(f'LoB{uid[0]}:')
    e(f's_lshl_b32 s{sT0}, s{sCh}, 1')
    E.vm(f'buffer_load_dwordx2 {vr(vDraw,2)}, v{vZ}, {sr(srdSSMD)}, s{sT0} offen')
    vFo_, vFa_ = 241, 242
    e(f'v_mul_u32_u24 v{vFa_}, {9*FLB}, v{vLane}')
    e(f's_lshr_b32 s{sT0}, s{sCT}, 2')
    e(f's_lshl_b32 s{sT0}, s{sT0}, 8')
    e(f's_and_b32 s{sT1}, s{sCT}, 3')
    e(f's_lshl_b32 s{sT1}, s{sT1}, 1')
    e(f's_add_u32 s{sT1}, s{sT1}, s{sHsel}')
    e(f's_lshl_b32 s{sT1}, s{sT1}, 2')
    e(f's_add_u32 s{sT0}, s{sT0}, s{sT1}')
    e(f's_add_u32 s{sT0}, s{sT0}, {WS_FL + 128}')
    e(f'v_add_u32 v{vFa_}, s{sT0}, v{vFa_}')
    E.all_lg()
    e('s_barrier')
    def cpoll(name, off, thr=4, va=None):
        e(f'L{name}:')
        e(f'ds_read_b32 v252, v{va or vCn} offset:{off}')
        e('s_waitcnt lgkmcnt(0)')
        e(f'v_readfirstlane_b32 s{sT0}, v252')
        e(f's_cmp_ge_u32 s{sT0}, {thr}')
        e(f's_cbranch_scc1 L{name}_ok')
        e('s_sleep 2')
        e(f's_branch L{name}')
        e(f'L{name}_ok:')
    e(f's_cmp_lt_u32 s{sWave}, 4')
    e('s_cbranch_scc1 Lconv_a')
    cpoll('cpollb', 8)
    hloadA(1)
    e(f's_cmp_lg_u32 s{sMode}, 0')
    e('s_cbranch_scc1 Lconv_ld')
    e('s_add_u32 s15, s15, 8192')
    e(f'buffer_load_dword v15, v12, {sr(srdSSMK)}, s15 offen')
    if Opt.bq:
        e(f's_lshl_b32 s{sT0}, s{sIdx}, 2')
        e(f's_add_u32 s{sT0}, s{sT0}, s{sWi_}')
        e(f's_mul_i32 s{sT0}, s{sT0}, {64*1152}')
        e(f's_lshl_b32 s{sT1}, s{sFS}, 7')
        e(f's_add_u32 s{sT0}, s{sT0}, s{sT1}')
        e(f's_add_u32 s{sT0}, s{sT0}, {1024*1152}')
        e(f'v_mul_u32_u24 v13, 1152, v{vLane}')
        e(f'buffer_load_dword v15, v13, {sr(srdK)}, s{sT0} offen nt')
        e(f'buffer_load_dword v15, v13, {sr(srdV)}, s{sT0} offen nt')
        e('s_waitcnt vmcnt(0)')
    e('s_branch Lconv_ld')
    e('Lconv_a:')
    e(f's_cmp_lg_u32 s{sMode}, 0')
    e('s_cbranch_scc1 Lconv_ld')
    e('s_waitcnt vmcnt(0)')
    e('Lconv_ld:')
    ts.stamp(E)
    kl, vl = [], []
    for j in range(3, 11):
        bb, off = (b1, (j-3)*1152) if j < 7 else (b2, (j-7)*1152)
        kl.append(E.vm(f'buffer_load_dwordx4 {vr(KR+4*j)}, v{bb}, {sr(srdK)}, 0 offen offset:{off}'))
    def sig1():
        e('s_waitcnt vmcnt(8)')
        e(f's_lshl_b32 s{sT0}, s{sMode}, 1')
        e(f's_add_u32 s{sT0}, s{sT0}, 1')
        hreadyA(1, f's{sT0}')
    onlyB(sig1)
    for j in range(8):
        bb, off = (b1, j*1152) if j < 4 else (b2, (j-4)*1152)
        vl.append(E.vm(f'buffer_load_dwordx4 {vr(VR+4*j)}, v{bb}, {sr(srdV)}, 0 offen offset:{off}'))
    e('s_mov_b32 exec_lo, 0x00030003')
    e('s_mov_b32 exec_hi, 0x00030003')
    for j in range(3):
        kl.append(E.vm(f'buffer_load_dwordx4 {vr(KR+4*j)}, v{b0}, {sr(srdK)}, 0 offen offset:{j*1152}'))
    e('s_mov_b64 exec, -1')
    vmn = E.vm_n
    hload(4, 0)
    E.vm_n = vmn + 5
    e('v_mov_b32 v12, 1')
    e('s_mov_b64 exec, 1')
    E.lg(f'ds_add_u32 v{vCn}, v12 offset:8')
    e(f's_mov_b64 exec, {(1 << NMT) - 1}')
    e(f's_cmp_eq_u32 s{sWave}, 7')
    e(f's_cselect_b32 s{sT0}, 0, 0x40000000')
    E.vm(f'buffer_load_dword v{vFo_}, v{vFa_}, {sr(srdWS)}, s{sT0} offen{SC}')
    e('s_mov_b64 exec, -1')
    vKW = 14
    e(f'v_mul_u32_u24 v{vKW}, {8*RS}, v{vHf}')
    e(f'v_lshlrev_b32 v12, 4, v{vRg}')
    e(f'v_sub_u32 v{vKW}, v{vKW}, v12')
    e(f'v_add_u32 v{vKW}, {KVB + 4080}, v{vKW}')
    onlyB(lambda: (cpoll('cpa1', 48, 1, vPr), hloadA(0), e('s_waitcnt vmcnt(0)'), hreadyA(0, 2)), True)
    E.need(*(kl + vl + skl))
    ts.stamp(E)
    for j in range(3):
        for m in range(4):
            e(f'v_mov_b32_dpp v{KR+4*j+m}, v{KR+4*(j+8)+m} row_shr:2 row_mask:0xf bank_mask:0xf')
    for i in range(16):
        e(f'v_lshlrev_b32 v{SKF+2*i}, 16, v{SKR+i}')
        e(f'v_and_b32 v{SKF+2*i+1}, 0xffff0000, v{SKR+i}')
    KF, AC, PK = 144, 156, 164
    for ch in range(8):
        m, hi = divmod(ch, 2)
        def unp(d, s_):
            e(f'v_and_b32 v{d}, 0xffff0000, v{s_}' if hi else f'v_lshlrev_b32 v{d}, 16, v{s_}')
        for j in range(11): unp(KF+j, KR+4*j+m)
        for s_ in range(8): e(f'v_mul_f32 v{AC+s_}, v{KF+s_}, v{SKF+4*ch+3}')
        for tap in (2, 1, 0):
            for s_ in range(8): e(f'v_fmac_f32 v{AC+s_}, v{KF+s_+3-tap}, v{SKF+4*ch+tap}')
        for s_ in range(8): unp(KF+s_, VR+4*s_+m)
        for s_ in range(8): e(f'v_mul_f32 v{AC+s_}, v{AC+s_}, v{KF+s_}')
        pk = PK + 4*(ch & 1)
        for mm in range(4): e(f'v_cvt_pk_bf16_f32 v{pk+mm}, v{AC+7-2*mm}, v{AC+6-2*mm}')
        E.lg(f'ds_write_b128 v{vKW}, {vr(pk)} offset:{ch*RS}')
        if ch == Opt.h3at: onlyB(lambda: (cpoll('cpa2', 48, 2, vPr), hloadA(1)), True)
    onlyB(lambda: (e('s_waitcnt vmcnt(0)'), hreadyA(1, 3)), True)
    vA = [2, 3, 4, 5]; vB, vE, vHh = 6, 7, 12
    e(f'v_and_b32 v12, 15, v{vLane}')
    e(f'v_lshrrev_b32 v13, 4, v{vLane}')
    e(f'v_and_b32 v14, 1, v12')
    e(f'v_add_u32 v{vA[0]}, v12, v14')
    e(f'v_lshl_add_u32 v{vA[0]}, v13, 3, v{vA[0]}')
    e(f'v_lshlrev_b32 v{vA[0]}, 1, v{vA[0]}')
    e(f'v_xor_b32 v14, 1, v14')
    e(f'v_mul_lo_u32 v14, v14, s{sHS}')
    e(f'v_add3_u32 v{vA[0]}, v{vA[0]}, v14, s{sHB}')
    for i in range(1, 4): e(f'v_add_u32 v{vA[i]}, {1024*i}, v{vA[0]}')
    e(f's_mul_i32 s{sT0}, s{sLoc}, {RS}')
    e(f'v_lshlrev_b32 v14, 5, v12')
    e(f'v_lshlrev_b32 v{vB}, 4, v13')
    e(f'v_sub_u32 v{vB}, v{vB}, v14')
    e(f'v_add_u32 v{vB}, {KVB + 480}, v{vB}')
    e(f'v_add_u32 v{vB}, s{sT0}, v{vB}')
    e(f'v_lshl_add_u32 v14, v13, 3, v14')
    e(f'v_sub_u32 v{vE}, {KVB + 504}, v14')
    e(f'v_add_u32 v{vE}, s{sT0}, v{vE}')
    e(f's_add_u32 s{sT0}, s{sHB}, s{sHS}')
    e(f'v_mov_b32 v{vHh}, s{sT0}')
    e(f's_and_b32 s{sT0}, s{sWave}, 4')
    e(f'v_add_u32 v13, s{sT0}, v{vCn}')
    e('v_mov_b32 v14, 1')
    E.all_lg()
    e('s_mov_b64 exec, 1')
    e('ds_add_u32 v13, v14')
    e('s_mov_b64 exec, -1')
    ts.stamp(E)
    cpoll('cpoll0', 0)
    AF, BF, ACC0 = 16, 80, 112
    def w2pf():
        e(f's_mov_b32 s{srdK}, s{sW2}')
        e(f's_and_b32 s{srdK+1}, s{sW2+1}, 0xffff')
        e(f's_add_u32 s{sT0}, s{sFS}, 1')
        e(f's_mul_i32 s{sT0}, s{sT0}, 663552')
        e(f's_cmp_eq_u32 s{sMode}, 0')
        e(f's_cselect_b32 s{srdK+2}, s{sT0}, 0')
        e(f's_mov_b32 s{srdK+3}, 0x20000')
        e(f's_mul_i32 s15, s{sFS}, 663552')
        e(f's_lshl_b32 s{sT1}, s{sIdx}, 2')
        e(f's_add_u32 s{sT1}, s{sT1}, s{sWi_}')
        e(f's_mul_i32 s{sT1}, s{sT1}, {16*1152}')
        e(f's_add_u32 s15, s15, s{sT1}')
        e(f's_and_b32 s{sT1}, s{sFS}, 1')
        e(f's_lshl_b32 s{sT1}, s{sT1}, 9')
        e(f's_add_u32 s15, s15, s{sT1}')
        e(f'v_lshrrev_b32 v13, 2, v{vLane}')
        e('v_mul_u32_u24 v13, 1152, v13')
        e(f'v_and_b32 v14, 3, v{vLane}')
        e('v_lshl_add_u32 v13, v14, 7, v13')
    def w2one():
        e(f'buffer_load_dword v15, v13, {sr(srdK)}, s15 offen')
        e(f's_add_u32 s15, s15, {256*1152}')
    def cpass(us, nE, ACC, boff, zero, hook=None, vhook=None):
        aid, bid = {}, {}
        def aread(v, ee, h):
            r = AF + 32*(v % 2) + 4*ee + 2*h
            o = (512*(ee & 1) + 64*(7-v) + 8*h) // 4
            aid.setdefault((v, ee), []).append(E.lg(f'ds_read2_b32 {vr(r,2)}, v{vA[ee >> 1]} offset0:{o} offset1:{o+1}'))
        def bread(v, u):
            bid[(v, u)] = E.lg(f'ds_read_b128 {vr(BF + 16*(v % 2) + 4*(u & 3))}, v{vB} offset:{boff + 512*(7-u) + 64*(7-v)}')
        def reads(v):
            L = [lambda: bread(v, us[0])]
            for ee in range(nE):
                L += [lambda ee=ee: aread(v, ee, 0), lambda ee=ee: aread(v, ee, 1)]
            L += [(lambda u=u: bread(v, u)) for u in us[1:]]
            return L
        for f in reads(0): f()
        nm = sum(8-u for u in us)
        for v in range(8):
            fill = reads(v+1) if v < 7 else []
            nf = len(fill); cnt = 0; done = 0
            for u in us:
                for w in range(u, 8):
                    E.need(*(aid[(v, w-u)] + [bid[(v, u)]]))
                    c = '0' if (zero and v == 0 and u == us[0]) else vr(ACC+4*w)
                    e(f'v_mfma_f32_16x16x32_bf16 {vr(ACC+4*w)}, {vr(AF + 32*(v % 2) + 4*(w-u))}, {vr(BF + 16*(v % 2) + 4*(u & 3))}, {c}')
                    cnt += 1
                    while fill and done < cnt * nf / max(nm - 2, 1):
                        fill.pop(0)(); done += 1
                    if hook and v == 7 and u == us[1] and w == u: hook()
                    if vhook and v in vhook[0] and cnt == nm - 1: vhook[1]()
            assert not fill
    def epi(ws_, ACC, off, plain_from):
        KVR, TT = 16, 40
        kr = {w: E.lg(f'ds_read_b64 {vr(KVR+2*w,2)}, v{vE} offset:{off + 512*(7-w)}') for w in ws_}
        e('s_nop 3')
        for w in ws_:
            E.need(kr[w])
            a = ACC + 4*w; t = TT + 4*(w & 1)
            e(f'v_lshlrev_b32 v{t+3}, 16, v{KVR+2*w}')
            e(f'v_and_b32 v{t+2}, 0xffff0000, v{KVR+2*w}')
            e(f'v_lshlrev_b32 v{t+1}, 16, v{KVR+2*w+1}')
            e(f'v_and_b32 v{t}, 0xffff0000, v{KVR+2*w+1}')
            for r in range(4):
                e(f'v_add_f32 v{a+r}, v{a+r}, v{t+r}' if w >= plain_from else f'v_fmac_f32 v{a+r}, v{t+r}, v{vDv}')
            e(f'v_cvt_pk_bf16_f32 v{KVR+2*w}, v{a+3}, v{a+2}')
            e(f'v_cvt_pk_bf16_f32 v{KVR+2*w+1}, v{a+1}, v{a}')
            E.lg(f'ds_write_b64 v{vE}, {vr(KVR+2*w,2)} offset:{off + 512*(7-w)}')
    def setD(c):
        r = vDraw + c // 2
        e(f'v_and_b32 v{vDv}, 0xffff0000, v{r}' if c & 1 else f'v_lshlrev_b32 v{vDv}, 16, v{r}')
    e(f's_cmp_ge_u32 s{sWave}, 4')
    e('s_cbranch_scc1 Lconv_B')
    tsn = ts.n
    w2pf()
    e(f's_cmp_eq_u32 s{sMode}, 0')
    e('s_cbranch_scc1 LcA0')
    e(f'v_subrev_u32 v{vB}, {2*RS}, v{vB}')
    e(f'v_subrev_u32 v{vE}, {2*RS}, v{vE}')
    e('s_waitcnt vmcnt(0)')
    e(f'v_mov_b32 v{vDraw+1}, v{vDraw}')
    e('s_branch LcA2')
    for c in range(4):
        e(f'LcA{c}:')
        buf = c & 1
        if c in (0, 2):
            if c == 2:
                e(f's_cmp_eq_u32 s{sMode}, 0'); e('s_cbranch_scc1 LcAx2')
            e('s_waitcnt vmcnt(0)')
            e(f'ds_write_b16 v{vHh}, v{vH0} offset:30')
            e('s_waitcnt lgkmcnt(0)')
            if c == 2:
                e('s_branch Lcph2_ok'); e('LcAx2:')
        if c > 0: cpoll(f'cph{c}', 32, c, vPr)
        E.reset()
        ts.stamp(E)
        def prog(c=c):
            e(f'v_mov_b32 v251, {c + 1}')
            E.lg(f'ds_write_b32 v{vPr}, v251 offset:48')
        vh = (1, 3, 5) if c == Opt.w2at else None
        cpass([0, 1, 2, 3], 8, ACC0 + 32*c, c*RS, True, prog if c < 2 else None, (vh, w2one) if vh else None)
        if c < 3:
            d = 2*HS if buf == 0 else -2*HS
            for i in range(4):
                e(f'v_add_u32 v{vA[i]}, {2*HS}, v{vA[i]}' if buf == 0 else f'v_subrev_u32 v{vA[i]}, {2*HS}, v{vA[i]}')
    E.all_lg()
    cpoll('cpoll1', 4)
    ts.stamp(E)
    cpass([4, 5, 6, 7], 4, ACC0 + 96, 3*RS, False)
    setD(3)
    epi(range(8), ACC0 + 96, 3*RS, 8)
    e(f's_cmp_lg_u32 s{sMode}, 0')
    e('s_cbranch_scc1 LcAe2')
    if Opt.nb == 2:
        for i in range(4): e(f'v_subrev_u32 v{vA[i]}, {2*HS}, v{vA[i]}')
        E.all_lg()
        cpass([4, 5, 6, 7], 4, ACC0 + 64, 2*RS, False)
        setD(2)
        epi(range(8), ACC0 + 64, 2*RS, 8)
    for c in range(3):
        if c == 2 and Opt.nb == 2: e('s_branch Lconv_fin')
        e(f'LcAe{c}:')
        cpoll(f'cpe{c}', 16, c + 1, vPr)
        E.reset()
        setD(c)
        epi(range(8), ACC0 + 32*c, c*RS, 4)
    e('s_branch Lconv_fin')
    e('Lconv_B:')
    tsA = ts.n; ts.n = tsn
    cpoll('cpoll2', 4)
    if Opt.cprio: e('s_setprio 1')
    e(f's_lshl_b32 s{sIt}, s{sMode}, 1')
    e('LcB:')
    e('s_waitcnt vmcnt(0) lgkmcnt(0)')
    E.reset()
    w0 = E.lg(f'ds_write_b16 v{vHh}, v{vH0} offset:30')
    e(f'v_lshlrev_b32 v{vDv}, 16, v{vDraw}')
    e(f'v_alignbit_b32 v{vDraw}, v{vDraw+1}, v{vDraw}, 16')
    e(f'v_lshrrev_b32 v{vDraw+1}, 16, v{vDraw+1}')
    E.need(w0)
    def refill():
        e(f's_cmp_ge_u32 s{sIt}, {Opt.nb - 1}')
        e('s_cbranch_scc1 LcB_nr')
        e(f's_add_u32 s{sCh}, s{sCh}, 1')
        hload(2, 0, HS2)
        e('LcB_nr:')
    cpass([4, 5, 6, 7], 4, ACC0, 0, True, refill)
    epi(range(4, 8), ACC0, 0, 8)
    e(f's_add_u32 s{sIt}, s{sIt}, 1')
    e(f'v_mov_b32 v14, s{sIt}')
    E.all_lg()
    e(f'ds_write_b32 v{vPr}, v14 offset:16')
    e(f'v_add_u32 v{vB}, {RS}, v{vB}')
    e(f'v_add_u32 v{vE}, {RS}, v{vE}')
    e(f's_cmp_lt_u32 s{sIt}, {Opt.nb}')
    e('s_cbranch_scc1 LcB')
    while ts.n < tsA: ts.stamp(E)
    e('Lconv_fin:')
    e('s_waitcnt vmcnt(0) lgkmcnt(0)')
    E.reset()
    ts.stamp(E)
    e('s_barrier')
    e(f'v_lshrrev_b32 v2, 5, v{vLane}')
    e(f'v_lshrrev_b32 v3, 2, v{vLane}')
    e('v_and_b32 v3, 3, v3')
    e('v_lshl_add_u32 v3, v2, 3, v3')
    e(f'v_mul_u32_u24 v3, {RS}, v3')
    e(f'v_and_b32 v4, 16, v{vLane}')
    e('v_lshl_add_u32 v3, v4, 1, v3')
    e(f'v_and_b32 v5, 3, v{vLane}')
    e('v_lshl_add_u32 v3, v5, 3, v3')
    e(f's_lshl_b32 s{sT0}, s{sWave}, 9')
    e(f's_add_u32 s{sT0}, s{sT0}, {KVB}')
    e(f'v_add_u32 v3, s{sT0}, v3')
    e(f'v_and_b32 v5, 31, v{vLane}')
    e(f's_lshl_b32 s{sT0}, s{sWave}, 8')
    e(f'v_add_u32 v5, s{sT0}, v5')
    e(f'v_sub_u32 v5, {2047-224}, v5')
    e('v_lshlrev_b32 v5, 4, v5')
    e('v_lshl_add_u32 v5, v2, 15, v5')
    e(f's_lshl_b32 s{sT0}, s{sCT}, 16')
    e(f's_add_u32 s{sT0}, s{sT0}, {WS_Y}')
    e(f's_add_u32 s{sT1}, s{sT0}, 4096')
    rd = []
    for blk in range(8):
        r = 16 + 4*blk
        i0 = E.lg(f'ds_read_b64_tr_b16 {vr(r,2)}, v3 offset:{64*blk}')
        i1 = E.lg(f'ds_read_b64_tr_b16 {vr(r+2,2)}, v3 offset:{64*blk + 4*RS}')
        rd.append([i0, i1])
    E.all_lg()
    e(f's_cmp_eq_u32 s{sMode}, 0')
    e('s_cbranch_scc1 Lconv_st')
    e(f's_sub_u32 exec_lo, s{sHsel}, 1')
    e(f's_sub_u32 exec_hi, 0, s{sHsel}')
    e('Lconv_st:')
    for blk in range(8):
        E.vm(f'buffer_store_dwordx4 {vr(16+4*blk)}, v5, {sr(srdWS)}, s{sT0} offen offset:{(7-blk)*512}{SC}')
    e('s_mov_b64 exec, -1')
    E.all_vm()
    e('s_barrier')
    e(f's_cmp_lg_u32 s{sWave}, 7')
    e('s_cbranch_scc1 Lconv_end')
    e(f'v_add_u32 v{vFo_}, 1, v{vFo_}')
    e(f's_mov_b64 exec, {(1 << NMT) - 1}')
    e(f'buffer_store_dword v{vFo_}, v{vFa_}, {sr(srdWS)}, 0 offen{SC}')
    e('s_mov_b64 exec, -1')
    e('Lconv_end:')
    if Opt.ts:
        ts.stamp(E)
        ts.flush(E, 60)
    e('s_endpgm')
    e('Lhelper:')
    srd(E, srdW2, sW2, D*F*2)
    e(f's_mul_i32 s{sT0}, s{sFS}, 663552')
    e(f's_and_b32 s10, s{sFS}, 1')
    e('s_xor_b32 s10, s10, 1')
    e('s_lshl_b32 s10, s10, 2')
    if Opt.hdelay: e(f's_sleep {Opt.hdelay}')
    for i in range(6):
        e(f'v_add_u32 v2, {512*i}, v0')
        e('v_mul_u32_u24 v3, 13108, v2')
        e('v_lshrrev_b32 v3, 16, v3')
        e('v_mul_u32_u24 v4, 5, v3')
        e('v_sub_u32 v4, v2, v4')
        e('v_cmp_eq_u32 vcc, 4, v4')
        e('v_add_u32 v4, s10, v4')
        e('v_min_u32 v3, 575, v3')
        e('v_cndmask_b32 v4, v4, 8, vcc')
        e('v_mul_u32_u24 v3, 1152, v3')
        e('v_lshl_add_u32 v3, v4, 7, v3')
        e(f'buffer_load_dword v8, v3, {sr(srdW2)}, s{sT0} offen')
        e('s_barrier')
    if Opt.ts:
        e('s_waitcnt vmcnt(0)')
        srd(E, srdWS, sWS, WS_BYTES)
        ts.n = 1; ts.stamp(E); ts.flush(E, 60); e('s_mov_b64 exec, -1')
    if Opt.tlbw:
        srd(E, srdWS, sWS, WS_BYTES)
        srd(E, srdB1, sOUT, S*D*2)
        e('v_lshlrev_b32 v2, 16, v0')
        e(f'buffer_load_dword v14, v2, {sr(srdWS)}, 0 offen{SC}')
        e(f'buffer_load_dword v15, v2, {sr(srdB1)}, 0 offen')
    e('s_waitcnt vmcnt(0)')
    e('s_endpgm')

def k1(E):
    e = E.e
    e('.p2align 8')
    e(f'.type {KNAME},@function')
    e(f'{KNAME}:')
    e(f's_cmp_ge_u32 s2, {NWG}')
    e('s_cbranch_scc1 Lk1_exit')
    TS().rt0(E)
    for i in range(Opt.d_sleep): e('s_sleep 127')
    e('s_load_dwordx16 s[16:31], s[0:1], 0')
    e('s_load_dwordx8 s[32:39], s[0:1], 64')
    e('s_load_dwordx2 s[40:41], s[0:1], 96')
    e(f'v_and_b32 v{vLane}, 63, v0')
    e('v_lshrrev_b32 v2, 6, v0')
    e(f's_and_b32 s{sFS}, s2, 7')
    e(f'v_readfirstlane_b32 s{sWave}, v2')
    e(f's_lshr_b32 s{sMT}, s2, 3')
    if Opt.code_pf:
        e('s_getpc_b64 s[10:11]')
        e('Lpc:')
        e(f'v_lshl_add_u32 v3, v0, 5, s{sMT}')
        e('v_lshlrev_b32 v3, 7, v3')
        e('v_cmp_gt_u32 vcc, Lk1_exit-Lpc, v3')
        e('s_and_saveexec_b64 s[12:13], vcc')
        e('s_cbranch_execz Lnocpf')
        e(f'global_load_dword v{vDum}, v3, s[10:11]')
        e('Lnocpf:')
        e('s_mov_b64 exec, s[12:13]')
    e(f's_cmp_lt_u32 s{sMT}, {IDX_MLP0}')
    e('s_waitcnt lgkmcnt(0)')
    e('s_cbranch_scc1 Lconv')
    if Opt.nomlp: e('s_endpgm')
    ts = TS()
    ts.stamp(E)
    P = mlp_prologue(E, ts)
    pre_ids = []
    mlp_ln(E, P, ts, lambda: pre_ids.extend(mlp_prefill(E)))
    st = E.state(); tsn = ts.n
    e(f's_cmp_ge_u32 s{sWave}, 4')
    e('s_cbranch_scc1 LmlpB')
    mlp_main(E, 'P', P, ts, pre_ids)
    e('LmlpB:')
    E.set_state(st); ts.n = tsn
    E.vm_n -= 8 - (1 if Opt.qpf else 0)
    mlp_main(E, 'Q', P, ts, pre_ids)
    for l in stubs: e(l)
    e('Lmlp_end:')
    e('Lconv:')
    E.reset()
    conv(E)
    e('Lk1_exit:')
    e('s_endpgm')

def desc(name, vg, sg):
    return f'''.p2align 6
.amdhsa_kernel {name}
  .amdhsa_next_free_vgpr {vg}
  .amdhsa_next_free_sgpr {sg}
  .amdhsa_accum_offset {vg}
  .amdhsa_group_segment_fixed_size 0
  .amdhsa_kernarg_size 104
  .amdhsa_user_sgpr_count 2
  .amdhsa_user_sgpr_kernarg_segment_ptr 1
  .amdhsa_system_sgpr_workgroup_id_x 1
.end_amdhsa_kernel
'''

def build():
    E = Em()
    e = E.e
    head = HDR + f'; @launch grid=({NWG},1,1) block=(512,1,1) lds={LDS_BYTES}\n'
    head += f'.amdgcn_target "amdgcn-amd-amdhsa--gfx950"\n.text\n.globl {KNAME}\n'
    k1(E)
    tail = '.section .rodata,"a"\n' + desc(KNAME, 256, 102)
    return head + E.text() + tail

if __name__ == '__main__':
    out = sys.argv[1] if len(sys.argv) > 1 else 'cdna_kernels/' + NAME + '.s'
    for a in sys.argv[2:]:
        k, v = a.split('=', 1)
        cur = getattr(Opt, k)
        setattr(Opt, k, type(cur)(int(v)) if isinstance(cur, (bool, int)) else v)
    Em.lgmerge = Opt.lgmerge
    t = build()
    open(out, 'w').write(t)
    print(out, len(t), 'bytes', t.count('\n'), 'lines')
```

```python
import sys
from em import Em, vr, sr

NAME = 'parallel_sum__ssm_conv_h3__dense_activation_mish__prompt'
HDR = open('cdna_kernels/' + NAME + '.s.ref').read().split('; Override launch')[0]

S, D, F = 2048, 576, 4608
NMT = 26
N_MLP = NMT * 8
N_CONV = 36
NWG = 256
IDX_MLP0 = 6
PSTRIDE = 130 * 18432
WS_P = 0
WS_Y = 20 << 20
WS_ST = 24 << 20
WS_TS = 28 << 20
WS_FL = 26 << 20
KNAME = NAME + '_kernel'
WS_BYTES = 32 << 20
LDS_BYTES = 163840
XA_BYTES = 92160
LOG2E = 0x3fb8aa3b
RSQRT2 = 0x3f3504f3

class Opt:
    ts = False
    dlat = 18
    dma_delay = 6
    wlead = 4
    xlead = 10
    cap = 2
    lgmerge = 7
    oddR = 3
    dspace = 4
    psleep = 1
    fine = ''
    x_warm = 0
    x_nochk = 0
    budget = 12
    wcost = 4
    force = 2
    x_qidle = 0
    x_nolgw = 0
    x_novmw = 0
    wrate = 1
    wslack = 1
    mnop = -1
    fold = 1
    qdeep = 1
    egate = 24
    pw0 = 3
    pw1 = 2
    qsig = 27
    edelay = 0
    pthr = 9
    esleep = 2
    tmpl = 0
    x_nopub = 0
    cprio = 0
    spin = 0
    x_nowr = 0
    x_pq = 0
    sthr = 15
    milp = 4
    cph = 12
    pph = 7
    wph = 0
    code_pf = True
    w2pf = 1
    qpf = 0
    bwait = 0
    w2at = 2
    w1b = 1
    hdelay = 100
    rt = 0
    cdelay = 100
    snake = 1
    ntkv = ' nt'
    bq = 0
    ntkv2 = ''
    x_noconv = 0
    d_sleep = 0
    d_mfma = 0
    d_end = 0
    d_conv = 0
    d_mlp = 0
    d_mlp2 = 0
    x_noex = 0
    nb = 2
    h3at = 3
    prom = 0
    promf = ' sc1'
    hpf = True
    lnts = False
    kvpf = 1
    nomlp = False
    dbg = 0
    tlbw = True
    bgate = 8
    x_nodma = 0
    nt = ''
    dot = 1
    x_nomish = 0

sQ, sK, sV, sSHK, sSSMK, sSSMD, sW1 = 16, 18, 20, 22, 24, 26, 30
sB1, sW2, sOUT, sDBG, sWS = 32, 34, 36, 38, 40
srdX, srdW1, srdW2, srdB1, srdWS = 44, 48, 52, 56, 60
srdK, srdV, srdSHK, srdSSMK, srdSSMD = 44, 48, 52, 56, 64
sWave, sFS, sMT, sRing, sT0, sT1, sC = 3, 4, 5, 6, 7, 8, 9
sTS = 68
sWi, sLine2, sOddM, sFlA, sFlO, sFin = 18, 19, 20, 21, 22, 23
sXcd, sI, sWr = 14, 15, 42
SC = ' sc1'
vLane = 1

def srd(E, d, p, nbytes):
    E.e(f's_mov_b32 s{d}, s{p}')
    E.e(f's_and_b32 s{d+1}, s{p+1}, 0xffff')
    E.e(f's_mov_b32 s{d+2}, {nbytes}')
    E.e(f's_mov_b32 s{d+3}, 0x20000')

class TS:
    def __init__(self): self.n = 0
    def stamp(self, E, fine=False):
        if Opt.ts and (bool(Opt.fine) == fine or self.n == 0 or getattr(self, 'conv', False)):
            assert self.n < 14
            E.e(f'{"s_memrealtime" if Opt.rt else "s_memtime"} s[{sTS+2*self.n}:{sTS+2*self.n+1}]')
            self.n += 1
    def val(self, E, sreg):
        if Opt.ts and Opt.spin:
            E.e(f's_add_u32 s{sTS+2*self.n}, s{sreg}, s{sTS}')
            self.n += 1
    def stamp2(self, E, sIt):
        if Opt.ts:
            TS.uid = getattr(TS, 'uid', 0) + 1
            u = TS.uid
            E.e(f's_cmp_lg_u32 s{sIt}, 0')
            E.e(f's_cbranch_scc1 Lts{u}a')
            self.stamp(E)
            E.e(f's_branch Lts{u}b')
            E.e(f'Lts{u}a:')
            self.stamp(E)
            E.e(f'Lts{u}b:')
    def rt0(self, E):
        if Opt.ts: E.e(f's_memrealtime s[{sTS+28}:{sTS+29}]')
    def flush(self, E, vtmp):
        if not Opt.ts: return
        E.e(f's_memrealtime s[{sTS+30}:{sTS+31}]')
        E.e('s_waitcnt lgkmcnt(0)')
        E.e(f's_lshl_b32 s{sT0}, s2, 3')
        E.e(f's_add_u32 s{sT0}, s{sT0}, s{sWave}')
        E.e(f's_lshl_b32 s{sT0}, s{sT0}, 6')
        E.e(f's_add_u32 s{sT0}, s{sT0}, {WS_TS}')
        E.e(f'v_mov_b32 v{vtmp}, 0')
        for i in list(range(self.n)) + [14, 15]:
            E.e(f'v_writelane_b32 v{vtmp}, s{sTS+2*i}, {i}')
        E.e(f'v_lshlrev_b32 v{vtmp+1}, 2, v{vLane}')
        E.e('s_mov_b64 exec, 0xffff')
        E.e(f'buffer_store_dword v{vtmp}, v{vtmp+1}, {sr(srdWS)}, s{sT0} offen')
        if Opt.dbg:
            TS.uid = getattr(TS, 'uid', 0) + 1
            u = TS.uid
            srd(E, 44, sDBG, 256)
            E.e('s_mov_b64 exec, 1')
            E.e(f's_not_b32 s{sT1}, s{sTS+28}')
            E.e(f'v_mov_b32 v{vtmp+2}, s{sT1}')
            E.e(f'v_mov_b32 v{vtmp+3}, s{sTS+30}')
            E.e(f'buffer_atomic_umax v{vtmp+2}, v{vtmp+1}, s[44:47], 0 offen offset:56')
            E.e(f'buffer_atomic_umax v{vtmp+3}, v{vtmp+1}, s[44:47], 0 offen offset:60')
            E.e(f's_cmp_lg_u32 s2, {Opt.dbg}')
            E.e(f's_cbranch_scc1 Ldbg{u}')
            E.e(f's_cmp_lg_u32 s{sWave}, 5')
            E.e(f's_cbranch_scc1 Ldbg{u}')
            E.e('s_mov_b64 exec, 0x3fff')
            E.e(f'v_readlane_b32 s{sT1}, v{vtmp}, 0')
            E.e('s_nop 1')
            E.e(f'v_subrev_u32 v{vtmp}, s{sT1}, v{vtmp}')
            E.e(f'buffer_store_dword v{vtmp}, v{vtmp+1}, s[44:47], 0 offen')
            E.e(f'Ldbg{u}:')

vX0, vX1, vXg0, vXg1 = 2, 3, 4, 5
vWt = [6, 7, 8, 9]
vWo = 10
vD1a, vD1b, vD2a, vD2b, vDo = 11, 12, 13, 14, 15
vAW, vAWo, vP, vPo = 16, 17, 18, 19
vSA, vSB, vSW, vS, vPg = 20, 21, 22, 23, 24
vOld2, vDum, vS2 = 25, 26, 27
sSpin = 100
vT = 28
vXF = 36
vWF = 76
vAcc = 116
vBraw = 216
vFlOld = 226
SCR = LDS_BYTES - 2048
STW = SCR + 128
FLB = 256

ODDB = XA_BYTES + 12288
ODDR = 5
ODDOFF = [0, 16384, 32768, 49152, 53248]
assert ODDB + ODDOFF[4] + 4096 <= SCR

def flag_base(E, dst):
    E.e(f's_mul_i32 s{dst}, s{sMT}, {9*FLB}')
    E.e(f's_add_u32 s{dst}, s{dst}, {WS_FL}')

def flag_addrs(E, rA, rO):
    e = E.e
    flag_base(E, sT0)
    e(f's_lshl_b32 s{sT1}, s{sFS}, 4')
    e(f's_add_u32 s{sT0}, s{sT0}, s{sT1}')
    e(f's_lshl_b32 s{rA}, s{sLine2}, 8')
    e(f's_add_u32 s{rA}, s{rA}, s{sT0}')
    e(f's_lshl_b32 s{rO}, s{sWi}, 2')
    e(f's_add_u32 s{rO}, s{rO}, s{sT0}')
    e(f's_add_u32 s{rO}, s{rO}, {8*FLB}')

def mlp_prologue(E, ts):
    e = E.e
    a, b, c, d = vT, vT+1, vT+2, vT+3
    e(f's_sub_u32 s{sMT}, s{sMT}, {IDX_MLP0}')
    def kvpf_issue():
        e('s_mov_b64 exec, 0x3ff')
        E.vm(f'buffer_load_dword v{vDum}, v{vT+7}, {sr(srdW2)}, s10 offen{Opt.ntkv}')
        e('s_mov_b64 exec, -1')
    if Opt.kvpf:
        e(f's_cmp_lt_u32 s{sWave}, 4')
        e(f's_cselect_b32 s{srdW2}, s{sK}, s{sV}')
        e(f's_cselect_b32 s{srdW2+1}, s{sK+1}, s{sV+1}')
        e(f's_and_b32 s{srdW2+1}, s{srdW2+1}, 0xffff')
        e(f's_mov_b32 s{srdW2+2}, {S*D*2}')
        e(f's_mov_b32 s{srdW2+3}, 0x20000')
        e(f's_and_b32 s{sT0}, s{sWave}, 3')
        e(f's_lshl_b32 s{sT1}, s{sMT}, 2')
        e(f's_add_u32 s{sT0}, s{sT0}, s{sT1}')
        e(f's_mul_i32 s{sT0}, s{sT0}, {10*1152}')
        e(f's_lshl_b32 s{sT1}, s{sFS}, 7')
        e(f's_add_u32 s10, s{sT0}, s{sT1}')
        e(f'v_mul_u32_u24 v{vT+7}, 1152, v{vLane}')
        kvpf_issue()
        if Opt.kvpf == 3:
            e(f's_add_u32 s10, s10, {1024*1152}')
            e('s_mov_b64 exec, 0x3ff')
            E.vm(f'buffer_load_dword v{vDum}, v{vT+7}, {sr(srdW2)}, s10 offen{Opt.ntkv2}')
            e('s_mov_b64 exec, -1')
    srd(E, srdX, sQ, S*D*2)
    vR, vCc, vOff, vSl = 180, 181, 182, 183
    e(f'v_mul_u32_u24 v{vR}, 43, v{vLane}')
    e(f'v_lshrrev_b32 v{vR}, 8, v{vR}')
    e(f'v_mul_u32_u24 v{vCc}, 6, v{vR}')
    e(f'v_sub_u32 v{vCc}, v{vLane}, v{vCc}')
    e(f's_mul_i32 s{sT0}, s{sWave}, 10')
    e(f'v_add_u32 v{vSl}, s{sT0}, v{vR}')
    e(f's_mul_i32 s{sT1}, s{sMT}, 80')
    e(f'v_add_u32 v{vOff}, s{sT1}, v{vSl}')
    e(f'v_mul_u32_u24 v{vOff}, 1152, v{vOff}')
    e(f'v_lshl_add_u32 v{vOff}, v{vCc}, 4, v{vOff}')
    XR = 36
    xl = []
    for i in range(12):
        xl.append(E.vm(f'buffer_load_dwordx4 {vr(XR+4*i)}, v{vOff}, {sr(srdX)}, 0 offen offset:{96*i}'))
    if Opt.kvpf == 2:
        e(f's_cmp_lt_u32 s{sWave}, 6')
        e(f's_cselect_b32 s{srdW2}, s{sK}, s{sV}')
        e(f's_cselect_b32 s{srdW2+1}, s{sK+1}, s{sV+1}')
        e(f's_and_b32 s{srdW2+1}, s{srdW2+1}, 0xffff')
        e(f's_and_b32 s{sT0}, s{sWave}, 1')
        e(f's_lshl_b32 s{sT1}, s{sMT}, 1')
        e(f's_add_u32 s{sT0}, s{sT0}, s{sT1}')
        e(f's_mul_i32 s{sT0}, s{sT0}, {20*1152}')
        e(f's_lshl_b32 s{sT1}, s{sFS}, 7')
        e(f's_add_u32 s10, s{sT0}, s{sT1}')
        e(f's_add_u32 s10, s10, {1024*1152}')
        e(f's_cmp_lt_u32 s{sWave}, 4')
        e('s_cselect_b32 s10, 0x40000000, s10')
        e('s_mov_b64 exec, 0xfffff')
        E.vm(f'buffer_load_dword v{vDum}, v{vT+7}, {sr(srdW2)}, s10 offen{Opt.ntkv}')
        e('s_mov_b64 exec, -1')
    srd(E, srdW1, sW1, D*F*2)
    srd(E, srdW2, sW2, D*F*2)
    srd(E, srdB1, sB1, F*2)
    srd(E, srdWS, sWS, WS_BYTES)
    if Opt.w1b:
        e(f's_and_b32 s{sT0}, s{sWave}, 3')
        e(f's_mul_i32 s{sT0}, s{sT0}, {28*26}')
        e(f's_mul_i32 s{sT1}, s{sMT}, 28')
        e(f's_add_u32 s{sT0}, s{sT0}, s{sT1}')
        e(f'v_add_u32 v{a}, s{sT0}, v{vLane}')
        e(f'v_mul_u32_u24 v{b}, 13108, v{a}')
        e(f'v_lshrrev_b32 v{b}, 16, v{b}')
        e(f'v_mul_u32_u24 v{c}, 5, v{b}')
        e(f'v_sub_u32 v{c}, v{a}, v{c}')
        e(f'v_mul_u32_u24 v{b}, 9216, v{b}')
        e(f'v_lshl_add_u32 v{vT+6}, v{c}, 7, v{b}')
    e(f'v_cmp_gt_u32 vcc, 12, v{vLane}')
    e(f's_mul_i32 s{sT0}, s{sWave}, {12*26}')
    e(f's_mul_i32 s{sT1}, s{sMT}, 12')
    e(f's_add_u32 s{sT0}, s{sT0}, s{sT1}')
    e(f'v_add_u32 v{a}, s{sT0}, v{vLane}')
    e(f'v_lshrrev_b32 v{b}, 2, v{a}')
    e(f'v_and_b32 v{c}, 3, v{a}')
    e(f'v_mul_u32_u24 v{b}, 9216, v{b}')
    e(f'v_lshl_add_u32 v{b}, v{c}, 7, v{b}')
    e(f'v_cndmask_b32 v{b}, -1, v{b}, vcc')
    e(f's_mul_i32 s{sT0}, s{sFS}, 1152')
    E.vm(f'buffer_load_dword v{vDum}, v{b}, {sr(srdW1)}, s{sT0} offen{Opt.nt}')
    e(f's_and_b32 s{sWi}, s{sWave}, 3')
    e(f's_lshr_b32 s{sT0}, s{sWave}, 2')
    e(f's_xor_b32 s{sT0}, s{sT0}, s{sFS}')
    e(f's_and_b32 s{sT0}, s{sT0}, 1')
    e(f's_xor_b32 s{sT0}, s{sT0}, 1')
    e(f's_lshl_b32 s{sLine2}, s{sT0}, 2')
    e(f's_add_u32 s{sLine2}, s{sLine2}, s{sWi}')
    e(f's_and_b32 s{sT0}, s{sFS}, 1')
    e(f's_lshl_b32 s{sT0}, s{sT0}, 2')
    e(f's_lshr_b32 s{sFin}, s{sFS}, 1')
    e(f's_add_u32 s{sFin}, s{sFin}, s{sT0}')
    flag_addrs(E, sFlA, sFlO)
    e(f'v_mov_b32 v{a}, s{sFlA}')
    e(f'v_writelane_b32 v{a}, s{sFlO}, 1')
    e('s_mov_b64 exec, 3')
    fl = [E.vm(f'buffer_load_dword v{vFlOld}, v{a}, {sr(srdWS)}, 0 offen{SC}')]
    e('s_mov_b64 exec, -1')
    e(f'v_lshlrev_b32 v{b}, 2, v{vLane}')
    flag_base(E, sT0)
    e(f's_lshl_b32 s{sT1}, s{sFin}, 8')
    e(f's_add_u32 s{sT1}, s{sT1}, s{sT0}')
    e(f's_add_u32 s{sT0}, s{sT0}, {8*FLB}')
    e(f's_cmp_ge_u32 s{sWave}, 4')
    e('s_cbranch_scc1 Lnoold')
    e(f'buffer_load_dword v0, v{b}, {sr(srdWS)}, s{sT1} offen{SC}')
    e(f'buffer_load_dword v{vOld2}, v{b}, {sr(srdWS)}, s{sT0} offen{SC}')
    e('Lnoold:')
    e(f'v_lshrrev_b32 v{d}, 4, v{vLane}')
    e(f's_mul_i32 s{sT0}, s{sFS}, 1152')
    e(f'v_lshl_add_u32 v{b}, v{d}, 3, s{sT0}')
    e(f's_lshl_b32 s{sT1}, s{sWave}, 7')
    bl = []
    for i in range(4):
        bl.append(E.vm(f'buffer_load_dwordx2 {vr(vBraw+2*i,2)}, v{b}, {sr(srdB1)}, s{sT1} offen offset:{32*i}'))
    e(f's_lshl_b32 s{sT1}, s{sWi}, 5')
    bl.append(E.vm(f'buffer_load_dwordx2 {vr(vBraw+8,2)}, v{b}, {sr(srdB1)}, s{sT1} offen offset:1024'))
    if Opt.w1b:
        e(f's_mul_i32 s{sT0}, s{sFS}, 1152')
        e(f's_add_u32 s{sT0}, s{sT0}, 512')
        e(f's_cmp_lt_u32 s{sWave}, 4')
        e(f's_cselect_b32 s{sT0}, 0x40000000, s{sT0}')
        e('s_mov_b64 exec, 0xfffffff')
        E.vm(f'buffer_load_dword v{vDum}, v{vT+6}, {sr(srdW1)}, s{sT0} offen')
        e('s_mov_b64 exec, -1')
    oddb = ODDB
    e(f'v_lshlrev_b32 v{vX0}, 4, v{vLane}')
    e(f'v_add_u32 v{vX1}, 46080, v{vX0}')
    e(f's_lshl_b32 s{sRing}, s{sWi}, 14')
    e(f's_add_u32 s{sRing}, s{sRing}, {XA_BYTES}')
    e(f's_lshr_b32 s{sT1}, s{sWave}, 2')
    e(f's_lshl_b32 s{sT1}, s{sT1}, 12')
    e(f's_add_u32 s15, s{sRing}, s{sT1}')
    e(f's_lshl_b32 s{sOddM}, s{sWi}, 10')
    e(f's_add_u32 s{sOddM}, s{sOddM}, {oddb}')
    e(f'v_lshrrev_b32 v{a}, 2, v{vLane}')
    e(f'v_and_b32 v{c}, 3, v{vLane}')
    e(f'v_lshlrev_b32 v{b}, 7, v{a}')
    e(f'v_lshl_add_u32 v{b}, v{c}, 3, v{b}')
    e(f'v_bfe_u32 v{c}, v{vLane}, 3, 2')
    e(f'v_lshl_add_u32 v{b}, v{c}, 5, v{b}')
    for t in range(4):
        e(f'v_xor_b32 v{vWt[t]}, {32*t}, v{b}')
        e(f'v_add_u32 v{vWt[t]}, s{sRing}, v{vWt[t]}')
    e(f's_lshl_b32 s{sT0}, s{sWi}, 5')
    e(f'v_xor_b32 v{vWo}, s{sT0}, v{b}')
    e(f'v_add_u32 v{vWo}, {oddb}, v{vWo}')
    e(f'v_lshrrev_b32 v{a}, 3, v{vLane}')
    e(f'v_and_b32 v{c}, 7, v{vLane}')
    e(f'v_and_b32 v{b}, 6, v{a}')
    e(f'v_xor_b32 v{c}, v{c}, v{b}')
    e(f'v_mul_u32_u24 v{d}, 1152, v{a}')
    e(f'v_lshl_add_u32 v{d}, v{c}, 4, v{d}')
    e(f's_mul_i32 s{sT0}, s{sFS}, 663552')
    e(f's_lshl_b32 s{sT1}, s{sLine2}, 7')
    e(f's_add_u32 s{sT1}, s{sT1}, s{sT0}')
    e(f'v_add_u32 v{vD2a}, s{sT1}, v{d}')
    e(f'v_add_u32 v{vD2b}, {8*1152-1024}, v{vD2a}')
    e(f's_mul_i32 s{sT1}, s{sWi}, {8*1152}')
    e(f's_add_u32 s{sT1}, s{sT1}, s{sT0}')
    e(f's_add_u32 s{sT1}, s{sT1}, 1024')
    e(f'v_add_u32 v{vDo}, s{sT1}, v{d}')
    e(f'v_and_b32 v{b}, 4, v{a}')
    e(f'v_add_u32 v{b}, v{b}, v{a}')
    e(f'v_mul_u32_u24 v{d}, 9216, v{b}')
    e(f'v_lshl_add_u32 v{d}, v{c}, 4, v{d}')
    e(f's_mul_i32 s{sT0}, s{sFS}, 1152')
    e(f's_lshl_b32 s{sT1}, s{sWave}, 7')
    e(f's_add_u32 s{sT1}, s{sT1}, s{sT0}')
    e(f'v_add_u32 v{vD1a}, s{sT1}, v{d}')
    e(f'v_add_u32 v{vD1b}, {16*9216-1024}, v{vD1a}')
    e(f's_cmp_lt_u32 s{sWave}, 4')
    e('s_cbranch_scc1 Lodd_p')
    e(f's_and_b32 s{sT1}, s{sWi}, 1')
    e(f's_mul_i32 s{sT1}, s{sT1}, {16*9216}')
    e(f's_add_u32 s{sT0}, s{sT0}, s{sT1}')
    e(f's_lshr_b32 s{sT1}, s{sWi}, 1')
    e(f's_mul_i32 s{sT1}, s{sT1}, {4*9216}')
    e(f's_add_u32 s{sT0}, s{sT0}, s{sT1}')
    e(f's_add_u32 s{sT0}, s{sT0}, 1024')
    e(f'v_add_u32 v{vDo}, s{sT0}, v{d}')
    e('Lodd_p:')
    e(f's_and_b32 s{sT0}, s{sWave}, 4')
    e(f's_add_u32 s{sT0}, s{sT0}, s{sWave}')
    e(f's_mul_i32 s{sT0}, s{sT0}, 5120')
    e(f'v_add_u32 v{vAW}, s{sT0}, v{vX0}')
    e(f's_lshr_b32 s{sT0}, s{sWi}, 1')
    e(f's_mul_i32 s{sT0}, s{sT0}, 5120')
    e(f's_and_b32 s{sT1}, s{sWi}, 1')
    e(f's_lshl_b32 s{sT1}, s{sT1}, 3')
    e(f's_add_u32 s{sT0}, s{sT0}, s{sT1}')
    e(f's_add_u32 s{sT0}, s{sT0}, {16*5120}')
    e(f'v_add_u32 v{vAWo}, s{sT0}, v{vX0}')
    e(f's_mul_i32 s{sT0}, s{sFS}, {PSTRIDE}')
    e(f's_mul_i32 s10, s{sMT}, {5*18432}')
    e(f's_add_u32 s{sT0}, s{sT0}, s10')
    e(f's_lshl_b32 s10, s{sLine2}, 11')
    e(f's_add_u32 s10, s10, s{sT0}')
    e(f'v_add_u32 v{vP}, s10, v{vX0}')
    e(f's_lshl_b32 s10, s{sWi}, 9')
    e(f's_add_u32 s10, s10, s{sT0}')
    e(f's_add_u32 s10, s10, {16*1024}')
    e(f'v_lshl_add_u32 v{vPo}, v{vLane}, 3, s10')
    e(f's_mov_b32 s{sC}, {RSQRT2}')
    e(f's_mov_b32 s{sSpin}, 0')
    e(f'v_and_b32 v{a}, 3, v{vLane}')
    e(f'v_lshlrev_b32 v{a}, 2, v{a}')
    e(f'v_add_u32 v{vSA}, {STW}, v{a}')
    e(f'v_add_u32 v{vSB}, {STW+16}, v{a}')
    e(f's_lshl_b32 s{sT0}, s{sWave}, 2')
    e(f's_add_u32 s{sT0}, s{sT0}, {STW}')
    e(f'v_mov_b32 v{vSW}, s{sT0}')
    vSw, vSr, vFe, vFo = 184, 185, 186, 187
    e(f's_lshl_b32 s{sT0}, s{sWave}, 9')
    e(f's_add_u32 s{sT0}, s{sT0}, {ODDB + ODDOFF[4]}')
    e(f'v_lshl_add_u32 v{vSw}, v{vLane}, 3, s{sT0}')
    e(f'v_mul_u32_u24 v{vSr}, 48, v{vR}')
    e(f'v_add_u32 v{vSr}, s{sT0}, v{vSr}')
    e(f'v_lshrrev_b32 v{a}, 4, v{vSl}')
    e(f'v_and_b32 v{b}, 15, v{vSl}')
    e(f'v_lshlrev_b32 v{a}, 10, v{a}')
    e(f'v_lshl_add_u32 v{a}, v{b}, 6, v{a}')
    e(f'v_lshrrev_b32 v{d}, 2, v{b}')
    e(f'v_and_b32 v{d}, 2, v{d}')
    for (dst, add) in ((vFe, 0), (vFo, 6)):
        e(f'v_add_u32 v{b}, {add}, v{vCc}')
        e(f'v_lshrrev_b32 v{c}, 2, v{b}')
        e(f'v_mul_u32_u24 v{c}, 5120, v{c}')
        e(f'v_and_b32 v{b}, 3, v{b}')
        e(f'v_xor_b32 v{b}, v{b}, v{d}')
        e(f'v_lshl_add_u32 v{c}, v{b}, 4, v{c}')
        e(f'v_add_u32 v{dst}, v{a}, v{c}')
    e(f'v_and_b32 v{a}, 15, v{vLane}')
    e(f'v_lshrrev_b32 v{b}, 4, v{vLane}')
    e(f'v_lshrrev_b32 v{c}, 2, v{a}')
    e(f'v_and_b32 v{c}, 2, v{c}')
    e(f'v_xor_b32 v{b}, v{b}, v{c}')
    e(f'v_lshlrev_b32 v{vXg0}, 6, v{a}')
    e(f'v_lshl_add_u32 v{vXg0}, v{b}, 4, v{vXg0}')
    e(f'v_add_u32 v{vXg1}, 46080, v{vXg0}')
    return dict(fl=fl, vR=vR, XR=XR, xl=xl, bl=bl, vSw=vSw, vSr=vSr, vFe=vFe, vFo=vFo, vCc=vCc)

def rowsum(E, P, vs, tmp):
    E.lg(f'ds_write_b32 v{P["vSw"]}, v{vs}')
    E.all_lg()
    for i in range(3):
        E.lg(f'ds_read_b64 {vr(tmp+2*i,2)}, v{P["vSr"]} offset:{8*i}')
    E.all_lg()
    E.e(f'v_add_f32 v{tmp}, v{tmp}, v{tmp+1}')
    E.e(f'v_add_f32 v{tmp+2}, v{tmp+2}, v{tmp+3}')
    E.e(f'v_add_f32 v{tmp+4}, v{tmp+4}, v{tmp+5}')
    E.e(f'v_add_f32 v{tmp}, v{tmp}, v{tmp+2}')
    E.e(f'v_add_f32 v{vs}, v{tmp}, v{tmp+4}')

def bf16r(E, v):
    E.e(f'v_cvt_pk_bf16_f32 v{v}, v{v}, v{v}')
    E.e(f'v_and_b32 v{v}, 0xffff0000, v{v}')

def mlp_ln(E, P, ts, prefill):
    e = E.e
    XR = P['XR']
    XT = 84
    S1, S2, PV, TD = 188, 192, 196, 198
    for i in range(12):
        E.need(P['xl'][i])
        for j in range(4):
            r = XR + 4*i + j
            t = XT + 2*(4*i + j)
            e(f'v_lshlrev_b32 v{t}, 16, v{r}')
            e(f'v_and_b32 v{t+1}, 0xffff0000, v{r}')
            if i == 0 and j == 0: e(f'v_mov_b32 v{PV}, v{t}')
            k = 2*(j & 1); d = TD + k
            first = i == 0 and j < 2
            dd = S1 + k if first else d
            e(f'v_pk_add_f32 {vr(dd,2)}, {vr(t,2)}, {vr(PV,2)} op_sel_hi:[1,0] neg_lo:[0,1] neg_hi:[0,1]')
            if first:
                e(f'v_pk_mul_f32 {vr(S2+k,2)}, {vr(dd,2)}, {vr(dd,2)}')
            else:
                e(f'v_pk_add_f32 {vr(S1+k,2)}, {vr(S1+k,2)}, {vr(d,2)}')
                e(f'v_pk_fma_f32 {vr(S2+k,2)}, {vr(d,2)}, {vr(d,2)}, {vr(S2+k,2)}')
    ts.stamp(E)
    e(f'v_pk_add_f32 {vr(S1,2)}, {vr(S1,2)}, {vr(S1+2,2)}')
    e(f'v_pk_add_f32 {vr(S2,2)}, {vr(S2,2)}, {vr(S2+2,2)}')
    e(f'v_add_f32 v{S1}, v{S1}, v{S1+1}')
    e(f'v_add_f32 v{S2}, v{S2}, v{S2+1}')
    e(f'v_mul_f32 v{S1+1}, 0x3c2aaaab, v{S1}')
    e(f'v_add_f32 v{TD}, v{PV}, v{S1+1}')
    e(f'v_fma_f32 v{TD+1}, -v{S1}, v{S1+1}, v{S2}')
    E.lg(f'ds_write_b64 v{P["vSw"]}, {vr(TD,2)}')
    prefill()
    E.all_lg()
    G = 200
    for i in range(3):
        E.lg(f'ds_read_b128 {vr(G+4*i)}, v{P["vSr"]} offset:{16*i}')
    E.all_lg()
    vMu, vM = 192, 194
    e(f'v_pk_add_f32 {vr(S1,2)}, {vr(G,2)}, {vr(G+2,2)}')
    e(f'v_pk_add_f32 {vr(S1+2,2)}, {vr(G+4,2)}, {vr(G+6,2)}')
    e(f'v_pk_add_f32 {vr(TD,2)}, {vr(G+8,2)}, {vr(G+10,2)}')
    e(f'v_pk_add_f32 {vr(S1,2)}, {vr(S1,2)}, {vr(S1+2,2)}')
    e(f'v_pk_add_f32 {vr(S1,2)}, {vr(S1,2)}, {vr(TD,2)}')
    e(f'v_mul_f32 v{vMu}, 0x3e2aaaab, v{S1}')
    for i in range(6): e(f'v_sub_f32 v{G+2*i}, v{G+2*i}, v{vMu}')
    e(f'v_mul_f32 v{TD}, v{G}, v{G}')
    e(f'v_mul_f32 v{TD+1}, v{G+2}, v{G+2}')
    for i in range(2, 6): e(f'v_fmac_f32 v{TD + (i & 1)}, v{G+2*i}, v{G+2*i}')
    e(f'v_add_f32 v{TD}, v{TD}, v{TD+1}')
    vV = S1
    e(f'v_mul_f32 v{vV}, 0x3ae38e39, v{S1+1}')
    e(f'v_fmac_f32 v{vV}, 0x3e2aaaab, v{TD}')
    e(f'v_mov_b32 v{vM}, v{vMu}')
    e(f'v_max_f32 v{vV}, 0, v{vV}')
    bf16r(E, vM)
    bf16r(E, vV)
    e(f'v_add_f32 v{vV}, 0x3727c5ac, v{vV}')
    bf16r(E, vV)
    e(f'v_sqrt_f32 v{vV}, v{vV}')
    e('s_nop 0')
    bf16r(E, vV)
    e(f'v_rcp_f32 v{vM+1}, v{vV}')
    tmp = 200
    e(f's_cmp_lg_u32 s{sWave}, 0')
    e('s_cbranch_scc1 Lnoz')
    e(f'v_mov_b32 v{tmp}, 0')
    e(f'ds_write_b32 v{vSA}, v{tmp}')
    e(f'ds_write_b32 v{vSB}, v{tmp}')
    e('Lnoz:')
    e('s_mov_b32 exec_hi, 0x0fffffff')
    e(f'v_cmp_eq_u32 vcc, 0, v{P["vCc"]}')
    e(f's_lshl_b32 s{sT0}, s{sWave}, 8')
    e(f's_add_u32 s{sT0}, s{sT0}, {SCR}')
    e(f'v_lshl_add_u32 v{tmp+1}, v{P["vR"]}, 3, s{sT0}')
    e('s_and_saveexec_b64 s[12:13], vcc')
    E.lg(f'ds_write_b64 v{tmp+1}, {vr(vM,2)}')
    e('s_mov_b64 exec, s[12:13]')
    e(f'v_mul_f32 v{vMu}, {hex(LOG2E) if Opt.fold else "1.0"}, v{vM+1}')
    e(f'v_mul_f32 v{vMu+1}, v{vM}, v{vMu}')
    for i in range(12):
        for j in range(4):
            t = XT + 2*(4*i + j)
            e(f'v_pk_fma_f32 {vr(t,2)}, {vr(t,2)}, {vr(vMu,2)}, {vr(vMu,2)} op_sel:[0,0,1] op_sel_hi:[1,0,1] neg_lo:[0,0,1] neg_hi:[0,0,1]')
        for j in range(4):
            t = XT + 2*(4*i + j)
            e(f'v_cvt_pk_bf16_f32 v{XR+4*i+j}, v{t}, v{t+1}')
        base = P['vFe'] if i % 2 == 0 else P['vFo']
        m = i // 2
        if m == 4 :
            e(f'v_add_u32 v{base}, {4*15360}, v{base}')
        off = (m % 4) * 15360
        E.lg(f'ds_write_b128 v{base}, {vr(XR+4*i)} offset:{off}')
    e('s_mov_b32 exec_hi, -1')

sD_ = 11
def mlp_prefill(E):
    ids = []
    E.e(f's_cmp_ge_u32 s{sWave}, 4')
    E.e('s_cbranch_scc1 Lnopre')
    for n in range(4):
        E.e(f's_add_u32 m0, s{sRing}, {((n + 2) % 4)*2048}')
        E.e(f's_mov_b32 s{sD_}, {(n // 2)*32*9216 + (n % 2)*4*9216}')
        E.vm(f'buffer_load_dwordx4 v{vD1a}, {sr(srdW1)}, s{sD_} offen lds')
        ids.append(E.vm(f'buffer_load_dwordx4 v{vD1b}, {sr(srdW1)}, s{sD_} offen offset:1024 lds'))
    E.e('s_branch Lpre_done')
    E.e('Lnopre:')
    if Opt.qpf:
        e = E.e
        a, b, c = vT, vT+1, vT+2
        e(f's_mul_i32 s{sT0}, s{sWi}, {28*26}')
        e(f's_mul_i32 s{sT1}, s{sMT}, 28')
        e(f's_add_u32 s{sT0}, s{sT0}, s{sT1}')
        e(f'v_add_u32 v{a}, s{sT0}, v{vLane}')
        e(f'v_mul_u32_u24 v{b}, 13108, v{a}')
        e(f'v_lshrrev_b32 v{b}, 16, v{b}')
        e(f'v_mul_u32_u24 v{c}, 5, v{b}')
        e(f'v_sub_u32 v{c}, v{a}, v{c}')
        e(f'v_mul_u32_u24 v{b}, 9216, v{b}')
        e(f'v_lshl_add_u32 v{b}, v{c}, 7, v{b}')
        e(f's_mul_i32 s{sT0}, s{sFS}, 1152')
        e(f's_add_u32 s{sT0}, s{sT0}, 512')
        e('s_mov_b64 exec, 0xfffffff')
        e(f'buffer_load_dword v{vDum}, v{b}, {sr(srdW1)}, s{sT0} offen{Opt.nt}')
        e('s_mov_b64 exec, -1')
    E.e('Lpre_done:')
    return ids

KORD = [0, 2, 4, 6, 1, 3, 5, 7, 8, 10, 12, 14, 9, 11, 13, 15, 16, 17]
stubs = []
def mlp_main(E, cls, P, ts, pre_ids):
    e = E.e
    isP = cls == 'P'
    R = ODDR
    vSown = vSA if isP else vSB
    steps, groups, pairs, odds = [], [], [], []
    for gm in (1, 2):
        for k in range(18):
            kx = k if gm == 1 else KORD[k]
            hasodd = (gm == 1) != isP
            st = dict(gm=gm, k=k, x=k, g0=len(groups), odd=hasodd, xr={})
            rs = 9216 if gm == 1 else 1152
            hb = 4 if gm == 1 else 16
            st['pa'] = len(pairs)
            for h in range(2):
                pairs.append(dict(gm=gm, soff=kx*32*rs + h*hb*rs, reads=[], id=None))
            if hasodd:
                st['oi'] = len(odds); odds.append(dict(gm=gm, soff=kx*32*rs, id=None, reads=[]))
            for t in range(5 if hasodd else 4):
                groups.append(dict(step=len(steps), t=t, w=[]))
            st['ng'] = len(groups) - st['g0']
            steps.append(st)
    NG = len(groups); NM = 5*NG
    own, flo = ((0, 2) if isP else (4, 2))
    lastuse = {}
    deep = (not isP) and Opt.qdeep
    for n, p in enumerate(pairs):
        s_, h = divmod(n, 2); k = s_ % 18
        isflo = (k % 2 == 0) and (k > 0 or (isP and s_ == 0))
        p['slot'] = (flo if isflo else own) + h
        if deep and s_ >= 18 + 4:
            p['slot'] = [2, 0, 6, 4][(k - 4) % 4] + h
        p['prev'] = lastuse.get(p['slot']); lastuse[p['slot']] = n
    nxt = {p['prev']: n for n, p in enumerate(pairs) if p['prev'] is not None}
    pre = [[] for _ in range(NM)]
    gaps = [[] for _ in range(NM)]
    def stepm(s): return 5*steps[s]['g0'] if s < len(steps) else NM
    so0 = 18 if isP else 0
    PB, QB = 6, 3
    pbase = PB if isP else QB
    obase = 18 if isP else 0

    def wait_status(name, vaddr, thr, pre_id=None, part=0, vv=vS):
        if pre_id is None:
            vv = vS2
            pre_id = E.lg(f'ds_read_b32 v{vv}, v{vaddr}')
        if part != 2:
            E.need(pre_id)
            e(f'v_cmp_gt_u32 vcc, {thr}, v{vv}')
        if part == 1: return
        e(f's_cbranch_vccnz Lw{name}')
        e(f'Lr{name}:')
        stubs.extend([f'Lw{name}:', f'ds_read_b32 v{vv}, v{vaddr}', f's_add_u32 s{sSpin}, s{sSpin}, 1', f's_cmp_gt_u32 s{sSpin}, 0x100000', f's_cbranch_scc1 Lr{name}',
                      's_waitcnt lgkmcnt(0)', f'v_cmp_gt_u32 vcc, {thr}, v{vv}', f's_cbranch_vccz Lr{name}', 's_sleep 1', f's_branch Lw{name}'])
    def publish(val):
        e(f'v_mov_b32 v{vPg}, {val}')
        E.lg(f'ds_write_b32 v{vSW}, v{vPg}')
    def p_m0(n): e(f's_add_u32 m0, s{sRing}, {pairs[n]["slot"]*2048}')
    def p_so(n): e(f's_mov_b32 s{sD_}, {pairs[n]["soff"]}')
    def p_ld(n, i):
        it = pairs[n]
        if it['prev'] is not None and i == 0:
            assert len(pairs[it['prev']]['reads']) == 4
            E.need(*pairs[it['prev']]['reads'])
        va, sd = ((vD1a, vD1b), srdW1) if it['gm'] == 1 else ((vD2a, vD2b), srdW2)
        if Opt.x_nodma:
            e('s_nop 0'); x = ('vm', 0)
        else:
            x = E.vm(f'buffer_load_dwordx4 v{va[i]}, {sr(sd)}, s{sD_} offen{" offset:1024" if i else ""} lds')
        if i: it['id'] = x
    def p_all(n): p_m0(n); p_so(n); p_ld(n, 0); p_ld(n, 1)
    def o_m0(n): e(f's_add_u32 m0, s{sOddM}, {ODDOFF[(obase + n) % R]}')
    def o_so(n): e(f's_mov_b32 s{sD_}, {odds[n]["soff"]}')
    def o_ld(n):
        sd = srdW1 if odds[n]['gm'] == 1 else srdW2
        if Opt.x_nodma:
            e('s_nop 0'); odds[n]['id'] = ('vm', 0)
        else:
            odds[n]['id'] = E.vm(f'buffer_load_dwordx4 v{vDo}, {sr(sd)}, s{sD_} offen lds')
    def wreg(s, t): return vWF + 20*(s % 2) + 4*t
    def do_wread(s, t, h):
        st = steps[s]; g = st['g0'] + t
        if t < 4:
            n = st['pa'] + h
            E.need(pairs[n]['id'])
            i = E.lg(f'ds_read_b64_tr_b16 {vr(wreg(s,t)+2*h,2)}, v{vWt[t]} offset:{pairs[n]["slot"]*2048}')
            pairs[n]['reads'].append(i)
        else:
            n = st['oi']
            i = E.lg(f'ds_read_b64_tr_b16 {vr(wreg(s,t)+2*h,2)}, v{vWo} offset:{ODDOFF[(obase + n) % R] + h*2048}')
            odds[n]['reads'].append(i)
        groups[g]['w'].append(i)
    def do_xread(s, rt):
        idx = steps[s]['x']*5 + rt
        b0, b1 = (vX0, vX1) if steps[s]['gm'] == 2 else (vXg0, vXg1)
        vb, off = (b0, idx*1024) if idx < 45 else (b1, (idx-45)*1024)
        steps[s]['xr'][rt] = E.lg(f'ds_read_b128 {vr(vXF + 20*(s % 2) + 4*rt)}, v{vb} offset:{off}')

    TN = dict(Wa=[0,1,3,4], Wb=[10,11,13,14], X=[5,6,8,9,15], DA=[12,17], DAs=[8,9], DB=[2,7], DBs=[-2,-1], lg=19)
    TO = dict(Wa=[0,1,3,4], Wb=[14,15,16,18], X=[8,9,11,19,20], DA=[12,17], DAs=[8,9], DB=[2,7], DBs=[-2,-2], lg=24,
              Wo=[5,6], Sr=10, Pv=11, Sw=13, Cm=19, Br=21, Do=22, Dos=[18,20])
    if Opt.tmpl == 1:
        TO = dict(Wa=[0,1,3,4], Wb=[9,10,11,13], X=[14,15,16,18,19], DA=[17,22], DAs=[13,14], DB=[2,7], DBs=[-2,-2], lg=24,
                  Wo=[5,6], Sr=-4, Pv=18, Sw=20, Cm=8, Br=10, Do=12, Dos=[8,9])
    if Opt.tmpl == 2:
        TO = dict(Wa=[0,1,3,4], Wb=[13,14,15,16], X=[5,6,8,9,10], DA=[17,22], DAs=[13,14], DB=[7,12], DBs=[3,4], lg=24,
                  Wo=[18,19], Sr=11, Pv=5, Sw=20, Cm=21, Br=23, Do=27, Dos=[23,24], lag=1)
    manual = set()
    def at(s, g, f):
        if steps[s]['k'] == 0 and g < 0: pre[stepm(s)].append(f)
        else: gaps[stepm(s) + g].append(f)
    sread = {}
    gated = {26: QB+18, 30: QB+19, 34: QB+20} if isP else {}
    for s in range(36):
        st = steps[s]; T = TO if st['odd'] else TN; k = st['k']
        if k < 17:
            for h, key in ((0, 'Wa'), (1, 'Wb')):
                for t in range(4): at(s, T[key][t], lambda s=s, t=t, h=h: do_wread(s+1, t, h))
            if s+1 in gated:
                at(s, -4, lambda s=s: sread.__setitem__(('g', s), E.lg(f'ds_read_b32 v{vS2}, v{vSB}')))
                at(s, 3, lambda s=s: wait_status(f'Pg{s}', vSB, gated[s+1], sread[('g', s)], part=1, vv=vS2))
                at(s, 5, lambda s=s: (wait_status(f'Pg{s}', vSB, gated[s+1], sread[('g', s)], part=2, vv=vS2), ts.stamp(E)))
            for rt in range(5): at(s, T['X'][rt], lambda s=s, rt=rt: do_xread(s+1, rt))
            at(s, T['lg'], lambda s=s: E.need(*([steps[s+1]['xr'][0]] + groups[steps[s+1]['g0']]['w'])))
        def place(n, D, Ds):
            at(s, Ds[0], lambda n=n: p_m0(n)); at(s, Ds[1], lambda n=n: p_so(n))
            at(s, D[0], lambda n=n: p_ld(n, 0)); at(s, D[1], lambda n=n: p_ld(n, 1))
            manual.discard(n)
        def ok(n):
            return n is not None and not (pairs[n]['slot'] in (flo, flo+1) and (n // 36) != (pairs[n]['prev'] // 36))
        if k < 17 and ok(nxt.get(steps[s+1]['pa'])): place(nxt[steps[s+1]['pa']], T['DA'], T['DAs'])
        if k >= 1 and ok(nxt.get(st['pa'] + 1)): place(nxt[st['pa'] + 1], T['DB'], T['DBs'])
        if st['odd']:
            if k < 17:
                for h in range(2): at(s, T['Wo'][h], lambda s=s, h=h: do_wread(s+1, 4, h))
            if k < 16 and not Opt.x_nochk:
                at(s, T['Sr'], lambda k=k: sread.__setitem__(k, E.lg(f'ds_read_b32 v{vS}, v{vSown}')))
                at(s, T['Cm'], lambda k=k: wait_status(f'{cls}o{k}', vSown, pbase + k - 1, sread[k], part=1))
                at(s, T['Br'], lambda k=k: wait_status(f'{cls}o{k}', vSown, pbase + k - 1, sread[k], part=2))
            if k + R < 18:
                n = k + R
                at(s, T['Dos'][0], lambda n=n: o_m0(n)); at(s, T['Dos'][1], lambda n=n: o_so(n)); at(s, T['Do'], lambda n=n: o_ld(n))
            def pub(k=k, s=s, T=T):
                ids = list(steps[s]['xr'].values()) + pairs[steps[s]['pa']]['reads'] + pairs[steps[s]['pa']+1]['reads']
                if T.get('lag'):
                    ids += odds[k]['reads']
                elif k + 1 < 18: ids += odds[k+1]['reads']
                ids.append(odds[min(k + R - 2, 17)]['id'])
                E.need(*ids)
                E.lg(f'ds_write_b32 v{vSW}, v{vPg}')
            if not (Opt.x_nopub and (k not in (3, 7, 14, 16, 17))):
                at(s, T['Pv'], lambda k=k: e(f'v_mov_b32 v{vPg}, {pbase + k}')); at(s, T['Sw'], pub)
    if deep:
        at(19, 16, lambda: wait_status('Qe', vSA, PB + 17))
        for i, n in enumerate((46, 47, 48, 49)):
            at(20 + i // 2, 7 if i % 2 == 0 else 17, lambda n=n: p_all(n))
    if not isP:
        at(Opt.qsig, 15, lambda: e(f'v_mov_b32 v{vPg}, {QB + 21}'))
        at(Opt.qsig, 16, lambda: E.lg(f'ds_write_b32 v{vSW}, v{vPg}'))
    if isP:
        at(16, 0, lambda: e(f'v_mov_b32 v{vPg}, 1'))
        at(16, 2, lambda: (E.need(*(pairs[32]['reads'] + pairs[33]['reads'])), E.lg(f'ds_write_b32 v{vSW}, v{vPg}')))

    if isP:
        TL = Tail(E, ts)
    def mish_quad(src, dst, tb):
        T = [tb+i for i in range(4)]
        I = range(4)
        o = []
        if Opt.fold:
            o += [f'v_exp_f32 v{T[i]}, v{src+i}' for i in I]
        else:
            o += [f'v_mul_f32 v{T[i]}, {hex(LOG2E)}, v{src+i}' for i in I]
            o += [f'v_exp_f32 v{T[i]}, v{T[i]}' for i in I]
        o += [f'v_fma_f32 v{T[i]}, v{T[i]}, s{sC}, s{sC}' for i in I]
        o += [f'v_fma_f32 v{T[i]}, v{T[i]}, v{T[i]}, 0.5' for i in I]
        o += [f'v_rcp_f32 v{T[i]}, v{T[i]}' for i in I]
        o += [f'v_fma_f32 v{T[i]}, -v{src+i}, v{T[i]}, v{src+i}' for i in I]
        o += [f'v_cvt_pk_bf16_f32 v{dst}, v{T[0]}, v{T[1]}', f'v_cvt_pk_bf16_f32 v{dst+1}, v{T[2]}, v{T[3]}']
        if Opt.x_nomish: o = o[-2:]
        if Opt.mnop >= 0:
            o2 = []; acc = 0
            for op in o:
                o2.append(op)
                acc += 8 if ('exp' in op or 'rcp' in op) else 4
                if acc >= 8:
                    o2.append(f's_nop {Opt.mnop}'); acc = 0
            o = o2
        return o
    def mish_rt(hf, rt):
        a0, a1 = vAcc + 40*hf + 4*rt, vAcc + 40*hf + 20 + 4*rt
        for o in mish_quad(a0, a0, vT): e(o)
        for o in mish_quad(a1, a0+2, vT+4): e(o)
    def wr(hf, rt):
        if Opt.x_nowr: return ('lg', 0)
        return E.lg(f'ds_write_b128 v{vAW}, {vr(vAcc + 40*hf + 4*rt)} offset:{hf*20480 + rt*1024}')
    def w_stage_ops(s0):
        L = [(lambda t=t, h=h: do_wread(s0, t, h)) for h in range(2) for t in range(4)]
        for n in (steps[s0+1]['pa'], steps[s0+1]['pa'] + 1):
            L += [lambda n=n: (p_m0(n), p_so(n), p_ld(n, 0)), lambda n=n: p_ld(n, 1)]
        return L
    def w_stage(s0):
        for f in w_stage_ops(s0): f()
    side = []
    def valu_phase():
        clk = E.clock; E.clock = None
        ts.stamp(E)
        e('s_setprio 0')
        if isP:
            publish(2)
            e('s_nop 4')
            w = []
            for rt in range(Opt.pw0): mish_rt(0, rt)
            wait_status('Pa', vSA, 2)
            wait_status('Pb', vSB, QB + 3)
            pend = [(0, rt) for rt in range(Opt.pw0)]
            def mish_w(hf, rt):
                a0, a1 = vAcc + 40*hf + 4*rt, vAcc + 40*hf + 20 + 4*rt
                for (src, dst, tb) in ((a0, a0, vT), (a1, a0+2, vT+4)):
                    ops = mish_quad(src, dst, tb)
                    for i, o in enumerate(ops):
                        e(o)
                        if pend and pend[0][0] <= allowed[0] and i == len(ops) // 2: w.append(wr(*pend.pop(0)))
                        if side and i in (3, len(ops) - 4): side.pop(0)()
                pend.append((hf, rt))
            allowed = [0]
            for rt in range(Opt.pw0, 5): mish_w(0, rt)
            side.extend(w_stage_ops(18))
            for rt in range(5):
                if rt == Opt.pw1:
                    wait_status('Pb2', vSB, QB + 7); allowed[0] = 1
                mish_w(1, rt)
            assert not side
            for x in pend: w.append(wr(*x))
            ts.stamp(E)
            E.need(*w)
            publish(3)
            wait_status('Pc0', vSB, QB + 14)
            for n in range(3):
                o_m0(n); o_so(n); o_ld(n)
            E.need(odds[2]['id'])
            publish(4)
            wait_status('Pd', vSA, 4)
            for h in range(2): do_wread(18, 4, h)
            for rt in range(5): do_xread(18, rt)
            E.need(*odds[0]['reads'])
            publish(5)
            wait_status('Pc3', vSB, QB + 16)
            p_all(40); p_all(41)
            for n in range(3, R):
                o_m0(n); o_so(n); o_ld(n)
        else:
            e('s_nop 7')
            for rt in range(2): mish_rt(0, rt)
            wait_status('Qa', vSB, QB + 17)
            wait_status('Qp', vSA, 2)
            w = [wr(0, 0), wr(0, 1)]
            for rt in range(2, 5):
                mish_rt(0, rt); w.append(wr(0, rt))
            E.need(*w); publish(QB + 18)
            w = []
            for rt in range(5):
                mish_rt(1, rt); w.append(wr(1, rt))
            E.need(*w); publish(QB + 19)
            w = []
            for rt in range(5):
                a0 = vAcc + 80 + 4*rt
                for o in mish_quad(a0, a0, vT + 4*(rt & 1)): e(o)
                w.append(E.lg(f'ds_write_b64 v{vAWo}, {vr(a0,2)} offset:{rt*1024}'))
            E.need(*w); publish(QB + 20)
            ts.stamp(E)
            for f in w_stage_ops(18):
                f(); e('s_sleep 1')
            wait_status('Qc', vSB, QB + 20)
            wait_status('Qd', vSA, 3)
            for rt in range(5): do_xread(18, rt)
            wait_status('Qb', vSA, PB + 16)
            p_all(40); p_all(41)
        e('s_setprio 1')
        ts.stamp(E)
        E.clock = clk
    if not isP:
        pre[0].append(lambda: ts.val(E, sSpin)); pre[stepm(18)].append(lambda: ts.val(E, sSpin))
    pre[stepm(18)].insert(0, valu_phase)
    if Opt.fine:
        lo_, st_ = [int(x) for x in Opt.fine.split(',')]
        for i in range(13):
            if lo_ + i*st_ < 36: pre[stepm(lo_ + i*st_)].append(lambda: ts.stamp(E, True))

    if isP:
        for n in range(4): pairs[n]['id'] = pre_ids[n]
    def small_setup():
        E.need(*P['bl'])
        for i in range(4 if isP else 5):
            r = vBraw + 2*i; d = vAcc + 20*i + 16
            e(f'v_lshlrev_b32 v{d}, 16, v{r}')
            e(f'v_and_b32 v{d+1}, 0xffff0000, v{r}')
            e(f'v_lshlrev_b32 v{d+2}, 16, v{r+1}')
            e(f'v_and_b32 v{d+3}, 0xffff0000, v{r+1}')
            if Opt.fold:
                for j in range(4): e(f'v_mul_f32 v{d+j}, {hex(LOG2E)}, v{d+j}')
        E.need(*P['fl'])
        e(f'v_readlane_b32 s{sFlA+3}, v{vFlOld}, 0')
        e(f'v_readlane_b32 s{sFlO+3}, v{vFlOld}, 1')
    if isP: small_setup()
    if Opt.x_warm:
        a, b, c = vT, vT+1, vT+2
        e(f's_mul_i32 s{sT0}, s{sMT}, 200')
        e(f's_mul_i32 s{sT1}, s{sWi}, 50')
        e(f's_add_u32 s{sT0}, s{sT0}, s{sT1}')
        e(f'v_add_u32 v{a}, s{sT0}, v{vLane}')
        if isP:
            e(f'v_mul_u32_u24 v{b}, 7282, v{a}')
            e(f'v_lshrrev_b32 v{b}, 16, v{b}')
            e(f'v_mul_u32_u24 v{c}, 9, v{b}')
            e(f'v_sub_u32 v{c}, v{a}, v{c}')
            e(f'v_mul_u32_u24 v{b}, 9216, v{b}')
            e(f'v_lshl_add_u32 v{b}, v{c}, 7, v{b}')
            e(f's_mul_i32 s{sT0}, s{sFS}, 1152')
            E.vm(f'buffer_load_dword v{vDum}, v{b}, {sr(srdW1)}, s{sT0} offen{Opt.nt}')
        else:
            e(f'v_lshlrev_b32 v{b}, 7, v{a}')
            e(f's_mul_i32 s{sT0}, s{sFS}, 663552')
            E.vm(f'buffer_load_dword v{vDum}, v{b}, {sr(srdW2)}, s{sT0} offen')
        E.all_vm()
        for i in range(3): e('s_sleep 127')
    if isP:
        for h in range(2):
            for t in range(4): do_wread(0, t, h)
        p_all(4); p_all(5)
        poison(E)
    e('s_waitcnt lgkmcnt(0)'); E.lg_done = E.lg_n - 1
    ts.stamp(E)
    e('s_barrier')
    if Opt.d_mlp and isP: e(f's_sleep {Opt.d_mlp}')
    e(f's_setprio {3 if isP else 2}')
    for rt in range(5): do_xread(0, rt)
    if not isP:
        small_setup()
        if Opt.qpf: e('s_waitcnt vmcnt(0)'); e('s_sleep 8')
        for n in range(2): p_all(n)
        for n in range(R):
            o_m0(n); o_so(n); o_ld(n)
        w_stage(0)
        E.need(odds[R-1]['id'])
        publish(1)
        wait_status('Qr', vSB, 1)
        for h in range(2): do_wread(0, 4, h)
        E.need(*odds[0]['reads'])
        publish(2)
        wait_status('Qs', vSA, 1)
        p_all(4); p_all(5)
    if isP and Opt.d_mfma:
        e('s_waitcnt lgkmcnt(0)')
        e(f's_mov_b32 s12, {Opt.d_mfma}')
        e('Ldm:')
        for i in range(20):
            e(f'v_mfma_f32_16x16x32_bf16 {vr(232 + 4*(i % 5))}, {vr(wreg(0, i // 5))}, {vr(vXF + 4*(i % 5))}, 0')
        e('s_sub_u32 s12, s12, 1'); e('s_cmp_lg_u32 s12, 0'); e('s_cbranch_scc1 Ldm')
    for m in range(NM):
        g, rt = divmod(m, 5)
        G = groups[g]; s = G['step']; st = steps[s]
        if Opt.snake and G['t'] % 2 and not (st['k'] == 0 and st['gm'] == 1): rt = 4 - rt
        E.clock = m
        for f in pre[m]: f()
        assert len(G['w']) == 2, (cls, m, g)
        E.need(*(G['w'] + [st['xr'][rt]]))
        ab = vAcc + 20*G['t']; d = ab + 4*rt
        c = vr(d)
        if st['k'] == 0: c = vr(ab + 16) if st['gm'] == 1 else '0'
        e(f'v_mfma_f32_16x16x32_bf16 {vr(d)}, {vr(wreg(s, G["t"]))}, {vr(vXF + 20*(s % 2) + 4*rt)}, {c}')
        for f in gaps[m]: f()
    assert all(p['id'] for p in pairs) and all(len(p['reads']) == 4 for p in pairs)
    E.clock = None
    ts.stamp(E)
    if Opt.x_noex:
        e('s_endpgm'); return
    e('s_setprio 0')
    e('s_nop 6')
    def pack(u, rt):
        a0, a1 = vAcc + 40*u + 4*rt, vAcc + 40*u + 20 + 4*rt
        e(f'v_cvt_pk_bf16_f32 v{a0}, v{a0}, v{a0+1}')
        e(f'v_cvt_pk_bf16_f32 v{a0+1}, v{a0+2}, v{a0+3}')
        e(f'v_cvt_pk_bf16_f32 v{a0+2}, v{a1}, v{a1+1}')
        e(f'v_cvt_pk_bf16_f32 v{a0+3}, v{a1+2}, v{a1+3}')
        return a0
    if not isP:
        e(f's_cmp_eq_u32 s{sLine2}, s{sFin}')
        e('s_cbranch_scc1 Lq_own')
        for u in range(2):
            for rt in range(5):
                a0 = pack(u, rt)
                e(f's_mov_b32 s{sT0}, {rt*18432}')
                e(f'buffer_store_dwordx4 {vr(a0)}, v{vP}, {sr(srdWS)}, s{sT0} offen offset:{u*1024}{SC}')
        e('s_branch Lq_end')
        e('Lq_own:')
        e(f'v_add_u32 v{vT}, s{sRing}, v{vX0}')
        for u in range(2):
            for rt in range(5):
                a0 = pack(u, rt)
                e(f'ds_write_b128 v{vT}, {vr(a0)} offset:{(5*u + rt)*1024}')
        e('s_waitcnt lgkmcnt(0)')
        e('Lq_end:')
        publish(QB + 22)
        if Opt.ts:
            e('s_waitcnt vmcnt(0)')
            ts.stamp(E)
            ts.flush(E, vT)
        e('s_endpgm')
        return
    sts = []
    def st_main(u, rt):
        a0 = pack(u, rt)
        e(f's_mov_b32 s{sT0}, {rt*18432}')
        if len(sts) >= Opt.sthr: E.need(sts[-Opt.sthr])
        sts.append(E.vm(f'buffer_store_dwordx4 {vr(a0)}, v{vP}, {sr(srdWS)}, s{sT0} offen offset:{u*1024}{SC}'))
    def st_odd(rt):
        a0 = vAcc + 80 + 4*rt
        e(f'v_cvt_pk_bf16_f32 v{a0}, v{a0}, v{a0+1}')
        e(f'v_cvt_pk_bf16_f32 v{a0+1}, v{a0+2}, v{a0+3}')
        e(f's_mov_b32 s{sT0}, {rt*18432}')
        if len(sts) >= Opt.sthr: E.need(sts[-Opt.sthr])
        sts.append(E.vm(f'buffer_store_dwordx2 {vr(a0,2)}, v{vPo}, {sr(srdWS)}, s{sT0} offen{SC}'))
    todo = [(lambda u=u, rt=rt: st_main(u, rt)) for u in range(2) for rt in range(5)] + [(lambda rt=rt: st_odd(rt)) for rt in range(5)]
    for f in todo: f()
    TL.setup()
    e(f'v_mov_b32 v{vT}, 0')
    e(f's_add_u32 s{sFlA+3}, s{sFlA+3}, 1')
    e(f's_add_u32 s{sFlO+3}, s{sFlO+3}, 1')
    e(f'v_mov_b32 v{vT+1}, s{sFlA+3}')
    e(f'v_mov_b32 v{vT+2}, s{sFlO+3}')
    e('s_mov_b64 exec, 1')
    E.need(*sts[:10])
    E.vm(f'buffer_store_dword v{vT+1}, v{vT}, {sr(srdWS)}, s{sFlA} offen{SC}')
    E.need(*sts)
    E.vm(f'buffer_store_dword v{vT+2}, v{vT}, {sr(srdWS)}, s{sFlO} offen{SC}')
    e('s_mov_b64 exec, -1')
    ts.stamp(E)
    TL.run(lambda: wait_status('Pt', vSB, QB + 21))

def gpoll(E, name, vcur, vadr, sb, vold, mask, have=False, sleep=None):
    e = E.e
    e('s_mov_b32 s10, 0')
    if have: e(f's_branch L{name}_c')
    e(f'L{name}:')
    e(f'buffer_load_dword v{vcur}, v{vadr}, {sr(srdWS)}, s{sb} offen{SC}')
    e('s_waitcnt vmcnt(0)')
    e(f'L{name}_c:')
    e(f'v_cmp_ne_u32 vcc, v{vcur}, v{vold}')
    e(f's_and_b64 s[12:13], vcc, s[{mask}:{mask+1}]')
    e(f's_cmp_eq_u64 s[12:13], s[{mask}:{mask+1}]')
    e(f's_cbranch_scc1 L{name}_ok')
    e(f's_sleep {sleep or Opt.psleep}')
    e('s_add_u32 s10, s10, 1')
    e('s_cmp_lt_u32 s10, 0x20000')
    e(f's_cbranch_scc1 L{name}')
    e(f'L{name}_ok:')
    if not have: E.vm_done = E.vm_n - 1

def late_block_soff(E, dst, b_expr_reg):
    pass

def block_ur(E, s_):
    e = E.e
    e(f's_add_u32 s13, s{sWi}, {4*s_}')
    e(f's_lshl_b32 s14, s{sFin}, 1')
    e('s_cmp_ge_u32 s13, 5')
    e(f's_cselect_b32 s{sT0}, 5, 0')
    e('s_addc_u32 s14, s14, 0')
    e(f's_sub_u32 s15, s13, s{sT0}')

def piece_off(E, dst, u, r):
    e = E.e
    e(f's_mul_i32 s{dst}, s{sMT}, 5')
    e(f's_add_u32 s{dst}, s{dst}, s{r}')
    e(f's_mul_i32 s{dst}, s{dst}, 18432')
    e(f's_lshl_b32 s{sT1}, s{u}, 10')
    e(f's_add_u32 s{dst}, s{dst}, s{sT1}')

def late_slabs(E, d0):
    for k in range(3):
        E.e(f's_add_u32 s{d0+k}, s{sFS}, {2*(k+1)}')
        E.e(f's_and_b32 s{d0+k}, s{d0+k}, 7')
        E.e(f's_mul_i32 s{d0+k}, s{d0+k}, {PSTRIDE}')

def poison(E):
    e = E.e
    for i in range(4): e(f'v_mov_b32 v{228+i}, -1')
    late_slabs(E, 64)
    ids = []
    for s_ in range(3):
        block_ur(E, s_)
        piece_off(E, 12, 14, 15)
        if s_ == 2:
            e('s_cmp_ge_u32 s13, 10')
            e('s_cselect_b32 s12, 0x40000000, s12')
        for k in range(3):
            e(f's_add_u32 s{sT0}, s12, s{64+k}')
            if len(ids) >= Opt.pthr: E.need(ids[-Opt.pthr])
            ids.append(E.vm(f'buffer_store_dwordx4 v[228:231], v{vX0}, {sr(srdWS)}, s{sT0} offen{SC}'))

class Tail:
    def __init__(self, E, ts):
        self.E, self.ts = E, ts
    def slot_addr(self, d, u, r):
        e = self.E.e
        e(f's_min_u32 s{sT0}, s{r}, 4')
        e(f's_lshl_b32 s{sT0}, s{sT0}, 4')
        e(f'v_add_u32 v8, s{sT0}, v4')
        e('v_mul_u32_u24 v9, 205, v8')
        e('v_lshrrev_b32 v9, 11, v9')
        e('v_mul_u32_u24 v9, 176, v9')
        e('v_lshl_add_u32 v9, v8, 3, v9')
        e(f'v_add_u32 v9, {SCR}, v9')
        d['st'] = self.E.lg(f'ds_read_b64 {vr(d["ST"],2)}, v9')
        e(f's_mul_i32 s{sT0}, s{sMT}, 80')
        e(f'v_add_u32 v8, s{sT0}, v8')
        e(f'v_mul_u32_u24 v{d["xa"]}, 1152, v8')
        e(f'v_lshl_add_u32 v{d["xa"]}, v6, 5, v{d["xa"]}')
        e(f'v_lshl_add_u32 v{d["xa"]}, v5, 4, v{d["xa"]}')
        e(f's_lshl_b32 s{sT0}, s{u}, 6')
        e(f'v_add_u32 v{d["xa"]}, s{sT0}, v{d["xa"]}')
        e(f'v_lshlrev_b32 v{d["ya"]}, 4, v8')
        e(f'v_lshl_add_u32 v{d["ya"]}, v5, 15, v{d["ya"]}')
        e(f'v_lshl_add_u32 v{d["ya"]}, v6, 16, v{d["ya"]}')
        e(f's_lshl_b32 s{sT0}, s{u}, 17')
        e(f's_add_u32 s{sT0}, s{sT0}, {WS_Y}')
        e(f'v_add_u32 v{d["ya"]}, s{sT0}, v{d["ya"]}')
        piece_off(self.E, d['sP'], u, r)
    sME, sMY, sMO, sMYO = 30, 32, 28, 40
    sFb, sFo = 26, 27
    vFa, vCur, vCur2 = 236, 237, 238
    def sample0(self):
        e = self.E.e
        e(f'v_lshlrev_b32 v{self.vFa}, 2, v{vLane}')
        flag_base(self.E, self.sFo)
    def sample1(self):
        e = self.E.e
        e(f's_lshl_b32 s{self.sFb}, s{sFin}, 8')
        e(f's_add_u32 s{self.sFb}, s{self.sFb}, s{self.sFo}')
        self.f1 = self.E.vm(f'buffer_load_dword v{self.vCur}, v{self.vFa}, {sr(srdWS)}, s{self.sFb} offen{SC}')
    def sample2(self):
        self.E.e(f's_add_u32 s{self.sFo}, s{self.sFo}, {8*FLB}')
        self.f2 = self.E.vm(f'buffer_load_dword v{self.vCur2}, v{self.vFa}, {sr(srdWS)}, s{self.sFo} offen{SC}')
    def poll2(self, name, m1, m2, have):
        E = self.E; e = E.e
        e('s_mov_b32 s10, 0')
        if have: e(f's_branch L{name}_c')
        e(f'L{name}:')
        e(f'buffer_load_dword v{self.vCur}, v{self.vFa}, {sr(srdWS)}, s{self.sFb} offen{SC}')
        e(f'buffer_load_dword v{self.vCur2}, v{self.vFa}, {sr(srdWS)}, s{self.sFo} offen{SC}')
        e('s_waitcnt vmcnt(0)')
        e(f'L{name}_c:')
        e(f'v_cmp_eq_u32 vcc, v{self.vCur}, v0')
        e(f'v_cmp_eq_u32 s[12:13], v{self.vCur2}, v{vOld2}')
        e(f's_and_b64 vcc, vcc, s[{m1}:{m1+1}]')
        e(f's_and_b64 s[12:13], s[12:13], s[{m2}:{m2+1}]')
        e('s_or_b64 s[12:13], s[12:13], vcc')
        e(f's_cbranch_scc0 L{name}_ok')
        e(f's_sleep {Opt.esleep}')
        e('s_add_u32 s10, s10, 1')
        e('s_cmp_lt_u32 s10, 0x20000')
        e(f's_cbranch_scc1 L{name}')
        e(f'L{name}_ok:')
        if not have: E.vm_done = E.vm_n - 1
    def setup(self):
        E = self.E; e = E.e
        srd(E, srdB1, sOUT, S*D*2)
        e(f's_mov_b32 s{self.sME}, 0x10101010')
        e(f's_and_b32 s{sT0}, s{sFS}, 1')
        e(f's_lshl_b32 s{sT0}, s{sT0}, 2')
        e(f's_lshr_b32 s{self.sME}, s{self.sME}, s{sT0}')
        e(f's_mov_b32 s{self.sME+1}, 0')
        e('s_mov_b32 s43, 0')
        e(f's_mov_b64 s[{self.sMO}:{self.sMO+1}], 0')
        e(f'v_lshlrev_b32 v{self.vFa}, 2, v{vLane}')
        flag_base(E, self.sFo)
        e(f's_lshl_b32 s{self.sFb}, s{sFin}, 8')
        e(f's_add_u32 s{self.sFb}, s{self.sFb}, s{self.sFo}')
        e(f's_add_u32 s{self.sFo}, s{self.sFo}, {8*FLB}')
        e('s_mov_b32 s32, 0x3f80')
        e('s_mov_b32 s33, 0x3f800000')
        e('s_mov_b32 s40, 0x3f317218' if Opt.fold else 's_mov_b32 s40, 1.0')
        e('v_and_b32 v4, 15, v1')
        e('v_lshrrev_b32 v5, 4, v1')
        e('v_and_b32 v6, 1, v5')
        e('v_lshrrev_b32 v5, 1, v5')
        e('v_lshlrev_b32 v7, 4, v1')
        self.sl = []
        for s_ in range(3):
            B = 36 + 24*s_; W = 116 + 40*s_
            d = dict(XR=B, YR=B, ST=B+4, xa=B+6, ya=B+7, X=B+8, N=B+16, EP=W, LP=W+16, SUM=W+32, sP=34+s_, sB=37+s_)
            self.sl.append(d)
            block_ur(E, s_)
            e(f's_lshl_b32 s{d["sB"]}, s13, 10')
            if s_ == 2:
                e(f's_cmp_lt_u32 s{sWi}, 2')
                e('s_cbranch_scc1 Ls3_done')
                e(f's_sub_u32 s{sT0}, s{sWi}, 2')
                e(f's_lshl_b32 s{sT0}, s{sT0}, 3')
                e(f's_add_u32 s{sT0}, s{sT0}, s{sFS}')
                e(f's_cmp_ge_u32 s{sT0}, 5')
                e(f's_cselect_b32 s{sT1}, 5, 0')
                e('s_cselect_b32 s14, 17, 16')
                e(f's_sub_u32 s15, s{sT0}, s{sT1}')
                e('s_cmp_lt_u32 s15, 5')
                e(f's_cselect_b32 s{self.sMO}, -1, 0')
                e('s_cselect_b32 s43, 0xff, 0')
                e('Ls3_done:')
                e('s_mov_b32 s42, s15')
            self.slot_addr(d, 14, 15)
            d['xl'] = E.vm(f'buffer_load_dwordx4 {vr(d["XR"])}, v{d["xa"]}, {sr(srdX)}, 0 offen')
        late_slabs(E, 64)
        e(f's_and_b32 s67, s{sFS}, 1')
        e('s_xor_b32 s67, s67, 1')
        e(f's_mul_i32 s67, s67, {PSTRIDE}')
    def unpack(self, dst, src, n=4):
        for j in range(n):
            self.E.e(f'v_lshlrev_b32 v{dst+2*j}, 16, v{src+j}')
            self.E.e(f'v_and_b32 v{dst+2*j+1}, 0xffff0000, v{src+j}')
    def add(self, d, src, first, pk):
        e = self.E.e; SUM = d['SUM']; T = vT
        if Opt.dot:
            for j in range(8):
                e(f'v_dot2_f32_bf16 v{SUM+j}, v{src + j//2}, s{32 + (j & 1)}, {"0" if first else f"v{SUM+j}"}')
            return
        self.unpack(SUM if first else T, src)
        if first: return
        if pk:
            for j in range(4): e(f'v_pk_add_f32 {vr(SUM+2*j,2)}, {vr(SUM+2*j,2)}, {vr(T+2*j,2)}')
        else:
            for j in range(8): e(f'v_add_f32 v{SUM+j}, v{SUM+j}, v{T+j}')
    def xn(self, d):
        E = self.E; e = E.e; T = vT
        X, N = d['X'], d['N']
        E.need(d['st'], d['xl'])
        self.unpack(X, d['XR'])
        def rnd(b):
            for j in range(4): e(f'v_cvt_pk_bf16_f32 v{T+j}, v{b+2*j}, v{b+2*j+1}')
            self.unpack(b, T)
        for i in range(8): e(f'v_sub_f32 v{N+i}, v{X+i}, v{d["ST"]}')
        rnd(N)
        for i in range(8): e(f'v_mul_f32 v{N+i}, v{N+i}, v{d["ST"]+1}')
        rnd(N)
    def tterm(self, d):
        E = self.E; e = E.e; T = vT
        E.need(d['yl'])
        self.unpack(T, d['YR'])
        for i in range(8): e(f'v_fma_f32 v{d["N"]+i}, v{d["N"]+i}, v{T+i}, v{d["X"]+i}')
    def final(self, d, so='0'):
        E = self.E; e = E.e
        SUM, N, X = d['SUM'], d['N'], d['X']
        e('s_nop 2')
        for j in range(4): e(f'v_permlane16_swap_b32 v{SUM+j}, v{SUM+4+j}')
        for i in range(8): e(f'v_fma_f32 v{N+i}, v{SUM+i}, s40, v{N+i}')
        for j in range(4): e(f'v_cvt_pk_bf16_f32 v{X+j}, v{N+2*j}, v{N+2*j+1}')
        E.vm(f'buffer_store_dwordx4 {vr(X)}, v{d["xa"]}, {sr(srdB1)}, {so} offen')
    def run(self, gate1):
        E = self.E; e = E.e; ts = self.ts; sl = self.sl
        for d in sl: self.xn(d)
        gate1()
        self.poll2('pe', self.sME, self.sMO, False)
        e(f's_mov_b32 s{self.sME}, 0')
        e(f's_mov_b32 s{self.sME+1}, {0 if Opt.x_noconv else 0x55}')
        e(f's_mov_b32 s{self.sMO}, 0')
        e(f's_mov_b32 s{self.sMO+1}, {0 if Opt.x_noconv else "s43"}')
        ts.stamp(E)
        tsn = ts.n
        e(f's_cmp_ge_u32 s{sWi}, 2')
        e('s_cbranch_scc1 Ltail2')
        st0 = E.state()
        for nreg in (3, 2):
            ts.n = tsn
            if nreg == 2:
                e('Ltail2:'); E.set_state(st0)
            reg = sl[:nreg]
            for d in reg:
                d['el'] = []
                e(f's_add_u32 s{sT0}, s{d["sP"]}, s67')
                for i in range(4):
                    if i: e(f's_add_u32 s{sT0}, s{sT0}, {2*PSTRIDE}')
                    d['el'].append(E.vm(f'buffer_load_dwordx4 {vr(d["EP"]+4*i)}, v7, {sr(srdWS)}, s{sT0} offen{SC}'))
            if nreg == 2:
                d = sl[2]
                e('s_cmp_ge_u32 s42, 5')
                e(f's_cselect_b32 s{sT0}, 0x40000000, s{d["sP"]}')
                e('s_cselect_b32 s42, 0x40000000, 0')
                e('v_lshlrev_b32 v10, 3, v1')
                ol = []
                for p in range(8):
                    if p: e(f's_add_u32 s{sT0}, s{sT0}, {PSTRIDE}')
                    r = d['EP'] + 4*p
                    E.vm(f'buffer_load_dwordx2 {vr(r,2)}, v10, {sr(srdWS)}, s{sT0} offen{SC}')
                    ol.append(E.vm(f'buffer_load_dwordx2 {vr(r+2,2)}, v10, {sr(srdWS)}, s{sT0} offen offset:512{SC}'))
            for d in reg:
                for i in range(4):
                    E.need(d['el'][i]); self.add(d, d['EP'] + 4*i, i == 0, False)
            if nreg == 2:
                d = sl[2]
                for p in range(8):
                    E.need(ol[p]); self.add(d, d['EP'] + 4*p, p == 0, False)
            self.poll2(f'py{nreg}', self.sME, self.sMO, True)
            for d in sl:
                d['yl'] = E.vm(f'buffer_load_dwordx4 {vr(d["YR"])}, v{d["ya"]}, {sr(srdWS)}, 0 offen{SC}')
            e(f'Lg2w{nreg}:')
            e(f'ds_read_b32 v{vS2}, v{vSB}')
            e('s_waitcnt lgkmcnt(0)')
            e(f'v_cmp_gt_u32 vcc, {3 + 22}, v{vS2}')
            e(f's_cbranch_vccz Lg2k{nreg}')
            e('s_sleep 1')
            e(f's_branch Lg2w{nreg}')
            e(f'Lg2k{nreg}:')
            ts.stamp(E)
            e('s_setprio 3')
            e('s_mov_b32 s10, 0')
            e(f's_lshr_b32 s{sT0}, s{sFS}, 1')
            e(f's_lshl_b32 s{sT0}, s{sT0}, 14')
            e(f's_add_u32 s{sT0}, s{sT0}, {XA_BYTES}')
            e(f'v_add_u32 v10, s{sT0}, v7')
            for d in reg:
                e(f'v_add_u32 v11, s{d["sB"]}, v10')
                d['ol'] = E.lg(f'ds_read_b128 {vr(d["LP"]+12)}, v11')
            e(f'Llate{nreg}:')
            for d in reg:
                for k in range(3):
                    e(f's_add_u32 s{sT0}, s{d["sP"]}, s{64+k}')
                    e(f'buffer_load_dwordx4 {vr(d["LP"]+4*k)}, v7, {sr(srdWS)}, s{sT0} offen{SC}')
            e('s_cmp_lg_u32 s10, 0')
            e(f's_cbranch_scc1 Llw{nreg}')
            for d in reg:
                E.need(d['ol']); self.add(d, d['LP'] + 12, False, True)
            e(f's_waitcnt vmcnt({3*nreg})')
            E.vm_done = E.vm_n - 1
            for d in sl: self.tterm(d)
            e(f'Llw{nreg}:')
            e('v_mov_b32 v10, 0')
            n = 3*nreg
            for di, d in enumerate(reg):
                for k in range(3):
                    n -= 1
                    e(f's_waitcnt vmcnt({n})')
                    r = d['LP'] + 4*k
                    e(f'v_max3_u32 v10, v10, v{r}, v{r+1}')
                    e(f'v_max3_u32 v10, v10, v{r+2}, v{r+3}')
            e('v_cmp_eq_u32 vcc, -1, v10')
            e(f's_cbranch_vccz Llok{nreg}')
            e('s_add_u32 s10, s10, 1')
            e('s_cmp_lt_u32 s10, 0x8000')
            e(f's_cbranch_scc1 Llate{nreg}')
            e(f'Llok{nreg}:')
            E.vm_done = E.vm_n - 1
            for d in reg:
                for k in range(3): self.add(d, d['LP'] + 4*k, False, True)
                self.final(d)
            if nreg == 2: self.final(sl[2], 's42')
            if Opt.ts:
                E.all_vm()
                ts.stamp(E)
                ts.flush(E, vT)
            e('s_endpgm')

RS = 4672
HS = 4160
HS2 = 2112
HB0 = 0
HB1 = HB0 + 4*4*HS
KVB = HB1 + 4*2*HS2
assert KVB + 16*RS <= LDS_BYTES - 64 and KVB % 256 == 0
def conv(E):
    e = E.e
    ts = TS(); ts.conv = True
    ts.stamp(E)
    sCT, sCh, sHB, sIt, sIdx = 10, 11, 6, 9, 5
    sMode, sLoc, sHsel, sWi_, sHS = 12, 13, 14, 42, 43
    e(f's_cmp_eq_u32 s{sIdx}, 5')
    e('s_cbranch_scc1 Lhelper')
    if Opt.x_noconv: e('s_endpgm')
    e(f's_lshl_b32 s{sCT}, s{sFS}, 2')
    e(f's_add_u32 s{sCT}, s{sCT}, s{sIdx}')
    e(f's_and_b32 s{sWi_}, s{sWave}, 3')
    e(f's_mov_b32 s{sMode}, 0')
    e(f's_mov_b32 s{sHsel}, 0')
    e(f's_lshl_b32 s{sLoc}, s{sWi_}, 2')
    e(f's_cmp_lt_u32 s{sIdx}, 4')
    e('s_cbranch_scc1 Lconv_go')
    e(f's_lshr_b32 s{sCT}, s{sFS}, 1')
    e(f's_add_u32 s{sCT}, s{sCT}, 32')
    e(f's_mov_b32 s{sMode}, 1')
    e(f's_and_b32 s{sHsel}, s{sFS}, 1')
    e(f's_lshl_b32 s{sLoc}, s{sHsel}, 2')
    e(f's_add_u32 s{sLoc}, s{sLoc}, s{sWi_}')
    e(f's_lshl_b32 s{sLoc}, s{sLoc}, 1')
    if Opt.cdelay: e(f's_sleep {Opt.cdelay}')
    e('Lconv_go:')
    srd(E, srdSSMK, sSSMK, D*S*2)
    e(f's_lshl_b32 s{sCh}, s{sCT}, 4')
    e(f's_add_u32 s{sCh}, s{sCh}, s{sLoc}')
    e(f'v_lshlrev_b32 v12, 7, v{vLane}')
    e(f's_lshl_b32 s15, s{sCh}, 12')
    e(f's_cmp_ge_u32 s{sWave}, 4')
    e('s_cbranch_scc1 Lconv_nw')
    e('s_mov_b32 exec_hi, 0')
    e(f'buffer_load_dword v15, v12, {sr(srdSSMK)}, s15 offen{Opt.nt}')
    e('s_mov_b32 exec_hi, -1')
    e('Lconv_nw:')
    vZ = 244
    for i in range(4): e(f'v_mov_b32 v{vZ+i}, 0')
    e(f's_mul_i32 s{sHB}, s{sWi_}, {4*HS}')
    e(f's_add_u32 s{sHB}, s{sHB}, {HB0}')
    e(f's_mul_i32 s{sT0}, s{sWi_}, {2*HS2}')
    e(f's_add_u32 s{sT0}, s{sT0}, {HB1}')
    e(f's_movk_i32 s{sT1}, {HS2}')
    e(f's_cmp_ge_u32 s{sWave}, 4')
    e(f's_cselect_b32 s{sHB}, s{sT0}, s{sHB}')
    e(f's_cselect_b32 s{sHS}, s{sT1}, {HS}')
    e(f's_cselect_b32 s{sT0}, 3, 7')
    e('v_lshrrev_b32 v13, 5, v0')
    e(f'v_mul_u32_u24 v13, {RS}, v13')
    e('v_and_b32 v14, 31, v0')
    e('v_lshl_add_u32 v13, v14, 4, v13')
    e(f'v_add_u32 v13, {KVB}, v13')
    E.lg(f'ds_write_b128 v13, {vr(vZ)} offset:4096')
    e(f'v_and_b32 v13, s{sT0}, v{vLane}')
    e('v_lshrrev_b32 v14, 1, v13')
    e(f'v_mul_lo_u32 v14, v14, s{sHS}')
    e('v_and_b32 v13, 1, v13')
    e('v_lshl_add_u32 v13, v13, 4, v14')
    e(f'v_add_u32 v13, s{sHB}, v13')
    E.lg(f'ds_write_b128 v13, {vr(vZ)}')
    vCn = 240
    e(f'v_mov_b32 v{vCn}, {LDS_BYTES-64}')
    E.lg(f'ds_write_b128 v{vCn}, {vr(vZ)}')
    for o_ in (16, 32, 48): E.lg(f'ds_write_b128 v{vCn}, {vr(vZ)} offset:{o_}')
    vPr, vHa = 243, 250
    e(f's_lshl_b32 s{sT0}, s{sWi_}, 2')
    e(f'v_add_u32 v{vPr}, s{sT0}, v{vCn}')
    sHBA, sChA = 101, 100
    e(f's_mul_i32 s{sHBA}, s{sWi_}, {4*HS}')
    e(f's_add_u32 s{sT0}, s{sHBA}, {HS}')
    e(f'v_mov_b32 v{vHa}, s{sT0}')
    e(f's_mov_b32 s{sChA}, s{sCh}')
    srd(E, srdK, sK, S*D*2)
    srd(E, srdV, sV, S*D*2)
    vRg, vHf, b0, b1, b2 = 2, 3, 4, 5, 6
    e(f'v_lshrrev_b32 v{vRg}, 1, v0')
    e(f'v_and_b32 v{vHf}, 1, v0')
    e(f'v_mul_u32_u24 v{b1}, {8*1152}, v{vRg}')
    e(f'v_lshl_add_u32 v{b1}, v{vHf}, 4, v{b1}')
    e(f's_lshl_b32 s{sT0}, s{sCT}, 5')
    e(f'v_add_u32 v{b1}, s{sT0}, v{b1}')
    e(f'v_subrev_u32 v{b0}, 3456, v{b1}')
    e(f'v_add_u32 v{b2}, 4608, v{b1}')
    KR, VR, SKR, SKF = 16, 60, 92, 108
    srd(E, srdSHK, sSHK, D*4*2)
    e(f's_lshl_b32 s{sT0}, s{sCT}, 7')
    e(f'v_lshlrev_b32 v7, 6, v{vHf}')
    skl = [E.vm(f'buffer_load_dwordx4 {vr(SKR+4*i)}, v7, {sr(srdSHK)}, s{sT0} offen offset:{16*i}') for i in range(4)]
    srd(E, srdSSMD, sSSMD, D*2)
    srd(E, srdWS, sWS, WS_BYTES)
    vL16 = 8
    vH0, vDv, vDraw = 9, 10, 248
    e(f'v_lshlrev_b32 v{vL16}, 4, v{vLane}')
    def hload(np_, buf, hs=None):
        e(f's_lshl_b32 s{sT0}, s{sCh}, 12')
        e(f's_add_u32 m0, s{sHB}, {32 + buf*2*HS}')
        e(f's_add_u32 s{sT1}, s{sT0}, 2')
        ids = []
        for i in range(np_):
            if i == 2 and hs is None:
                e(f's_cmp_ge_u32 s{sWave}, 4'); e('s_cbranch_scc1 Lh0a')
            ids.append(E.vm(f'buffer_load_dwordx4 v{vL16}, {sr(srdSSMK)}, s{sT0} offen offset:{1024*i} lds'))
        if hs is None:
            e('Lh0a:')
            e(f's_add_u32 m0, m0, s{sHS}')
        else:
            e(f's_add_u32 m0, m0, {hs}')
        e('s_nop 0')
        for i in range(np_):
            if i == 2 and hs is None:
                e(f's_cmp_ge_u32 s{sWave}, 4'); e('s_cbranch_scc1 Lh0b')
            ids.append(E.vm(f'buffer_load_dwordx4 v{vL16}, {sr(srdSSMK)}, s{sT1} offen offset:{1024*i} lds'))
        if hs is None: e('Lh0b:')
        ids.append(E.vm(f'buffer_load_ushort v{vH0 + 2*buf}, v{vZ}, {sr(srdSSMK)}, s{sT0} offen'))
        return ids
    def hloadA(buf):
        e(f's_add_u32 s{sChA}, s{sChA}, 1')
        e(f's_lshl_b32 s{sT0}, s{sChA}, 12')
        e(f's_add_u32 m0, s{sHBA}, {32 + buf*2*HS}')
        e(f's_add_u32 s{sT1}, s{sT0}, 2')
        for i in range(4): e(f'buffer_load_dwordx4 v{vL16}, {sr(srdSSMK)}, s{sT0} offen offset:{1024*i} lds')
        e(f's_add_u32 m0, m0, {HS}')
        e('s_nop 0')
        for i in range(4): e(f'buffer_load_dwordx4 v{vL16}, {sr(srdSSMK)}, s{sT1} offen offset:{1024*i} lds')
        e(f'buffer_load_ushort v11, v{vZ}, {sr(srdSSMK)}, s{sT0} offen')
    def hreadyA(buf, val):
        e(f'ds_write_b16 v{vHa}, v11 offset:{30 + buf*2*HS}')
        e(f'v_mov_b32 v251, {val}')
        e('s_waitcnt lgkmcnt(0)')
        e(f'ds_write_b32 v{vPr}, v251 offset:32')
    uid = [0]
    def onlyB(f, full=False):
        uid[0] += 1
        e(f's_cmp_lt_u32 s{sWave}, 4'); e(f's_cbranch_scc1 LoB{uid[0]}')
        if full:
            e(f's_cmp_lg_u32 s{sMode}, 0'); e(f's_cbranch_scc1 LoB{uid[0]}')
        f()
        e(f'LoB{uid[0]}:')
    e(f's_lshl_b32 s{sT0}, s{sCh}, 1')
    E.vm(f'buffer_load_dwordx2 {vr(vDraw,2)}, v{vZ}, {sr(srdSSMD)}, s{sT0} offen')
    vFo_, vFa_ = 241, 242
    e(f'v_mul_u32_u24 v{vFa_}, {9*FLB}, v{vLane}')
    e(f's_lshr_b32 s{sT0}, s{sCT}, 2')
    e(f's_lshl_b32 s{sT0}, s{sT0}, 8')
    e(f's_and_b32 s{sT1}, s{sCT}, 3')
    e(f's_lshl_b32 s{sT1}, s{sT1}, 1')
    e(f's_add_u32 s{sT1}, s{sT1}, s{sHsel}')
    e(f's_lshl_b32 s{sT1}, s{sT1}, 2')
    e(f's_add_u32 s{sT0}, s{sT0}, s{sT1}')
    e(f's_add_u32 s{sT0}, s{sT0}, {WS_FL + 128}')
    e(f'v_add_u32 v{vFa_}, s{sT0}, v{vFa_}')
    E.all_lg()
    e('s_barrier')
    def cpoll(name, off, thr=4, va=None):
        e(f'L{name}:')
        e(f'ds_read_b32 v252, v{va or vCn} offset:{off}')
        e('s_waitcnt lgkmcnt(0)')
        e(f'v_readfirstlane_b32 s{sT0}, v252')
        e(f's_cmp_ge_u32 s{sT0}, {thr}')
        e(f's_cbranch_scc1 L{name}_ok')
        e('s_sleep 2')
        e(f's_branch L{name}')
        e(f'L{name}_ok:')
    e(f's_cmp_lt_u32 s{sWave}, 4')
    e('s_cbranch_scc1 Lconv_a')
    cpoll('cpollb', 8)
    hloadA(1)
    e(f's_cmp_lg_u32 s{sMode}, 0')
    e('s_cbranch_scc1 Lconv_ld')
    e('s_add_u32 s15, s15, 8192')
    e(f'buffer_load_dword v15, v12, {sr(srdSSMK)}, s15 offen')
    if Opt.bq:
        e(f's_lshl_b32 s{sT0}, s{sIdx}, 2')
        e(f's_add_u32 s{sT0}, s{sT0}, s{sWi_}')
        e(f's_mul_i32 s{sT0}, s{sT0}, {64*1152}')
        e(f's_lshl_b32 s{sT1}, s{sFS}, 7')
        e(f's_add_u32 s{sT0}, s{sT0}, s{sT1}')
        e(f's_add_u32 s{sT0}, s{sT0}, {1024*1152}')
        e(f'v_mul_u32_u24 v13, 1152, v{vLane}')
        e(f'buffer_load_dword v15, v13, {sr(srdK)}, s{sT0} offen nt')
        e(f'buffer_load_dword v15, v13, {sr(srdV)}, s{sT0} offen nt')
        e('s_waitcnt vmcnt(0)')
    e('s_branch Lconv_ld')
    e('Lconv_a:')
    e(f's_cmp_lg_u32 s{sMode}, 0')
    e('s_cbranch_scc1 Lconv_ld')
    e('s_waitcnt vmcnt(0)')
    e('Lconv_ld:')
    ts.stamp(E)
    kl, vl = [], []
    for j in range(3, 11):
        bb, off = (b1, (j-3)*1152) if j < 7 else (b2, (j-7)*1152)
        kl.append(E.vm(f'buffer_load_dwordx4 {vr(KR+4*j)}, v{bb}, {sr(srdK)}, 0 offen offset:{off}'))
    def sig1():
        e('s_waitcnt vmcnt(8)')
        e(f's_lshl_b32 s{sT0}, s{sMode}, 1')
        e(f's_add_u32 s{sT0}, s{sT0}, 1')
        hreadyA(1, f's{sT0}')
    onlyB(sig1)
    for j in range(8):
        bb, off = (b1, j*1152) if j < 4 else (b2, (j-4)*1152)
        vl.append(E.vm(f'buffer_load_dwordx4 {vr(VR+4*j)}, v{bb}, {sr(srdV)}, 0 offen offset:{off}'))
    e('s_mov_b32 exec_lo, 0x00030003')
    e('s_mov_b32 exec_hi, 0x00030003')
    for j in range(3):
        kl.append(E.vm(f'buffer_load_dwordx4 {vr(KR+4*j)}, v{b0}, {sr(srdK)}, 0 offen offset:{j*1152}'))
    e('s_mov_b64 exec, -1')
    vmn = E.vm_n
    hload(4, 0)
    E.vm_n = vmn + 5
    e('v_mov_b32 v12, 1')
    e('s_mov_b64 exec, 1')
    E.lg(f'ds_add_u32 v{vCn}, v12 offset:8')
    e(f's_mov_b64 exec, {(1 << NMT) - 1}')
    e(f's_cmp_eq_u32 s{sWave}, 7')
    e(f's_cselect_b32 s{sT0}, 0, 0x40000000')
    E.vm(f'buffer_load_dword v{vFo_}, v{vFa_}, {sr(srdWS)}, s{sT0} offen{SC}')
    e('s_mov_b64 exec, -1')
    vKW = 14
    e(f'v_mul_u32_u24 v{vKW}, {8*RS}, v{vHf}')
    e(f'v_lshlrev_b32 v12, 4, v{vRg}')
    e(f'v_sub_u32 v{vKW}, v{vKW}, v12')
    e(f'v_add_u32 v{vKW}, {KVB + 4080}, v{vKW}')
    onlyB(lambda: (cpoll('cpa1', 48, 1, vPr), hloadA(0), e('s_waitcnt vmcnt(0)'), hreadyA(0, 2)), True)
    E.need(*(kl + vl + skl))
    ts.stamp(E)
    for j in range(3):
        for m in range(4):
            e(f'v_mov_b32_dpp v{KR+4*j+m}, v{KR+4*(j+8)+m} row_shr:2 row_mask:0xf bank_mask:0xf')
    for i in range(16):
        e(f'v_lshlrev_b32 v{SKF+2*i}, 16, v{SKR+i}')
        e(f'v_and_b32 v{SKF+2*i+1}, 0xffff0000, v{SKR+i}')
    KF, AC, PK = 144, 156, 164
    for ch in range(8):
        m, hi = divmod(ch, 2)
        def unp(d, s_):
            e(f'v_and_b32 v{d}, 0xffff0000, v{s_}' if hi else f'v_lshlrev_b32 v{d}, 16, v{s_}')
        for j in range(11): unp(KF+j, KR+4*j+m)
        for s_ in range(8): e(f'v_mul_f32 v{AC+s_}, v{KF+s_}, v{SKF+4*ch+3}')
        for tap in (2, 1, 0):
            for s_ in range(8): e(f'v_fmac_f32 v{AC+s_}, v{KF+s_+3-tap}, v{SKF+4*ch+tap}')
        for s_ in range(8): unp(KF+s_, VR+4*s_+m)
        for s_ in range(8): e(f'v_mul_f32 v{AC+s_}, v{AC+s_}, v{KF+s_}')
        pk = PK + 4*(ch & 1)
        for mm in range(4): e(f'v_cvt_pk_bf16_f32 v{pk+mm}, v{AC+7-2*mm}, v{AC+6-2*mm}')
        E.lg(f'ds_write_b128 v{vKW}, {vr(pk)} offset:{ch*RS}')
        if ch == Opt.h3at: onlyB(lambda: (cpoll('cpa2', 48, 2, vPr), hloadA(1)), True)
    onlyB(lambda: (e('s_waitcnt vmcnt(0)'), hreadyA(1, 3)), True)
    vA = [2, 3, 4, 5]; vB, vE, vHh = 6, 7, 12
    e(f'v_and_b32 v12, 15, v{vLane}')
    e(f'v_lshrrev_b32 v13, 4, v{vLane}')
    e(f'v_and_b32 v14, 1, v12')
    e(f'v_add_u32 v{vA[0]}, v12, v14')
    e(f'v_lshl_add_u32 v{vA[0]}, v13, 3, v{vA[0]}')
    e(f'v_lshlrev_b32 v{vA[0]}, 1, v{vA[0]}')
    e(f'v_xor_b32 v14, 1, v14')
    e(f'v_mul_lo_u32 v14, v14, s{sHS}')
    e(f'v_add3_u32 v{vA[0]}, v{vA[0]}, v14, s{sHB}')
    for i in range(1, 4): e(f'v_add_u32 v{vA[i]}, {1024*i}, v{vA[0]}')
    e(f's_mul_i32 s{sT0}, s{sLoc}, {RS}')
    e(f'v_lshlrev_b32 v14, 5, v12')
    e(f'v_lshlrev_b32 v{vB}, 4, v13')
    e(f'v_sub_u32 v{vB}, v{vB}, v14')
    e(f'v_add_u32 v{vB}, {KVB + 480}, v{vB}')
    e(f'v_add_u32 v{vB}, s{sT0}, v{vB}')
    e(f'v_lshl_add_u32 v14, v13, 3, v14')
    e(f'v_sub_u32 v{vE}, {KVB + 504}, v14')
    e(f'v_add_u32 v{vE}, s{sT0}, v{vE}')
    e(f's_add_u32 s{sT0}, s{sHB}, s{sHS}')
    e(f'v_mov_b32 v{vHh}, s{sT0}')
    e(f's_and_b32 s{sT0}, s{sWave}, 4')
    e(f'v_add_u32 v13, s{sT0}, v{vCn}')
    e('v_mov_b32 v14, 1')
    E.all_lg()
    e('s_mov_b64 exec, 1')
    e('ds_add_u32 v13, v14')
    e('s_mov_b64 exec, -1')
    ts.stamp(E)
    cpoll('cpoll0', 0)
    AF, BF, ACC0 = 16, 80, 112
    def w2pf():
        e(f's_mov_b32 s{srdK}, s{sW2}')
        e(f's_and_b32 s{srdK+1}, s{sW2+1}, 0xffff')
        e(f's_add_u32 s{sT0}, s{sFS}, 1')
        e(f's_mul_i32 s{sT0}, s{sT0}, 663552')
        e(f's_cmp_eq_u32 s{sMode}, 0')
        e(f's_cselect_b32 s{srdK+2}, s{sT0}, 0')
        e(f's_mov_b32 s{srdK+3}, 0x20000')
        e(f's_mul_i32 s15, s{sFS}, 663552')
        e(f's_lshl_b32 s{sT1}, s{sIdx}, 2')
        e(f's_add_u32 s{sT1}, s{sT1}, s{sWi_}')
        e(f's_mul_i32 s{sT1}, s{sT1}, {16*1152}')
        e(f's_add_u32 s15, s15, s{sT1}')
        e(f's_and_b32 s{sT1}, s{sFS}, 1')
        e(f's_lshl_b32 s{sT1}, s{sT1}, 9')
        e(f's_add_u32 s15, s15, s{sT1}')
        e(f'v_lshrrev_b32 v13, 2, v{vLane}')
        e('v_mul_u32_u24 v13, 1152, v13')
        e(f'v_and_b32 v14, 3, v{vLane}')
        e('v_lshl_add_u32 v13, v14, 7, v13')
    def w2one():
        e(f'buffer_load_dword v15, v13, {sr(srdK)}, s15 offen')
        e(f's_add_u32 s15, s15, {256*1152}')
    def cpass(us, nE, ACC, boff, zero, hook=None, vhook=None):
        aid, bid = {}, {}
        def aread(v, ee, h):
            r = AF + 32*(v % 2) + 4*ee + 2*h
            o = (512*(ee & 1) + 64*(7-v) + 8*h) // 4
            aid.setdefault((v, ee), []).append(E.lg(f'ds_read2_b32 {vr(r,2)}, v{vA[ee >> 1]} offset0:{o} offset1:{o+1}'))
        def bread(v, u):
            bid[(v, u)] = E.lg(f'ds_read_b128 {vr(BF + 16*(v % 2) + 4*(u & 3))}, v{vB} offset:{boff + 512*(7-u) + 64*(7-v)}')
        def reads(v):
            L = [lambda: bread(v, us[0])]
            for ee in range(nE):
                L += [lambda ee=ee: aread(v, ee, 0), lambda ee=ee: aread(v, ee, 1)]
            L += [(lambda u=u: bread(v, u)) for u in us[1:]]
            return L
        for f in reads(0): f()
        nm = sum(8-u for u in us)
        for v in range(8):
            fill = reads(v+1) if v < 7 else []
            nf = len(fill); cnt = 0; done = 0
            for u in us:
                for w in range(u, 8):
                    E.need(*(aid[(v, w-u)] + [bid[(v, u)]]))
                    c = '0' if (zero and v == 0 and u == us[0]) else vr(ACC+4*w)
                    e(f'v_mfma_f32_16x16x32_bf16 {vr(ACC+4*w)}, {vr(AF + 32*(v % 2) + 4*(w-u))}, {vr(BF + 16*(v % 2) + 4*(u & 3))}, {c}')
                    cnt += 1
                    while fill and done < cnt * nf / max(nm - 2, 1):
                        fill.pop(0)(); done += 1
                    if hook and v == 7 and u == us[1] and w == u: hook()
                    if vhook and v in vhook[0] and cnt == nm - 1: vhook[1]()
            assert not fill
    def epi(ws_, ACC, off, plain_from):
        KVR, TT = 16, 40
        kr = {w: E.lg(f'ds_read_b64 {vr(KVR+2*w,2)}, v{vE} offset:{off + 512*(7-w)}') for w in ws_}
        e('s_nop 3')
        for w in ws_:
            E.need(kr[w])
            a = ACC + 4*w; t = TT + 4*(w & 1)
            e(f'v_lshlrev_b32 v{t+3}, 16, v{KVR+2*w}')
            e(f'v_and_b32 v{t+2}, 0xffff0000, v{KVR+2*w}')
            e(f'v_lshlrev_b32 v{t+1}, 16, v{KVR+2*w+1}')
            e(f'v_and_b32 v{t}, 0xffff0000, v{KVR+2*w+1}')
            for r in range(4):
                e(f'v_add_f32 v{a+r}, v{a+r}, v{t+r}' if w >= plain_from else f'v_fmac_f32 v{a+r}, v{t+r}, v{vDv}')
            e(f'v_cvt_pk_bf16_f32 v{KVR+2*w}, v{a+3}, v{a+2}')
            e(f'v_cvt_pk_bf16_f32 v{KVR+2*w+1}, v{a+1}, v{a}')
            E.lg(f'ds_write_b64 v{vE}, {vr(KVR+2*w,2)} offset:{off + 512*(7-w)}')
    def setD(c):
        r = vDraw + c // 2
        e(f'v_and_b32 v{vDv}, 0xffff0000, v{r}' if c & 1 else f'v_lshlrev_b32 v{vDv}, 16, v{r}')
    e(f's_cmp_ge_u32 s{sWave}, 4')
    e('s_cbranch_scc1 Lconv_B')
    tsn = ts.n
    w2pf()
    e(f's_cmp_eq_u32 s{sMode}, 0')
    e('s_cbranch_scc1 LcA0')
    e(f'v_subrev_u32 v{vB}, {2*RS}, v{vB}')
    e(f'v_subrev_u32 v{vE}, {2*RS}, v{vE}')
    e('s_waitcnt vmcnt(0)')
    e(f'v_mov_b32 v{vDraw+1}, v{vDraw}')
    e('s_branch LcA2')
    for c in range(4):
        e(f'LcA{c}:')
        buf = c & 1
        if c in (0, 2):
            if c == 2:
                e(f's_cmp_eq_u32 s{sMode}, 0'); e('s_cbranch_scc1 LcAx2')
            e('s_waitcnt vmcnt(0)')
            e(f'ds_write_b16 v{vHh}, v{vH0} offset:30')
            e('s_waitcnt lgkmcnt(0)')
            if c == 2:
                e('s_branch Lcph2_ok'); e('LcAx2:')
        if c > 0: cpoll(f'cph{c}', 32, c, vPr)
        E.reset()
        ts.stamp(E)
        def prog(c=c):
            e(f'v_mov_b32 v251, {c + 1}')
            E.lg(f'ds_write_b32 v{vPr}, v251 offset:48')
        vh = (1, 3, 5) if c == Opt.w2at else None
        cpass([0, 1, 2, 3], 8, ACC0 + 32*c, c*RS, True, prog if c < 2 else None, (vh, w2one) if vh else None)
        if c < 3:
            d = 2*HS if buf == 0 else -2*HS
            for i in range(4):
                e(f'v_add_u32 v{vA[i]}, {2*HS}, v{vA[i]}' if buf == 0 else f'v_subrev_u32 v{vA[i]}, {2*HS}, v{vA[i]}')
    E.all_lg()
    cpoll('cpoll1', 4)
    ts.stamp(E)
    cpass([4, 5, 6, 7], 4, ACC0 + 96, 3*RS, False)
    setD(3)
    epi(range(8), ACC0 + 96, 3*RS, 8)
    e(f's_cmp_lg_u32 s{sMode}, 0')
    e('s_cbranch_scc1 LcAe2')
    if Opt.nb == 2:
        for i in range(4): e(f'v_subrev_u32 v{vA[i]}, {2*HS}, v{vA[i]}')
        E.all_lg()
        cpass([4, 5, 6, 7], 4, ACC0 + 64, 2*RS, False)
        setD(2)
        epi(range(8), ACC0 + 64, 2*RS, 8)
    for c in range(3):
        if c == 2 and Opt.nb == 2: e('s_branch Lconv_fin')
        e(f'LcAe{c}:')
        cpoll(f'cpe{c}', 16, c + 1, vPr)
        E.reset()
        setD(c)
        epi(range(8), ACC0 + 32*c, c*RS, 4)
    e('s_branch Lconv_fin')
    e('Lconv_B:')
    tsA = ts.n; ts.n = tsn
    cpoll('cpoll2', 4)
    if Opt.cprio: e('s_setprio 1')
    e(f's_lshl_b32 s{sIt}, s{sMode}, 1')
    e('LcB:')
    e('s_waitcnt vmcnt(0) lgkmcnt(0)')
    E.reset()
    w0 = E.lg(f'ds_write_b16 v{vHh}, v{vH0} offset:30')
    e(f'v_lshlrev_b32 v{vDv}, 16, v{vDraw}')
    e(f'v_alignbit_b32 v{vDraw}, v{vDraw+1}, v{vDraw}, 16')
    e(f'v_lshrrev_b32 v{vDraw+1}, 16, v{vDraw+1}')
    E.need(w0)
    def refill():
        e(f's_cmp_ge_u32 s{sIt}, {Opt.nb - 1}')
        e('s_cbranch_scc1 LcB_nr')
        e(f's_add_u32 s{sCh}, s{sCh}, 1')
        hload(2, 0, HS2)
        e('LcB_nr:')
    cpass([4, 5, 6, 7], 4, ACC0, 0, True, refill)
    epi(range(4, 8), ACC0, 0, 8)
    e(f's_add_u32 s{sIt}, s{sIt}, 1')
    e(f'v_mov_b32 v14, s{sIt}')
    E.all_lg()
    e(f'ds_write_b32 v{vPr}, v14 offset:16')
    e(f'v_add_u32 v{vB}, {RS}, v{vB}')
    e(f'v_add_u32 v{vE}, {RS}, v{vE}')
    e(f's_cmp_lt_u32 s{sIt}, {Opt.nb}')
    e('s_cbranch_scc1 LcB')
    while ts.n < tsA: ts.stamp(E)
    e('Lconv_fin:')
    if Opt.d_conv: e(f's_sleep {Opt.d_conv}')
    e('s_waitcnt vmcnt(0) lgkmcnt(0)')
    E.reset()
    ts.stamp(E)
    e('s_barrier')
    e(f'v_lshrrev_b32 v2, 5, v{vLane}')
    e(f'v_lshrrev_b32 v3, 2, v{vLane}')
    e('v_and_b32 v3, 3, v3')
    e('v_lshl_add_u32 v3, v2, 3, v3')
    e(f'v_mul_u32_u24 v3, {RS}, v3')
    e(f'v_and_b32 v4, 16, v{vLane}')
    e('v_lshl_add_u32 v3, v4, 1, v3')
    e(f'v_and_b32 v5, 3, v{vLane}')
    e('v_lshl_add_u32 v3, v5, 3, v3')
    e(f's_lshl_b32 s{sT0}, s{sWave}, 9')
    e(f's_add_u32 s{sT0}, s{sT0}, {KVB}')
    e(f'v_add_u32 v3, s{sT0}, v3')
    e(f'v_and_b32 v5, 31, v{vLane}')
    e(f's_lshl_b32 s{sT0}, s{sWave}, 8')
    e(f'v_add_u32 v5, s{sT0}, v5')
    e(f'v_sub_u32 v5, {2047-224}, v5')
    e('v_lshlrev_b32 v5, 4, v5')
    e('v_lshl_add_u32 v5, v2, 15, v5')
    e(f's_lshl_b32 s{sT0}, s{sCT}, 16')
    e(f's_add_u32 s{sT0}, s{sT0}, {WS_Y}')
    e(f's_add_u32 s{sT1}, s{sT0}, 4096')
    rd = []
    for blk in range(8):
        r = 16 + 4*blk
        i0 = E.lg(f'ds_read_b64_tr_b16 {vr(r,2)}, v3 offset:{64*blk}')
        i1 = E.lg(f'ds_read_b64_tr_b16 {vr(r+2,2)}, v3 offset:{64*blk + 4*RS}')
        rd.append([i0, i1])
    E.all_lg()
    e(f's_cmp_eq_u32 s{sMode}, 0')
    e('s_cbranch_scc1 Lconv_st')
    e(f's_sub_u32 exec_lo, s{sHsel}, 1')
    e(f's_sub_u32 exec_hi, 0, s{sHsel}')
    e('Lconv_st:')
    for blk in range(8):
        E.vm(f'buffer_store_dwordx4 {vr(16+4*blk)}, v5, {sr(srdWS)}, s{sT0} offen offset:{(7-blk)*512}{SC}')
    e('s_mov_b64 exec, -1')
    E.all_vm()
    e('s_barrier')
    e(f's_cmp_lg_u32 s{sWave}, 7')
    e('s_cbranch_scc1 Lconv_end')
    e(f'v_add_u32 v{vFo_}, 1, v{vFo_}')
    e(f's_mov_b64 exec, {(1 << NMT) - 1}')
    e(f'buffer_store_dword v{vFo_}, v{vFa_}, {sr(srdWS)}, 0 offen{SC}')
    e('s_mov_b64 exec, -1')
    e('Lconv_end:')
    if Opt.ts:
        ts.stamp(E)
        ts.flush(E, 60)
    e('s_endpgm')
    e('Lhelper:')
    srd(E, srdW2, sW2, D*F*2)
    e(f's_mul_i32 s{sT0}, s{sFS}, 663552')
    e(f's_and_b32 s10, s{sFS}, 1')
    e('s_xor_b32 s10, s10, 1')
    e('s_lshl_b32 s10, s10, 2')
    if Opt.hdelay: e(f's_sleep {Opt.hdelay}')
    for i in range(6):
        e(f'v_add_u32 v2, {512*i}, v0')
        e('v_mul_u32_u24 v3, 13108, v2')
        e('v_lshrrev_b32 v3, 16, v3')
        e('v_mul_u32_u24 v4, 5, v3')
        e('v_sub_u32 v4, v2, v4')
        e('v_cmp_eq_u32 vcc, 4, v4')
        e('v_add_u32 v4, s10, v4')
        e('v_min_u32 v3, 575, v3')
        e('v_cndmask_b32 v4, v4, 8, vcc')
        e('v_mul_u32_u24 v3, 1152, v3')
        e('v_lshl_add_u32 v3, v4, 7, v3')
        e(f'buffer_load_dword v8, v3, {sr(srdW2)}, s{sT0} offen')
        e('s_barrier')
    if Opt.ts:
        e('s_waitcnt vmcnt(0)')
        srd(E, srdWS, sWS, WS_BYTES)
        ts.n = 1; ts.stamp(E); ts.flush(E, 60); e('s_mov_b64 exec, -1')
    if Opt.tlbw:
        srd(E, srdWS, sWS, WS_BYTES)
        srd(E, srdB1, sOUT, S*D*2)
        e('v_lshlrev_b32 v2, 16, v0')
        e(f'buffer_load_dword v14, v2, {sr(srdWS)}, 0 offen{SC}')
        e(f'buffer_load_dword v15, v2, {sr(srdB1)}, 0 offen')
    e('s_waitcnt vmcnt(0)')
    e('s_endpgm')

def k1(E):
    e = E.e
    e('.p2align 8')
    e(f'.type {KNAME},@function')
    e(f'{KNAME}:')
    e(f's_cmp_ge_u32 s2, {NWG}')
    e('s_cbranch_scc1 Lk1_exit')
    TS().rt0(E)
    for i in range(Opt.d_sleep): e('s_sleep 127')
    e('s_load_dwordx16 s[16:31], s[0:1], 0')
    e('s_load_dwordx8 s[32:39], s[0:1], 64')
    e('s_load_dwordx2 s[40:41], s[0:1], 96')
    e(f'v_and_b32 v{vLane}, 63, v0')
    e('v_lshrrev_b32 v2, 6, v0')
    e(f's_and_b32 s{sFS}, s2, 7')
    e(f'v_readfirstlane_b32 s{sWave}, v2')
    e(f's_lshr_b32 s{sMT}, s2, 3')
    if Opt.code_pf:
        e('s_getpc_b64 s[10:11]')
        e('Lpc:')
        e(f'v_lshl_add_u32 v3, v0, 5, s{sMT}')
        e('v_lshlrev_b32 v3, 7, v3')
        e('v_cmp_gt_u32 vcc, Lk1_exit-Lpc, v3')
        e('s_and_saveexec_b64 s[12:13], vcc')
        e('s_cbranch_execz Lnocpf')
        e(f'global_load_dword v{vDum}, v3, s[10:11]')
        e('Lnocpf:')
        e('s_mov_b64 exec, s[12:13]')
    e(f's_cmp_lt_u32 s{sMT}, {IDX_MLP0}')
    e('s_waitcnt lgkmcnt(0)')
    if Opt.d_end:
        e('s_cselect_b32 s99, 1, 0')
        if Opt.d_end == 2:
            e('v_lshlrev_b32 v3, 16, v0')
            for (p, n) in ((sQ, S*D*2), (sK, S*D*2), (sV, S*D*2), (sSSMK, S*D*2), (sW1, D*F*2), (sW2, D*F*2), (sOUT, S*D*2), (sWS, WS_BYTES), (sB1, F*2), (sSHK, 4608), (sSSMD, 1152)):
                srd(E, 44, p, n)
                e('buffer_load_dword v4, v3, s[44:47], 0 offen sc1 nt')
        for i in range(2): e('s_sleep 127')
        e('s_cmp_eq_u32 s99, 1')
    e('s_cbranch_scc1 Lconv')
    if Opt.nomlp: e('s_endpgm')
    ts = TS()
    ts.stamp(E)
    P = mlp_prologue(E, ts)
    pre_ids = []
    mlp_ln(E, P, ts, lambda: pre_ids.extend(mlp_prefill(E)))
    st = E.state(); tsn = ts.n
    e(f's_cmp_ge_u32 s{sWave}, 4')
    e('s_cbranch_scc1 LmlpB')
    mlp_main(E, 'P', P, ts, pre_ids)
    e('LmlpB:')
    E.set_state(st); ts.n = tsn
    E.vm_n -= 8 - (1 if Opt.qpf else 0)
    mlp_main(E, 'Q', P, ts, pre_ids)
    for l in stubs: e(l)
    e('Lmlp_end:')
    e('Lconv:')
    E.reset()
    conv(E)
    e('Lk1_exit:')
    e('s_endpgm')

def desc(name, vg, sg):
    return f'''.p2align 6
.amdhsa_kernel {name}
  .amdhsa_next_free_vgpr {vg}
  .amdhsa_next_free_sgpr {sg}
  .amdhsa_accum_offset {vg}
  .amdhsa_group_segment_fixed_size 0
  .amdhsa_kernarg_size 104
  .amdhsa_user_sgpr_count 2
  .amdhsa_user_sgpr_kernarg_segment_ptr 1
  .amdhsa_system_sgpr_workgroup_id_x 1
.end_amdhsa_kernel
'''

def build():
    E = Em()
    e = E.e
    head = HDR + f'; @launch grid=({NWG},1,1) block=(512,1,1) lds={LDS_BYTES}\n'
    head += f'.amdgcn_target "amdgcn-amd-amdhsa--gfx950"\n.text\n.globl {KNAME}\n'
    k1(E)
    tail = '.section .rodata,"a"\n' + desc(KNAME, 256, 102)
    return head + E.text() + tail

if __name__ == '__main__':
    out = sys.argv[1] if len(sys.argv) > 1 else 'cdna_kernels/' + NAME + '.s'
    for a in sys.argv[2:]:
        k, v = a.split('=', 1)
        cur = getattr(Opt, k)
        setattr(Opt, k, type(cur)(int(v)) if isinstance(cur, (bool, int)) else v)
    Em.lgmerge = Opt.lgmerge
    t = build()
    open(out, 'w').write(t)
    print(out, len(t), 'bytes', t.count('\n'), 'lines')
```

```python
import sys
from em import Em, vr, sr

NAME = 'parallel_sum__ssm_conv_h3__dense_activation_mish__prompt'
HDR = open('cdna_kernels/' + NAME + '.s.ref').read().split('; Override launch')[0]

S, D, F = 2048, 576, 4608
NMT = 26
N_MLP = NMT * 8
N_CONV = 36
NWG = 256
IDX_MLP0 = 6
PSTRIDE = 130 * 18432
WS_P = 0
WS_Y = 20 << 20
WS_ST = 24 << 20
WS_TS = 28 << 20
WS_FL = 26 << 20
KNAME = NAME + '_kernel'
WS_BYTES = 32 << 20
LDS_BYTES = 163840
XA_BYTES = 92160
LOG2E = 0x3fb8aa3b
RSQRT2 = 0x3f3504f3

class Opt:
    ts = False
    dlat = 18
    dma_delay = 6
    wlead = 4
    xlead = 10
    cap = 2
    lgmerge = 7
    oddR = 3
    dspace = 4
    psleep = 1
    fine = ''
    x_warm = 0
    x_nochk = 0
    budget = 12
    wcost = 4
    force = 2
    x_qidle = 0
    x_nolgw = 0
    x_novmw = 0
    wrate = 1
    wslack = 1
    mnop = -1
    fold = 1
    qdeep = 1
    egate = 24
    pw0 = 3
    pw1 = 2
    qsig = 27
    edelay = 0
    pthr = 9
    esleep = 2
    tmpl = 0
    x_nopub = 0
    cprio = 0
    spin = 0
    x_nowr = 0
    x_pq = 0
    sthr = 15
    milp = 4
    cph = 12
    pph = 7
    wph = 0
    code_pf = True
    w2pf = 1
    qpf = 0
    bwait = 0
    w2at = 2
    w1b = 1
    hdelay = 100
    rt = 0
    cdelay = 100
    snake = 1
    ntkv = ' nt'
    bq = 0
    ntkv2 = ''
    x_noconv = 0
    d_sleep = 0
    d_mfma = 0
    d_end = 0
    wsbase = 0
    pois_at = 0
    w1b_at = 0
    d_conv = 0
    d_mlp = 0
    d_mlp2 = 0
    x_noex = 0
    nb = 2
    h3at = 3
    prom = 0
    promf = ' sc1'
    hpf = True
    lnts = False
    kvpf = 1
    nomlp = False
    dbg = 0
    tlbw = True
    bgate = 8
    x_nodma = 0
    nt = ''
    dot = 1
    x_nomish = 0

sQ, sK, sV, sSHK, sSSMK, sSSMD, sW1 = 16, 18, 20, 22, 24, 26, 30
sB1, sW2, sOUT, sDBG, sWS = 32, 34, 36, 38, 40
srdX, srdW1, srdW2, srdB1, srdWS = 44, 48, 52, 56, 60
srdK, srdV, srdSHK, srdSSMK, srdSSMD = 44, 48, 52, 56, 64
sWave, sFS, sMT, sRing, sT0, sT1, sC = 3, 4, 5, 6, 7, 8, 9
sTS = 68
sWi, sLine2, sOddM, sFlA, sFlO, sFin = 18, 19, 20, 21, 22, 23
sXcd, sI, sWr = 14, 15, 42
SC = ' sc1'
vLane = 1

def srd(E, d, p, nbytes):
    E.e(f's_mov_b32 s{d}, s{p}')
    E.e(f's_and_b32 s{d+1}, s{p+1}, 0xffff')
    E.e(f's_mov_b32 s{d+2}, {nbytes}')
    E.e(f's_mov_b32 s{d+3}, 0x20000')

class TS:
    def __init__(self): self.n = 0
    def stamp(self, E, fine=False):
        if Opt.ts and (bool(Opt.fine) == fine or self.n == 0 or getattr(self, 'conv', False)):
            assert self.n < 14
            E.e(f'{"s_memrealtime" if Opt.rt else "s_memtime"} s[{sTS+2*self.n}:{sTS+2*self.n+1}]')
            self.n += 1
    def val(self, E, sreg):
        if Opt.ts and Opt.spin:
            E.e(f's_add_u32 s{sTS+2*self.n}, s{sreg}, s{sTS}')
            self.n += 1
    def stamp2(self, E, sIt):
        if Opt.ts:
            TS.uid = getattr(TS, 'uid', 0) + 1
            u = TS.uid
            E.e(f's_cmp_lg_u32 s{sIt}, 0')
            E.e(f's_cbranch_scc1 Lts{u}a')
            self.stamp(E)
            E.e(f's_branch Lts{u}b')
            E.e(f'Lts{u}a:')
            self.stamp(E)
            E.e(f'Lts{u}b:')
    def rt0(self, E):
        if Opt.ts: E.e(f's_memrealtime s[{sTS+28}:{sTS+29}]')
    def flush(self, E, vtmp):
        if not Opt.ts: return
        E.e(f's_memrealtime s[{sTS+30}:{sTS+31}]')
        E.e('s_waitcnt lgkmcnt(0)')
        E.e(f's_lshl_b32 s{sT0}, s2, 3')
        E.e(f's_add_u32 s{sT0}, s{sT0}, s{sWave}')
        E.e(f's_lshl_b32 s{sT0}, s{sT0}, 6')
        E.e(f's_add_u32 s{sT0}, s{sT0}, {WS_TS}')
        E.e(f'v_mov_b32 v{vtmp}, 0')
        for i in list(range(self.n)) + [14, 15]:
            E.e(f'v_writelane_b32 v{vtmp}, s{sTS+2*i}, {i}')
        E.e(f'v_lshlrev_b32 v{vtmp+1}, 2, v{vLane}')
        E.e('s_mov_b64 exec, 0xffff')
        E.e(f'buffer_store_dword v{vtmp}, v{vtmp+1}, {sr(srdWS)}, s{sT0} offen')
        if Opt.dbg:
            TS.uid = getattr(TS, 'uid', 0) + 1
            u = TS.uid
            srd(E, 44, sDBG, 256)
            E.e('s_mov_b64 exec, 1')
            E.e(f's_not_b32 s{sT1}, s{sTS+28}')
            E.e(f'v_mov_b32 v{vtmp+2}, s{sT1}')
            E.e(f'v_mov_b32 v{vtmp+3}, s{sTS+30}')
            E.e(f'buffer_atomic_umax v{vtmp+2}, v{vtmp+1}, s[44:47], 0 offen offset:56')
            E.e(f'buffer_atomic_umax v{vtmp+3}, v{vtmp+1}, s[44:47], 0 offen offset:60')
            E.e(f's_cmp_lg_u32 s2, {Opt.dbg}')
            E.e(f's_cbranch_scc1 Ldbg{u}')
            E.e(f's_cmp_lg_u32 s{sWave}, 5')
            E.e(f's_cbranch_scc1 Ldbg{u}')
            E.e('s_mov_b64 exec, 0x3fff')
            E.e(f'v_readlane_b32 s{sT1}, v{vtmp}, 0')
            E.e('s_nop 1')
            E.e(f'v_subrev_u32 v{vtmp}, s{sT1}, v{vtmp}')
            E.e(f'buffer_store_dword v{vtmp}, v{vtmp+1}, s[44:47], 0 offen')
            E.e(f'Ldbg{u}:')

vX0, vX1, vXg0, vXg1 = 2, 3, 4, 5
vWt = [6, 7, 8, 9]
vWo = 10
vD1a, vD1b, vD2a, vD2b, vDo = 11, 12, 13, 14, 15
vAW, vAWo, vP, vPo = 16, 17, 18, 19
vSA, vSB, vSW, vS, vPg = 20, 21, 22, 23, 24
vOld2, vDum, vS2 = 25, 26, 27
sSpin = 100
vT = 28
vXF = 36
vWF = 76
vAcc = 116
vBraw = 216
vFlOld = 226
SCR = LDS_BYTES - 2048
STW = SCR + 128
FLB = 256

ODDB = XA_BYTES + 12288
ODDR = 5
ODDOFF = [0, 16384, 32768, 49152, 53248]
assert ODDB + ODDOFF[4] + 4096 <= SCR

def flag_base(E, dst):
    E.e(f's_mul_i32 s{dst}, s{sMT}, {9*FLB}')
    E.e(f's_add_u32 s{dst}, s{dst}, {WS_FL}')

def flag_addrs(E, rA, rO):
    e = E.e
    flag_base(E, sT0)
    e(f's_lshl_b32 s{sT1}, s{sFS}, 4')
    e(f's_add_u32 s{sT0}, s{sT0}, s{sT1}')
    e(f's_lshl_b32 s{rA}, s{sLine2}, 8')
    e(f's_add_u32 s{rA}, s{rA}, s{sT0}')
    e(f's_lshl_b32 s{rO}, s{sWi}, 2')
    e(f's_add_u32 s{rO}, s{rO}, s{sT0}')
    e(f's_add_u32 s{rO}, s{rO}, {8*FLB}')

def mlp_prologue(E, ts):
    e = E.e
    a, b, c, d = vT, vT+1, vT+2, vT+3
    e(f's_sub_u32 s{sMT}, s{sMT}, {IDX_MLP0}')
    def kvpf_issue():
        e('s_mov_b64 exec, 0x3ff')
        E.vm(f'buffer_load_dword v{vDum}, v{vT+7}, {sr(srdW2)}, s10 offen{Opt.ntkv}')
        e('s_mov_b64 exec, -1')
    if Opt.kvpf:
        e(f's_cmp_lt_u32 s{sWave}, 4')
        e(f's_cselect_b32 s{srdW2}, s{sK}, s{sV}')
        e(f's_cselect_b32 s{srdW2+1}, s{sK+1}, s{sV+1}')
        e(f's_and_b32 s{srdW2+1}, s{srdW2+1}, 0xffff')
        e(f's_mov_b32 s{srdW2+2}, {S*D*2}')
        e(f's_mov_b32 s{srdW2+3}, 0x20000')
        e(f's_and_b32 s{sT0}, s{sWave}, 3')
        e(f's_lshl_b32 s{sT1}, s{sMT}, 2')
        e(f's_add_u32 s{sT0}, s{sT0}, s{sT1}')
        e(f's_mul_i32 s{sT0}, s{sT0}, {10*1152}')
        e(f's_lshl_b32 s{sT1}, s{sFS}, 7')
        e(f's_add_u32 s10, s{sT0}, s{sT1}')
        e(f'v_mul_u32_u24 v{vT+7}, 1152, v{vLane}')
        kvpf_issue()
        if Opt.kvpf == 3:
            e(f's_add_u32 s10, s10, {1024*1152}')
            e('s_mov_b64 exec, 0x3ff')
            E.vm(f'buffer_load_dword v{vDum}, v{vT+7}, {sr(srdW2)}, s10 offen{Opt.ntkv2}')
            e('s_mov_b64 exec, -1')
    srd(E, srdX, sQ, S*D*2)
    vR, vCc, vOff, vSl = 180, 181, 182, 183
    e(f'v_mul_u32_u24 v{vR}, 43, v{vLane}')
    e(f'v_lshrrev_b32 v{vR}, 8, v{vR}')
    e(f'v_mul_u32_u24 v{vCc}, 6, v{vR}')
    e(f'v_sub_u32 v{vCc}, v{vLane}, v{vCc}')
    e(f's_mul_i32 s{sT0}, s{sWave}, 10')
    e(f'v_add_u32 v{vSl}, s{sT0}, v{vR}')
    e(f's_mul_i32 s{sT1}, s{sMT}, 80')
    e(f'v_add_u32 v{vOff}, s{sT1}, v{vSl}')
    e(f'v_mul_u32_u24 v{vOff}, 1152, v{vOff}')
    e(f'v_lshl_add_u32 v{vOff}, v{vCc}, 4, v{vOff}')
    XR = 36
    xl = []
    for i in range(12):
        xl.append(E.vm(f'buffer_load_dwordx4 {vr(XR+4*i)}, v{vOff}, {sr(srdX)}, 0 offen offset:{96*i}'))
    if Opt.kvpf == 2:
        e(f's_cmp_lt_u32 s{sWave}, 6')
        e(f's_cselect_b32 s{srdW2}, s{sK}, s{sV}')
        e(f's_cselect_b32 s{srdW2+1}, s{sK+1}, s{sV+1}')
        e(f's_and_b32 s{srdW2+1}, s{srdW2+1}, 0xffff')
        e(f's_and_b32 s{sT0}, s{sWave}, 1')
        e(f's_lshl_b32 s{sT1}, s{sMT}, 1')
        e(f's_add_u32 s{sT0}, s{sT0}, s{sT1}')
        e(f's_mul_i32 s{sT0}, s{sT0}, {20*1152}')
        e(f's_lshl_b32 s{sT1}, s{sFS}, 7')
        e(f's_add_u32 s10, s{sT0}, s{sT1}')
        e(f's_add_u32 s10, s10, {1024*1152}')
        e(f's_cmp_lt_u32 s{sWave}, 4')
        e('s_cselect_b32 s10, 0x40000000, s10')
        e('s_mov_b64 exec, 0xfffff')
        E.vm(f'buffer_load_dword v{vDum}, v{vT+7}, {sr(srdW2)}, s10 offen{Opt.ntkv}')
        e('s_mov_b64 exec, -1')
    srd(E, srdW1, sW1, D*F*2)
    srd(E, srdW2, sW2, D*F*2)
    srd(E, srdB1, sB1, F*2)
    srd(E, srdWS, sWS, WS_BYTES)
    if Opt.w1b:
        e(f's_and_b32 s{sT0}, s{sWave}, 3')
        e(f's_mul_i32 s{sT0}, s{sT0}, {28*26}')
        e(f's_mul_i32 s{sT1}, s{sMT}, 28')
        e(f's_add_u32 s{sT0}, s{sT0}, s{sT1}')
        e(f'v_add_u32 v{a}, s{sT0}, v{vLane}')
        e(f'v_mul_u32_u24 v{b}, 13108, v{a}')
        e(f'v_lshrrev_b32 v{b}, 16, v{b}')
        e(f'v_mul_u32_u24 v{c}, 5, v{b}')
        e(f'v_sub_u32 v{c}, v{a}, v{c}')
        e(f'v_mul_u32_u24 v{b}, 9216, v{b}')
        e(f'v_lshl_add_u32 v{vT+6}, v{c}, 7, v{b}')
    e(f'v_cmp_gt_u32 vcc, 12, v{vLane}')
    e(f's_mul_i32 s{sT0}, s{sWave}, {12*26}')
    e(f's_mul_i32 s{sT1}, s{sMT}, 12')
    e(f's_add_u32 s{sT0}, s{sT0}, s{sT1}')
    e(f'v_add_u32 v{a}, s{sT0}, v{vLane}')
    e(f'v_lshrrev_b32 v{b}, 2, v{a}')
    e(f'v_and_b32 v{c}, 3, v{a}')
    e(f'v_mul_u32_u24 v{b}, 9216, v{b}')
    e(f'v_lshl_add_u32 v{b}, v{c}, 7, v{b}')
    e(f'v_cndmask_b32 v{b}, -1, v{b}, vcc')
    e(f's_mul_i32 s{sT0}, s{sFS}, 1152')
    E.vm(f'buffer_load_dword v{vDum}, v{b}, {sr(srdW1)}, s{sT0} offen{Opt.nt}')
    e(f's_and_b32 s{sWi}, s{sWave}, 3')
    e(f's_lshr_b32 s{sT0}, s{sWave}, 2')
    e(f's_xor_b32 s{sT0}, s{sT0}, s{sFS}')
    e(f's_and_b32 s{sT0}, s{sT0}, 1')
    e(f's_xor_b32 s{sT0}, s{sT0}, 1')
    e(f's_lshl_b32 s{sLine2}, s{sT0}, 2')
    e(f's_add_u32 s{sLine2}, s{sLine2}, s{sWi}')
    e(f's_and_b32 s{sT0}, s{sFS}, 1')
    e(f's_lshl_b32 s{sT0}, s{sT0}, 2')
    e(f's_lshr_b32 s{sFin}, s{sFS}, 1')
    e(f's_add_u32 s{sFin}, s{sFin}, s{sT0}')
    flag_addrs(E, sFlA, sFlO)
    e(f'v_mov_b32 v{a}, s{sFlA}')
    e(f'v_writelane_b32 v{a}, s{sFlO}, 1')
    e('s_mov_b64 exec, 3')
    fl = [E.vm(f'buffer_load_dword v{vFlOld}, v{a}, {sr(srdWS)}, 0 offen{SC}')]
    e('s_mov_b64 exec, -1')
    e(f'v_lshlrev_b32 v{b}, 2, v{vLane}')
    flag_base(E, sT0)
    e(f's_lshl_b32 s{sT1}, s{sFin}, 8')
    e(f's_add_u32 s{sT1}, s{sT1}, s{sT0}')
    e(f's_add_u32 s{sT0}, s{sT0}, {8*FLB}')
    e(f's_cmp_ge_u32 s{sWave}, 4')
    e('s_cbranch_scc1 Lnoold')
    e(f'buffer_load_dword v0, v{b}, {sr(srdWS)}, s{sT1} offen{SC}')
    e(f'buffer_load_dword v{vOld2}, v{b}, {sr(srdWS)}, s{sT0} offen{SC}')
    e('Lnoold:')
    e(f'v_lshrrev_b32 v{d}, 4, v{vLane}')
    e(f's_mul_i32 s{sT0}, s{sFS}, 1152')
    e(f'v_lshl_add_u32 v{b}, v{d}, 3, s{sT0}')
    e(f's_lshl_b32 s{sT1}, s{sWave}, 7')
    bl = []
    for i in range(4):
        bl.append(E.vm(f'buffer_load_dwordx2 {vr(vBraw+2*i,2)}, v{b}, {sr(srdB1)}, s{sT1} offen offset:{32*i}'))
    e(f's_lshl_b32 s{sT1}, s{sWi}, 5')
    bl.append(E.vm(f'buffer_load_dwordx2 {vr(vBraw+8,2)}, v{b}, {sr(srdB1)}, s{sT1} offen offset:1024'))
    if Opt.w1b and Opt.w1b_at == 0:
        e(f's_mul_i32 s{sT0}, s{sFS}, 1152')
        e(f's_add_u32 s{sT0}, s{sT0}, 512')
        e(f's_cmp_lt_u32 s{sWave}, 4')
        e(f's_cselect_b32 s{sT0}, 0x40000000, s{sT0}')
        e('s_mov_b64 exec, 0xfffffff')
        E.vm(f'buffer_load_dword v{vDum}, v{vT+6}, {sr(srdW1)}, s{sT0} offen')
        e('s_mov_b64 exec, -1')
    oddb = ODDB
    e(f'v_lshlrev_b32 v{vX0}, 4, v{vLane}')
    e(f'v_add_u32 v{vX1}, 46080, v{vX0}')
    e(f's_lshl_b32 s{sRing}, s{sWi}, 14')
    e(f's_add_u32 s{sRing}, s{sRing}, {XA_BYTES}')
    e(f's_lshr_b32 s{sT1}, s{sWave}, 2')
    e(f's_lshl_b32 s{sT1}, s{sT1}, 12')
    e(f's_add_u32 s15, s{sRing}, s{sT1}')
    e(f's_lshl_b32 s{sOddM}, s{sWi}, 10')
    e(f's_add_u32 s{sOddM}, s{sOddM}, {oddb}')
    e(f'v_lshrrev_b32 v{a}, 2, v{vLane}')
    e(f'v_and_b32 v{c}, 3, v{vLane}')
    e(f'v_lshlrev_b32 v{b}, 7, v{a}')
    e(f'v_lshl_add_u32 v{b}, v{c}, 3, v{b}')
    e(f'v_bfe_u32 v{c}, v{vLane}, 3, 2')
    e(f'v_lshl_add_u32 v{b}, v{c}, 5, v{b}')
    for t in range(4):
        e(f'v_xor_b32 v{vWt[t]}, {32*t}, v{b}')
        e(f'v_add_u32 v{vWt[t]}, s{sRing}, v{vWt[t]}')
    e(f's_lshl_b32 s{sT0}, s{sWi}, 5')
    e(f'v_xor_b32 v{vWo}, s{sT0}, v{b}')
    e(f'v_add_u32 v{vWo}, {oddb}, v{vWo}')
    e(f'v_lshrrev_b32 v{a}, 3, v{vLane}')
    e(f'v_and_b32 v{c}, 7, v{vLane}')
    e(f'v_and_b32 v{b}, 6, v{a}')
    e(f'v_xor_b32 v{c}, v{c}, v{b}')
    e(f'v_mul_u32_u24 v{d}, 1152, v{a}')
    e(f'v_lshl_add_u32 v{d}, v{c}, 4, v{d}')
    e(f's_mul_i32 s{sT0}, s{sFS}, 663552')
    e(f's_lshl_b32 s{sT1}, s{sLine2}, 7')
    e(f's_add_u32 s{sT1}, s{sT1}, s{sT0}')
    e(f'v_add_u32 v{vD2a}, s{sT1}, v{d}')
    e(f'v_add_u32 v{vD2b}, {8*1152-1024}, v{vD2a}')
    e(f's_mul_i32 s{sT1}, s{sWi}, {8*1152}')
    e(f's_add_u32 s{sT1}, s{sT1}, s{sT0}')
    e(f's_add_u32 s{sT1}, s{sT1}, 1024')
    e(f'v_add_u32 v{vDo}, s{sT1}, v{d}')
    e(f'v_and_b32 v{b}, 4, v{a}')
    e(f'v_add_u32 v{b}, v{b}, v{a}')
    e(f'v_mul_u32_u24 v{d}, 9216, v{b}')
    e(f'v_lshl_add_u32 v{d}, v{c}, 4, v{d}')
    e(f's_mul_i32 s{sT0}, s{sFS}, 1152')
    e(f's_lshl_b32 s{sT1}, s{sWave}, 7')
    e(f's_add_u32 s{sT1}, s{sT1}, s{sT0}')
    e(f'v_add_u32 v{vD1a}, s{sT1}, v{d}')
    e(f'v_add_u32 v{vD1b}, {16*9216-1024}, v{vD1a}')
    e(f's_cmp_lt_u32 s{sWave}, 4')
    e('s_cbranch_scc1 Lodd_p')
    e(f's_and_b32 s{sT1}, s{sWi}, 1')
    e(f's_mul_i32 s{sT1}, s{sT1}, {16*9216}')
    e(f's_add_u32 s{sT0}, s{sT0}, s{sT1}')
    e(f's_lshr_b32 s{sT1}, s{sWi}, 1')
    e(f's_mul_i32 s{sT1}, s{sT1}, {4*9216}')
    e(f's_add_u32 s{sT0}, s{sT0}, s{sT1}')
    e(f's_add_u32 s{sT0}, s{sT0}, 1024')
    e(f'v_add_u32 v{vDo}, s{sT0}, v{d}')
    e('Lodd_p:')
    e(f's_and_b32 s{sT0}, s{sWave}, 4')
    e(f's_add_u32 s{sT0}, s{sT0}, s{sWave}')
    e(f's_mul_i32 s{sT0}, s{sT0}, 5120')
    e(f'v_add_u32 v{vAW}, s{sT0}, v{vX0}')
    e(f's_lshr_b32 s{sT0}, s{sWi}, 1')
    e(f's_mul_i32 s{sT0}, s{sT0}, 5120')
    e(f's_and_b32 s{sT1}, s{sWi}, 1')
    e(f's_lshl_b32 s{sT1}, s{sT1}, 3')
    e(f's_add_u32 s{sT0}, s{sT0}, s{sT1}')
    e(f's_add_u32 s{sT0}, s{sT0}, {16*5120}')
    e(f'v_add_u32 v{vAWo}, s{sT0}, v{vX0}')
    e(f's_mul_i32 s{sT0}, s{sFS}, {PSTRIDE}')
    e(f's_mul_i32 s10, s{sMT}, {5*18432}')
    e(f's_add_u32 s{sT0}, s{sT0}, s10')
    e(f's_lshl_b32 s10, s{sLine2}, 11')
    e(f's_add_u32 s10, s10, s{sT0}')
    e(f'v_add_u32 v{vP}, s10, v{vX0}')
    e(f's_lshl_b32 s10, s{sWi}, 9')
    e(f's_add_u32 s10, s10, s{sT0}')
    e(f's_add_u32 s10, s10, {16*1024}')
    e(f'v_lshl_add_u32 v{vPo}, v{vLane}, 3, s10')
    e(f's_mov_b32 s{sC}, {RSQRT2}')
    e(f's_mov_b32 s{sSpin}, 0')
    e(f'v_and_b32 v{a}, 3, v{vLane}')
    e(f'v_lshlrev_b32 v{a}, 2, v{a}')
    e(f'v_add_u32 v{vSA}, {STW}, v{a}')
    e(f'v_add_u32 v{vSB}, {STW+16}, v{a}')
    e(f's_lshl_b32 s{sT0}, s{sWave}, 2')
    e(f's_add_u32 s{sT0}, s{sT0}, {STW}')
    e(f'v_mov_b32 v{vSW}, s{sT0}')
    vSw, vSr, vFe, vFo = 184, 185, 186, 187
    e(f's_lshl_b32 s{sT0}, s{sWave}, 9')
    e(f's_add_u32 s{sT0}, s{sT0}, {ODDB + ODDOFF[4]}')
    e(f'v_lshl_add_u32 v{vSw}, v{vLane}, 3, s{sT0}')
    e(f'v_mul_u32_u24 v{vSr}, 48, v{vR}')
    e(f'v_add_u32 v{vSr}, s{sT0}, v{vSr}')
    e(f'v_lshrrev_b32 v{a}, 4, v{vSl}')
    e(f'v_and_b32 v{b}, 15, v{vSl}')
    e(f'v_lshlrev_b32 v{a}, 10, v{a}')
    e(f'v_lshl_add_u32 v{a}, v{b}, 6, v{a}')
    e(f'v_lshrrev_b32 v{d}, 2, v{b}')
    e(f'v_and_b32 v{d}, 2, v{d}')
    for (dst, add) in ((vFe, 0), (vFo, 6)):
        e(f'v_add_u32 v{b}, {add}, v{vCc}')
        e(f'v_lshrrev_b32 v{c}, 2, v{b}')
        e(f'v_mul_u32_u24 v{c}, 5120, v{c}')
        e(f'v_and_b32 v{b}, 3, v{b}')
        e(f'v_xor_b32 v{b}, v{b}, v{d}')
        e(f'v_lshl_add_u32 v{c}, v{b}, 4, v{c}')
        e(f'v_add_u32 v{dst}, v{a}, v{c}')
    e(f'v_and_b32 v{a}, 15, v{vLane}')
    e(f'v_lshrrev_b32 v{b}, 4, v{vLane}')
    e(f'v_lshrrev_b32 v{c}, 2, v{a}')
    e(f'v_and_b32 v{c}, 2, v{c}')
    e(f'v_xor_b32 v{b}, v{b}, v{c}')
    e(f'v_lshlrev_b32 v{vXg0}, 6, v{a}')
    e(f'v_lshl_add_u32 v{vXg0}, v{b}, 4, v{vXg0}')
    e(f'v_add_u32 v{vXg1}, 46080, v{vXg0}')
    return dict(fl=fl, vR=vR, XR=XR, xl=xl, bl=bl, vSw=vSw, vSr=vSr, vFe=vFe, vFo=vFo, vCc=vCc)

def rowsum(E, P, vs, tmp):
    E.lg(f'ds_write_b32 v{P["vSw"]}, v{vs}')
    E.all_lg()
    for i in range(3):
        E.lg(f'ds_read_b64 {vr(tmp+2*i,2)}, v{P["vSr"]} offset:{8*i}')
    E.all_lg()
    E.e(f'v_add_f32 v{tmp}, v{tmp}, v{tmp+1}')
    E.e(f'v_add_f32 v{tmp+2}, v{tmp+2}, v{tmp+3}')
    E.e(f'v_add_f32 v{tmp+4}, v{tmp+4}, v{tmp+5}')
    E.e(f'v_add_f32 v{tmp}, v{tmp}, v{tmp+2}')
    E.e(f'v_add_f32 v{vs}, v{tmp}, v{tmp+4}')

def bf16r(E, v):
    E.e(f'v_cvt_pk_bf16_f32 v{v}, v{v}, v{v}')
    E.e(f'v_and_b32 v{v}, 0xffff0000, v{v}')

def mlp_ln(E, P, ts, prefill):
    e = E.e
    XR = P['XR']
    XT = 84
    S1, S2, PV, TD = 188, 192, 196, 198
    for i in range(12):
        E.need(P['xl'][i])
        for j in range(4):
            r = XR + 4*i + j
            t = XT + 2*(4*i + j)
            e(f'v_lshlrev_b32 v{t}, 16, v{r}')
            e(f'v_and_b32 v{t+1}, 0xffff0000, v{r}')
            if i == 0 and j == 0: e(f'v_mov_b32 v{PV}, v{t}')
            k = 2*(j & 1); d = TD + k
            first = i == 0 and j < 2
            dd = S1 + k if first else d
            e(f'v_pk_add_f32 {vr(dd,2)}, {vr(t,2)}, {vr(PV,2)} op_sel_hi:[1,0] neg_lo:[0,1] neg_hi:[0,1]')
            if first:
                e(f'v_pk_mul_f32 {vr(S2+k,2)}, {vr(dd,2)}, {vr(dd,2)}')
            else:
                e(f'v_pk_add_f32 {vr(S1+k,2)}, {vr(S1+k,2)}, {vr(d,2)}')
                e(f'v_pk_fma_f32 {vr(S2+k,2)}, {vr(d,2)}, {vr(d,2)}, {vr(S2+k,2)}')
    ts.stamp(E)
    e(f'v_pk_add_f32 {vr(S1,2)}, {vr(S1,2)}, {vr(S1+2,2)}')
    e(f'v_pk_add_f32 {vr(S2,2)}, {vr(S2,2)}, {vr(S2+2,2)}')
    e(f'v_add_f32 v{S1}, v{S1}, v{S1+1}')
    e(f'v_add_f32 v{S2}, v{S2}, v{S2+1}')
    e(f'v_mul_f32 v{S1+1}, 0x3c2aaaab, v{S1}')
    e(f'v_add_f32 v{TD}, v{PV}, v{S1+1}')
    e(f'v_fma_f32 v{TD+1}, -v{S1}, v{S1+1}, v{S2}')
    E.lg(f'ds_write_b64 v{P["vSw"]}, {vr(TD,2)}')
    prefill()
    E.all_lg()
    G = 200
    for i in range(3):
        E.lg(f'ds_read_b128 {vr(G+4*i)}, v{P["vSr"]} offset:{16*i}')
    E.all_lg()
    vMu, vM = 192, 194
    e(f'v_pk_add_f32 {vr(S1,2)}, {vr(G,2)}, {vr(G+2,2)}')
    e(f'v_pk_add_f32 {vr(S1+2,2)}, {vr(G+4,2)}, {vr(G+6,2)}')
    e(f'v_pk_add_f32 {vr(TD,2)}, {vr(G+8,2)}, {vr(G+10,2)}')
    e(f'v_pk_add_f32 {vr(S1,2)}, {vr(S1,2)}, {vr(S1+2,2)}')
    e(f'v_pk_add_f32 {vr(S1,2)}, {vr(S1,2)}, {vr(TD,2)}')
    e(f'v_mul_f32 v{vMu}, 0x3e2aaaab, v{S1}')
    for i in range(6): e(f'v_sub_f32 v{G+2*i}, v{G+2*i}, v{vMu}')
    e(f'v_mul_f32 v{TD}, v{G}, v{G}')
    e(f'v_mul_f32 v{TD+1}, v{G+2}, v{G+2}')
    for i in range(2, 6): e(f'v_fmac_f32 v{TD + (i & 1)}, v{G+2*i}, v{G+2*i}')
    e(f'v_add_f32 v{TD}, v{TD}, v{TD+1}')
    vV = S1
    e(f'v_mul_f32 v{vV}, 0x3ae38e39, v{S1+1}')
    e(f'v_fmac_f32 v{vV}, 0x3e2aaaab, v{TD}')
    e(f'v_mov_b32 v{vM}, v{vMu}')
    e(f'v_max_f32 v{vV}, 0, v{vV}')
    bf16r(E, vM)
    bf16r(E, vV)
    e(f'v_add_f32 v{vV}, 0x3727c5ac, v{vV}')
    bf16r(E, vV)
    e(f'v_sqrt_f32 v{vV}, v{vV}')
    e('s_nop 0')
    bf16r(E, vV)
    e(f'v_rcp_f32 v{vM+1}, v{vV}')
    tmp = 200
    e(f's_cmp_lg_u32 s{sWave}, 0')
    e('s_cbranch_scc1 Lnoz')
    e(f'v_mov_b32 v{tmp}, 0')
    e(f'ds_write_b32 v{vSA}, v{tmp}')
    e(f'ds_write_b32 v{vSB}, v{tmp}')
    e('Lnoz:')
    e('s_mov_b32 exec_hi, 0x0fffffff')
    e(f'v_cmp_eq_u32 vcc, 0, v{P["vCc"]}')
    e(f's_lshl_b32 s{sT0}, s{sWave}, 8')
    e(f's_add_u32 s{sT0}, s{sT0}, {SCR}')
    e(f'v_lshl_add_u32 v{tmp+1}, v{P["vR"]}, 3, s{sT0}')
    e('s_and_saveexec_b64 s[12:13], vcc')
    E.lg(f'ds_write_b64 v{tmp+1}, {vr(vM,2)}')
    e('s_mov_b64 exec, s[12:13]')
    e(f'v_mul_f32 v{vMu}, {hex(LOG2E) if Opt.fold else "1.0"}, v{vM+1}')
    e(f'v_mul_f32 v{vMu+1}, v{vM}, v{vMu}')
    for i in range(12):
        for j in range(4):
            t = XT + 2*(4*i + j)
            e(f'v_pk_fma_f32 {vr(t,2)}, {vr(t,2)}, {vr(vMu,2)}, {vr(vMu,2)} op_sel:[0,0,1] op_sel_hi:[1,0,1] neg_lo:[0,0,1] neg_hi:[0,0,1]')
        for j in range(4):
            t = XT + 2*(4*i + j)
            e(f'v_cvt_pk_bf16_f32 v{XR+4*i+j}, v{t}, v{t+1}')
        base = P['vFe'] if i % 2 == 0 else P['vFo']
        m = i // 2
        if m == 4 :
            e(f'v_add_u32 v{base}, {4*15360}, v{base}')
        off = (m % 4) * 15360
        E.lg(f'ds_write_b128 v{base}, {vr(XR+4*i)} offset:{off}')
    e('s_mov_b32 exec_hi, -1')

sD_ = 11
def mlp_prefill(E):
    ids = []
    E.e(f's_cmp_ge_u32 s{sWave}, 4')
    E.e('s_cbranch_scc1 Lnopre')
    for n in range(4):
        E.e(f's_add_u32 m0, s{sRing}, {((n + 2) % 4)*2048}')
        E.e(f's_mov_b32 s{sD_}, {(n // 2)*32*9216 + (n % 2)*4*9216}')
        E.vm(f'buffer_load_dwordx4 v{vD1a}, {sr(srdW1)}, s{sD_} offen lds')
        ids.append(E.vm(f'buffer_load_dwordx4 v{vD1b}, {sr(srdW1)}, s{sD_} offen offset:1024 lds'))
    E.e('s_branch Lpre_done')
    E.e('Lnopre:')
    if Opt.qpf:
        e = E.e
        a, b, c = vT, vT+1, vT+2
        e(f's_mul_i32 s{sT0}, s{sWi}, {28*26}')
        e(f's_mul_i32 s{sT1}, s{sMT}, 28')
        e(f's_add_u32 s{sT0}, s{sT0}, s{sT1}')
        e(f'v_add_u32 v{a}, s{sT0}, v{vLane}')
        e(f'v_mul_u32_u24 v{b}, 13108, v{a}')
        e(f'v_lshrrev_b32 v{b}, 16, v{b}')
        e(f'v_mul_u32_u24 v{c}, 5, v{b}')
        e(f'v_sub_u32 v{c}, v{a}, v{c}')
        e(f'v_mul_u32_u24 v{b}, 9216, v{b}')
        e(f'v_lshl_add_u32 v{b}, v{c}, 7, v{b}')
        e(f's_mul_i32 s{sT0}, s{sFS}, 1152')
        e(f's_add_u32 s{sT0}, s{sT0}, 512')
        e('s_mov_b64 exec, 0xfffffff')
        e(f'buffer_load_dword v{vDum}, v{b}, {sr(srdW1)}, s{sT0} offen{Opt.nt}')
        e('s_mov_b64 exec, -1')
    E.e('Lpre_done:')
    return ids

KORD = [0, 2, 4, 6, 1, 3, 5, 7, 8, 10, 12, 14, 9, 11, 13, 15, 16, 17]
stubs = []
def mlp_main(E, cls, P, ts, pre_ids):
    e = E.e
    isP = cls == 'P'
    R = ODDR
    vSown = vSA if isP else vSB
    steps, groups, pairs, odds = [], [], [], []
    for gm in (1, 2):
        for k in range(18):
            kx = k if gm == 1 else KORD[k]
            hasodd = (gm == 1) != isP
            st = dict(gm=gm, k=k, x=k, g0=len(groups), odd=hasodd, xr={})
            rs = 9216 if gm == 1 else 1152
            hb = 4 if gm == 1 else 16
            st['pa'] = len(pairs)
            for h in range(2):
                pairs.append(dict(gm=gm, soff=kx*32*rs + h*hb*rs, reads=[], id=None))
            if hasodd:
                st['oi'] = len(odds); odds.append(dict(gm=gm, soff=kx*32*rs, id=None, reads=[]))
            for t in range(5 if hasodd else 4):
                groups.append(dict(step=len(steps), t=t, w=[]))
            st['ng'] = len(groups) - st['g0']
            steps.append(st)
    NG = len(groups); NM = 5*NG
    own, flo = ((0, 2) if isP else (4, 2))
    lastuse = {}
    deep = (not isP) and Opt.qdeep
    for n, p in enumerate(pairs):
        s_, h = divmod(n, 2); k = s_ % 18
        isflo = (k % 2 == 0) and (k > 0 or (isP and s_ == 0))
        p['slot'] = (flo if isflo else own) + h
        if deep and s_ >= 18 + 4:
            p['slot'] = [2, 0, 6, 4][(k - 4) % 4] + h
        p['prev'] = lastuse.get(p['slot']); lastuse[p['slot']] = n
    nxt = {p['prev']: n for n, p in enumerate(pairs) if p['prev'] is not None}
    pre = [[] for _ in range(NM)]
    gaps = [[] for _ in range(NM)]
    def stepm(s): return 5*steps[s]['g0'] if s < len(steps) else NM
    so0 = 18 if isP else 0
    PB, QB = 6, 3
    pbase = PB if isP else QB
    obase = 18 if isP else 0

    def wait_status(name, vaddr, thr, pre_id=None, part=0, vv=vS):
        if pre_id is None:
            vv = vS2
            pre_id = E.lg(f'ds_read_b32 v{vv}, v{vaddr}')
        if part != 2:
            E.need(pre_id)
            e(f'v_cmp_gt_u32 vcc, {thr}, v{vv}')
        if part == 1: return
        e(f's_cbranch_vccnz Lw{name}')
        e(f'Lr{name}:')
        stubs.extend([f'Lw{name}:', f'ds_read_b32 v{vv}, v{vaddr}', f's_add_u32 s{sSpin}, s{sSpin}, 1', f's_cmp_gt_u32 s{sSpin}, 0x100000', f's_cbranch_scc1 Lr{name}',
                      's_waitcnt lgkmcnt(0)', f'v_cmp_gt_u32 vcc, {thr}, v{vv}', f's_cbranch_vccz Lr{name}', 's_sleep 1', f's_branch Lw{name}'])
    def publish(val):
        e(f'v_mov_b32 v{vPg}, {val}')
        E.lg(f'ds_write_b32 v{vSW}, v{vPg}')
    def p_m0(n): e(f's_add_u32 m0, s{sRing}, {pairs[n]["slot"]*2048}')
    def p_so(n): e(f's_mov_b32 s{sD_}, {pairs[n]["soff"]}')
    def p_ld(n, i):
        it = pairs[n]
        if it['prev'] is not None and i == 0:
            assert len(pairs[it['prev']]['reads']) == 4
            E.need(*pairs[it['prev']]['reads'])
        va, sd = ((vD1a, vD1b), srdW1) if it['gm'] == 1 else ((vD2a, vD2b), srdW2)
        if Opt.x_nodma:
            e('s_nop 0'); x = ('vm', 0)
        else:
            x = E.vm(f'buffer_load_dwordx4 v{va[i]}, {sr(sd)}, s{sD_} offen{" offset:1024" if i else ""} lds')
        if i: it['id'] = x
    def p_all(n): p_m0(n); p_so(n); p_ld(n, 0); p_ld(n, 1)
    def o_m0(n): e(f's_add_u32 m0, s{sOddM}, {ODDOFF[(obase + n) % R]}')
    def o_so(n): e(f's_mov_b32 s{sD_}, {odds[n]["soff"]}')
    def o_ld(n):
        sd = srdW1 if odds[n]['gm'] == 1 else srdW2
        if Opt.x_nodma:
            e('s_nop 0'); odds[n]['id'] = ('vm', 0)
        else:
            odds[n]['id'] = E.vm(f'buffer_load_dwordx4 v{vDo}, {sr(sd)}, s{sD_} offen lds')
    def wreg(s, t): return vWF + 20*(s % 2) + 4*t
    def do_wread(s, t, h):
        st = steps[s]; g = st['g0'] + t
        if t < 4:
            n = st['pa'] + h
            E.need(pairs[n]['id'])
            i = E.lg(f'ds_read_b64_tr_b16 {vr(wreg(s,t)+2*h,2)}, v{vWt[t]} offset:{pairs[n]["slot"]*2048}')
            pairs[n]['reads'].append(i)
        else:
            n = st['oi']
            i = E.lg(f'ds_read_b64_tr_b16 {vr(wreg(s,t)+2*h,2)}, v{vWo} offset:{ODDOFF[(obase + n) % R] + h*2048}')
            odds[n]['reads'].append(i)
        groups[g]['w'].append(i)
    def do_xread(s, rt):
        idx = steps[s]['x']*5 + rt
        b0, b1 = (vX0, vX1) if steps[s]['gm'] == 2 else (vXg0, vXg1)
        vb, off = (b0, idx*1024) if idx < 45 else (b1, (idx-45)*1024)
        steps[s]['xr'][rt] = E.lg(f'ds_read_b128 {vr(vXF + 20*(s % 2) + 4*rt)}, v{vb} offset:{off}')

    TN = dict(Wa=[0,1,3,4], Wb=[10,11,13,14], X=[5,6,8,9,15], DA=[12,17], DAs=[8,9], DB=[2,7], DBs=[-2,-1], lg=19)
    TO = dict(Wa=[0,1,3,4], Wb=[14,15,16,18], X=[8,9,11,19,20], DA=[12,17], DAs=[8,9], DB=[2,7], DBs=[-2,-2], lg=24,
              Wo=[5,6], Sr=10, Pv=11, Sw=13, Cm=19, Br=21, Do=22, Dos=[18,20])
    if Opt.tmpl == 1:
        TO = dict(Wa=[0,1,3,4], Wb=[9,10,11,13], X=[14,15,16,18,19], DA=[17,22], DAs=[13,14], DB=[2,7], DBs=[-2,-2], lg=24,
                  Wo=[5,6], Sr=-4, Pv=18, Sw=20, Cm=8, Br=10, Do=12, Dos=[8,9])
    if Opt.tmpl == 2:
        TO = dict(Wa=[0,1,3,4], Wb=[13,14,15,16], X=[5,6,8,9,10], DA=[17,22], DAs=[13,14], DB=[7,12], DBs=[3,4], lg=24,
                  Wo=[18,19], Sr=11, Pv=5, Sw=20, Cm=21, Br=23, Do=27, Dos=[23,24], lag=1)
    manual = set()
    def at(s, g, f):
        if steps[s]['k'] == 0 and g < 0: pre[stepm(s)].append(f)
        else: gaps[stepm(s) + g].append(f)
    sread = {}
    gated = {26: QB+18, 30: QB+19, 34: QB+20} if isP else {}
    for s in range(36):
        st = steps[s]; T = TO if st['odd'] else TN; k = st['k']
        if k < 17:
            for h, key in ((0, 'Wa'), (1, 'Wb')):
                for t in range(4): at(s, T[key][t], lambda s=s, t=t, h=h: do_wread(s+1, t, h))
            if s+1 in gated:
                at(s, -4, lambda s=s: sread.__setitem__(('g', s), E.lg(f'ds_read_b32 v{vS2}, v{vSB}')))
                at(s, 3, lambda s=s: wait_status(f'Pg{s}', vSB, gated[s+1], sread[('g', s)], part=1, vv=vS2))
                at(s, 5, lambda s=s: (wait_status(f'Pg{s}', vSB, gated[s+1], sread[('g', s)], part=2, vv=vS2), ts.stamp(E)))
            for rt in range(5): at(s, T['X'][rt], lambda s=s, rt=rt: do_xread(s+1, rt))
            at(s, T['lg'], lambda s=s: E.need(*([steps[s+1]['xr'][0]] + groups[steps[s+1]['g0']]['w'])))
        def place(n, D, Ds):
            at(s, Ds[0], lambda n=n: p_m0(n)); at(s, Ds[1], lambda n=n: p_so(n))
            at(s, D[0], lambda n=n: p_ld(n, 0)); at(s, D[1], lambda n=n: p_ld(n, 1))
            manual.discard(n)
        def ok(n):
            return n is not None and not (pairs[n]['slot'] in (flo, flo+1) and (n // 36) != (pairs[n]['prev'] // 36))
        if k < 17 and ok(nxt.get(steps[s+1]['pa'])): place(nxt[steps[s+1]['pa']], T['DA'], T['DAs'])
        if k >= 1 and ok(nxt.get(st['pa'] + 1)): place(nxt[st['pa'] + 1], T['DB'], T['DBs'])
        if st['odd']:
            if k < 17:
                for h in range(2): at(s, T['Wo'][h], lambda s=s, h=h: do_wread(s+1, 4, h))
            if k < 16 and not Opt.x_nochk:
                at(s, T['Sr'], lambda k=k: sread.__setitem__(k, E.lg(f'ds_read_b32 v{vS}, v{vSown}')))
                at(s, T['Cm'], lambda k=k: wait_status(f'{cls}o{k}', vSown, pbase + k - 1, sread[k], part=1))
                at(s, T['Br'], lambda k=k: wait_status(f'{cls}o{k}', vSown, pbase + k - 1, sread[k], part=2))
            if k + R < 18:
                n = k + R
                at(s, T['Dos'][0], lambda n=n: o_m0(n)); at(s, T['Dos'][1], lambda n=n: o_so(n)); at(s, T['Do'], lambda n=n: o_ld(n))
            def pub(k=k, s=s, T=T):
                ids = list(steps[s]['xr'].values()) + pairs[steps[s]['pa']]['reads'] + pairs[steps[s]['pa']+1]['reads']
                if T.get('lag'):
                    ids += odds[k]['reads']
                elif k + 1 < 18: ids += odds[k+1]['reads']
                ids.append(odds[min(k + R - 2, 17)]['id'])
                E.need(*ids)
                E.lg(f'ds_write_b32 v{vSW}, v{vPg}')
            if not (Opt.x_nopub and (k not in (3, 7, 14, 16, 17))):
                at(s, T['Pv'], lambda k=k: e(f'v_mov_b32 v{vPg}, {pbase + k}')); at(s, T['Sw'], pub)
    if deep:
        at(19, 16, lambda: wait_status('Qe', vSA, PB + 17))
        for i, n in enumerate((46, 47, 48, 49)):
            at(20 + i // 2, 7 if i % 2 == 0 else 17, lambda n=n: p_all(n))
    if not isP:
        at(Opt.qsig, 15, lambda: e(f'v_mov_b32 v{vPg}, {QB + 21}'))
        at(Opt.qsig, 16, lambda: E.lg(f'ds_write_b32 v{vSW}, v{vPg}'))
    if isP:
        at(16, 0, lambda: e(f'v_mov_b32 v{vPg}, 1'))
        at(16, 2, lambda: (E.need(*(pairs[32]['reads'] + pairs[33]['reads'])), E.lg(f'ds_write_b32 v{vSW}, v{vPg}')))

    if isP:
        TL = Tail(E, ts)
    def mish_quad(src, dst, tb):
        T = [tb+i for i in range(4)]
        I = range(4)
        o = []
        if Opt.fold:
            o += [f'v_exp_f32 v{T[i]}, v{src+i}' for i in I]
        else:
            o += [f'v_mul_f32 v{T[i]}, {hex(LOG2E)}, v{src+i}' for i in I]
            o += [f'v_exp_f32 v{T[i]}, v{T[i]}' for i in I]
        o += [f'v_fma_f32 v{T[i]}, v{T[i]}, s{sC}, s{sC}' for i in I]
        o += [f'v_fma_f32 v{T[i]}, v{T[i]}, v{T[i]}, 0.5' for i in I]
        o += [f'v_rcp_f32 v{T[i]}, v{T[i]}' for i in I]
        o += [f'v_fma_f32 v{T[i]}, -v{src+i}, v{T[i]}, v{src+i}' for i in I]
        o += [f'v_cvt_pk_bf16_f32 v{dst}, v{T[0]}, v{T[1]}', f'v_cvt_pk_bf16_f32 v{dst+1}, v{T[2]}, v{T[3]}']
        if Opt.x_nomish: o = o[-2:]
        if Opt.mnop >= 0:
            o2 = []; acc = 0
            for op in o:
                o2.append(op)
                acc += 8 if ('exp' in op or 'rcp' in op) else 4
                if acc >= 8:
                    o2.append(f's_nop {Opt.mnop}'); acc = 0
            o = o2
        return o
    def mish_rt(hf, rt):
        a0, a1 = vAcc + 40*hf + 4*rt, vAcc + 40*hf + 20 + 4*rt
        for o in mish_quad(a0, a0, vT): e(o)
        for o in mish_quad(a1, a0+2, vT+4): e(o)
    def wr(hf, rt):
        if Opt.x_nowr: return ('lg', 0)
        return E.lg(f'ds_write_b128 v{vAW}, {vr(vAcc + 40*hf + 4*rt)} offset:{hf*20480 + rt*1024}')
    def w_stage_ops(s0):
        L = [(lambda t=t, h=h: do_wread(s0, t, h)) for h in range(2) for t in range(4)]
        for n in (steps[s0+1]['pa'], steps[s0+1]['pa'] + 1):
            L += [lambda n=n: (p_m0(n), p_so(n), p_ld(n, 0)), lambda n=n: p_ld(n, 1)]
        return L
    def w_stage(s0):
        for f in w_stage_ops(s0): f()
    side = []
    def valu_phase():
        clk = E.clock; E.clock = None
        ts.stamp(E)
        e('s_setprio 0')
        if isP:
            publish(2)
            e('s_nop 4')
            w = []
            for rt in range(Opt.pw0): mish_rt(0, rt)
            wait_status('Pa', vSA, 2)
            wait_status('Pb', vSB, QB + 3)
            pend = [(0, rt) for rt in range(Opt.pw0)]
            def mish_w(hf, rt):
                a0, a1 = vAcc + 40*hf + 4*rt, vAcc + 40*hf + 20 + 4*rt
                for (src, dst, tb) in ((a0, a0, vT), (a1, a0+2, vT+4)):
                    ops = mish_quad(src, dst, tb)
                    for i, o in enumerate(ops):
                        e(o)
                        if pend and pend[0][0] <= allowed[0] and i == len(ops) // 2: w.append(wr(*pend.pop(0)))
                        if side and i in (3, len(ops) - 4): side.pop(0)()
                pend.append((hf, rt))
            allowed = [0]
            for rt in range(Opt.pw0, 5): mish_w(0, rt)
            side.extend(w_stage_ops(18))
            for rt in range(5):
                if rt == Opt.pw1:
                    wait_status('Pb2', vSB, QB + 7); allowed[0] = 1
                mish_w(1, rt)
            assert not side
            for x in pend: w.append(wr(*x))
            ts.stamp(E)
            E.need(*w)
            publish(3)
            if Opt.pois_at == 2: poison(E)
            wait_status('Pc0', vSB, QB + 14)
            for n in range(3):
                o_m0(n); o_so(n); o_ld(n)
            E.need(odds[2]['id'])
            publish(4)
            wait_status('Pd', vSA, 4)
            for h in range(2): do_wread(18, 4, h)
            for rt in range(5): do_xread(18, rt)
            E.need(*odds[0]['reads'])
            publish(5)
            wait_status('Pc3', vSB, QB + 16)
            p_all(40); p_all(41)
            for n in range(3, R):
                o_m0(n); o_so(n); o_ld(n)
        else:
            e('s_nop 7')
            for rt in range(2): mish_rt(0, rt)
            wait_status('Qa', vSB, QB + 17)
            wait_status('Qp', vSA, 2)
            w = [wr(0, 0), wr(0, 1)]
            for rt in range(2, 5):
                mish_rt(0, rt); w.append(wr(0, rt))
            E.need(*w); publish(QB + 18)
            w = []
            for rt in range(5):
                mish_rt(1, rt); w.append(wr(1, rt))
            E.need(*w); publish(QB + 19)
            w = []
            for rt in range(5):
                a0 = vAcc + 80 + 4*rt
                for o in mish_quad(a0, a0, vT + 4*(rt & 1)): e(o)
                w.append(E.lg(f'ds_write_b64 v{vAWo}, {vr(a0,2)} offset:{rt*1024}'))
            E.need(*w); publish(QB + 20)
            ts.stamp(E)
            for f in w_stage_ops(18):
                f(); e('s_sleep 1')
            wait_status('Qc', vSB, QB + 20)
            wait_status('Qd', vSA, 3)
            for rt in range(5): do_xread(18, rt)
            wait_status('Qb', vSA, PB + 16)
            p_all(40); p_all(41)
        e('s_setprio 1')
        ts.stamp(E)
        E.clock = clk
    if not isP:
        pre[0].append(lambda: ts.val(E, sSpin)); pre[stepm(18)].append(lambda: ts.val(E, sSpin))
    pre[stepm(18)].insert(0, valu_phase)
    if Opt.fine:
        lo_, st_ = [int(x) for x in Opt.fine.split(',')]
        for i in range(13):
            if lo_ + i*st_ < 36: pre[stepm(lo_ + i*st_)].append(lambda: ts.stamp(E, True))

    if isP:
        for n in range(4): pairs[n]['id'] = pre_ids[n]
    def small_setup():
        E.need(*P['bl'])
        for i in range(4 if isP else 5):
            r = vBraw + 2*i; d = vAcc + 20*i + 16
            e(f'v_lshlrev_b32 v{d}, 16, v{r}')
            e(f'v_and_b32 v{d+1}, 0xffff0000, v{r}')
            e(f'v_lshlrev_b32 v{d+2}, 16, v{r+1}')
            e(f'v_and_b32 v{d+3}, 0xffff0000, v{r+1}')
            if Opt.fold:
                for j in range(4): e(f'v_mul_f32 v{d+j}, {hex(LOG2E)}, v{d+j}')
        E.need(*P['fl'])
        e(f'v_readlane_b32 s{sFlA+3}, v{vFlOld}, 0')
        e(f'v_readlane_b32 s{sFlO+3}, v{vFlOld}, 1')
    if isP: small_setup()
    if Opt.x_warm:
        a, b, c = vT, vT+1, vT+2
        e(f's_mul_i32 s{sT0}, s{sMT}, 200')
        e(f's_mul_i32 s{sT1}, s{sWi}, 50')
        e(f's_add_u32 s{sT0}, s{sT0}, s{sT1}')
        e(f'v_add_u32 v{a}, s{sT0}, v{vLane}')
        if isP:
            e(f'v_mul_u32_u24 v{b}, 7282, v{a}')
            e(f'v_lshrrev_b32 v{b}, 16, v{b}')
            e(f'v_mul_u32_u24 v{c}, 9, v{b}')
            e(f'v_sub_u32 v{c}, v{a}, v{c}')
            e(f'v_mul_u32_u24 v{b}, 9216, v{b}')
            e(f'v_lshl_add_u32 v{b}, v{c}, 7, v{b}')
            e(f's_mul_i32 s{sT0}, s{sFS}, 1152')
            E.vm(f'buffer_load_dword v{vDum}, v{b}, {sr(srdW1)}, s{sT0} offen{Opt.nt}')
        else:
            e(f'v_lshlrev_b32 v{b}, 7, v{a}')
            e(f's_mul_i32 s{sT0}, s{sFS}, 663552')
            E.vm(f'buffer_load_dword v{vDum}, v{b}, {sr(srdW2)}, s{sT0} offen')
        E.all_vm()
        for i in range(3): e('s_sleep 127')
    if isP:
        for h in range(2):
            for t in range(4): do_wread(0, t, h)
        p_all(4); p_all(5)
        if Opt.pois_at == 0: poison(E)
    e('s_waitcnt lgkmcnt(0)'); E.lg_done = E.lg_n - 1
    ts.stamp(E)
    e('s_barrier')
    if Opt.d_mlp and isP: e(f's_sleep {Opt.d_mlp}')
    e(f's_setprio {3 if isP else 2}')
    for rt in range(5): do_xread(0, rt)
    if not isP:
        if Opt.w1b_at == 1:
            e(f's_mul_i32 s{sT0}, s{sFS}, 1152')
            e(f's_add_u32 s{sT0}, s{sT0}, 512')
            e('s_mov_b64 exec, 0xfffffff')
            E.vm(f'buffer_load_dword v{vDum}, v{vT+6}, {sr(srdW1)}, s{sT0} offen')
            e('s_mov_b64 exec, -1')
            E.all_vm()
        small_setup()
        if Opt.qpf: e('s_waitcnt vmcnt(0)'); e('s_sleep 8')
        for n in range(2): p_all(n)
        for n in range(R):
            o_m0(n); o_so(n); o_ld(n)
        w_stage(0)
        E.need(odds[R-1]['id'])
        publish(1)
        wait_status('Qr', vSB, 1)
        for h in range(2): do_wread(0, 4, h)
        E.need(*odds[0]['reads'])
        publish(2)
        if Opt.pois_at == 1: poison(E)
        wait_status('Qs', vSA, 1)
        p_all(4); p_all(5)
    if isP and Opt.d_mfma:
        e('s_waitcnt lgkmcnt(0)')
        e(f's_mov_b32 s12, {Opt.d_mfma}')
        e('Ldm:')
        for i in range(20):
            e(f'v_mfma_f32_16x16x32_bf16 {vr(232 + 4*(i % 5))}, {vr(wreg(0, i // 5))}, {vr(vXF + 4*(i % 5))}, 0')
        e('s_sub_u32 s12, s12, 1'); e('s_cmp_lg_u32 s12, 0'); e('s_cbranch_scc1 Ldm')
    for m in range(NM):
        g, rt = divmod(m, 5)
        G = groups[g]; s = G['step']; st = steps[s]
        if Opt.snake and G['t'] % 2 and not (st['k'] == 0 and st['gm'] == 1): rt = 4 - rt
        E.clock = m
        for f in pre[m]: f()
        assert len(G['w']) == 2, (cls, m, g)
        E.need(*(G['w'] + [st['xr'][rt]]))
        ab = vAcc + 20*G['t']; d = ab + 4*rt
        c = vr(d)
        if st['k'] == 0: c = vr(ab + 16) if st['gm'] == 1 else '0'
        e(f'v_mfma_f32_16x16x32_bf16 {vr(d)}, {vr(wreg(s, G["t"]))}, {vr(vXF + 20*(s % 2) + 4*rt)}, {c}')
        for f in gaps[m]: f()
    assert all(p['id'] for p in pairs) and all(len(p['reads']) == 4 for p in pairs)
    E.clock = None
    ts.stamp(E)
    if Opt.x_noex:
        e('s_endpgm'); return
    e('s_setprio 0')
    e('s_nop 6')
    def pack(u, rt):
        a0, a1 = vAcc + 40*u + 4*rt, vAcc + 40*u + 20 + 4*rt
        e(f'v_cvt_pk_bf16_f32 v{a0}, v{a0}, v{a0+1}')
        e(f'v_cvt_pk_bf16_f32 v{a0+1}, v{a0+2}, v{a0+3}')
        e(f'v_cvt_pk_bf16_f32 v{a0+2}, v{a1}, v{a1+1}')
        e(f'v_cvt_pk_bf16_f32 v{a0+3}, v{a1+2}, v{a1+3}')
        return a0
    if not isP:
        e(f's_cmp_eq_u32 s{sLine2}, s{sFin}')
        e('s_cbranch_scc1 Lq_own')
        for u in range(2):
            for rt in range(5):
                a0 = pack(u, rt)
                e(f's_mov_b32 s{sT0}, {rt*18432}')
                e(f'buffer_store_dwordx4 {vr(a0)}, v{vP}, {sr(srdWS)}, s{sT0} offen offset:{u*1024}{SC}')
        e('s_branch Lq_end')
        e('Lq_own:')
        e(f'v_add_u32 v{vT}, s{sRing}, v{vX0}')
        for u in range(2):
            for rt in range(5):
                a0 = pack(u, rt)
                e(f'ds_write_b128 v{vT}, {vr(a0)} offset:{(5*u + rt)*1024}')
        e('s_waitcnt lgkmcnt(0)')
        e('Lq_end:')
        publish(QB + 22)
        if Opt.ts:
            e('s_waitcnt vmcnt(0)')
            ts.stamp(E)
            ts.flush(E, vT)
        e('s_endpgm')
        return
    sts = []
    def st_main(u, rt):
        a0 = pack(u, rt)
        e(f's_mov_b32 s{sT0}, {rt*18432}')
        if len(sts) >= Opt.sthr: E.need(sts[-Opt.sthr])
        sts.append(E.vm(f'buffer_store_dwordx4 {vr(a0)}, v{vP}, {sr(srdWS)}, s{sT0} offen offset:{u*1024}{SC}'))
    def st_odd(rt):
        a0 = vAcc + 80 + 4*rt
        e(f'v_cvt_pk_bf16_f32 v{a0}, v{a0}, v{a0+1}')
        e(f'v_cvt_pk_bf16_f32 v{a0+1}, v{a0+2}, v{a0+3}')
        e(f's_mov_b32 s{sT0}, {rt*18432}')
        if len(sts) >= Opt.sthr: E.need(sts[-Opt.sthr])
        sts.append(E.vm(f'buffer_store_dwordx2 {vr(a0,2)}, v{vPo}, {sr(srdWS)}, s{sT0} offen{SC}'))
    todo = [(lambda u=u, rt=rt: st_main(u, rt)) for u in range(2) for rt in range(5)] + [(lambda rt=rt: st_odd(rt)) for rt in range(5)]
    for f in todo: f()
    TL.setup()
    e(f'v_mov_b32 v{vT}, 0')
    e(f's_add_u32 s{sFlA+3}, s{sFlA+3}, 1')
    e(f's_add_u32 s{sFlO+3}, s{sFlO+3}, 1')
    e(f'v_mov_b32 v{vT+1}, s{sFlA+3}')
    e(f'v_mov_b32 v{vT+2}, s{sFlO+3}')
    e('s_mov_b64 exec, 1')
    E.need(*sts[:10])
    E.vm(f'buffer_store_dword v{vT+1}, v{vT}, {sr(srdWS)}, s{sFlA} offen{SC}')
    E.need(*sts)
    E.vm(f'buffer_store_dword v{vT+2}, v{vT}, {sr(srdWS)}, s{sFlO} offen{SC}')
    e('s_mov_b64 exec, -1')
    ts.stamp(E)
    TL.run(lambda: wait_status('Pt', vSB, QB + 21))

def gpoll(E, name, vcur, vadr, sb, vold, mask, have=False, sleep=None):
    e = E.e
    e('s_mov_b32 s10, 0')
    if have: e(f's_branch L{name}_c')
    e(f'L{name}:')
    e(f'buffer_load_dword v{vcur}, v{vadr}, {sr(srdWS)}, s{sb} offen{SC}')
    e('s_waitcnt vmcnt(0)')
    e(f'L{name}_c:')
    e(f'v_cmp_ne_u32 vcc, v{vcur}, v{vold}')
    e(f's_and_b64 s[12:13], vcc, s[{mask}:{mask+1}]')
    e(f's_cmp_eq_u64 s[12:13], s[{mask}:{mask+1}]')
    e(f's_cbranch_scc1 L{name}_ok')
    e(f's_sleep {sleep or Opt.psleep}')
    e('s_add_u32 s10, s10, 1')
    e('s_cmp_lt_u32 s10, 0x20000')
    e(f's_cbranch_scc1 L{name}')
    e(f'L{name}_ok:')
    if not have: E.vm_done = E.vm_n - 1

def late_block_soff(E, dst, b_expr_reg):
    pass

def block_ur(E, s_):
    e = E.e
    e(f's_add_u32 s13, s{sWi}, {4*s_}')
    e(f's_lshl_b32 s14, s{sFin}, 1')
    e('s_cmp_ge_u32 s13, 5')
    e(f's_cselect_b32 s{sT0}, 5, 0')
    e('s_addc_u32 s14, s14, 0')
    e(f's_sub_u32 s15, s13, s{sT0}')

def piece_off(E, dst, u, r):
    e = E.e
    e(f's_mul_i32 s{dst}, s{sMT}, 5')
    e(f's_add_u32 s{dst}, s{dst}, s{r}')
    e(f's_mul_i32 s{dst}, s{dst}, 18432')
    e(f's_lshl_b32 s{sT1}, s{u}, 10')
    e(f's_add_u32 s{dst}, s{dst}, s{sT1}')

def late_slabs(E, d0):
    for k in range(3):
        E.e(f's_add_u32 s{d0+k}, s{sFS}, {2*(k+1)}')
        E.e(f's_and_b32 s{d0+k}, s{d0+k}, 7')
        E.e(f's_mul_i32 s{d0+k}, s{d0+k}, {PSTRIDE}')

def poison(E):
    e = E.e
    for i in range(4): e(f'v_mov_b32 v{228+i}, -1')
    late_slabs(E, 64)
    ids = []
    for s_ in range(3):
        block_ur(E, s_)
        piece_off(E, 12, 14, 15)
        if s_ == 2:
            e('s_cmp_ge_u32 s13, 10')
            e('s_cselect_b32 s12, 0x40000000, s12')
        for k in range(3):
            e(f's_add_u32 s{sT0}, s12, s{64+k}')
            if len(ids) >= Opt.pthr: E.need(ids[-Opt.pthr])
            ids.append(E.vm(f'buffer_store_dwordx4 v[228:231], v{vX0}, {sr(srdWS)}, s{sT0} offen{SC}'))

class Tail:
    def __init__(self, E, ts):
        self.E, self.ts = E, ts
    def slot_addr(self, d, u, r):
        e = self.E.e
        e(f's_min_u32 s{sT0}, s{r}, 4')
        e(f's_lshl_b32 s{sT0}, s{sT0}, 4')
        e(f'v_add_u32 v8, s{sT0}, v4')
        e('v_mul_u32_u24 v9, 205, v8')
        e('v_lshrrev_b32 v9, 11, v9')
        e('v_mul_u32_u24 v9, 176, v9')
        e('v_lshl_add_u32 v9, v8, 3, v9')
        e(f'v_add_u32 v9, {SCR}, v9')
        d['st'] = self.E.lg(f'ds_read_b64 {vr(d["ST"],2)}, v9')
        e(f's_mul_i32 s{sT0}, s{sMT}, 80')
        e(f'v_add_u32 v8, s{sT0}, v8')
        e(f'v_mul_u32_u24 v{d["xa"]}, 1152, v8')
        e(f'v_lshl_add_u32 v{d["xa"]}, v6, 5, v{d["xa"]}')
        e(f'v_lshl_add_u32 v{d["xa"]}, v5, 4, v{d["xa"]}')
        e(f's_lshl_b32 s{sT0}, s{u}, 6')
        e(f'v_add_u32 v{d["xa"]}, s{sT0}, v{d["xa"]}')
        e(f'v_lshlrev_b32 v{d["ya"]}, 4, v8')
        e(f'v_lshl_add_u32 v{d["ya"]}, v5, 15, v{d["ya"]}')
        e(f'v_lshl_add_u32 v{d["ya"]}, v6, 16, v{d["ya"]}')
        e(f's_lshl_b32 s{sT0}, s{u}, 17')
        e(f's_add_u32 s{sT0}, s{sT0}, {WS_Y}')
        e(f'v_add_u32 v{d["ya"]}, s{sT0}, v{d["ya"]}')
        piece_off(self.E, d['sP'], u, r)
    sME, sMY, sMO, sMYO = 30, 32, 28, 40
    sFb, sFo = 26, 27
    vFa, vCur, vCur2 = 236, 237, 238
    def sample0(self):
        e = self.E.e
        e(f'v_lshlrev_b32 v{self.vFa}, 2, v{vLane}')
        flag_base(self.E, self.sFo)
    def sample1(self):
        e = self.E.e
        e(f's_lshl_b32 s{self.sFb}, s{sFin}, 8')
        e(f's_add_u32 s{self.sFb}, s{self.sFb}, s{self.sFo}')
        self.f1 = self.E.vm(f'buffer_load_dword v{self.vCur}, v{self.vFa}, {sr(srdWS)}, s{self.sFb} offen{SC}')
    def sample2(self):
        self.E.e(f's_add_u32 s{self.sFo}, s{self.sFo}, {8*FLB}')
        self.f2 = self.E.vm(f'buffer_load_dword v{self.vCur2}, v{self.vFa}, {sr(srdWS)}, s{self.sFo} offen{SC}')
    def poll2(self, name, m1, m2, have):
        E = self.E; e = E.e
        e('s_mov_b32 s10, 0')
        if have: e(f's_branch L{name}_c')
        e(f'L{name}:')
        e(f'buffer_load_dword v{self.vCur}, v{self.vFa}, {sr(srdWS)}, s{self.sFb} offen{SC}')
        e(f'buffer_load_dword v{self.vCur2}, v{self.vFa}, {sr(srdWS)}, s{self.sFo} offen{SC}')
        e('s_waitcnt vmcnt(0)')
        e(f'L{name}_c:')
        e(f'v_cmp_eq_u32 vcc, v{self.vCur}, v0')
        e(f'v_cmp_eq_u32 s[12:13], v{self.vCur2}, v{vOld2}')
        e(f's_and_b64 vcc, vcc, s[{m1}:{m1+1}]')
        e(f's_and_b64 s[12:13], s[12:13], s[{m2}:{m2+1}]')
        e('s_or_b64 s[12:13], s[12:13], vcc')
        e(f's_cbranch_scc0 L{name}_ok')
        e(f's_sleep {Opt.esleep}')
        e('s_add_u32 s10, s10, 1')
        e('s_cmp_lt_u32 s10, 0x20000')
        e(f's_cbranch_scc1 L{name}')
        e(f'L{name}_ok:')
        if not have: E.vm_done = E.vm_n - 1
    def setup(self):
        E = self.E; e = E.e
        srd(E, srdB1, sOUT, S*D*2)
        e(f's_mov_b32 s{self.sME}, 0x10101010')
        e(f's_and_b32 s{sT0}, s{sFS}, 1')
        e(f's_lshl_b32 s{sT0}, s{sT0}, 2')
        e(f's_lshr_b32 s{self.sME}, s{self.sME}, s{sT0}')
        e(f's_mov_b32 s{self.sME+1}, 0')
        e('s_mov_b32 s43, 0')
        e(f's_mov_b64 s[{self.sMO}:{self.sMO+1}], 0')
        e(f'v_lshlrev_b32 v{self.vFa}, 2, v{vLane}')
        flag_base(E, self.sFo)
        e(f's_lshl_b32 s{self.sFb}, s{sFin}, 8')
        e(f's_add_u32 s{self.sFb}, s{self.sFb}, s{self.sFo}')
        e(f's_add_u32 s{self.sFo}, s{self.sFo}, {8*FLB}')
        e('s_mov_b32 s32, 0x3f80')
        e('s_mov_b32 s33, 0x3f800000')
        e('s_mov_b32 s40, 0x3f317218' if Opt.fold else 's_mov_b32 s40, 1.0')
        e('v_and_b32 v4, 15, v1')
        e('v_lshrrev_b32 v5, 4, v1')
        e('v_and_b32 v6, 1, v5')
        e('v_lshrrev_b32 v5, 1, v5')
        e('v_lshlrev_b32 v7, 4, v1')
        self.sl = []
        for s_ in range(3):
            B = 36 + 24*s_; W = 116 + 40*s_
            d = dict(XR=B, YR=B, ST=B+4, xa=B+6, ya=B+7, X=B+8, N=B+16, EP=W, LP=W+16, SUM=W+32, sP=34+s_, sB=37+s_)
            self.sl.append(d)
            block_ur(E, s_)
            e(f's_lshl_b32 s{d["sB"]}, s13, 10')
            if s_ == 2:
                e(f's_cmp_lt_u32 s{sWi}, 2')
                e('s_cbranch_scc1 Ls3_done')
                e(f's_sub_u32 s{sT0}, s{sWi}, 2')
                e(f's_lshl_b32 s{sT0}, s{sT0}, 3')
                e(f's_add_u32 s{sT0}, s{sT0}, s{sFS}')
                e(f's_cmp_ge_u32 s{sT0}, 5')
                e(f's_cselect_b32 s{sT1}, 5, 0')
                e('s_cselect_b32 s14, 17, 16')
                e(f's_sub_u32 s15, s{sT0}, s{sT1}')
                e('s_cmp_lt_u32 s15, 5')
                e(f's_cselect_b32 s{self.sMO}, -1, 0')
                e('s_cselect_b32 s43, 0xff, 0')
                e('Ls3_done:')
                e('s_mov_b32 s42, s15')
            self.slot_addr(d, 14, 15)
            d['xl'] = E.vm(f'buffer_load_dwordx4 {vr(d["XR"])}, v{d["xa"]}, {sr(srdX)}, 0 offen')
        late_slabs(E, 64)
        e(f's_and_b32 s67, s{sFS}, 1')
        e('s_xor_b32 s67, s67, 1')
        e(f's_mul_i32 s67, s67, {PSTRIDE}')
    def unpack(self, dst, src, n=4):
        for j in range(n):
            self.E.e(f'v_lshlrev_b32 v{dst+2*j}, 16, v{src+j}')
            self.E.e(f'v_and_b32 v{dst+2*j+1}, 0xffff0000, v{src+j}')
    def add(self, d, src, first, pk):
        e = self.E.e; SUM = d['SUM']; T = vT
        if Opt.dot:
            for j in range(8):
                e(f'v_dot2_f32_bf16 v{SUM+j}, v{src + j//2}, s{32 + (j & 1)}, {"0" if first else f"v{SUM+j}"}')
            return
        self.unpack(SUM if first else T, src)
        if first: return
        if pk:
            for j in range(4): e(f'v_pk_add_f32 {vr(SUM+2*j,2)}, {vr(SUM+2*j,2)}, {vr(T+2*j,2)}')
        else:
            for j in range(8): e(f'v_add_f32 v{SUM+j}, v{SUM+j}, v{T+j}')
    def xn(self, d):
        E = self.E; e = E.e; T = vT
        X, N = d['X'], d['N']
        E.need(d['st'], d['xl'])
        self.unpack(X, d['XR'])
        def rnd(b):
            for j in range(4): e(f'v_cvt_pk_bf16_f32 v{T+j}, v{b+2*j}, v{b+2*j+1}')
            self.unpack(b, T)
        for i in range(8): e(f'v_sub_f32 v{N+i}, v{X+i}, v{d["ST"]}')
        rnd(N)
        for i in range(8): e(f'v_mul_f32 v{N+i}, v{N+i}, v{d["ST"]+1}')
        rnd(N)
    def tterm(self, d):
        E = self.E; e = E.e; T = vT
        E.need(d['yl'])
        self.unpack(T, d['YR'])
        for i in range(8): e(f'v_fma_f32 v{d["N"]+i}, v{d["N"]+i}, v{T+i}, v{d["X"]+i}')
    def final(self, d, so='0'):
        E = self.E; e = E.e
        SUM, N, X = d['SUM'], d['N'], d['X']
        e('s_nop 2')
        for j in range(4): e(f'v_permlane16_swap_b32 v{SUM+j}, v{SUM+4+j}')
        for i in range(8): e(f'v_fma_f32 v{N+i}, v{SUM+i}, s40, v{N+i}')
        for j in range(4): e(f'v_cvt_pk_bf16_f32 v{X+j}, v{N+2*j}, v{N+2*j+1}')
        E.vm(f'buffer_store_dwordx4 {vr(X)}, v{d["xa"]}, {sr(srdB1)}, {so} offen')
    def run(self, gate1):
        E = self.E; e = E.e; ts = self.ts; sl = self.sl
        for d in sl: self.xn(d)
        gate1()
        self.poll2('pe', self.sME, self.sMO, False)
        e(f's_mov_b32 s{self.sME}, 0')
        e(f's_mov_b32 s{self.sME+1}, {0 if Opt.x_noconv else 0x55}')
        e(f's_mov_b32 s{self.sMO}, 0')
        e(f's_mov_b32 s{self.sMO+1}, {0 if Opt.x_noconv else "s43"}')
        ts.stamp(E)
        tsn = ts.n
        e(f's_cmp_ge_u32 s{sWi}, 2')
        e('s_cbranch_scc1 Ltail2')
        st0 = E.state()
        for nreg in (3, 2):
            ts.n = tsn
            if nreg == 2:
                e('Ltail2:'); E.set_state(st0)
            reg = sl[:nreg]
            for d in reg:
                d['el'] = []
                e(f's_add_u32 s{sT0}, s{d["sP"]}, s67')
                for i in range(4):
                    if i: e(f's_add_u32 s{sT0}, s{sT0}, {2*PSTRIDE}')
                    d['el'].append(E.vm(f'buffer_load_dwordx4 {vr(d["EP"]+4*i)}, v7, {sr(srdWS)}, s{sT0} offen{SC}'))
            if nreg == 2:
                d = sl[2]
                e('s_cmp_ge_u32 s42, 5')
                e(f's_cselect_b32 s{sT0}, 0x40000000, s{d["sP"]}')
                e('s_cselect_b32 s42, 0x40000000, 0')
                e('v_lshlrev_b32 v10, 3, v1')
                ol = []
                for p in range(8):
                    if p: e(f's_add_u32 s{sT0}, s{sT0}, {PSTRIDE}')
                    r = d['EP'] + 4*p
                    E.vm(f'buffer_load_dwordx2 {vr(r,2)}, v10, {sr(srdWS)}, s{sT0} offen{SC}')
                    ol.append(E.vm(f'buffer_load_dwordx2 {vr(r+2,2)}, v10, {sr(srdWS)}, s{sT0} offen offset:512{SC}'))
            for d in reg:
                for i in range(4):
                    E.need(d['el'][i]); self.add(d, d['EP'] + 4*i, i == 0, False)
            if nreg == 2:
                d = sl[2]
                for p in range(8):
                    E.need(ol[p]); self.add(d, d['EP'] + 4*p, p == 0, False)
            self.poll2(f'py{nreg}', self.sME, self.sMO, True)
            for d in sl:
                d['yl'] = E.vm(f'buffer_load_dwordx4 {vr(d["YR"])}, v{d["ya"]}, {sr(srdWS)}, 0 offen{SC}')
            e(f'Lg2w{nreg}:')
            e(f'ds_read_b32 v{vS2}, v{vSB}')
            e('s_waitcnt lgkmcnt(0)')
            e(f'v_cmp_gt_u32 vcc, {3 + 22}, v{vS2}')
            e(f's_cbranch_vccz Lg2k{nreg}')
            e('s_sleep 1')
            e(f's_branch Lg2w{nreg}')
            e(f'Lg2k{nreg}:')
            ts.stamp(E)
            e('s_setprio 3')
            e('s_mov_b32 s10, 0')
            e(f's_lshr_b32 s{sT0}, s{sFS}, 1')
            e(f's_lshl_b32 s{sT0}, s{sT0}, 14')
            e(f's_add_u32 s{sT0}, s{sT0}, {XA_BYTES}')
            e(f'v_add_u32 v10, s{sT0}, v7')
            for d in reg:
                e(f'v_add_u32 v11, s{d["sB"]}, v10')
                d['ol'] = E.lg(f'ds_read_b128 {vr(d["LP"]+12)}, v11')
            e(f'Llate{nreg}:')
            for d in reg:
                for k in range(3):
                    e(f's_add_u32 s{sT0}, s{d["sP"]}, s{64+k}')
                    e(f'buffer_load_dwordx4 {vr(d["LP"]+4*k)}, v7, {sr(srdWS)}, s{sT0} offen{SC}')
            e('s_cmp_lg_u32 s10, 0')
            e(f's_cbranch_scc1 Llw{nreg}')
            for d in reg:
                E.need(d['ol']); self.add(d, d['LP'] + 12, False, True)
            e(f's_waitcnt vmcnt({3*nreg})')
            E.vm_done = E.vm_n - 1
            for d in sl: self.tterm(d)
            e(f'Llw{nreg}:')
            e('v_mov_b32 v10, 0')
            n = 3*nreg
            for di, d in enumerate(reg):
                for k in range(3):
                    n -= 1
                    e(f's_waitcnt vmcnt({n})')
                    r = d['LP'] + 4*k
                    e(f'v_max3_u32 v10, v10, v{r}, v{r+1}')
                    e(f'v_max3_u32 v10, v10, v{r+2}, v{r+3}')
            e('v_cmp_eq_u32 vcc, -1, v10')
            e(f's_cbranch_vccz Llok{nreg}')
            e('s_add_u32 s10, s10, 1')
            e('s_cmp_lt_u32 s10, 0x8000')
            e(f's_cbranch_scc1 Llate{nreg}')
            e(f'Llok{nreg}:')
            E.vm_done = E.vm_n - 1
            for d in reg:
                for k in range(3): self.add(d, d['LP'] + 4*k, False, True)
                self.final(d)
            if nreg == 2: self.final(sl[2], 's42')
            if Opt.ts:
                E.all_vm()
                ts.stamp(E)
                ts.flush(E, vT)
            e('s_endpgm')

RS = 4672
HS = 4160
HS2 = 2112
HB0 = 0
HB1 = HB0 + 4*4*HS
KVB = HB1 + 4*2*HS2
assert KVB + 16*RS <= LDS_BYTES - 64 and KVB % 256 == 0
def conv(E):
    e = E.e
    ts = TS(); ts.conv = True
    ts.stamp(E)
    sCT, sCh, sHB, sIt, sIdx = 10, 11, 6, 9, 5
    sMode, sLoc, sHsel, sWi_, sHS = 12, 13, 14, 42, 43
    e(f's_cmp_eq_u32 s{sIdx}, 5')
    e('s_cbranch_scc1 Lhelper')
    if Opt.x_noconv: e('s_endpgm')
    e(f's_lshl_b32 s{sCT}, s{sFS}, 2')
    e(f's_add_u32 s{sCT}, s{sCT}, s{sIdx}')
    e(f's_and_b32 s{sWi_}, s{sWave}, 3')
    e(f's_mov_b32 s{sMode}, 0')
    e(f's_mov_b32 s{sHsel}, 0')
    e(f's_lshl_b32 s{sLoc}, s{sWi_}, 2')
    e(f's_cmp_lt_u32 s{sIdx}, 4')
    e('s_cbranch_scc1 Lconv_go')
    e(f's_lshr_b32 s{sCT}, s{sFS}, 1')
    e(f's_add_u32 s{sCT}, s{sCT}, 32')
    e(f's_mov_b32 s{sMode}, 1')
    e(f's_and_b32 s{sHsel}, s{sFS}, 1')
    e(f's_lshl_b32 s{sLoc}, s{sHsel}, 2')
    e(f's_add_u32 s{sLoc}, s{sLoc}, s{sWi_}')
    e(f's_lshl_b32 s{sLoc}, s{sLoc}, 1')
    if Opt.cdelay: e(f's_sleep {Opt.cdelay}')
    e('Lconv_go:')
    srd(E, srdSSMK, sSSMK, D*S*2)
    e(f's_lshl_b32 s{sCh}, s{sCT}, 4')
    e(f's_add_u32 s{sCh}, s{sCh}, s{sLoc}')
    e(f'v_lshlrev_b32 v12, 7, v{vLane}')
    e(f's_lshl_b32 s15, s{sCh}, 12')
    e(f's_cmp_ge_u32 s{sWave}, 4')
    e('s_cbranch_scc1 Lconv_nw')
    e('s_mov_b32 exec_hi, 0')
    e(f'buffer_load_dword v15, v12, {sr(srdSSMK)}, s15 offen{Opt.nt}')
    e('s_mov_b32 exec_hi, -1')
    e('Lconv_nw:')
    vZ = 244
    for i in range(4): e(f'v_mov_b32 v{vZ+i}, 0')
    e(f's_mul_i32 s{sHB}, s{sWi_}, {4*HS}')
    e(f's_add_u32 s{sHB}, s{sHB}, {HB0}')
    e(f's_mul_i32 s{sT0}, s{sWi_}, {2*HS2}')
    e(f's_add_u32 s{sT0}, s{sT0}, {HB1}')
    e(f's_movk_i32 s{sT1}, {HS2}')
    e(f's_cmp_ge_u32 s{sWave}, 4')
    e(f's_cselect_b32 s{sHB}, s{sT0}, s{sHB}')
    e(f's_cselect_b32 s{sHS}, s{sT1}, {HS}')
    e(f's_cselect_b32 s{sT0}, 3, 7')
    e('v_lshrrev_b32 v13, 5, v0')
    e(f'v_mul_u32_u24 v13, {RS}, v13')
    e('v_and_b32 v14, 31, v0')
    e('v_lshl_add_u32 v13, v14, 4, v13')
    e(f'v_add_u32 v13, {KVB}, v13')
    E.lg(f'ds_write_b128 v13, {vr(vZ)} offset:4096')
    e(f'v_and_b32 v13, s{sT0}, v{vLane}')
    e('v_lshrrev_b32 v14, 1, v13')
    e(f'v_mul_lo_u32 v14, v14, s{sHS}')
    e('v_and_b32 v13, 1, v13')
    e('v_lshl_add_u32 v13, v13, 4, v14')
    e(f'v_add_u32 v13, s{sHB}, v13')
    E.lg(f'ds_write_b128 v13, {vr(vZ)}')
    vCn = 240
    e(f'v_mov_b32 v{vCn}, {LDS_BYTES-64}')
    E.lg(f'ds_write_b128 v{vCn}, {vr(vZ)}')
    for o_ in (16, 32, 48): E.lg(f'ds_write_b128 v{vCn}, {vr(vZ)} offset:{o_}')
    vPr, vHa = 243, 250
    e(f's_lshl_b32 s{sT0}, s{sWi_}, 2')
    e(f'v_add_u32 v{vPr}, s{sT0}, v{vCn}')
    sHBA, sChA = 101, 100
    e(f's_mul_i32 s{sHBA}, s{sWi_}, {4*HS}')
    e(f's_add_u32 s{sT0}, s{sHBA}, {HS}')
    e(f'v_mov_b32 v{vHa}, s{sT0}')
    e(f's_mov_b32 s{sChA}, s{sCh}')
    srd(E, srdK, sK, S*D*2)
    srd(E, srdV, sV, S*D*2)
    vRg, vHf, b0, b1, b2 = 2, 3, 4, 5, 6
    e(f'v_lshrrev_b32 v{vRg}, 1, v0')
    e(f'v_and_b32 v{vHf}, 1, v0')
    e(f'v_mul_u32_u24 v{b1}, {8*1152}, v{vRg}')
    e(f'v_lshl_add_u32 v{b1}, v{vHf}, 4, v{b1}')
    e(f's_lshl_b32 s{sT0}, s{sCT}, 5')
    e(f'v_add_u32 v{b1}, s{sT0}, v{b1}')
    e(f'v_subrev_u32 v{b0}, 3456, v{b1}')
    e(f'v_add_u32 v{b2}, 4608, v{b1}')
    KR, VR, SKR, SKF = 16, 60, 92, 108
    srd(E, srdSHK, sSHK, D*4*2)
    e(f's_lshl_b32 s{sT0}, s{sCT}, 7')
    e(f'v_lshlrev_b32 v7, 6, v{vHf}')
    skl = [E.vm(f'buffer_load_dwordx4 {vr(SKR+4*i)}, v7, {sr(srdSHK)}, s{sT0} offen offset:{16*i}') for i in range(4)]
    srd(E, srdSSMD, sSSMD, D*2)
    srd(E, srdWS, sWS, WS_BYTES)
    vL16 = 8
    vH0, vDv, vDraw = 9, 10, 248
    e(f'v_lshlrev_b32 v{vL16}, 4, v{vLane}')
    def hload(np_, buf, hs=None):
        e(f's_lshl_b32 s{sT0}, s{sCh}, 12')
        e(f's_add_u32 m0, s{sHB}, {32 + buf*2*HS}')
        e(f's_add_u32 s{sT1}, s{sT0}, 2')
        ids = []
        for i in range(np_):
            if i == 2 and hs is None:
                e(f's_cmp_ge_u32 s{sWave}, 4'); e('s_cbranch_scc1 Lh0a')
            ids.append(E.vm(f'buffer_load_dwordx4 v{vL16}, {sr(srdSSMK)}, s{sT0} offen offset:{1024*i} lds'))
        if hs is None:
            e('Lh0a:')
            e(f's_add_u32 m0, m0, s{sHS}')
        else:
            e(f's_add_u32 m0, m0, {hs}')
        e('s_nop 0')
        for i in range(np_):
            if i == 2 and hs is None:
                e(f's_cmp_ge_u32 s{sWave}, 4'); e('s_cbranch_scc1 Lh0b')
            ids.append(E.vm(f'buffer_load_dwordx4 v{vL16}, {sr(srdSSMK)}, s{sT1} offen offset:{1024*i} lds'))
        if hs is None: e('Lh0b:')
        ids.append(E.vm(f'buffer_load_ushort v{vH0 + 2*buf}, v{vZ}, {sr(srdSSMK)}, s{sT0} offen'))
        return ids
    def hloadA(buf):
        e(f's_add_u32 s{sChA}, s{sChA}, 1')
        e(f's_lshl_b32 s{sT0}, s{sChA}, 12')
        e(f's_add_u32 m0, s{sHBA}, {32 + buf*2*HS}')
        e(f's_add_u32 s{sT1}, s{sT0}, 2')
        for i in range(4): e(f'buffer_load_dwordx4 v{vL16}, {sr(srdSSMK)}, s{sT0} offen offset:{1024*i} lds')
        e(f's_add_u32 m0, m0, {HS}')
        e('s_nop 0')
        for i in range(4): e(f'buffer_load_dwordx4 v{vL16}, {sr(srdSSMK)}, s{sT1} offen offset:{1024*i} lds')
        e(f'buffer_load_ushort v11, v{vZ}, {sr(srdSSMK)}, s{sT0} offen')
    def hreadyA(buf, val):
        e(f'ds_write_b16 v{vHa}, v11 offset:{30 + buf*2*HS}')
        e(f'v_mov_b32 v251, {val}')
        e('s_waitcnt lgkmcnt(0)')
        e(f'ds_write_b32 v{vPr}, v251 offset:32')
    uid = [0]
    def onlyB(f, full=False):
        uid[0] += 1
        e(f's_cmp_lt_u32 s{sWave}, 4'); e(f's_cbranch_scc1 LoB{uid[0]}')
        if full:
            e(f's_cmp_lg_u32 s{sMode}, 0'); e(f's_cbranch_scc1 LoB{uid[0]}')
        f()
        e(f'LoB{uid[0]}:')
    e(f's_lshl_b32 s{sT0}, s{sCh}, 1')
    E.vm(f'buffer_load_dwordx2 {vr(vDraw,2)}, v{vZ}, {sr(srdSSMD)}, s{sT0} offen')
    vFo_, vFa_ = 241, 242
    e(f'v_mul_u32_u24 v{vFa_}, {9*FLB}, v{vLane}')
    e(f's_lshr_b32 s{sT0}, s{sCT}, 2')
    e(f's_lshl_b32 s{sT0}, s{sT0}, 8')
    e(f's_and_b32 s{sT1}, s{sCT}, 3')
    e(f's_lshl_b32 s{sT1}, s{sT1}, 1')
    e(f's_add_u32 s{sT1}, s{sT1}, s{sHsel}')
    e(f's_lshl_b32 s{sT1}, s{sT1}, 2')
    e(f's_add_u32 s{sT0}, s{sT0}, s{sT1}')
    e(f's_add_u32 s{sT0}, s{sT0}, {WS_FL + 128}')
    e(f'v_add_u32 v{vFa_}, s{sT0}, v{vFa_}')
    E.all_lg()
    e('s_barrier')
    def cpoll(name, off, thr=4, va=None):
        e(f'L{name}:')
        e(f'ds_read_b32 v252, v{va or vCn} offset:{off}')
        e('s_waitcnt lgkmcnt(0)')
        e(f'v_readfirstlane_b32 s{sT0}, v252')
        e(f's_cmp_ge_u32 s{sT0}, {thr}')
        e(f's_cbranch_scc1 L{name}_ok')
        e('s_sleep 2')
        e(f's_branch L{name}')
        e(f'L{name}_ok:')
    e(f's_cmp_lt_u32 s{sWave}, 4')
    e('s_cbranch_scc1 Lconv_a')
    cpoll('cpollb', 8)
    hloadA(1)
    e(f's_cmp_lg_u32 s{sMode}, 0')
    e('s_cbranch_scc1 Lconv_ld')
    e('s_add_u32 s15, s15, 8192')
    e(f'buffer_load_dword v15, v12, {sr(srdSSMK)}, s15 offen')
    if Opt.bq:
        e(f's_lshl_b32 s{sT0}, s{sIdx}, 2')
        e(f's_add_u32 s{sT0}, s{sT0}, s{sWi_}')
        e(f's_mul_i32 s{sT0}, s{sT0}, {64*1152}')
        e(f's_lshl_b32 s{sT1}, s{sFS}, 7')
        e(f's_add_u32 s{sT0}, s{sT0}, s{sT1}')
        e(f's_add_u32 s{sT0}, s{sT0}, {1024*1152}')
        e(f'v_mul_u32_u24 v13, 1152, v{vLane}')
        e(f'buffer_load_dword v15, v13, {sr(srdK)}, s{sT0} offen nt')
        e(f'buffer_load_dword v15, v13, {sr(srdV)}, s{sT0} offen nt')
        e('s_waitcnt vmcnt(0)')
    e('s_branch Lconv_ld')
    e('Lconv_a:')
    e(f's_cmp_lg_u32 s{sMode}, 0')
    e('s_cbranch_scc1 Lconv_ld')
    e('s_waitcnt vmcnt(0)')
    e('Lconv_ld:')
    ts.stamp(E)
    kl, vl = [], []
    for j in range(3, 11):
        bb, off = (b1, (j-3)*1152) if j < 7 else (b2, (j-7)*1152)
        kl.append(E.vm(f'buffer_load_dwordx4 {vr(KR+4*j)}, v{bb}, {sr(srdK)}, 0 offen offset:{off}'))
    def sig1():
        e('s_waitcnt vmcnt(8)')
        e(f's_lshl_b32 s{sT0}, s{sMode}, 1')
        e(f's_add_u32 s{sT0}, s{sT0}, 1')
        hreadyA(1, f's{sT0}')
    onlyB(sig1)
    for j in range(8):
        bb, off = (b1, j*1152) if j < 4 else (b2, (j-4)*1152)
        vl.append(E.vm(f'buffer_load_dwordx4 {vr(VR+4*j)}, v{bb}, {sr(srdV)}, 0 offen offset:{off}'))
    e('s_mov_b32 exec_lo, 0x00030003')
    e('s_mov_b32 exec_hi, 0x00030003')
    for j in range(3):
        kl.append(E.vm(f'buffer_load_dwordx4 {vr(KR+4*j)}, v{b0}, {sr(srdK)}, 0 offen offset:{j*1152}'))
    e('s_mov_b64 exec, -1')
    vmn = E.vm_n
    hload(4, 0)
    E.vm_n = vmn + 5
    e('v_mov_b32 v12, 1')
    e('s_mov_b64 exec, 1')
    E.lg(f'ds_add_u32 v{vCn}, v12 offset:8')
    e(f's_mov_b64 exec, {(1 << NMT) - 1}')
    e(f's_cmp_eq_u32 s{sWave}, 7')
    e(f's_cselect_b32 s{sT0}, 0, 0x40000000')
    E.vm(f'buffer_load_dword v{vFo_}, v{vFa_}, {sr(srdWS)}, s{sT0} offen{SC}')
    e('s_mov_b64 exec, -1')
    vKW = 14
    e(f'v_mul_u32_u24 v{vKW}, {8*RS}, v{vHf}')
    e(f'v_lshlrev_b32 v12, 4, v{vRg}')
    e(f'v_sub_u32 v{vKW}, v{vKW}, v12')
    e(f'v_add_u32 v{vKW}, {KVB + 4080}, v{vKW}')
    onlyB(lambda: (cpoll('cpa1', 48, 1, vPr), hloadA(0), e('s_waitcnt vmcnt(0)'), hreadyA(0, 2)), True)
    E.need(*(kl + vl + skl))
    ts.stamp(E)
    for j in range(3):
        for m in range(4):
            e(f'v_mov_b32_dpp v{KR+4*j+m}, v{KR+4*(j+8)+m} row_shr:2 row_mask:0xf bank_mask:0xf')
    for i in range(16):
        e(f'v_lshlrev_b32 v{SKF+2*i}, 16, v{SKR+i}')
        e(f'v_and_b32 v{SKF+2*i+1}, 0xffff0000, v{SKR+i}')
    KF, AC, PK = 144, 156, 164
    for ch in range(8):
        m, hi = divmod(ch, 2)
        def unp(d, s_):
            e(f'v_and_b32 v{d}, 0xffff0000, v{s_}' if hi else f'v_lshlrev_b32 v{d}, 16, v{s_}')
        for j in range(11): unp(KF+j, KR+4*j+m)
        for s_ in range(8): e(f'v_mul_f32 v{AC+s_}, v{KF+s_}, v{SKF+4*ch+3}')
        for tap in (2, 1, 0):
            for s_ in range(8): e(f'v_fmac_f32 v{AC+s_}, v{KF+s_+3-tap}, v{SKF+4*ch+tap}')
        for s_ in range(8): unp(KF+s_, VR+4*s_+m)
        for s_ in range(8): e(f'v_mul_f32 v{AC+s_}, v{AC+s_}, v{KF+s_}')
        pk = PK + 4*(ch & 1)
        for mm in range(4): e(f'v_cvt_pk_bf16_f32 v{pk+mm}, v{AC+7-2*mm}, v{AC+6-2*mm}')
        E.lg(f'ds_write_b128 v{vKW}, {vr(pk)} offset:{ch*RS}')
        if ch == Opt.h3at: onlyB(lambda: (cpoll('cpa2', 48, 2, vPr), hloadA(1)), True)
    onlyB(lambda: (e('s_waitcnt vmcnt(0)'), hreadyA(1, 3)), True)
    vA = [2, 3, 4, 5]; vB, vE, vHh = 6, 7, 12
    e(f'v_and_b32 v12, 15, v{vLane}')
    e(f'v_lshrrev_b32 v13, 4, v{vLane}')
    e(f'v_and_b32 v14, 1, v12')
    e(f'v_add_u32 v{vA[0]}, v12, v14')
    e(f'v_lshl_add_u32 v{vA[0]}, v13, 3, v{vA[0]}')
    e(f'v_lshlrev_b32 v{vA[0]}, 1, v{vA[0]}')
    e(f'v_xor_b32 v14, 1, v14')
    e(f'v_mul_lo_u32 v14, v14, s{sHS}')
    e(f'v_add3_u32 v{vA[0]}, v{vA[0]}, v14, s{sHB}')
    for i in range(1, 4): e(f'v_add_u32 v{vA[i]}, {1024*i}, v{vA[0]}')
    e(f's_mul_i32 s{sT0}, s{sLoc}, {RS}')
    e(f'v_lshlrev_b32 v14, 5, v12')
    e(f'v_lshlrev_b32 v{vB}, 4, v13')
    e(f'v_sub_u32 v{vB}, v{vB}, v14')
    e(f'v_add_u32 v{vB}, {KVB + 480}, v{vB}')
    e(f'v_add_u32 v{vB}, s{sT0}, v{vB}')
    e(f'v_lshl_add_u32 v14, v13, 3, v14')
    e(f'v_sub_u32 v{vE}, {KVB + 504}, v14')
    e(f'v_add_u32 v{vE}, s{sT0}, v{vE}')
    e(f's_add_u32 s{sT0}, s{sHB}, s{sHS}')
    e(f'v_mov_b32 v{vHh}, s{sT0}')
    e(f's_and_b32 s{sT0}, s{sWave}, 4')
    e(f'v_add_u32 v13, s{sT0}, v{vCn}')
    e('v_mov_b32 v14, 1')
    E.all_lg()
    e('s_mov_b64 exec, 1')
    e('ds_add_u32 v13, v14')
    e('s_mov_b64 exec, -1')
    ts.stamp(E)
    cpoll('cpoll0', 0)
    AF, BF, ACC0 = 16, 80, 112
    def w2pf():
        e(f's_mov_b32 s{srdK}, s{sW2}')
        e(f's_and_b32 s{srdK+1}, s{sW2+1}, 0xffff')
        e(f's_add_u32 s{sT0}, s{sFS}, 1')
        e(f's_mul_i32 s{sT0}, s{sT0}, 663552')
        e(f's_cmp_eq_u32 s{sMode}, 0')
        e(f's_cselect_b32 s{srdK+2}, s{sT0}, 0')
        e(f's_mov_b32 s{srdK+3}, 0x20000')
        e(f's_mul_i32 s15, s{sFS}, 663552')
        e(f's_lshl_b32 s{sT1}, s{sIdx}, 2')
        e(f's_add_u32 s{sT1}, s{sT1}, s{sWi_}')
        e(f's_mul_i32 s{sT1}, s{sT1}, {16*1152}')
        e(f's_add_u32 s15, s15, s{sT1}')
        e(f's_and_b32 s{sT1}, s{sFS}, 1')
        e(f's_lshl_b32 s{sT1}, s{sT1}, 9')
        e(f's_add_u32 s15, s15, s{sT1}')
        e(f'v_lshrrev_b32 v13, 2, v{vLane}')
        e('v_mul_u32_u24 v13, 1152, v13')
        e(f'v_and_b32 v14, 3, v{vLane}')
        e('v_lshl_add_u32 v13, v14, 7, v13')
    def w2one():
        e(f'buffer_load_dword v15, v13, {sr(srdK)}, s15 offen')
        e(f's_add_u32 s15, s15, {256*1152}')
    def cpass(us, nE, ACC, boff, zero, hook=None, vhook=None):
        aid, bid = {}, {}
        def aread(v, ee, h):
            r = AF + 32*(v % 2) + 4*ee + 2*h
            o = (512*(ee & 1) + 64*(7-v) + 8*h) // 4
            aid.setdefault((v, ee), []).append(E.lg(f'ds_read2_b32 {vr(r,2)}, v{vA[ee >> 1]} offset0:{o} offset1:{o+1}'))
        def bread(v, u):
            bid[(v, u)] = E.lg(f'ds_read_b128 {vr(BF + 16*(v % 2) + 4*(u & 3))}, v{vB} offset:{boff + 512*(7-u) + 64*(7-v)}')
        def reads(v):
            L = [lambda: bread(v, us[0])]
            for ee in range(nE):
                L += [lambda ee=ee: aread(v, ee, 0), lambda ee=ee: aread(v, ee, 1)]
            L += [(lambda u=u: bread(v, u)) for u in us[1:]]
            return L
        for f in reads(0): f()
        nm = sum(8-u for u in us)
        for v in range(8):
            fill = reads(v+1) if v < 7 else []
            nf = len(fill); cnt = 0; done = 0
            for u in us:
                for w in range(u, 8):
                    E.need(*(aid[(v, w-u)] + [bid[(v, u)]]))
                    c = '0' if (zero and v == 0 and u == us[0]) else vr(ACC+4*w)
                    e(f'v_mfma_f32_16x16x32_bf16 {vr(ACC+4*w)}, {vr(AF + 32*(v % 2) + 4*(w-u))}, {vr(BF + 16*(v % 2) + 4*(u & 3))}, {c}')
                    cnt += 1
                    while fill and done < cnt * nf / max(nm - 2, 1):
                        fill.pop(0)(); done += 1
                    if hook and v == 7 and u == us[1] and w == u: hook()
                    if vhook and v in vhook[0] and cnt == nm - 1: vhook[1]()
            assert not fill
    def epi(ws_, ACC, off, plain_from):
        KVR, TT = 16, 40
        kr = {w: E.lg(f'ds_read_b64 {vr(KVR+2*w,2)}, v{vE} offset:{off + 512*(7-w)}') for w in ws_}
        e('s_nop 3')
        for w in ws_:
            E.need(kr[w])
            a = ACC + 4*w; t = TT + 4*(w & 1)
            e(f'v_lshlrev_b32 v{t+3}, 16, v{KVR+2*w}')
            e(f'v_and_b32 v{t+2}, 0xffff0000, v{KVR+2*w}')
            e(f'v_lshlrev_b32 v{t+1}, 16, v{KVR+2*w+1}')
            e(f'v_and_b32 v{t}, 0xffff0000, v{KVR+2*w+1}')
            for r in range(4):
                e(f'v_add_f32 v{a+r}, v{a+r}, v{t+r}' if w >= plain_from else f'v_fmac_f32 v{a+r}, v{t+r}, v{vDv}')
            e(f'v_cvt_pk_bf16_f32 v{KVR+2*w}, v{a+3}, v{a+2}')
            e(f'v_cvt_pk_bf16_f32 v{KVR+2*w+1}, v{a+1}, v{a}')
            E.lg(f'ds_write_b64 v{vE}, {vr(KVR+2*w,2)} offset:{off + 512*(7-w)}')
    def setD(c):
        r = vDraw + c // 2
        e(f'v_and_b32 v{vDv}, 0xffff0000, v{r}' if c & 1 else f'v_lshlrev_b32 v{vDv}, 16, v{r}')
    e(f's_cmp_ge_u32 s{sWave}, 4')
    e('s_cbranch_scc1 Lconv_B')
    tsn = ts.n
    w2pf()
    e(f's_cmp_eq_u32 s{sMode}, 0')
    e('s_cbranch_scc1 LcA0')
    e(f'v_subrev_u32 v{vB}, {2*RS}, v{vB}')
    e(f'v_subrev_u32 v{vE}, {2*RS}, v{vE}')
    e('s_waitcnt vmcnt(0)')
    e(f'v_mov_b32 v{vDraw+1}, v{vDraw}')
    e('s_branch LcA2')
    for c in range(4):
        e(f'LcA{c}:')
        buf = c & 1
        if c in (0, 2):
            if c == 2:
                e(f's_cmp_eq_u32 s{sMode}, 0'); e('s_cbranch_scc1 LcAx2')
            e('s_waitcnt vmcnt(0)')
            e(f'ds_write_b16 v{vHh}, v{vH0} offset:30')
            e('s_waitcnt lgkmcnt(0)')
            if c == 2:
                e('s_branch Lcph2_ok'); e('LcAx2:')
        if c > 0: cpoll(f'cph{c}', 32, c, vPr)
        E.reset()
        ts.stamp(E)
        def prog(c=c):
            e(f'v_mov_b32 v251, {c + 1}')
            E.lg(f'ds_write_b32 v{vPr}, v251 offset:48')
        vh = (1, 3, 5) if c == Opt.w2at else None
        cpass([0, 1, 2, 3], 8, ACC0 + 32*c, c*RS, True, prog if c < 2 else None, (vh, w2one) if vh else None)
        if c < 3:
            d = 2*HS if buf == 0 else -2*HS
            for i in range(4):
                e(f'v_add_u32 v{vA[i]}, {2*HS}, v{vA[i]}' if buf == 0 else f'v_subrev_u32 v{vA[i]}, {2*HS}, v{vA[i]}')
    E.all_lg()
    cpoll('cpoll1', 4)
    ts.stamp(E)
    cpass([4, 5, 6, 7], 4, ACC0 + 96, 3*RS, False)
    setD(3)
    epi(range(8), ACC0 + 96, 3*RS, 8)
    e(f's_cmp_lg_u32 s{sMode}, 0')
    e('s_cbranch_scc1 LcAe2')
    if Opt.nb == 2:
        for i in range(4): e(f'v_subrev_u32 v{vA[i]}, {2*HS}, v{vA[i]}')
        E.all_lg()
        cpass([4, 5, 6, 7], 4, ACC0 + 64, 2*RS, False)
        setD(2)
        epi(range(8), ACC0 + 64, 2*RS, 8)
    for c in range(3):
        if c == 2 and Opt.nb == 2: e('s_branch Lconv_fin')
        e(f'LcAe{c}:')
        cpoll(f'cpe{c}', 16, c + 1, vPr)
        E.reset()
        setD(c)
        epi(range(8), ACC0 + 32*c, c*RS, 4)
    e('s_branch Lconv_fin')
    e('Lconv_B:')
    tsA = ts.n; ts.n = tsn
    cpoll('cpoll2', 4)
    if Opt.cprio: e('s_setprio 1')
    e(f's_lshl_b32 s{sIt}, s{sMode}, 1')
    e('LcB:')
    e('s_waitcnt vmcnt(0) lgkmcnt(0)')
    E.reset()
    w0 = E.lg(f'ds_write_b16 v{vHh}, v{vH0} offset:30')
    e(f'v_lshlrev_b32 v{vDv}, 16, v{vDraw}')
    e(f'v_alignbit_b32 v{vDraw}, v{vDraw+1}, v{vDraw}, 16')
    e(f'v_lshrrev_b32 v{vDraw+1}, 16, v{vDraw+1}')
    E.need(w0)
    def refill():
        e(f's_cmp_ge_u32 s{sIt}, {Opt.nb - 1}')
        e('s_cbranch_scc1 LcB_nr')
        e(f's_add_u32 s{sCh}, s{sCh}, 1')
        hload(2, 0, HS2)
        e('LcB_nr:')
    cpass([4, 5, 6, 7], 4, ACC0, 0, True, refill)
    epi(range(4, 8), ACC0, 0, 8)
    e(f's_add_u32 s{sIt}, s{sIt}, 1')
    e(f'v_mov_b32 v14, s{sIt}')
    E.all_lg()
    e(f'ds_write_b32 v{vPr}, v14 offset:16')
    e(f'v_add_u32 v{vB}, {RS}, v{vB}')
    e(f'v_add_u32 v{vE}, {RS}, v{vE}')
    e(f's_cmp_lt_u32 s{sIt}, {Opt.nb}')
    e('s_cbranch_scc1 LcB')
    while ts.n < tsA: ts.stamp(E)
    e('Lconv_fin:')
    if Opt.d_conv: e(f's_sleep {Opt.d_conv}')
    e('s_waitcnt vmcnt(0) lgkmcnt(0)')
    E.reset()
    ts.stamp(E)
    e('s_barrier')
    e(f'v_lshrrev_b32 v2, 5, v{vLane}')
    e(f'v_lshrrev_b32 v3, 2, v{vLane}')
    e('v_and_b32 v3, 3, v3')
    e('v_lshl_add_u32 v3, v2, 3, v3')
    e(f'v_mul_u32_u24 v3, {RS}, v3')
    e(f'v_and_b32 v4, 16, v{vLane}')
    e('v_lshl_add_u32 v3, v4, 1, v3')
    e(f'v_and_b32 v5, 3, v{vLane}')
    e('v_lshl_add_u32 v3, v5, 3, v3')
    e(f's_lshl_b32 s{sT0}, s{sWave}, 9')
    e(f's_add_u32 s{sT0}, s{sT0}, {KVB}')
    e(f'v_add_u32 v3, s{sT0}, v3')
    e(f'v_and_b32 v5, 31, v{vLane}')
    e(f's_lshl_b32 s{sT0}, s{sWave}, 8')
    e(f'v_add_u32 v5, s{sT0}, v5')
    e(f'v_sub_u32 v5, {2047-224}, v5')
    e('v_lshlrev_b32 v5, 4, v5')
    e('v_lshl_add_u32 v5, v2, 15, v5')
    e(f's_lshl_b32 s{sT0}, s{sCT}, 16')
    e(f's_add_u32 s{sT0}, s{sT0}, {WS_Y}')
    e(f's_add_u32 s{sT1}, s{sT0}, 4096')
    rd = []
    for blk in range(8):
        r = 16 + 4*blk
        i0 = E.lg(f'ds_read_b64_tr_b16 {vr(r,2)}, v3 offset:{64*blk}')
        i1 = E.lg(f'ds_read_b64_tr_b16 {vr(r+2,2)}, v3 offset:{64*blk + 4*RS}')
        rd.append([i0, i1])
    E.all_lg()
    e(f's_cmp_eq_u32 s{sMode}, 0')
    e('s_cbranch_scc1 Lconv_st')
    e(f's_sub_u32 exec_lo, s{sHsel}, 1')
    e(f's_sub_u32 exec_hi, 0, s{sHsel}')
    e('Lconv_st:')
    for blk in range(8):
        E.vm(f'buffer_store_dwordx4 {vr(16+4*blk)}, v5, {sr(srdWS)}, s{sT0} offen offset:{(7-blk)*512}{SC}')
    e('s_mov_b64 exec, -1')
    E.all_vm()
    e('s_barrier')
    e(f's_cmp_lg_u32 s{sWave}, 7')
    e('s_cbranch_scc1 Lconv_end')
    e(f'v_add_u32 v{vFo_}, 1, v{vFo_}')
    e(f's_mov_b64 exec, {(1 << NMT) - 1}')
    e(f'buffer_store_dword v{vFo_}, v{vFa_}, {sr(srdWS)}, 0 offen{SC}')
    e('s_mov_b64 exec, -1')
    e('Lconv_end:')
    if Opt.ts:
        ts.stamp(E)
        ts.flush(E, 60)
    e('s_endpgm')
    e('Lhelper:')
    srd(E, srdW2, sW2, D*F*2)
    e(f's_mul_i32 s{sT0}, s{sFS}, 663552')
    e(f's_and_b32 s10, s{sFS}, 1')
    e('s_xor_b32 s10, s10, 1')
    e('s_lshl_b32 s10, s10, 2')
    if Opt.hdelay: e(f's_sleep {Opt.hdelay}')
    for i in range(6):
        e(f'v_add_u32 v2, {512*i}, v0')
        e('v_mul_u32_u24 v3, 13108, v2')
        e('v_lshrrev_b32 v3, 16, v3')
        e('v_mul_u32_u24 v4, 5, v3')
        e('v_sub_u32 v4, v2, v4')
        e('v_cmp_eq_u32 vcc, 4, v4')
        e('v_add_u32 v4, s10, v4')
        e('v_min_u32 v3, 575, v3')
        e('v_cndmask_b32 v4, v4, 8, vcc')
        e('v_mul_u32_u24 v3, 1152, v3')
        e('v_lshl_add_u32 v3, v4, 7, v3')
        e(f'buffer_load_dword v8, v3, {sr(srdW2)}, s{sT0} offen')
        e('s_barrier')
    if Opt.ts:
        e('s_waitcnt vmcnt(0)')
        srd(E, srdWS, sWS, WS_BYTES)
        ts.n = 1; ts.stamp(E); ts.flush(E, 60); e('s_mov_b64 exec, -1')
    if Opt.tlbw:
        srd(E, srdWS, sWS, WS_BYTES)
        srd(E, srdB1, sOUT, S*D*2)
        e('v_lshlrev_b32 v2, 16, v0')
        e(f'buffer_load_dword v14, v2, {sr(srdWS)}, 0 offen{SC}')
        e(f'buffer_load_dword v15, v2, {sr(srdB1)}, 0 offen')
    e('s_waitcnt vmcnt(0)')
    e('s_endpgm')

def k1(E):
    e = E.e
    e('.p2align 8')
    e(f'.type {KNAME},@function')
    e(f'{KNAME}:')
    e(f's_cmp_ge_u32 s2, {NWG}')
    e('s_cbranch_scc1 Lk1_exit')
    TS().rt0(E)
    for i in range(Opt.d_sleep): e('s_sleep 127')
    e('s_load_dwordx16 s[16:31], s[0:1], 0')
    e('s_load_dwordx8 s[32:39], s[0:1], 64')
    e('s_load_dwordx2 s[40:41], s[0:1], 96')
    e(f'v_and_b32 v{vLane}, 63, v0')
    e('v_lshrrev_b32 v2, 6, v0')
    e(f's_and_b32 s{sFS}, s2, 7')
    e(f'v_readfirstlane_b32 s{sWave}, v2')
    e(f's_lshr_b32 s{sMT}, s2, 3')
    if Opt.code_pf:
        e('s_getpc_b64 s[10:11]')
        e('Lpc:')
        e(f'v_lshl_add_u32 v3, v0, 5, s{sMT}')
        e('v_lshlrev_b32 v3, 7, v3')
        e('v_cmp_gt_u32 vcc, Lk1_exit-Lpc, v3')
        e('s_and_saveexec_b64 s[12:13], vcc')
        e('s_cbranch_execz Lnocpf')
        e(f'global_load_dword v{vDum}, v3, s[10:11]')
        e('Lnocpf:')
        e('s_mov_b64 exec, s[12:13]')
    e(f's_cmp_lt_u32 s{sMT}, {IDX_MLP0}')
    e('s_waitcnt lgkmcnt(0)')
    if Opt.wsbase:
        e(f's_add_u32 s{sWS}, s{sWS}, {Opt.wsbase << 20}')
        e(f's_addc_u32 s{sWS+1}, s{sWS+1}, 0')
        e(f's_cmp_lt_u32 s{sMT}, {IDX_MLP0}')
    if Opt.d_end:
        e('s_cselect_b32 s99, 1, 0')
        if Opt.d_end == 2:
            e('v_lshlrev_b32 v3, 16, v0')
            for (p, n) in ((sQ, S*D*2), (sK, S*D*2), (sV, S*D*2), (sSSMK, S*D*2), (sW1, D*F*2), (sW2, D*F*2), (sOUT, S*D*2), (sWS, WS_BYTES), (sB1, F*2), (sSHK, 4608), (sSSMD, 1152)):
                srd(E, 44, p, n)
                e('buffer_load_dword v4, v3, s[44:47], 0 offen sc1 nt')
        for i in range(2): e('s_sleep 127')
        e('s_cmp_eq_u32 s99, 1')
    e('s_cbranch_scc1 Lconv')
    if Opt.nomlp: e('s_endpgm')
    ts = TS()
    ts.stamp(E)
    P = mlp_prologue(E, ts)
    pre_ids = []
    mlp_ln(E, P, ts, lambda: pre_ids.extend(mlp_prefill(E)))
    st = E.state(); tsn = ts.n
    e(f's_cmp_ge_u32 s{sWave}, 4')
    e('s_cbranch_scc1 LmlpB')
    mlp_main(E, 'P', P, ts, pre_ids)
    e('LmlpB:')
    E.set_state(st); ts.n = tsn
    E.vm_n -= 8 - (1 if Opt.qpf else 0)
    mlp_main(E, 'Q', P, ts, pre_ids)
    for l in stubs: e(l)
    e('Lmlp_end:')
    e('Lconv:')
    E.reset()
    conv(E)
    e('Lk1_exit:')
    e('s_endpgm')

def desc(name, vg, sg):
    return f'''.p2align 6
.amdhsa_kernel {name}
  .amdhsa_next_free_vgpr {vg}
  .amdhsa_next_free_sgpr {sg}
  .amdhsa_accum_offset {vg}
  .amdhsa_group_segment_fixed_size 0
  .amdhsa_kernarg_size 104
  .amdhsa_user_sgpr_count 2
  .amdhsa_user_sgpr_kernarg_segment_ptr 1
  .amdhsa_system_sgpr_workgroup_id_x 1
.end_amdhsa_kernel
'''

def build():
    E = Em()
    e = E.e
    head = HDR + f'; @launch grid=({NWG},1,1) block=(512,1,1) lds={LDS_BYTES}\n'
    head += f'.amdgcn_target "amdgcn-amd-amdhsa--gfx950"\n.text\n.globl {KNAME}\n'
    k1(E)
    tail = '.section .rodata,"a"\n' + desc(KNAME, 256, 102)
    return head + E.text() + tail

if __name__ == '__main__':
    out = sys.argv[1] if len(sys.argv) > 1 else 'cdna_kernels/' + NAME + '.s'
    for a in sys.argv[2:]:
        k, v = a.split('=', 1)
        cur = getattr(Opt, k)
        setattr(Opt, k, type(cur)(int(v)) if isinstance(cur, (bool, int)) else v)
    Em.lgmerge = Opt.lgmerge
    t = build()
    open(out, 'w').write(t)
    print(out, len(t), 'bytes', t.count('\n'), 'lines')
```

```python
import sys
from em import Em, vr, sr

NAME = 'parallel_sum__ssm_conv_h3__dense_activation_mish__prompt'
HDR = open('cdna_kernels/' + NAME + '.s.ref').read().split('; Override launch')[0]

S, D, F = 2048, 576, 4608
NMT = 26
N_MLP = NMT * 8
N_CONV = 36
NWG = 256
IDX_MLP0 = 6
PSTRIDE = 130 * 18432
WS_P = 0
WS_Y = 20 << 20
WS_ST = 24 << 20
WS_TS = 28 << 20
WS_FL = 26 << 20
KNAME = NAME + '_kernel'
WS_BYTES = 32 << 20
LDS_BYTES = 163840
XA_BYTES = 92160
LOG2E = 0x3fb8aa3b
RSQRT2 = 0x3f3504f3

class Opt:
    ts = False
    dlat = 18
    dma_delay = 6
    wlead = 4
    xlead = 10
    cap = 2
    lgmerge = 7
    oddR = 3
    dspace = 4
    psleep = 1
    fine = ''
    x_warm = 0
    x_nochk = 0
    budget = 12
    wcost = 4
    force = 2
    x_qidle = 0
    x_nolgw = 0
    x_novmw = 0
    wrate = 1
    wslack = 1
    mnop = -1
    fold = 1
    qdeep = 1
    egate = 24
    pw0 = 3
    pw1 = 2
    qsig = 27
    edelay = 0
    pthr = 9
    esleep = 2
    tmpl = 0
    x_nopub = 0
    cprio = 1
    spin = 0
    x_nowr = 0
    x_pq = 0
    sthr = 15
    milp = 4
    cph = 12
    pph = 7
    wph = 0
    code_pf = True
    w2pf = 1
    qpf = 0
    bwait = 0
    w2at = 2
    w1b = 1
    hdelay = 100
    rt = 0
    cdelay = 0
    snake = 1
    ntkv = ' nt'
    bq = 0
    ntkv2 = ''
    x_noconv = 0
    hkv = 1
    wsl = 0
    w64 = 0
    qgentle = 1
    pois_at = 0
    x_noex = 0
    nb = 2
    h3at = 3
    prom = 0
    promf = ' sc1'
    hpf = True
    lnts = False
    kvpf = 1
    nomlp = False
    dbg = 0
    tlbw = True
    bgate = 8
    x_nodma = 0
    nt = ''
    dot = 1
    x_nomish = 0

sQ, sK, sV, sSHK, sSSMK, sSSMD, sW1 = 16, 18, 20, 22, 24, 26, 30
sB1, sW2, sOUT, sDBG, sWS = 32, 34, 36, 38, 40
srdX, srdW1, srdW2, srdB1, srdWS = 44, 48, 52, 56, 60
srdK, srdV, srdSHK, srdSSMK, srdSSMD = 44, 48, 52, 56, 64
sWave, sFS, sMT, sRing, sT0, sT1, sC = 3, 4, 5, 6, 7, 8, 9
sTS = 68
sWi, sLine2, sOddM, sFlA, sFlO, sFin = 18, 19, 20, 21, 22, 23
sXcd, sI, sWr = 14, 15, 42
SC = ' sc1'
vLane = 1

def srd(E, d, p, nbytes):
    E.e(f's_mov_b32 s{d}, s{p}')
    E.e(f's_and_b32 s{d+1}, s{p+1}, 0xffff')
    E.e(f's_mov_b32 s{d+2}, {nbytes}')
    E.e(f's_mov_b32 s{d+3}, 0x20000')

class TS:
    def __init__(self): self.n = 0
    def stamp(self, E, fine=False):
        if Opt.ts and (bool(Opt.fine) == fine or self.n == 0 or getattr(self, 'conv', False)):
            assert self.n < 14
            E.e(f'{"s_memrealtime" if Opt.rt else "s_memtime"} s[{sTS+2*self.n}:{sTS+2*self.n+1}]')
            self.n += 1
    def val(self, E, sreg):
        if Opt.ts and Opt.spin:
            E.e(f's_add_u32 s{sTS+2*self.n}, s{sreg}, s{sTS}')
            self.n += 1
    def stamp2(self, E, sIt):
        if Opt.ts:
            TS.uid = getattr(TS, 'uid', 0) + 1
            u = TS.uid
            E.e(f's_cmp_lg_u32 s{sIt}, 0')
            E.e(f's_cbranch_scc1 Lts{u}a')
            self.stamp(E)
            E.e(f's_branch Lts{u}b')
            E.e(f'Lts{u}a:')
            self.stamp(E)
            E.e(f'Lts{u}b:')
    def rt0(self, E):
        if Opt.ts: E.e(f's_memrealtime s[{sTS+28}:{sTS+29}]')
    def flush(self, E, vtmp):
        if not Opt.ts: return
        E.e(f's_memrealtime s[{sTS+30}:{sTS+31}]')
        E.e('s_waitcnt lgkmcnt(0)')
        E.e(f's_lshl_b32 s{sT0}, s2, 3')
        E.e(f's_add_u32 s{sT0}, s{sT0}, s{sWave}')
        E.e(f's_lshl_b32 s{sT0}, s{sT0}, 6')
        E.e(f's_add_u32 s{sT0}, s{sT0}, {WS_TS}')
        E.e(f'v_mov_b32 v{vtmp}, 0')
        for i in list(range(self.n)) + [14, 15]:
            E.e(f'v_writelane_b32 v{vtmp}, s{sTS+2*i}, {i}')
        E.e(f'v_lshlrev_b32 v{vtmp+1}, 2, v{vLane}')
        E.e('s_mov_b64 exec, 0xffff')
        E.e(f'buffer_store_dword v{vtmp}, v{vtmp+1}, {sr(srdWS)}, s{sT0} offen')
        if Opt.dbg:
            TS.uid = getattr(TS, 'uid', 0) + 1
            u = TS.uid
            srd(E, 44, sDBG, 256)
            E.e('s_mov_b64 exec, 1')
            E.e(f's_not_b32 s{sT1}, s{sTS+28}')
            E.e(f'v_mov_b32 v{vtmp+2}, s{sT1}')
            E.e(f'v_mov_b32 v{vtmp+3}, s{sTS+30}')
            E.e(f'buffer_atomic_umax v{vtmp+2}, v{vtmp+1}, s[44:47], 0 offen offset:56')
            E.e(f'buffer_atomic_umax v{vtmp+3}, v{vtmp+1}, s[44:47], 0 offen offset:60')
            E.e(f's_cmp_lg_u32 s2, {Opt.dbg}')
            E.e(f's_cbranch_scc1 Ldbg{u}')
            E.e(f's_cmp_lg_u32 s{sWave}, 5')
            E.e(f's_cbranch_scc1 Ldbg{u}')
            E.e('s_mov_b64 exec, 0x3fff')
            E.e(f'v_readlane_b32 s{sT1}, v{vtmp}, 0')
            E.e('s_nop 1')
            E.e(f'v_subrev_u32 v{vtmp}, s{sT1}, v{vtmp}')
            E.e(f'buffer_store_dword v{vtmp}, v{vtmp+1}, s[44:47], 0 offen')
            E.e(f'Ldbg{u}:')

vX0, vX1, vXg0, vXg1 = 2, 3, 4, 5
vWt = [6, 7, 8, 9]
vWo = 10
vD1a, vD1b, vD2a, vD2b, vDo = 11, 12, 13, 14, 15
vAW, vAWo, vP, vPo = 16, 17, 18, 19
vSA, vSB, vSW, vS, vPg = 20, 21, 22, 23, 24
vOld2, vDum, vS2 = 25, 26, 27
sSpin = 100
vT = 28
vXF = 36
vWF = 76
vAcc = 116
vBraw = 216
vFlOld = 226
SCR = LDS_BYTES - 2048
STW = SCR + 128
FLB = 256

ODDB = XA_BYTES + 12288
ODDR = 5
ODDOFF = [0, 16384, 32768, 49152, 53248]
assert ODDB + ODDOFF[4] + 4096 <= SCR

def flag_base(E, dst):
    E.e(f's_mul_i32 s{dst}, s{sMT}, {9*FLB}')
    E.e(f's_add_u32 s{dst}, s{dst}, {WS_FL}')

def flag_addrs(E, rA, rO):
    e = E.e
    flag_base(E, sT0)
    e(f's_lshl_b32 s{sT1}, s{sFS}, 4')
    e(f's_add_u32 s{sT0}, s{sT0}, s{sT1}')
    e(f's_lshl_b32 s{rA}, s{sLine2}, 8')
    e(f's_add_u32 s{rA}, s{rA}, s{sT0}')
    e(f's_lshl_b32 s{rO}, s{sWi}, 2')
    e(f's_add_u32 s{rO}, s{rO}, s{sT0}')
    e(f's_add_u32 s{rO}, s{rO}, {8*FLB}')

def mlp_prologue(E, ts):
    e = E.e
    a, b, c, d = vT, vT+1, vT+2, vT+3
    e(f's_sub_u32 s{sMT}, s{sMT}, {IDX_MLP0}')
    def kvpf_issue():
        e('s_mov_b64 exec, 0x3ff')
        E.vm(f'buffer_load_dword v{vDum}, v{vT+7}, {sr(srdW2)}, s10 offen{Opt.ntkv}')
        e('s_mov_b64 exec, -1')
    if Opt.kvpf:
        e(f's_cmp_lt_u32 s{sWave}, 4')
        e(f's_cselect_b32 s{srdW2}, s{sK}, s{sV}')
        e(f's_cselect_b32 s{srdW2+1}, s{sK+1}, s{sV+1}')
        e(f's_and_b32 s{srdW2+1}, s{srdW2+1}, 0xffff')
        e(f's_mov_b32 s{srdW2+2}, {S*D*2}')
        e(f's_mov_b32 s{srdW2+3}, 0x20000')
        e(f's_and_b32 s{sT0}, s{sWave}, 3')
        e(f's_lshl_b32 s{sT1}, s{sMT}, 2')
        e(f's_add_u32 s{sT0}, s{sT0}, s{sT1}')
        e(f's_mul_i32 s{sT0}, s{sT0}, {10*1152}')
        e(f's_lshl_b32 s{sT1}, s{sFS}, 7')
        e(f's_add_u32 s10, s{sT0}, s{sT1}')
        e(f'v_mul_u32_u24 v{vT+7}, 1152, v{vLane}')
        kvpf_issue()
        if Opt.kvpf == 3:
            e(f's_add_u32 s10, s10, {1024*1152}')
            e('s_mov_b64 exec, 0x3ff')
            E.vm(f'buffer_load_dword v{vDum}, v{vT+7}, {sr(srdW2)}, s10 offen{Opt.ntkv2}')
            e('s_mov_b64 exec, -1')
    srd(E, srdX, sQ, S*D*2)
    vR, vCc, vOff, vSl = 180, 181, 182, 183
    e(f'v_mul_u32_u24 v{vR}, 43, v{vLane}')
    e(f'v_lshrrev_b32 v{vR}, 8, v{vR}')
    e(f'v_mul_u32_u24 v{vCc}, 6, v{vR}')
    e(f'v_sub_u32 v{vCc}, v{vLane}, v{vCc}')
    e(f's_mul_i32 s{sT0}, s{sWave}, 10')
    e(f'v_add_u32 v{vSl}, s{sT0}, v{vR}')
    e(f's_mul_i32 s{sT1}, s{sMT}, 80')
    e(f'v_add_u32 v{vOff}, s{sT1}, v{vSl}')
    e(f'v_mul_u32_u24 v{vOff}, 1152, v{vOff}')
    e(f'v_lshl_add_u32 v{vOff}, v{vCc}, 4, v{vOff}')
    XR = 36
    xl = []
    for i in range(12):
        xl.append(E.vm(f'buffer_load_dwordx4 {vr(XR+4*i)}, v{vOff}, {sr(srdX)}, 0 offen offset:{96*i}'))
    if Opt.kvpf == 2:
        e(f's_cmp_lt_u32 s{sWave}, 6')
        e(f's_cselect_b32 s{srdW2}, s{sK}, s{sV}')
        e(f's_cselect_b32 s{srdW2+1}, s{sK+1}, s{sV+1}')
        e(f's_and_b32 s{srdW2+1}, s{srdW2+1}, 0xffff')
        e(f's_and_b32 s{sT0}, s{sWave}, 1')
        e(f's_lshl_b32 s{sT1}, s{sMT}, 1')
        e(f's_add_u32 s{sT0}, s{sT0}, s{sT1}')
        e(f's_mul_i32 s{sT0}, s{sT0}, {20*1152}')
        e(f's_lshl_b32 s{sT1}, s{sFS}, 7')
        e(f's_add_u32 s10, s{sT0}, s{sT1}')
        e(f's_add_u32 s10, s10, {1024*1152}')
        e(f's_cmp_lt_u32 s{sWave}, 4')
        e('s_cselect_b32 s10, 0x40000000, s10')
        e('s_mov_b64 exec, 0xfffff')
        E.vm(f'buffer_load_dword v{vDum}, v{vT+7}, {sr(srdW2)}, s10 offen{Opt.ntkv}')
        e('s_mov_b64 exec, -1')
    srd(E, srdW1, sW1, D*F*2)
    srd(E, srdW2, sW2, D*F*2)
    srd(E, srdB1, sB1, F*2)
    srd(E, srdWS, sWS, WS_BYTES)
    if Opt.w1b:
        e(f's_and_b32 s{sT0}, s{sWave}, 3')
        e(f's_mul_i32 s{sT0}, s{sT0}, {28*26}')
        e(f's_mul_i32 s{sT1}, s{sMT}, 28')
        e(f's_add_u32 s{sT0}, s{sT0}, s{sT1}')
        e(f'v_add_u32 v{a}, s{sT0}, v{vLane}')
        e(f'v_mul_u32_u24 v{b}, 13108, v{a}')
        e(f'v_lshrrev_b32 v{b}, 16, v{b}')
        e(f'v_mul_u32_u24 v{c}, 5, v{b}')
        e(f'v_sub_u32 v{c}, v{a}, v{c}')
        e(f'v_mul_u32_u24 v{b}, 9216, v{b}')
        e(f'v_lshl_add_u32 v{vT+6}, v{c}, 7, v{b}')
    e(f'v_cmp_gt_u32 vcc, 12, v{vLane}')
    e(f's_mul_i32 s{sT0}, s{sWave}, {12*26}')
    e(f's_mul_i32 s{sT1}, s{sMT}, 12')
    e(f's_add_u32 s{sT0}, s{sT0}, s{sT1}')
    e(f'v_add_u32 v{a}, s{sT0}, v{vLane}')
    e(f'v_lshrrev_b32 v{b}, 2, v{a}')
    e(f'v_and_b32 v{c}, 3, v{a}')
    e(f'v_mul_u32_u24 v{b}, 9216, v{b}')
    e(f'v_lshl_add_u32 v{b}, v{c}, 7, v{b}')
    e(f'v_cndmask_b32 v{b}, -1, v{b}, vcc')
    e(f's_mul_i32 s{sT0}, s{sFS}, 1152')
    E.vm(f'buffer_load_dword v{vDum}, v{b}, {sr(srdW1)}, s{sT0} offen{Opt.nt}')
    e(f's_and_b32 s{sWi}, s{sWave}, 3')
    e(f's_lshr_b32 s{sT0}, s{sWave}, 2')
    e(f's_xor_b32 s{sT0}, s{sT0}, s{sFS}')
    e(f's_and_b32 s{sT0}, s{sT0}, 1')
    e(f's_xor_b32 s{sT0}, s{sT0}, 1')
    e(f's_lshl_b32 s{sLine2}, s{sT0}, 2')
    e(f's_add_u32 s{sLine2}, s{sLine2}, s{sWi}')
    e(f's_and_b32 s{sT0}, s{sFS}, 1')
    e(f's_lshl_b32 s{sT0}, s{sT0}, 2')
    e(f's_lshr_b32 s{sFin}, s{sFS}, 1')
    e(f's_add_u32 s{sFin}, s{sFin}, s{sT0}')
    flag_addrs(E, sFlA, sFlO)
    e(f'v_mov_b32 v{a}, s{sFlA}')
    e(f'v_writelane_b32 v{a}, s{sFlO}, 1')
    e('s_mov_b64 exec, 3')
    fl = [E.vm(f'buffer_load_dword v{vFlOld}, v{a}, {sr(srdWS)}, 0 offen{SC}')]
    e('s_mov_b64 exec, -1')
    e(f'v_lshlrev_b32 v{b}, 2, v{vLane}')
    flag_base(E, sT0)
    e(f's_lshl_b32 s{sT1}, s{sFin}, 8')
    e(f's_add_u32 s{sT1}, s{sT1}, s{sT0}')
    e(f's_add_u32 s{sT0}, s{sT0}, {8*FLB}')
    e(f's_cmp_ge_u32 s{sWave}, 4')
    e('s_cbranch_scc1 Lnoold')
    e(f'buffer_load_dword v0, v{b}, {sr(srdWS)}, s{sT1} offen{SC}')
    e(f'buffer_load_dword v{vOld2}, v{b}, {sr(srdWS)}, s{sT0} offen{SC}')
    e('Lnoold:')
    e(f'v_lshrrev_b32 v{d}, 4, v{vLane}')
    e(f's_mul_i32 s{sT0}, s{sFS}, 1152')
    e(f'v_lshl_add_u32 v{b}, v{d}, 3, s{sT0}')
    e(f's_lshl_b32 s{sT1}, s{sWave}, 7')
    bl = []
    for i in range(4):
        bl.append(E.vm(f'buffer_load_dwordx2 {vr(vBraw+2*i,2)}, v{b}, {sr(srdB1)}, s{sT1} offen offset:{32*i}'))
    e(f's_lshl_b32 s{sT1}, s{sWi}, 5')
    bl.append(E.vm(f'buffer_load_dwordx2 {vr(vBraw+8,2)}, v{b}, {sr(srdB1)}, s{sT1} offen offset:1024'))
    if Opt.w1b:
        e(f's_mul_i32 s{sT0}, s{sFS}, 1152')
        e(f's_add_u32 s{sT0}, s{sT0}, 512')
        e(f's_cmp_lt_u32 s{sWave}, 4')
        e(f's_cselect_b32 s{sT0}, 0x40000000, s{sT0}')
        e('s_mov_b64 exec, 0xfffffff')
        E.vm(f'buffer_load_dword v{vDum}, v{vT+6}, {sr(srdW1)}, s{sT0} offen')
        e('s_mov_b64 exec, -1')
    oddb = ODDB
    e(f'v_lshlrev_b32 v{vX0}, 4, v{vLane}')
    e(f'v_add_u32 v{vX1}, 46080, v{vX0}')
    e(f's_lshl_b32 s{sRing}, s{sWi}, 14')
    e(f's_add_u32 s{sRing}, s{sRing}, {XA_BYTES}')
    e(f's_lshr_b32 s{sT1}, s{sWave}, 2')
    e(f's_lshl_b32 s{sT1}, s{sT1}, 12')
    e(f's_add_u32 s15, s{sRing}, s{sT1}')
    e(f's_lshl_b32 s{sOddM}, s{sWi}, 10')
    e(f's_add_u32 s{sOddM}, s{sOddM}, {oddb}')
    e(f'v_lshrrev_b32 v{a}, 2, v{vLane}')
    e(f'v_and_b32 v{c}, 3, v{vLane}')
    e(f'v_lshlrev_b32 v{b}, 7, v{a}')
    e(f'v_lshl_add_u32 v{b}, v{c}, 3, v{b}')
    e(f'v_bfe_u32 v{c}, v{vLane}, 3, 2')
    e(f'v_lshl_add_u32 v{b}, v{c}, 5, v{b}')
    for t in range(4):
        e(f'v_xor_b32 v{vWt[t]}, {32*t}, v{b}')
        e(f'v_add_u32 v{vWt[t]}, s{sRing}, v{vWt[t]}')
    e(f's_lshl_b32 s{sT0}, s{sWi}, 5')
    e(f'v_xor_b32 v{vWo}, s{sT0}, v{b}')
    e(f'v_add_u32 v{vWo}, {oddb}, v{vWo}')
    e(f'v_lshrrev_b32 v{a}, 3, v{vLane}')
    e(f'v_and_b32 v{c}, 7, v{vLane}')
    e(f'v_and_b32 v{b}, 6, v{a}')
    e(f'v_xor_b32 v{c}, v{c}, v{b}')
    e(f'v_mul_u32_u24 v{d}, 1152, v{a}')
    e(f'v_lshl_add_u32 v{d}, v{c}, 4, v{d}')
    e(f's_mul_i32 s{sT0}, s{sFS}, 663552')
    e(f's_lshl_b32 s{sT1}, s{sLine2}, 7')
    e(f's_add_u32 s{sT1}, s{sT1}, s{sT0}')
    e(f'v_add_u32 v{vD2a}, s{sT1}, v{d}')
    e(f'v_add_u32 v{vD2b}, {8*1152-1024}, v{vD2a}')
    e(f's_mul_i32 s{sT1}, s{sWi}, {8*1152}')
    e(f's_add_u32 s{sT1}, s{sT1}, s{sT0}')
    e(f's_add_u32 s{sT1}, s{sT1}, 1024')
    e(f'v_add_u32 v{vDo}, s{sT1}, v{d}')
    e(f'v_and_b32 v{b}, 4, v{a}')
    e(f'v_add_u32 v{b}, v{b}, v{a}')
    e(f'v_mul_u32_u24 v{d}, 9216, v{b}')
    e(f'v_lshl_add_u32 v{d}, v{c}, 4, v{d}')
    e(f's_mul_i32 s{sT0}, s{sFS}, 1152')
    e(f's_lshl_b32 s{sT1}, s{sWave}, 7')
    e(f's_add_u32 s{sT1}, s{sT1}, s{sT0}')
    e(f'v_add_u32 v{vD1a}, s{sT1}, v{d}')
    e(f'v_add_u32 v{vD1b}, {16*9216-1024}, v{vD1a}')
    e(f's_cmp_lt_u32 s{sWave}, 4')
    e('s_cbranch_scc1 Lodd_p')
    e(f's_and_b32 s{sT1}, s{sWi}, 1')
    e(f's_mul_i32 s{sT1}, s{sT1}, {16*9216}')
    e(f's_add_u32 s{sT0}, s{sT0}, s{sT1}')
    e(f's_lshr_b32 s{sT1}, s{sWi}, 1')
    e(f's_mul_i32 s{sT1}, s{sT1}, {4*9216}')
    e(f's_add_u32 s{sT0}, s{sT0}, s{sT1}')
    e(f's_add_u32 s{sT0}, s{sT0}, 1024')
    e(f'v_add_u32 v{vDo}, s{sT0}, v{d}')
    e('Lodd_p:')
    e(f's_and_b32 s{sT0}, s{sWave}, 4')
    e(f's_add_u32 s{sT0}, s{sT0}, s{sWave}')
    e(f's_mul_i32 s{sT0}, s{sT0}, 5120')
    e(f'v_add_u32 v{vAW}, s{sT0}, v{vX0}')
    e(f's_lshr_b32 s{sT0}, s{sWi}, 1')
    e(f's_mul_i32 s{sT0}, s{sT0}, 5120')
    e(f's_and_b32 s{sT1}, s{sWi}, 1')
    e(f's_lshl_b32 s{sT1}, s{sT1}, 3')
    e(f's_add_u32 s{sT0}, s{sT0}, s{sT1}')
    e(f's_add_u32 s{sT0}, s{sT0}, {16*5120}')
    e(f'v_add_u32 v{vAWo}, s{sT0}, v{vX0}')
    e(f's_mul_i32 s{sT0}, s{sFS}, {PSTRIDE}')
    e(f's_mul_i32 s10, s{sMT}, {5*18432}')
    e(f's_add_u32 s{sT0}, s{sT0}, s10')
    e(f's_lshl_b32 s10, s{sLine2}, 11')
    e(f's_add_u32 s10, s10, s{sT0}')
    e(f'v_add_u32 v{vP}, s10, v{vX0}')
    e(f's_lshl_b32 s10, s{sWi}, 9')
    e(f's_add_u32 s10, s10, s{sT0}')
    e(f's_add_u32 s10, s10, {16*1024}')
    e(f'v_lshl_add_u32 v{vPo}, v{vLane}, 3, s10')
    e(f's_mov_b32 s{sC}, {RSQRT2}')
    e(f's_mov_b32 s{sSpin}, 0')
    e(f'v_and_b32 v{a}, 3, v{vLane}')
    e(f'v_lshlrev_b32 v{a}, 2, v{a}')
    e(f'v_add_u32 v{vSA}, {STW}, v{a}')
    e(f'v_add_u32 v{vSB}, {STW+16}, v{a}')
    e(f's_lshl_b32 s{sT0}, s{sWave}, 2')
    e(f's_add_u32 s{sT0}, s{sT0}, {STW}')
    e(f'v_mov_b32 v{vSW}, s{sT0}')
    vSw, vSr, vFe, vFo = 184, 185, 186, 187
    e(f's_lshl_b32 s{sT0}, s{sWave}, 9')
    e(f's_add_u32 s{sT0}, s{sT0}, {ODDB + ODDOFF[4]}')
    e(f'v_lshl_add_u32 v{vSw}, v{vLane}, 3, s{sT0}')
    e(f'v_mul_u32_u24 v{vSr}, 48, v{vR}')
    e(f'v_add_u32 v{vSr}, s{sT0}, v{vSr}')
    e(f'v_lshrrev_b32 v{a}, 4, v{vSl}')
    e(f'v_and_b32 v{b}, 15, v{vSl}')
    e(f'v_lshlrev_b32 v{a}, 10, v{a}')
    e(f'v_lshl_add_u32 v{a}, v{b}, 6, v{a}')
    e(f'v_lshrrev_b32 v{d}, 2, v{b}')
    e(f'v_and_b32 v{d}, 2, v{d}')
    for (dst, add) in ((vFe, 0), (vFo, 6)):
        e(f'v_add_u32 v{b}, {add}, v{vCc}')
        e(f'v_lshrrev_b32 v{c}, 2, v{b}')
        e(f'v_mul_u32_u24 v{c}, 5120, v{c}')
        e(f'v_and_b32 v{b}, 3, v{b}')
        e(f'v_xor_b32 v{b}, v{b}, v{d}')
        e(f'v_lshl_add_u32 v{c}, v{b}, 4, v{c}')
        e(f'v_add_u32 v{dst}, v{a}, v{c}')
    e(f'v_and_b32 v{a}, 15, v{vLane}')
    e(f'v_lshrrev_b32 v{b}, 4, v{vLane}')
    e(f'v_lshrrev_b32 v{c}, 2, v{a}')
    e(f'v_and_b32 v{c}, 2, v{c}')
    e(f'v_xor_b32 v{b}, v{b}, v{c}')
    e(f'v_lshlrev_b32 v{vXg0}, 6, v{a}')
    e(f'v_lshl_add_u32 v{vXg0}, v{b}, 4, v{vXg0}')
    e(f'v_add_u32 v{vXg1}, 46080, v{vXg0}')
    return dict(fl=fl, vR=vR, XR=XR, xl=xl, bl=bl, vSw=vSw, vSr=vSr, vFe=vFe, vFo=vFo, vCc=vCc)

def rowsum(E, P, vs, tmp):
    E.lg(f'ds_write_b32 v{P["vSw"]}, v{vs}')
    E.all_lg()
    for i in range(3):
        E.lg(f'ds_read_b64 {vr(tmp+2*i,2)}, v{P["vSr"]} offset:{8*i}')
    E.all_lg()
    E.e(f'v_add_f32 v{tmp}, v{tmp}, v{tmp+1}')
    E.e(f'v_add_f32 v{tmp+2}, v{tmp+2}, v{tmp+3}')
    E.e(f'v_add_f32 v{tmp+4}, v{tmp+4}, v{tmp+5}')
    E.e(f'v_add_f32 v{tmp}, v{tmp}, v{tmp+2}')
    E.e(f'v_add_f32 v{vs}, v{tmp}, v{tmp+4}')

def bf16r(E, v):
    E.e(f'v_cvt_pk_bf16_f32 v{v}, v{v}, v{v}')
    E.e(f'v_and_b32 v{v}, 0xffff0000, v{v}')

def mlp_ln(E, P, ts, prefill):
    e = E.e
    XR = P['XR']
    XT = 84
    S1, S2, PV, TD = 188, 192, 196, 198
    for i in range(12):
        E.need(P['xl'][i])
        for j in range(4):
            r = XR + 4*i + j
            t = XT + 2*(4*i + j)
            e(f'v_lshlrev_b32 v{t}, 16, v{r}')
            e(f'v_and_b32 v{t+1}, 0xffff0000, v{r}')
            if i == 0 and j == 0: e(f'v_mov_b32 v{PV}, v{t}')
            k = 2*(j & 1); d = TD + k
            first = i == 0 and j < 2
            dd = S1 + k if first else d
            e(f'v_pk_add_f32 {vr(dd,2)}, {vr(t,2)}, {vr(PV,2)} op_sel_hi:[1,0] neg_lo:[0,1] neg_hi:[0,1]')
            if first:
                e(f'v_pk_mul_f32 {vr(S2+k,2)}, {vr(dd,2)}, {vr(dd,2)}')
            else:
                e(f'v_pk_add_f32 {vr(S1+k,2)}, {vr(S1+k,2)}, {vr(d,2)}')
                e(f'v_pk_fma_f32 {vr(S2+k,2)}, {vr(d,2)}, {vr(d,2)}, {vr(S2+k,2)}')
    ts.stamp(E)
    e(f'v_pk_add_f32 {vr(S1,2)}, {vr(S1,2)}, {vr(S1+2,2)}')
    e(f'v_pk_add_f32 {vr(S2,2)}, {vr(S2,2)}, {vr(S2+2,2)}')
    e(f'v_add_f32 v{S1}, v{S1}, v{S1+1}')
    e(f'v_add_f32 v{S2}, v{S2}, v{S2+1}')
    e(f'v_mul_f32 v{S1+1}, 0x3c2aaaab, v{S1}')
    e(f'v_add_f32 v{TD}, v{PV}, v{S1+1}')
    e(f'v_fma_f32 v{TD+1}, -v{S1}, v{S1+1}, v{S2}')
    E.lg(f'ds_write_b64 v{P["vSw"]}, {vr(TD,2)}')
    prefill()
    E.all_lg()
    G = 200
    for i in range(3):
        E.lg(f'ds_read_b128 {vr(G+4*i)}, v{P["vSr"]} offset:{16*i}')
    E.all_lg()
    vMu, vM = 192, 194
    e(f'v_pk_add_f32 {vr(S1,2)}, {vr(G,2)}, {vr(G+2,2)}')
    e(f'v_pk_add_f32 {vr(S1+2,2)}, {vr(G+4,2)}, {vr(G+6,2)}')
    e(f'v_pk_add_f32 {vr(TD,2)}, {vr(G+8,2)}, {vr(G+10,2)}')
    e(f'v_pk_add_f32 {vr(S1,2)}, {vr(S1,2)}, {vr(S1+2,2)}')
    e(f'v_pk_add_f32 {vr(S1,2)}, {vr(S1,2)}, {vr(TD,2)}')
    e(f'v_mul_f32 v{vMu}, 0x3e2aaaab, v{S1}')
    for i in range(6): e(f'v_sub_f32 v{G+2*i}, v{G+2*i}, v{vMu}')
    e(f'v_mul_f32 v{TD}, v{G}, v{G}')
    e(f'v_mul_f32 v{TD+1}, v{G+2}, v{G+2}')
    for i in range(2, 6): e(f'v_fmac_f32 v{TD + (i & 1)}, v{G+2*i}, v{G+2*i}')
    e(f'v_add_f32 v{TD}, v{TD}, v{TD+1}')
    vV = S1
    e(f'v_mul_f32 v{vV}, 0x3ae38e39, v{S1+1}')
    e(f'v_fmac_f32 v{vV}, 0x3e2aaaab, v{TD}')
    e(f'v_mov_b32 v{vM}, v{vMu}')
    e(f'v_max_f32 v{vV}, 0, v{vV}')
    bf16r(E, vM)
    bf16r(E, vV)
    e(f'v_add_f32 v{vV}, 0x3727c5ac, v{vV}')
    bf16r(E, vV)
    e(f'v_sqrt_f32 v{vV}, v{vV}')
    e('s_nop 0')
    bf16r(E, vV)
    e(f'v_rcp_f32 v{vM+1}, v{vV}')
    tmp = 200
    e(f's_cmp_lg_u32 s{sWave}, 0')
    e('s_cbranch_scc1 Lnoz')
    e(f'v_mov_b32 v{tmp}, 0')
    e(f'ds_write_b32 v{vSA}, v{tmp}')
    e(f'ds_write_b32 v{vSB}, v{tmp}')
    e('Lnoz:')
    e('s_mov_b32 exec_hi, 0x0fffffff')
    e(f'v_cmp_eq_u32 vcc, 0, v{P["vCc"]}')
    e(f's_lshl_b32 s{sT0}, s{sWave}, 8')
    e(f's_add_u32 s{sT0}, s{sT0}, {SCR}')
    e(f'v_lshl_add_u32 v{tmp+1}, v{P["vR"]}, 3, s{sT0}')
    e('s_and_saveexec_b64 s[12:13], vcc')
    E.lg(f'ds_write_b64 v{tmp+1}, {vr(vM,2)}')
    e('s_mov_b64 exec, s[12:13]')
    e(f'v_mul_f32 v{vMu}, {hex(LOG2E) if Opt.fold else "1.0"}, v{vM+1}')
    e(f'v_mul_f32 v{vMu+1}, v{vM}, v{vMu}')
    for i in range(12):
        for j in range(4):
            t = XT + 2*(4*i + j)
            e(f'v_pk_fma_f32 {vr(t,2)}, {vr(t,2)}, {vr(vMu,2)}, {vr(vMu,2)} op_sel:[0,0,1] op_sel_hi:[1,0,1] neg_lo:[0,0,1] neg_hi:[0,0,1]')
        for j in range(4):
            t = XT + 2*(4*i + j)
            e(f'v_cvt_pk_bf16_f32 v{XR+4*i+j}, v{t}, v{t+1}')
        base = P['vFe'] if i % 2 == 0 else P['vFo']
        m = i // 2
        if m == 4 :
            e(f'v_add_u32 v{base}, {4*15360}, v{base}')
        off = (m % 4) * 15360
        E.lg(f'ds_write_b128 v{base}, {vr(XR+4*i)} offset:{off}')
    e('s_mov_b32 exec_hi, -1')

sD_ = 11
def mlp_prefill(E):
    ids = []
    E.e(f's_cmp_ge_u32 s{sWave}, 4')
    E.e('s_cbranch_scc1 Lnopre')
    for n in range(4):
        E.e(f's_add_u32 m0, s{sRing}, {((n + 2) % 4)*2048}')
        E.e(f's_mov_b32 s{sD_}, {(n // 2)*32*9216 + (n % 2)*4*9216}')
        E.vm(f'buffer_load_dwordx4 v{vD1a}, {sr(srdW1)}, s{sD_} offen lds')
        ids.append(E.vm(f'buffer_load_dwordx4 v{vD1b}, {sr(srdW1)}, s{sD_} offen offset:1024 lds'))
    E.e('s_branch Lpre_done')
    E.e('Lnopre:')
    if Opt.qpf:
        e = E.e
        a, b, c = vT, vT+1, vT+2
        e(f's_mul_i32 s{sT0}, s{sWi}, {28*26}')
        e(f's_mul_i32 s{sT1}, s{sMT}, 28')
        e(f's_add_u32 s{sT0}, s{sT0}, s{sT1}')
        e(f'v_add_u32 v{a}, s{sT0}, v{vLane}')
        e(f'v_mul_u32_u24 v{b}, 13108, v{a}')
        e(f'v_lshrrev_b32 v{b}, 16, v{b}')
        e(f'v_mul_u32_u24 v{c}, 5, v{b}')
        e(f'v_sub_u32 v{c}, v{a}, v{c}')
        e(f'v_mul_u32_u24 v{b}, 9216, v{b}')
        e(f'v_lshl_add_u32 v{b}, v{c}, 7, v{b}')
        e(f's_mul_i32 s{sT0}, s{sFS}, 1152')
        e(f's_add_u32 s{sT0}, s{sT0}, 512')
        e('s_mov_b64 exec, 0xfffffff')
        e(f'buffer_load_dword v{vDum}, v{b}, {sr(srdW1)}, s{sT0} offen{Opt.nt}')
        e('s_mov_b64 exec, -1')
    E.e('Lpre_done:')
    return ids

KORD = [0, 2, 4, 6, 1, 3, 5, 7, 8, 10, 12, 14, 9, 11, 13, 15, 16, 17]
stubs = []
def mlp_main(E, cls, P, ts, pre_ids):
    e = E.e
    isP = cls == 'P'
    R = ODDR
    vSown = vSA if isP else vSB
    steps, groups, pairs, odds = [], [], [], []
    for gm in (1, 2):
        for k in range(18):
            kx = k if gm == 1 else KORD[k]
            hasodd = (gm == 1) != isP
            st = dict(gm=gm, k=k, x=k, g0=len(groups), odd=hasodd, xr={})
            rs = 9216 if gm == 1 else 1152
            hb = 4 if gm == 1 else 16
            st['pa'] = len(pairs)
            for h in range(2):
                pairs.append(dict(gm=gm, soff=kx*32*rs + h*hb*rs, reads=[], id=None))
            if hasodd:
                st['oi'] = len(odds); odds.append(dict(gm=gm, soff=kx*32*rs, id=None, reads=[]))
            for t in range(5 if hasodd else 4):
                groups.append(dict(step=len(steps), t=t, w=[]))
            st['ng'] = len(groups) - st['g0']
            steps.append(st)
    NG = len(groups); NM = 5*NG
    own, flo = ((0, 2) if isP else (4, 2))
    lastuse = {}
    deep = (not isP) and Opt.qdeep
    for n, p in enumerate(pairs):
        s_, h = divmod(n, 2); k = s_ % 18
        isflo = (k % 2 == 0) and (k > 0 or (isP and s_ == 0))
        p['slot'] = (flo if isflo else own) + h
        if deep and s_ >= 18 + 4:
            p['slot'] = [2, 0, 6, 4][(k - 4) % 4] + h
        p['prev'] = lastuse.get(p['slot']); lastuse[p['slot']] = n
    nxt = {p['prev']: n for n, p in enumerate(pairs) if p['prev'] is not None}
    pre = [[] for _ in range(NM)]
    gaps = [[] for _ in range(NM)]
    def stepm(s): return 5*steps[s]['g0'] if s < len(steps) else NM
    so0 = 18 if isP else 0
    PB, QB = 6, 3
    pbase = PB if isP else QB
    obase = 18 if isP else 0

    def wait_status(name, vaddr, thr, pre_id=None, part=0, vv=vS):
        if pre_id is None:
            vv = vS2
            pre_id = E.lg(f'ds_read_b32 v{vv}, v{vaddr}')
        if part != 2:
            E.need(pre_id)
            e(f'v_cmp_gt_u32 vcc, {thr}, v{vv}')
        if part == 1: return
        e(f's_cbranch_vccnz Lw{name}')
        e(f'Lr{name}:')
        stubs.extend([f'Lw{name}:', f'ds_read_b32 v{vv}, v{vaddr}', f's_add_u32 s{sSpin}, s{sSpin}, 1', f's_cmp_gt_u32 s{sSpin}, 0x100000', f's_cbranch_scc1 Lr{name}',
                      's_waitcnt lgkmcnt(0)', f'v_cmp_gt_u32 vcc, {thr}, v{vv}', f's_cbranch_vccz Lr{name}', 's_sleep 1', f's_branch Lw{name}'])
    def publish(val):
        e(f'v_mov_b32 v{vPg}, {val}')
        E.lg(f'ds_write_b32 v{vSW}, v{vPg}')
    def p_m0(n): e(f's_add_u32 m0, s{sRing}, {pairs[n]["slot"]*2048}')
    def p_so(n): e(f's_mov_b32 s{sD_}, {pairs[n]["soff"]}')
    def p_ld(n, i):
        it = pairs[n]
        if it['prev'] is not None and i == 0:
            assert len(pairs[it['prev']]['reads']) == 4
            E.need(*pairs[it['prev']]['reads'])
        va, sd = ((vD1a, vD1b), srdW1) if it['gm'] == 1 else ((vD2a, vD2b), srdW2)
        if Opt.x_nodma:
            e('s_nop 0'); x = ('vm', 0)
        else:
            x = E.vm(f'buffer_load_dwordx4 v{va[i]}, {sr(sd)}, s{sD_} offen{" offset:1024" if i else ""} lds')
        if i: it['id'] = x
    def p_all(n): p_m0(n); p_so(n); p_ld(n, 0); p_ld(n, 1)
    def o_m0(n): e(f's_add_u32 m0, s{sOddM}, {ODDOFF[(obase + n) % R]}')
    def o_so(n): e(f's_mov_b32 s{sD_}, {odds[n]["soff"]}')
    def o_ld(n):
        sd = srdW1 if odds[n]['gm'] == 1 else srdW2
        if Opt.x_nodma:
            e('s_nop 0'); odds[n]['id'] = ('vm', 0)
        else:
            odds[n]['id'] = E.vm(f'buffer_load_dwordx4 v{vDo}, {sr(sd)}, s{sD_} offen lds')
    def wreg(s, t): return vWF + 20*(s % 2) + 4*t
    def do_wread(s, t, h):
        st = steps[s]; g = st['g0'] + t
        if t < 4:
            n = st['pa'] + h
            E.need(pairs[n]['id'])
            i = E.lg(f'ds_read_b64_tr_b16 {vr(wreg(s,t)+2*h,2)}, v{vWt[t]} offset:{pairs[n]["slot"]*2048}')
            pairs[n]['reads'].append(i)
        else:
            n = st['oi']
            i = E.lg(f'ds_read_b64_tr_b16 {vr(wreg(s,t)+2*h,2)}, v{vWo} offset:{ODDOFF[(obase + n) % R] + h*2048}')
            odds[n]['reads'].append(i)
        groups[g]['w'].append(i)
    def do_xread(s, rt):
        idx = steps[s]['x']*5 + rt
        b0, b1 = (vX0, vX1) if steps[s]['gm'] == 2 else (vXg0, vXg1)
        vb, off = (b0, idx*1024) if idx < 45 else (b1, (idx-45)*1024)
        steps[s]['xr'][rt] = E.lg(f'ds_read_b128 {vr(vXF + 20*(s % 2) + 4*rt)}, v{vb} offset:{off}')

    TN = dict(Wa=[0,1,3,4], Wb=[10,11,13,14], X=[5,6,8,9,15], DA=[12,17], DAs=[8,9], DB=[2,7], DBs=[-2,-1], lg=19)
    TO = dict(Wa=[0,1,3,4], Wb=[14,15,16,18], X=[8,9,11,19,20], DA=[12,17], DAs=[8,9], DB=[2,7], DBs=[-2,-2], lg=24,
              Wo=[5,6], Sr=10, Pv=11, Sw=13, Cm=19, Br=21, Do=22, Dos=[18,20])
    if Opt.tmpl == 1:
        TO = dict(Wa=[0,1,3,4], Wb=[9,10,11,13], X=[14,15,16,18,19], DA=[17,22], DAs=[13,14], DB=[2,7], DBs=[-2,-2], lg=24,
                  Wo=[5,6], Sr=-4, Pv=18, Sw=20, Cm=8, Br=10, Do=12, Dos=[8,9])
    if Opt.tmpl == 2:
        TO = dict(Wa=[0,1,3,4], Wb=[13,14,15,16], X=[5,6,8,9,10], DA=[17,22], DAs=[13,14], DB=[7,12], DBs=[3,4], lg=24,
                  Wo=[18,19], Sr=11, Pv=5, Sw=20, Cm=21, Br=23, Do=27, Dos=[23,24], lag=1)
    if Opt.tmpl == 3:
        TO = dict(Wa=[0,1,3,4], Wb=[14,15,16,18], X=[8,9,11,13,19], DA=[12,17], DAs=[8,9], DB=[2,7], DBs=[-2,-2], lg=24,
                  Wo=[5,6], Sr=10, Pv=18, Sw=20, Cm=19, Br=21, Do=22, Dos=[18,20])
    if Opt.tmpl == 4:
        TO = dict(Wa=[0,1,3,4], Wb=[13,14,15,16], X=[8,9,11,18,19], DA=[12,17], DAs=[8,9], DB=[2,7], DBs=[-2,-1], lg=24,
                  Wo=[5,6], Sr=10, Pv=21, Sw=23, Cm=18, Br=20, Do=22, Dos=[19,20])
    manual = set()
    def at(s, g, f):
        if steps[s]['k'] == 0 and g < 0: pre[stepm(s)].append(f)
        else: gaps[stepm(s) + g].append(f)
    sread = {}
    gated = {26: QB+18, 30: QB+19, 34: QB+20} if isP else {}
    for s in range(36):
        st = steps[s]; T = TO if st['odd'] else TN; k = st['k']
        if k < 17:
            for h, key in ((0, 'Wa'), (1, 'Wb')):
                for t in range(4): at(s, T[key][t], lambda s=s, t=t, h=h: do_wread(s+1, t, h))
            if s+1 in gated:
                at(s, -4, lambda s=s: sread.__setitem__(('g', s), E.lg(f'ds_read_b32 v{vS2}, v{vSB}')))
                at(s, 3, lambda s=s: wait_status(f'Pg{s}', vSB, gated[s+1], sread[('g', s)], part=1, vv=vS2))
                at(s, 5, lambda s=s: (wait_status(f'Pg{s}', vSB, gated[s+1], sread[('g', s)], part=2, vv=vS2), ts.stamp(E)))
            for rt in range(5): at(s, T['X'][rt], lambda s=s, rt=rt: do_xread(s+1, rt))
            at(s, T['lg'], lambda s=s: E.need(*([steps[s+1]['xr'][0]] + groups[steps[s+1]['g0']]['w'])))
        def place(n, D, Ds):
            at(s, Ds[0], lambda n=n: p_m0(n)); at(s, Ds[1], lambda n=n: p_so(n))
            at(s, D[0], lambda n=n: p_ld(n, 0)); at(s, D[1], lambda n=n: p_ld(n, 1))
            manual.discard(n)
        def ok(n):
            return n is not None and not (pairs[n]['slot'] in (flo, flo+1) and (n // 36) != (pairs[n]['prev'] // 36))
        if k < 17 and ok(nxt.get(steps[s+1]['pa'])): place(nxt[steps[s+1]['pa']], T['DA'], T['DAs'])
        if k >= 1 and ok(nxt.get(st['pa'] + 1)): place(nxt[st['pa'] + 1], T['DB'], T['DBs'])
        if st['odd']:
            if k < 17:
                for h in range(2): at(s, T['Wo'][h], lambda s=s, h=h: do_wread(s+1, 4, h))
            if k < 16 and not Opt.x_nochk:
                at(s, T['Sr'], lambda k=k: sread.__setitem__(k, E.lg(f'ds_read_b32 v{vS}, v{vSown}')))
                at(s, T['Cm'], lambda k=k: wait_status(f'{cls}o{k}', vSown, pbase + k - 1, sread[k], part=1))
                at(s, T['Br'], lambda k=k: wait_status(f'{cls}o{k}', vSown, pbase + k - 1, sread[k], part=2))
            if k + R < 18:
                n = k + R
                at(s, T['Dos'][0], lambda n=n: o_m0(n)); at(s, T['Dos'][1], lambda n=n: o_so(n)); at(s, T['Do'], lambda n=n: o_ld(n))
            def pub(k=k, s=s, T=T):
                ids = list(steps[s]['xr'].values()) + pairs[steps[s]['pa']]['reads'] + pairs[steps[s]['pa']+1]['reads']
                if T.get('lag'):
                    ids += odds[k]['reads']
                elif k + 1 < 18: ids += odds[k+1]['reads']
                ids.append(odds[min(k + R - 2, 17)]['id'])
                E.need(*ids)
                E.lg(f'ds_write_b32 v{vSW}, v{vPg}')
            if not (Opt.x_nopub and (k not in (3, 7, 14, 16, 17))):
                at(s, T['Pv'], lambda k=k: e(f'v_mov_b32 v{vPg}, {pbase + k}')); at(s, T['Sw'], pub)
    if deep:
        at(19, 16, lambda: wait_status('Qe', vSA, PB + 17))
        for i, n in enumerate((46, 47, 48, 49)):
            at(20 + i // 2, 7 if i % 2 == 0 else 17, lambda n=n: p_all(n))
    if not isP:
        at(Opt.qsig, 15, lambda: e(f'v_mov_b32 v{vPg}, {QB + 21}'))
        at(Opt.qsig, 16, lambda: E.lg(f'ds_write_b32 v{vSW}, v{vPg}'))
    if isP:
        at(16, 0, lambda: e(f'v_mov_b32 v{vPg}, 1'))
        at(16, 2, lambda: (E.need(*(pairs[32]['reads'] + pairs[33]['reads'])), E.lg(f'ds_write_b32 v{vSW}, v{vPg}')))

    if isP:
        TL = Tail(E, ts)
    def mish_quad(src, dst, tb):
        T = [tb+i for i in range(4)]
        I = range(4)
        o = []
        if Opt.fold:
            o += [f'v_exp_f32 v{T[i]}, v{src+i}' for i in I]
        else:
            o += [f'v_mul_f32 v{T[i]}, {hex(LOG2E)}, v{src+i}' for i in I]
            o += [f'v_exp_f32 v{T[i]}, v{T[i]}' for i in I]
        o += [f'v_fma_f32 v{T[i]}, v{T[i]}, s{sC}, s{sC}' for i in I]
        o += [f'v_fma_f32 v{T[i]}, v{T[i]}, v{T[i]}, 0.5' for i in I]
        o += [f'v_rcp_f32 v{T[i]}, v{T[i]}' for i in I]
        o += [f'v_fma_f32 v{T[i]}, -v{src+i}, v{T[i]}, v{src+i}' for i in I]
        o += [f'v_cvt_pk_bf16_f32 v{dst}, v{T[0]}, v{T[1]}', f'v_cvt_pk_bf16_f32 v{dst+1}, v{T[2]}, v{T[3]}']
        if Opt.x_nomish: o = o[-2:]
        if Opt.mnop >= 0:
            o2 = []; acc = 0
            for op in o:
                o2.append(op)
                acc += 8 if ('exp' in op or 'rcp' in op) else 4
                if acc >= 8:
                    o2.append(f's_nop {Opt.mnop}'); acc = 0
            o = o2
        return o
    def mish_rt(hf, rt):
        a0, a1 = vAcc + 40*hf + 4*rt, vAcc + 40*hf + 20 + 4*rt
        for o in mish_quad(a0, a0, vT): e(o)
        for o in mish_quad(a1, a0+2, vT+4): e(o)
    def wr(hf, rt):
        if Opt.x_nowr: return ('lg', 0)
        if Opt.w64:
            E.lg(f'ds_write_b64 v{vAW}, {vr(vAcc + 40*hf + 4*rt, 2)} offset:{hf*20480 + rt*1024}')
            return E.lg(f'ds_write_b64 v{vAW}, {vr(vAcc + 40*hf + 4*rt + 2, 2)} offset:{hf*20480 + rt*1024 + 8}')
        return E.lg(f'ds_write_b128 v{vAW}, {vr(vAcc + 40*hf + 4*rt)} offset:{hf*20480 + rt*1024}')
    def w_stage_ops(s0):
        L = [(lambda t=t, h=h: do_wread(s0, t, h)) for h in range(2) for t in range(4)]
        for n in (steps[s0+1]['pa'], steps[s0+1]['pa'] + 1):
            L += [lambda n=n: (p_m0(n), p_so(n), p_ld(n, 0)), lambda n=n: p_ld(n, 1)]
        return L
    def w_stage(s0):
        for f in w_stage_ops(s0): f()
    side = []
    def valu_phase():
        clk = E.clock; E.clock = None
        ts.stamp(E)
        e('s_setprio 0')
        if isP:
            publish(2)
            e('s_nop 4')
            w = []
            for rt in range(Opt.pw0): mish_rt(0, rt)
            wait_status('Pa', vSA, 2)
            wait_status('Pb', vSB, QB + 3)
            pend = [(0, rt) for rt in range(Opt.pw0)]
            def mish_w(hf, rt):
                a0, a1 = vAcc + 40*hf + 4*rt, vAcc + 40*hf + 20 + 4*rt
                for (src, dst, tb) in ((a0, a0, vT), (a1, a0+2, vT+4)):
                    ops = mish_quad(src, dst, tb)
                    for i, o in enumerate(ops):
                        e(o)
                        if pend and pend[0][0] <= allowed[0] and i == len(ops) // 2: w.append(wr(*pend.pop(0)))
                        if side and i in (3, len(ops) - 4): side.pop(0)()
                pend.append((hf, rt))
            allowed = [0]
            for rt in range(Opt.pw0, 5): mish_w(0, rt)
            side.extend(w_stage_ops(18))
            for rt in range(5):
                if rt == Opt.pw1:
                    wait_status('Pb2', vSB, QB + 7); allowed[0] = 1
                mish_w(1, rt)
            assert not side
            for x in pend: w.append(wr(*x))
            ts.stamp(E)
            E.need(*w)
            publish(3)
            if Opt.pois_at == 2: poison(E)
            wait_status('Pc0', vSB, QB + 14)
            for n in range(3):
                o_m0(n); o_so(n); o_ld(n)
            E.need(odds[2]['id'])
            publish(4)
            wait_status('Pd', vSA, 4)
            for h in range(2): do_wread(18, 4, h)
            for rt in range(5): do_xread(18, rt)
            E.need(*odds[0]['reads'])
            publish(5)
            wait_status('Pc3', vSB, QB + 16)
            p_all(40); p_all(41)
            for n in range(3, R):
                o_m0(n); o_so(n); o_ld(n)
        else:
            e('s_nop 7')
            for rt in range(2): mish_rt(0, rt)
            wait_status('Qa', vSB, QB + 17)
            wait_status('Qp', vSA, 2)
            w = [wr(0, 0), wr(0, 1)]
            for rt in range(2, 5):
                mish_rt(0, rt); w.append(wr(0, rt))
            E.need(*w); publish(QB + 18)
            w = []
            for rt in range(5):
                mish_rt(1, rt); w.append(wr(1, rt))
            E.need(*w); publish(QB + 19)
            w = []
            for rt in range(5):
                a0 = vAcc + 80 + 4*rt
                for o in mish_quad(a0, a0, vT + 4*(rt & 1)): e(o)
                w.append(E.lg(f'ds_write_b64 v{vAWo}, {vr(a0,2)} offset:{rt*1024}'))
            E.need(*w); publish(QB + 20)
            ts.stamp(E)
            for f in w_stage_ops(18):
                f()
                if Opt.wsl: e('s_sleep 1')
            wait_status('Qc', vSB, QB + 20)
            wait_status('Qd', vSA, 3)
            for rt in range(5): do_xread(18, rt)
            wait_status('Qb', vSA, PB + 16)
            p_all(40); p_all(41)
        e('s_setprio 1')
        ts.stamp(E)
        E.clock = clk
    if not isP:
        pre[0].append(lambda: ts.val(E, sSpin)); pre[stepm(18)].append(lambda: ts.val(E, sSpin))
    pre[stepm(18)].insert(0, valu_phase)
    if Opt.fine:
        lo_, st_ = [int(x) for x in Opt.fine.split(',')]
        for i in range(13):
            if lo_ + i*st_ < 36: pre[stepm(lo_ + i*st_)].append(lambda: ts.stamp(E, True))

    if isP:
        for n in range(4): pairs[n]['id'] = pre_ids[n]
    def small_setup():
        E.need(*P['bl'])
        for i in range(4 if isP else 5):
            r = vBraw + 2*i; d = vAcc + 20*i + 16
            e(f'v_lshlrev_b32 v{d}, 16, v{r}')
            e(f'v_and_b32 v{d+1}, 0xffff0000, v{r}')
            e(f'v_lshlrev_b32 v{d+2}, 16, v{r+1}')
            e(f'v_and_b32 v{d+3}, 0xffff0000, v{r+1}')
            if Opt.fold:
                for j in range(4): e(f'v_mul_f32 v{d+j}, {hex(LOG2E)}, v{d+j}')
        E.need(*P['fl'])
        e(f'v_readlane_b32 s{sFlA+3}, v{vFlOld}, 0')
        e(f'v_readlane_b32 s{sFlO+3}, v{vFlOld}, 1')
    if isP: small_setup()
    if Opt.x_warm:
        a, b, c = vT, vT+1, vT+2
        e(f's_mul_i32 s{sT0}, s{sMT}, 200')
        e(f's_mul_i32 s{sT1}, s{sWi}, 50')
        e(f's_add_u32 s{sT0}, s{sT0}, s{sT1}')
        e(f'v_add_u32 v{a}, s{sT0}, v{vLane}')
        if isP:
            e(f'v_mul_u32_u24 v{b}, 7282, v{a}')
            e(f'v_lshrrev_b32 v{b}, 16, v{b}')
            e(f'v_mul_u32_u24 v{c}, 9, v{b}')
            e(f'v_sub_u32 v{c}, v{a}, v{c}')
            e(f'v_mul_u32_u24 v{b}, 9216, v{b}')
            e(f'v_lshl_add_u32 v{b}, v{c}, 7, v{b}')
            e(f's_mul_i32 s{sT0}, s{sFS}, 1152')
            E.vm(f'buffer_load_dword v{vDum}, v{b}, {sr(srdW1)}, s{sT0} offen{Opt.nt}')
        else:
            e(f'v_lshlrev_b32 v{b}, 7, v{a}')
            e(f's_mul_i32 s{sT0}, s{sFS}, 663552')
            E.vm(f'buffer_load_dword v{vDum}, v{b}, {sr(srdW2)}, s{sT0} offen')
        E.all_vm()
        for i in range(3): e('s_sleep 127')
    if isP:
        for h in range(2):
            for t in range(4): do_wread(0, t, h)
        p_all(4); p_all(5)
        if Opt.pois_at == 0: poison(E)
    e('s_waitcnt lgkmcnt(0)'); E.lg_done = E.lg_n - 1
    ts.stamp(E)
    e('s_barrier')
    e(f's_setprio {3 if isP else 2}')
    for rt in range(5): do_xread(0, rt)
    if not isP:
        small_setup()
        if Opt.qgentle:
            E.all_vm()
            for n in range(2):
                p_m0(n); p_so(n); p_ld(n, 0); E.all_vm(); p_ld(n, 1); E.all_vm()
            for f in w_stage_ops(0):
                f(); E.all_vm()
            for n in range(R):
                o_m0(n); o_so(n); o_ld(n); E.all_vm()
        else:
            for n in range(2): p_all(n)
            for n in range(R):
                o_m0(n); o_so(n); o_ld(n)
            w_stage(0)
        E.need(odds[R-1]['id'])
        publish(1)
        wait_status('Qr', vSB, 1)
        for h in range(2): do_wread(0, 4, h)
        E.need(*odds[0]['reads'])
        publish(2)
        wait_status('Qs', vSA, 1)
        p_all(4); p_all(5)
    for m in range(NM):
        g, rt = divmod(m, 5)
        G = groups[g]; s = G['step']; st = steps[s]
        if Opt.snake and G['t'] % 2 and not (st['k'] == 0 and st['gm'] == 1): rt = 4 - rt
        E.clock = m
        for f in pre[m]: f()
        assert len(G['w']) == 2, (cls, m, g)
        E.need(*(G['w'] + [st['xr'][rt]]))
        ab = vAcc + 20*G['t']; d = ab + 4*rt
        c = vr(d)
        if st['k'] == 0: c = vr(ab + 16) if st['gm'] == 1 else '0'
        e(f'v_mfma_f32_16x16x32_bf16 {vr(d)}, {vr(wreg(s, G["t"]))}, {vr(vXF + 20*(s % 2) + 4*rt)}, {c}')
        for f in gaps[m]: f()
    assert all(p['id'] for p in pairs) and all(len(p['reads']) == 4 for p in pairs)
    E.clock = None
    ts.stamp(E)
    if Opt.x_noex:
        e('s_endpgm'); return
    e('s_setprio 0')
    e('s_nop 6')
    def pack(u, rt):
        a0, a1 = vAcc + 40*u + 4*rt, vAcc + 40*u + 20 + 4*rt
        e(f'v_cvt_pk_bf16_f32 v{a0}, v{a0}, v{a0+1}')
        e(f'v_cvt_pk_bf16_f32 v{a0+1}, v{a0+2}, v{a0+3}')
        e(f'v_cvt_pk_bf16_f32 v{a0+2}, v{a1}, v{a1+1}')
        e(f'v_cvt_pk_bf16_f32 v{a0+3}, v{a1+2}, v{a1+3}')
        return a0
    if not isP:
        e(f's_cmp_eq_u32 s{sLine2}, s{sFin}')
        e('s_cbranch_scc1 Lq_own')
        for u in range(2):
            for rt in range(5):
                a0 = pack(u, rt)
                e(f's_mov_b32 s{sT0}, {rt*18432}')
                e(f'buffer_store_dwordx4 {vr(a0)}, v{vP}, {sr(srdWS)}, s{sT0} offen offset:{u*1024}{SC}')
        e('s_branch Lq_end')
        e('Lq_own:')
        e(f'v_add_u32 v{vT}, s{sRing}, v{vX0}')
        for u in range(2):
            for rt in range(5):
                a0 = pack(u, rt)
                e(f'ds_write_b128 v{vT}, {vr(a0)} offset:{(5*u + rt)*1024}')
        e('s_waitcnt lgkmcnt(0)')
        e('Lq_end:')
        publish(QB + 22)
        if Opt.ts:
            e('s_waitcnt vmcnt(0)')
            ts.stamp(E)
            ts.flush(E, vT)
        e('s_endpgm')
        return
    sts = []
    def st_main(u, rt):
        a0 = pack(u, rt)
        e(f's_mov_b32 s{sT0}, {rt*18432}')
        if len(sts) >= Opt.sthr: E.need(sts[-Opt.sthr])
        sts.append(E.vm(f'buffer_store_dwordx4 {vr(a0)}, v{vP}, {sr(srdWS)}, s{sT0} offen offset:{u*1024}{SC}'))
    def st_odd(rt):
        a0 = vAcc + 80 + 4*rt
        e(f'v_cvt_pk_bf16_f32 v{a0}, v{a0}, v{a0+1}')
        e(f'v_cvt_pk_bf16_f32 v{a0+1}, v{a0+2}, v{a0+3}')
        e(f's_mov_b32 s{sT0}, {rt*18432}')
        if len(sts) >= Opt.sthr: E.need(sts[-Opt.sthr])
        sts.append(E.vm(f'buffer_store_dwordx2 {vr(a0,2)}, v{vPo}, {sr(srdWS)}, s{sT0} offen{SC}'))
    todo = [(lambda u=u, rt=rt: st_main(u, rt)) for u in range(2) for rt in range(5)] + [(lambda rt=rt: st_odd(rt)) for rt in range(5)]
    for f in todo: f()
    TL.setup()
    e(f'v_mov_b32 v{vT}, 0')
    e(f's_add_u32 s{sFlA+3}, s{sFlA+3}, 1')
    e(f's_add_u32 s{sFlO+3}, s{sFlO+3}, 1')
    e(f'v_mov_b32 v{vT+1}, s{sFlA+3}')
    e(f'v_mov_b32 v{vT+2}, s{sFlO+3}')
    e('s_mov_b64 exec, 1')
    E.need(*sts[:10])
    E.vm(f'buffer_store_dword v{vT+1}, v{vT}, {sr(srdWS)}, s{sFlA} offen{SC}')
    E.need(*sts)
    E.vm(f'buffer_store_dword v{vT+2}, v{vT}, {sr(srdWS)}, s{sFlO} offen{SC}')
    e('s_mov_b64 exec, -1')
    ts.stamp(E)
    TL.run(lambda: wait_status('Pt', vSB, QB + 21))

def gpoll(E, name, vcur, vadr, sb, vold, mask, have=False, sleep=None):
    e = E.e
    e('s_mov_b32 s10, 0')
    if have: e(f's_branch L{name}_c')
    e(f'L{name}:')
    e(f'buffer_load_dword v{vcur}, v{vadr}, {sr(srdWS)}, s{sb} offen{SC}')
    e('s_waitcnt vmcnt(0)')
    e(f'L{name}_c:')
    e(f'v_cmp_ne_u32 vcc, v{vcur}, v{vold}')
    e(f's_and_b64 s[12:13], vcc, s[{mask}:{mask+1}]')
    e(f's_cmp_eq_u64 s[12:13], s[{mask}:{mask+1}]')
    e(f's_cbranch_scc1 L{name}_ok')
    e(f's_sleep {sleep or Opt.psleep}')
    e('s_add_u32 s10, s10, 1')
    e('s_cmp_lt_u32 s10, 0x20000')
    e(f's_cbranch_scc1 L{name}')
    e(f'L{name}_ok:')
    if not have: E.vm_done = E.vm_n - 1

def late_block_soff(E, dst, b_expr_reg):
    pass

def block_ur(E, s_):
    e = E.e
    e(f's_add_u32 s13, s{sWi}, {4*s_}')
    e(f's_lshl_b32 s14, s{sFin}, 1')
    e('s_cmp_ge_u32 s13, 5')
    e(f's_cselect_b32 s{sT0}, 5, 0')
    e('s_addc_u32 s14, s14, 0')
    e(f's_sub_u32 s15, s13, s{sT0}')

def piece_off(E, dst, u, r):
    e = E.e
    e(f's_mul_i32 s{dst}, s{sMT}, 5')
    e(f's_add_u32 s{dst}, s{dst}, s{r}')
    e(f's_mul_i32 s{dst}, s{dst}, 18432')
    e(f's_lshl_b32 s{sT1}, s{u}, 10')
    e(f's_add_u32 s{dst}, s{dst}, s{sT1}')

def late_slabs(E, d0):
    for k in range(3):
        E.e(f's_add_u32 s{d0+k}, s{sFS}, {2*(k+1)}')
        E.e(f's_and_b32 s{d0+k}, s{d0+k}, 7')
        E.e(f's_mul_i32 s{d0+k}, s{d0+k}, {PSTRIDE}')

def poison(E):
    e = E.e
    for i in range(4): e(f'v_mov_b32 v{228+i}, -1')
    late_slabs(E, 64)
    ids = []
    for s_ in range(3):
        block_ur(E, s_)
        piece_off(E, 12, 14, 15)
        if s_ == 2:
            e('s_cmp_ge_u32 s13, 10')
            e('s_cselect_b32 s12, 0x40000000, s12')
        for k in range(3):
            e(f's_add_u32 s{sT0}, s12, s{64+k}')
            if len(ids) >= Opt.pthr: E.need(ids[-Opt.pthr])
            ids.append(E.vm(f'buffer_store_dwordx4 v[228:231], v{vX0}, {sr(srdWS)}, s{sT0} offen{SC}'))

class Tail:
    def __init__(self, E, ts):
        self.E, self.ts = E, ts
    def slot_addr(self, d, u, r):
        e = self.E.e
        e(f's_min_u32 s{sT0}, s{r}, 4')
        e(f's_lshl_b32 s{sT0}, s{sT0}, 4')
        e(f'v_add_u32 v8, s{sT0}, v4')
        e('v_mul_u32_u24 v9, 205, v8')
        e('v_lshrrev_b32 v9, 11, v9')
        e('v_mul_u32_u24 v9, 176, v9')
        e('v_lshl_add_u32 v9, v8, 3, v9')
        e(f'v_add_u32 v9, {SCR}, v9')
        d['st'] = self.E.lg(f'ds_read_b64 {vr(d["ST"],2)}, v9')
        e(f's_mul_i32 s{sT0}, s{sMT}, 80')
        e(f'v_add_u32 v8, s{sT0}, v8')
        e(f'v_mul_u32_u24 v{d["xa"]}, 1152, v8')
        e(f'v_lshl_add_u32 v{d["xa"]}, v6, 5, v{d["xa"]}')
        e(f'v_lshl_add_u32 v{d["xa"]}, v5, 4, v{d["xa"]}')
        e(f's_lshl_b32 s{sT0}, s{u}, 6')
        e(f'v_add_u32 v{d["xa"]}, s{sT0}, v{d["xa"]}')
        e(f'v_lshlrev_b32 v{d["ya"]}, 4, v8')
        e(f'v_lshl_add_u32 v{d["ya"]}, v5, 15, v{d["ya"]}')
        e(f'v_lshl_add_u32 v{d["ya"]}, v6, 16, v{d["ya"]}')
        e(f's_lshl_b32 s{sT0}, s{u}, 17')
        e(f's_add_u32 s{sT0}, s{sT0}, {WS_Y}')
        e(f'v_add_u32 v{d["ya"]}, s{sT0}, v{d["ya"]}')
        piece_off(self.E, d['sP'], u, r)
    sME, sMY, sMO, sMYO = 30, 32, 28, 40
    sFb, sFo = 26, 27
    vFa, vCur, vCur2 = 236, 237, 238
    def sample0(self):
        e = self.E.e
        e(f'v_lshlrev_b32 v{self.vFa}, 2, v{vLane}')
        flag_base(self.E, self.sFo)
    def sample1(self):
        e = self.E.e
        e(f's_lshl_b32 s{self.sFb}, s{sFin}, 8')
        e(f's_add_u32 s{self.sFb}, s{self.sFb}, s{self.sFo}')
        self.f1 = self.E.vm(f'buffer_load_dword v{self.vCur}, v{self.vFa}, {sr(srdWS)}, s{self.sFb} offen{SC}')
    def sample2(self):
        self.E.e(f's_add_u32 s{self.sFo}, s{self.sFo}, {8*FLB}')
        self.f2 = self.E.vm(f'buffer_load_dword v{self.vCur2}, v{self.vFa}, {sr(srdWS)}, s{self.sFo} offen{SC}')
    def poll2(self, name, m1, m2, have):
        E = self.E; e = E.e
        e('s_mov_b32 s10, 0')
        if have: e(f's_branch L{name}_c')
        e(f'L{name}:')
        e(f'buffer_load_dword v{self.vCur}, v{self.vFa}, {sr(srdWS)}, s{self.sFb} offen{SC}')
        e(f'buffer_load_dword v{self.vCur2}, v{self.vFa}, {sr(srdWS)}, s{self.sFo} offen{SC}')
        e('s_waitcnt vmcnt(0)')
        e(f'L{name}_c:')
        e(f'v_cmp_eq_u32 vcc, v{self.vCur}, v0')
        e(f'v_cmp_eq_u32 s[12:13], v{self.vCur2}, v{vOld2}')
        e(f's_and_b64 vcc, vcc, s[{m1}:{m1+1}]')
        e(f's_and_b64 s[12:13], s[12:13], s[{m2}:{m2+1}]')
        e('s_or_b64 s[12:13], s[12:13], vcc')
        e(f's_cbranch_scc0 L{name}_ok')
        e(f's_sleep {Opt.esleep}')
        e('s_add_u32 s10, s10, 1')
        e('s_cmp_lt_u32 s10, 0x20000')
        e(f's_cbranch_scc1 L{name}')
        e(f'L{name}_ok:')
        if not have: E.vm_done = E.vm_n - 1
    def setup(self):
        E = self.E; e = E.e
        srd(E, srdB1, sOUT, S*D*2)
        e(f's_mov_b32 s{self.sME}, 0x10101010')
        e(f's_and_b32 s{sT0}, s{sFS}, 1')
        e(f's_lshl_b32 s{sT0}, s{sT0}, 2')
        e(f's_lshr_b32 s{self.sME}, s{self.sME}, s{sT0}')
        e(f's_mov_b32 s{self.sME+1}, 0')
        e('s_mov_b32 s43, 0')
        e(f's_mov_b64 s[{self.sMO}:{self.sMO+1}], 0')
        e(f'v_lshlrev_b32 v{self.vFa}, 2, v{vLane}')
        flag_base(E, self.sFo)
        e(f's_lshl_b32 s{self.sFb}, s{sFin}, 8')
        e(f's_add_u32 s{self.sFb}, s{self.sFb}, s{self.sFo}')
        e(f's_add_u32 s{self.sFo}, s{self.sFo}, {8*FLB}')
        e('s_mov_b32 s32, 0x3f80')
        e('s_mov_b32 s33, 0x3f800000')
        e('s_mov_b32 s40, 0x3f317218' if Opt.fold else 's_mov_b32 s40, 1.0')
        e('v_and_b32 v4, 15, v1')
        e('v_lshrrev_b32 v5, 4, v1')
        e('v_and_b32 v6, 1, v5')
        e('v_lshrrev_b32 v5, 1, v5')
        e('v_lshlrev_b32 v7, 4, v1')
        self.sl = []
        for s_ in range(3):
            B = 36 + 24*s_; W = 116 + 40*s_
            d = dict(XR=B, YR=B, ST=B+4, xa=B+6, ya=B+7, X=B+8, N=B+16, EP=W, LP=W+16, SUM=W+32, sP=34+s_, sB=37+s_)
            self.sl.append(d)
            block_ur(E, s_)
            e(f's_lshl_b32 s{d["sB"]}, s13, 10')
            if s_ == 2:
                e(f's_cmp_lt_u32 s{sWi}, 2')
                e('s_cbranch_scc1 Ls3_done')
                e(f's_sub_u32 s{sT0}, s{sWi}, 2')
                e(f's_lshl_b32 s{sT0}, s{sT0}, 3')
                e(f's_add_u32 s{sT0}, s{sT0}, s{sFS}')
                e(f's_cmp_ge_u32 s{sT0}, 5')
                e(f's_cselect_b32 s{sT1}, 5, 0')
                e('s_cselect_b32 s14, 17, 16')
                e(f's_sub_u32 s15, s{sT0}, s{sT1}')
                e('s_cmp_lt_u32 s15, 5')
                e(f's_cselect_b32 s{self.sMO}, -1, 0')
                e('s_cselect_b32 s43, 0xff, 0')
                e('Ls3_done:')
                e('s_mov_b32 s42, s15')
            self.slot_addr(d, 14, 15)
            d['xl'] = E.vm(f'buffer_load_dwordx4 {vr(d["XR"])}, v{d["xa"]}, {sr(srdX)}, 0 offen')
        late_slabs(E, 64)
        e(f's_and_b32 s67, s{sFS}, 1')
        e('s_xor_b32 s67, s67, 1')
        e(f's_mul_i32 s67, s67, {PSTRIDE}')
    def unpack(self, dst, src, n=4):
        for j in range(n):
            self.E.e(f'v_lshlrev_b32 v{dst+2*j}, 16, v{src+j}')
            self.E.e(f'v_and_b32 v{dst+2*j+1}, 0xffff0000, v{src+j}')
    def add(self, d, src, first, pk):
        e = self.E.e; SUM = d['SUM']; T = vT
        if Opt.dot:
            for j in range(8):
                e(f'v_dot2_f32_bf16 v{SUM+j}, v{src + j//2}, s{32 + (j & 1)}, {"0" if first else f"v{SUM+j}"}')
            return
        self.unpack(SUM if first else T, src)
        if first: return
        if pk:
            for j in range(4): e(f'v_pk_add_f32 {vr(SUM+2*j,2)}, {vr(SUM+2*j,2)}, {vr(T+2*j,2)}')
        else:
            for j in range(8): e(f'v_add_f32 v{SUM+j}, v{SUM+j}, v{T+j}')
    def xn(self, d):
        E = self.E; e = E.e; T = vT
        X, N = d['X'], d['N']
        E.need(d['st'], d['xl'])
        self.unpack(X, d['XR'])
        def rnd(b):
            for j in range(4): e(f'v_cvt_pk_bf16_f32 v{T+j}, v{b+2*j}, v{b+2*j+1}')
            self.unpack(b, T)
        for i in range(8): e(f'v_sub_f32 v{N+i}, v{X+i}, v{d["ST"]}')
        rnd(N)
        for i in range(8): e(f'v_mul_f32 v{N+i}, v{N+i}, v{d["ST"]+1}')
        rnd(N)
    def tterm(self, d):
        E = self.E; e = E.e; T = vT
        E.need(d['yl'])
        self.unpack(T, d['YR'])
        for i in range(8): e(f'v_fma_f32 v{d["N"]+i}, v{d["N"]+i}, v{T+i}, v{d["X"]+i}')
    def final(self, d, so='0'):
        E = self.E; e = E.e
        SUM, N, X = d['SUM'], d['N'], d['X']
        e('s_nop 2')
        for j in range(4): e(f'v_permlane16_swap_b32 v{SUM+j}, v{SUM+4+j}')
        for i in range(8): e(f'v_fma_f32 v{N+i}, v{SUM+i}, s40, v{N+i}')
        for j in range(4): e(f'v_cvt_pk_bf16_f32 v{X+j}, v{N+2*j}, v{N+2*j+1}')
        E.vm(f'buffer_store_dwordx4 {vr(X)}, v{d["xa"]}, {sr(srdB1)}, {so} offen')
    def run(self, gate1):
        E = self.E; e = E.e; ts = self.ts; sl = self.sl
        for d in sl: self.xn(d)
        gate1()
        self.poll2('pe', self.sME, self.sMO, False)
        e(f's_mov_b32 s{self.sME}, 0')
        e(f's_mov_b32 s{self.sME+1}, {0 if Opt.x_noconv else 0x55}')
        e(f's_mov_b32 s{self.sMO}, 0')
        e(f's_mov_b32 s{self.sMO+1}, {0 if Opt.x_noconv else "s43"}')
        ts.stamp(E)
        tsn = ts.n
        e(f's_cmp_ge_u32 s{sWi}, 2')
        e('s_cbranch_scc1 Ltail2')
        st0 = E.state()
        for nreg in (3, 2):
            ts.n = tsn
            if nreg == 2:
                e('Ltail2:'); E.set_state(st0)
            reg = sl[:nreg]
            for d in reg:
                d['el'] = []
                e(f's_add_u32 s{sT0}, s{d["sP"]}, s67')
                for i in range(4):
                    if i: e(f's_add_u32 s{sT0}, s{sT0}, {2*PSTRIDE}')
                    d['el'].append(E.vm(f'buffer_load_dwordx4 {vr(d["EP"]+4*i)}, v7, {sr(srdWS)}, s{sT0} offen{SC}'))
            if nreg == 2:
                d = sl[2]
                e('s_cmp_ge_u32 s42, 5')
                e(f's_cselect_b32 s{sT0}, 0x40000000, s{d["sP"]}')
                e('s_cselect_b32 s42, 0x40000000, 0')
                e('v_lshlrev_b32 v10, 3, v1')
                ol = []
                for p in range(8):
                    if p: e(f's_add_u32 s{sT0}, s{sT0}, {PSTRIDE}')
                    r = d['EP'] + 4*p
                    E.vm(f'buffer_load_dwordx2 {vr(r,2)}, v10, {sr(srdWS)}, s{sT0} offen{SC}')
                    ol.append(E.vm(f'buffer_load_dwordx2 {vr(r+2,2)}, v10, {sr(srdWS)}, s{sT0} offen offset:512{SC}'))
            for d in reg:
                for i in range(4):
                    E.need(d['el'][i]); self.add(d, d['EP'] + 4*i, i == 0, False)
            if nreg == 2:
                d = sl[2]
                for p in range(8):
                    E.need(ol[p]); self.add(d, d['EP'] + 4*p, p == 0, False)
            self.poll2(f'py{nreg}', self.sME, self.sMO, True)
            for d in sl:
                d['yl'] = E.vm(f'buffer_load_dwordx4 {vr(d["YR"])}, v{d["ya"]}, {sr(srdWS)}, 0 offen{SC}')
            e(f'Lg2w{nreg}:')
            e(f'ds_read_b32 v{vS2}, v{vSB}')
            e('s_waitcnt lgkmcnt(0)')
            e(f'v_cmp_gt_u32 vcc, {3 + 22}, v{vS2}')
            e(f's_cbranch_vccz Lg2k{nreg}')
            e('s_sleep 1')
            e(f's_branch Lg2w{nreg}')
            e(f'Lg2k{nreg}:')
            ts.stamp(E)
            e('s_setprio 3')
            e('s_mov_b32 s10, 0')
            e(f's_lshr_b32 s{sT0}, s{sFS}, 1')
            e(f's_lshl_b32 s{sT0}, s{sT0}, 14')
            e(f's_add_u32 s{sT0}, s{sT0}, {XA_BYTES}')
            e(f'v_add_u32 v10, s{sT0}, v7')
            for d in reg:
                e(f'v_add_u32 v11, s{d["sB"]}, v10')
                d['ol'] = E.lg(f'ds_read_b128 {vr(d["LP"]+12)}, v11')
            e(f'Llate{nreg}:')
            for d in reg:
                for k in range(3):
                    e(f's_add_u32 s{sT0}, s{d["sP"]}, s{64+k}')
                    e(f'buffer_load_dwordx4 {vr(d["LP"]+4*k)}, v7, {sr(srdWS)}, s{sT0} offen{SC}')
            e('s_cmp_lg_u32 s10, 0')
            e(f's_cbranch_scc1 Llw{nreg}')
            for d in reg:
                E.need(d['ol']); self.add(d, d['LP'] + 12, False, True)
            e(f's_waitcnt vmcnt({3*nreg})')
            E.vm_done = E.vm_n - 1
            for d in sl: self.tterm(d)
            e(f'Llw{nreg}:')
            e('v_mov_b32 v10, 0')
            n = 3*nreg
            for di, d in enumerate(reg):
                for k in range(3):
                    n -= 1
                    e(f's_waitcnt vmcnt({n})')
                    r = d['LP'] + 4*k
                    e(f'v_max3_u32 v10, v10, v{r}, v{r+1}')
                    e(f'v_max3_u32 v10, v10, v{r+2}, v{r+3}')
            e('v_cmp_eq_u32 vcc, -1, v10')
            e(f's_cbranch_vccz Llok{nreg}')
            e('s_add_u32 s10, s10, 1')
            e('s_cmp_lt_u32 s10, 0x8000')
            e(f's_cbranch_scc1 Llate{nreg}')
            e(f'Llok{nreg}:')
            E.vm_done = E.vm_n - 1
            for d in reg:
                for k in range(3): self.add(d, d['LP'] + 4*k, False, True)
                self.final(d)
            if nreg == 2: self.final(sl[2], 's42')
            if Opt.ts:
                E.all_vm()
                ts.stamp(E)
                ts.flush(E, vT)
            e('s_endpgm')

RS = 4672
HS = 4160
HS2 = 2112
HB0 = 0
HB1 = HB0 + 4*4*HS
KVB = HB1 + 4*2*HS2
assert KVB + 16*RS <= LDS_BYTES - 64 and KVB % 256 == 0
def conv(E):
    e = E.e
    ts = TS(); ts.conv = True
    ts.stamp(E)
    sCT, sCh, sHB, sIt, sIdx = 10, 11, 6, 9, 5
    sMode, sLoc, sHsel, sWi_, sHS = 12, 13, 14, 42, 43
    e(f's_cmp_eq_u32 s{sIdx}, 5')
    e('s_cbranch_scc1 Lhelper')
    if Opt.x_noconv: e('s_endpgm')
    e(f's_lshl_b32 s{sCT}, s{sFS}, 2')
    e(f's_add_u32 s{sCT}, s{sCT}, s{sIdx}')
    e(f's_and_b32 s{sWi_}, s{sWave}, 3')
    e(f's_mov_b32 s{sMode}, 0')
    e(f's_mov_b32 s{sHsel}, 0')
    e(f's_lshl_b32 s{sLoc}, s{sWi_}, 2')
    e(f's_cmp_lt_u32 s{sIdx}, 4')
    e('s_cbranch_scc1 Lconv_go')
    e(f's_lshr_b32 s{sCT}, s{sFS}, 1')
    e(f's_add_u32 s{sCT}, s{sCT}, 32')
    e(f's_mov_b32 s{sMode}, 1')
    e(f's_and_b32 s{sHsel}, s{sFS}, 1')
    e(f's_lshl_b32 s{sLoc}, s{sHsel}, 2')
    e(f's_add_u32 s{sLoc}, s{sLoc}, s{sWi_}')
    e(f's_lshl_b32 s{sLoc}, s{sLoc}, 1')
    if Opt.cdelay: e(f's_sleep {Opt.cdelay}')
    e('Lconv_go:')
    srd(E, srdSSMK, sSSMK, D*S*2)
    e(f's_lshl_b32 s{sCh}, s{sCT}, 4')
    e(f's_add_u32 s{sCh}, s{sCh}, s{sLoc}')
    e(f'v_lshlrev_b32 v12, 7, v{vLane}')
    e(f's_lshl_b32 s15, s{sCh}, 12')
    e(f's_and_b32 s{sT0}, s{sWave}, 4')
    e(f's_lshl_b32 s{sT0}, s{sT0}, 10')
    e(f's_add_u32 s{sT0}, s{sT0}, s15')
    e('s_mov_b32 exec_hi, 0')
    e(f'buffer_load_dword v15, v12, {sr(srdSSMK)}, s{sT0} offen')
    e('s_mov_b32 exec_hi, -1')
    vZ = 244
    for i in range(4): e(f'v_mov_b32 v{vZ+i}, 0')
    e(f's_mul_i32 s{sHB}, s{sWi_}, {4*HS}')
    e(f's_add_u32 s{sHB}, s{sHB}, {HB0}')
    e(f's_mul_i32 s{sT0}, s{sWi_}, {2*HS2}')
    e(f's_add_u32 s{sT0}, s{sT0}, {HB1}')
    e(f's_movk_i32 s{sT1}, {HS2}')
    e(f's_cmp_ge_u32 s{sWave}, 4')
    e(f's_cselect_b32 s{sHB}, s{sT0}, s{sHB}')
    e(f's_cselect_b32 s{sHS}, s{sT1}, {HS}')
    e(f's_cselect_b32 s{sT0}, 3, 7')
    e('v_lshrrev_b32 v13, 5, v0')
    e(f'v_mul_u32_u24 v13, {RS}, v13')
    e('v_and_b32 v14, 31, v0')
    e('v_lshl_add_u32 v13, v14, 4, v13')
    e(f'v_add_u32 v13, {KVB}, v13')
    E.lg(f'ds_write_b128 v13, {vr(vZ)} offset:4096')
    e(f'v_and_b32 v13, s{sT0}, v{vLane}')
    e('v_lshrrev_b32 v14, 1, v13')
    e(f'v_mul_lo_u32 v14, v14, s{sHS}')
    e('v_and_b32 v13, 1, v13')
    e('v_lshl_add_u32 v13, v13, 4, v14')
    e(f'v_add_u32 v13, s{sHB}, v13')
    E.lg(f'ds_write_b128 v13, {vr(vZ)}')
    vCn = 240
    e(f'v_mov_b32 v{vCn}, {LDS_BYTES-64}')
    E.lg(f'ds_write_b128 v{vCn}, {vr(vZ)}')
    for o_ in (16, 32, 48): E.lg(f'ds_write_b128 v{vCn}, {vr(vZ)} offset:{o_}')
    vPr, vHa = 243, 250
    e(f's_lshl_b32 s{sT0}, s{sWi_}, 2')
    e(f'v_add_u32 v{vPr}, s{sT0}, v{vCn}')
    sHBA, sChA = 101, 100
    e(f's_mul_i32 s{sHBA}, s{sWi_}, {4*HS}')
    e(f's_add_u32 s{sT0}, s{sHBA}, {HS}')
    e(f'v_mov_b32 v{vHa}, s{sT0}')
    e(f's_mov_b32 s{sChA}, s{sCh}')
    srd(E, srdK, sK, S*D*2)
    srd(E, srdV, sV, S*D*2)
    vRg, vHf, b0, b1, b2 = 2, 3, 4, 5, 6
    e(f'v_lshrrev_b32 v{vRg}, 1, v0')
    e(f'v_and_b32 v{vHf}, 1, v0')
    e(f'v_mul_u32_u24 v{b1}, {8*1152}, v{vRg}')
    e(f'v_lshl_add_u32 v{b1}, v{vHf}, 4, v{b1}')
    e(f's_lshl_b32 s{sT0}, s{sCT}, 5')
    e(f'v_add_u32 v{b1}, s{sT0}, v{b1}')
    e(f'v_subrev_u32 v{b0}, 3456, v{b1}')
    e(f'v_add_u32 v{b2}, 4608, v{b1}')
    KR, VR, SKR, SKF = 16, 60, 92, 108
    srd(E, srdSHK, sSHK, D*4*2)
    e(f's_lshl_b32 s{sT0}, s{sCT}, 7')
    e(f'v_lshlrev_b32 v7, 6, v{vHf}')
    skl = [E.vm(f'buffer_load_dwordx4 {vr(SKR+4*i)}, v7, {sr(srdSHK)}, s{sT0} offen offset:{16*i}') for i in range(4)]
    srd(E, srdSSMD, sSSMD, D*2)
    srd(E, srdWS, sWS, WS_BYTES)
    vL16 = 8
    vH0, vDv, vDraw = 9, 10, 248
    e(f'v_lshlrev_b32 v{vL16}, 4, v{vLane}')
    def hload(np_, buf, hs=None):
        e(f's_lshl_b32 s{sT0}, s{sCh}, 12')
        e(f's_add_u32 m0, s{sHB}, {32 + buf*2*HS}')
        e(f's_add_u32 s{sT1}, s{sT0}, 2')
        ids = []
        for i in range(np_):
            if i == 2 and hs is None:
                e(f's_cmp_ge_u32 s{sWave}, 4'); e('s_cbranch_scc1 Lh0a')
            ids.append(E.vm(f'buffer_load_dwordx4 v{vL16}, {sr(srdSSMK)}, s{sT0} offen offset:{1024*i} lds'))
        if hs is None:
            e('Lh0a:')
            e(f's_add_u32 m0, m0, s{sHS}')
        else:
            e(f's_add_u32 m0, m0, {hs}')
        e('s_nop 0')
        for i in range(np_):
            if i == 2 and hs is None:
                e(f's_cmp_ge_u32 s{sWave}, 4'); e('s_cbranch_scc1 Lh0b')
            ids.append(E.vm(f'buffer_load_dwordx4 v{vL16}, {sr(srdSSMK)}, s{sT1} offen offset:{1024*i} lds'))
        if hs is None: e('Lh0b:')
        ids.append(E.vm(f'buffer_load_ushort v{vH0 + 2*buf}, v{vZ}, {sr(srdSSMK)}, s{sT0} offen'))
        return ids
    def hloadA(buf):
        e(f's_add_u32 s{sChA}, s{sChA}, 1')
        e(f's_lshl_b32 s{sT0}, s{sChA}, 12')
        e(f's_add_u32 m0, s{sHBA}, {32 + buf*2*HS}')
        e(f's_add_u32 s{sT1}, s{sT0}, 2')
        for i in range(4): e(f'buffer_load_dwordx4 v{vL16}, {sr(srdSSMK)}, s{sT0} offen offset:{1024*i} lds')
        e(f's_add_u32 m0, m0, {HS}')
        e('s_nop 0')
        for i in range(4): e(f'buffer_load_dwordx4 v{vL16}, {sr(srdSSMK)}, s{sT1} offen offset:{1024*i} lds')
        e(f'buffer_load_ushort v11, v{vZ}, {sr(srdSSMK)}, s{sT0} offen')
    def hreadyA(buf, val):
        e(f'ds_write_b16 v{vHa}, v11 offset:{30 + buf*2*HS}')
        e(f'v_mov_b32 v251, {val}')
        e('s_waitcnt lgkmcnt(0)')
        e(f'ds_write_b32 v{vPr}, v251 offset:32')
    uid = [0]
    def onlyB(f, full=False):
        uid[0] += 1
        e(f's_cmp_lt_u32 s{sWave}, 4'); e(f's_cbranch_scc1 LoB{uid[0]}')
        if full:
            e(f's_cmp_lg_u32 s{sMode}, 0'); e(f's_cbranch_scc1 LoB{uid[0]}')
        f()
        e(f'LoB{uid[0]}:')
    e(f's_lshl_b32 s{sT0}, s{sCh}, 1')
    E.vm(f'buffer_load_dwordx2 {vr(vDraw,2)}, v{vZ}, {sr(srdSSMD)}, s{sT0} offen')
    vFo_, vFa_ = 241, 242
    e(f'v_mul_u32_u24 v{vFa_}, {9*FLB}, v{vLane}')
    e(f's_lshr_b32 s{sT0}, s{sCT}, 2')
    e(f's_lshl_b32 s{sT0}, s{sT0}, 8')
    e(f's_and_b32 s{sT1}, s{sCT}, 3')
    e(f's_lshl_b32 s{sT1}, s{sT1}, 1')
    e(f's_add_u32 s{sT1}, s{sT1}, s{sHsel}')
    e(f's_lshl_b32 s{sT1}, s{sT1}, 2')
    e(f's_add_u32 s{sT0}, s{sT0}, s{sT1}')
    e(f's_add_u32 s{sT0}, s{sT0}, {WS_FL + 128}')
    e(f'v_add_u32 v{vFa_}, s{sT0}, v{vFa_}')
    E.all_lg()
    e('s_barrier')
    def cpoll(name, off, thr=4, va=None):
        e(f'L{name}:')
        e(f'ds_read_b32 v252, v{va or vCn} offset:{off}')
        e('s_waitcnt lgkmcnt(0)')
        e(f'v_readfirstlane_b32 s{sT0}, v252')
        e(f's_cmp_ge_u32 s{sT0}, {thr}')
        e(f's_cbranch_scc1 L{name}_ok')
        e('s_sleep 2')
        e(f's_branch L{name}')
        e(f'L{name}_ok:')
    e(f's_cmp_lt_u32 s{sWave}, 4')
    e('s_cbranch_scc1 Lconv_a')
    cpoll('cpollb', 8)
    hloadA(1)
    e('s_branch Lconv_ld')
    e('Lconv_a:')
    e(f's_cmp_lg_u32 s{sMode}, 0')
    e('s_cbranch_scc1 Lconv_ld')
    e('s_waitcnt vmcnt(0)')
    e('Lconv_ld:')
    ts.stamp(E)
    kl, vl = [], []
    for j in range(3, 11):
        bb, off = (b1, (j-3)*1152) if j < 7 else (b2, (j-7)*1152)
        kl.append(E.vm(f'buffer_load_dwordx4 {vr(KR+4*j)}, v{bb}, {sr(srdK)}, 0 offen offset:{off}'))
    def sig1():
        e('s_waitcnt vmcnt(8)')
        e(f's_lshl_b32 s{sT0}, s{sMode}, 1')
        e(f's_add_u32 s{sT0}, s{sT0}, 1')
        hreadyA(1, f's{sT0}')
    onlyB(sig1)
    for j in range(8):
        bb, off = (b1, j*1152) if j < 4 else (b2, (j-4)*1152)
        vl.append(E.vm(f'buffer_load_dwordx4 {vr(VR+4*j)}, v{bb}, {sr(srdV)}, 0 offen offset:{off}'))
    e('s_mov_b32 exec_lo, 0x00030003')
    e('s_mov_b32 exec_hi, 0x00030003')
    for j in range(3):
        kl.append(E.vm(f'buffer_load_dwordx4 {vr(KR+4*j)}, v{b0}, {sr(srdK)}, 0 offen offset:{j*1152}'))
    e('s_mov_b64 exec, -1')
    vmn = E.vm_n
    hload(4, 0)
    E.vm_n = vmn + 5
    e('s_add_u32 s15, s15, 8192')
    e(f's_lshl_b32 s{sT0}, s{sMode}, 2')
    e(f's_add_u32 s{sT0}, s{sT0}, 4')
    e(f's_cmp_lt_u32 s{sWave}, s{sT0}')
    e('s_cselect_b32 s15, 0x40000000, s15')
    E.vm(f'buffer_load_dword v15, v12, {sr(srdSSMK)}, s15 offen')
    e('v_mov_b32 v12, 1')
    e('s_mov_b64 exec, 1')
    E.lg(f'ds_add_u32 v{vCn}, v12 offset:8')
    e(f's_mov_b64 exec, {(1 << NMT) - 1}')
    e(f's_cmp_eq_u32 s{sWave}, 7')
    e(f's_cselect_b32 s{sT0}, 0, 0x40000000')
    E.vm(f'buffer_load_dword v{vFo_}, v{vFa_}, {sr(srdWS)}, s{sT0} offen{SC}')
    e('s_mov_b64 exec, -1')
    vKW = 14
    e(f'v_mul_u32_u24 v{vKW}, {8*RS}, v{vHf}')
    e(f'v_lshlrev_b32 v12, 4, v{vRg}')
    e(f'v_sub_u32 v{vKW}, v{vKW}, v12')
    e(f'v_add_u32 v{vKW}, {KVB + 4080}, v{vKW}')
    E.need(*(kl + vl + skl))
    ts.stamp(E)
    for j in range(3):
        for m in range(4):
            e(f'v_mov_b32_dpp v{KR+4*j+m}, v{KR+4*(j+8)+m} row_shr:2 row_mask:0xf bank_mask:0xf')
    for i in range(16):
        e(f'v_lshlrev_b32 v{SKF+2*i}, 16, v{SKR+i}')
        e(f'v_and_b32 v{SKF+2*i+1}, 0xffff0000, v{SKR+i}')
    KF, AC, PK = 144, 156, 164
    for ch in range(8):
        m, hi = divmod(ch, 2)
        def unp(d, s_):
            e(f'v_and_b32 v{d}, 0xffff0000, v{s_}' if hi else f'v_lshlrev_b32 v{d}, 16, v{s_}')
        for j in range(11): unp(KF+j, KR+4*j+m)
        for s_ in range(8): e(f'v_mul_f32 v{AC+s_}, v{KF+s_}, v{SKF+4*ch+3}')
        for tap in (2, 1, 0):
            for s_ in range(8): e(f'v_fmac_f32 v{AC+s_}, v{KF+s_+3-tap}, v{SKF+4*ch+tap}')
        for s_ in range(8): unp(KF+s_, VR+4*s_+m)
        for s_ in range(8): e(f'v_mul_f32 v{AC+s_}, v{AC+s_}, v{KF+s_}')
        pk = PK + 4*(ch & 1)
        for mm in range(4): e(f'v_cvt_pk_bf16_f32 v{pk+mm}, v{AC+7-2*mm}, v{AC+6-2*mm}')
        E.lg(f'ds_write_b128 v{vKW}, {vr(pk)} offset:{ch*RS}')
        if ch == Opt.h3at: onlyB(lambda: (cpoll('cpa1', 48, 1, vPr), hloadA(0)), True)
    onlyB(lambda: (e('s_waitcnt vmcnt(0)'), hreadyA(0, 2)), True)
    vA = [2, 3, 4, 5]; vB, vE, vHh = 6, 7, 12
    e(f'v_and_b32 v12, 15, v{vLane}')
    e(f'v_lshrrev_b32 v13, 4, v{vLane}')
    e(f'v_and_b32 v14, 1, v12')
    e(f'v_add_u32 v{vA[0]}, v12, v14')
    e(f'v_lshl_add_u32 v{vA[0]}, v13, 3, v{vA[0]}')
    e(f'v_lshlrev_b32 v{vA[0]}, 1, v{vA[0]}')
    e(f'v_xor_b32 v14, 1, v14')
    e(f'v_mul_lo_u32 v14, v14, s{sHS}')
    e(f'v_add3_u32 v{vA[0]}, v{vA[0]}, v14, s{sHB}')
    for i in range(1, 4): e(f'v_add_u32 v{vA[i]}, {1024*i}, v{vA[0]}')
    e(f's_mul_i32 s{sT0}, s{sLoc}, {RS}')
    e(f'v_lshlrev_b32 v14, 5, v12')
    e(f'v_lshlrev_b32 v{vB}, 4, v13')
    e(f'v_sub_u32 v{vB}, v{vB}, v14')
    e(f'v_add_u32 v{vB}, {KVB + 480}, v{vB}')
    e(f'v_add_u32 v{vB}, s{sT0}, v{vB}')
    e(f'v_lshl_add_u32 v14, v13, 3, v14')
    e(f'v_sub_u32 v{vE}, {KVB + 504}, v14')
    e(f'v_add_u32 v{vE}, s{sT0}, v{vE}')
    e(f's_add_u32 s{sT0}, s{sHB}, s{sHS}')
    e(f'v_mov_b32 v{vHh}, s{sT0}')
    e(f's_and_b32 s{sT0}, s{sWave}, 4')
    e(f'v_add_u32 v13, s{sT0}, v{vCn}')
    e('v_mov_b32 v14, 1')
    E.all_lg()
    e('s_mov_b64 exec, 1')
    e('ds_add_u32 v13, v14')
    e('s_mov_b64 exec, -1')
    ts.stamp(E)
    cpoll('cpoll0', 0)
    AF, BF, ACC0 = 16, 80, 112
    def w2pf():
        e(f's_mov_b32 s{srdK}, s{sW2}')
        e(f's_and_b32 s{srdK+1}, s{sW2+1}, 0xffff')
        e(f's_add_u32 s{sT0}, s{sFS}, 1')
        e(f's_mul_i32 s{sT0}, s{sT0}, 663552')
        e(f's_cmp_eq_u32 s{sMode}, 0')
        e(f's_cselect_b32 s{srdK+2}, s{sT0}, 0')
        e(f's_mov_b32 s{srdK+3}, 0x20000')
        e(f's_mul_i32 s15, s{sFS}, 663552')
        e(f's_lshl_b32 s{sT1}, s{sIdx}, 2')
        e(f's_add_u32 s{sT1}, s{sT1}, s{sWi_}')
        e(f's_mul_i32 s{sT1}, s{sT1}, {16*1152}')
        e(f's_add_u32 s15, s15, s{sT1}')
        e(f's_and_b32 s{sT1}, s{sFS}, 1')
        e(f's_lshl_b32 s{sT1}, s{sT1}, 9')
        e(f's_add_u32 s15, s15, s{sT1}')
        e(f'v_lshrrev_b32 v13, 2, v{vLane}')
        e('v_mul_u32_u24 v13, 1152, v13')
        e(f'v_and_b32 v14, 3, v{vLane}')
        e('v_lshl_add_u32 v13, v14, 7, v13')
    def w2one():
        e(f'buffer_load_dword v15, v13, {sr(srdK)}, s15 offen')
        e(f's_add_u32 s15, s15, {256*1152}')
    def cpass(us, nE, ACC, boff, zero, hook=None, vhook=None):
        aid, bid = {}, {}
        full = len(us) == 8
        def breg(v, u): return BF + 4*u if full else BF + 16*(v % 2) + 4*(u & 3)
        def aread(v, ee, h):
            r = AF + 32*(v % 2) + 4*ee + 2*h
            o = (512*(ee & 1) + 64*(7-v) + 8*h) // 4
            aid.setdefault((v, ee), []).append(E.lg(f'ds_read2_b32 {vr(r,2)}, v{vA[ee >> 1]} offset0:{o} offset1:{o+1}'))
        def bread(v, u):
            bid[(v, u)] = E.lg(f'ds_read_b128 {vr(breg(v, u))}, v{vB} offset:{boff + 512*(7-u) + 64*(7-v)}')
        def reads(v):
            L = [] if (full and v) else [lambda: bread(v, us[0])]
            for ee in range(nE):
                L += [lambda ee=ee: aread(v, ee, 0), lambda ee=ee: aread(v, ee, 1)]
            if not (full and v): L += [(lambda u=u: bread(v, u)) for u in us[1:]]
            return L
        for f in reads(0): f()
        nm = sum(8-u for u in us)
        for v in range(8):
            fill = reads(v+1) if v < 7 else []
            nf = len(fill); cnt = 0; done = 0
            for u in us:
                for w in range(u, 8):
                    E.need(*(aid[(v, w-u)] + [bid[(v, u)]]))
                    c = '0' if (zero and v == 0 and u == us[0]) else vr(ACC+4*w)
                    e(f'v_mfma_f32_16x16x32_bf16 {vr(ACC+4*w)}, {vr(AF + 32*(v % 2) + 4*(w-u))}, {vr(breg(v, u))}, {c}')
                    cnt += 1
                    if full and w == 7 and v < 7: bread(v+1, u)
                    while fill and done < cnt * nf / max(nm - 2, 1):
                        fill.pop(0)(); done += 1
                    if hook and v == 7 and u == us[1] and w == u: hook()
                    if vhook and v in vhook[0] and cnt == nm - 1: vhook[1]()
            assert not fill
    def epi(ws_, ACC, off, plain_from):
        KVR, TT = 16, 40
        kr = {w: E.lg(f'ds_read_b64 {vr(KVR+2*w,2)}, v{vE} offset:{off + 512*(7-w)}') for w in ws_}
        e('s_nop 3')
        for w in ws_:
            E.need(kr[w])
            a = ACC + 4*w; t = TT + 4*(w & 1)
            e(f'v_lshlrev_b32 v{t+3}, 16, v{KVR+2*w}')
            e(f'v_and_b32 v{t+2}, 0xffff0000, v{KVR+2*w}')
            e(f'v_lshlrev_b32 v{t+1}, 16, v{KVR+2*w+1}')
            e(f'v_and_b32 v{t}, 0xffff0000, v{KVR+2*w+1}')
            for r in range(4):
                e(f'v_add_f32 v{a+r}, v{a+r}, v{t+r}' if w >= plain_from else f'v_fmac_f32 v{a+r}, v{t+r}, v{vDv}')
            e(f'v_cvt_pk_bf16_f32 v{KVR+2*w}, v{a+3}, v{a+2}')
            e(f'v_cvt_pk_bf16_f32 v{KVR+2*w+1}, v{a+1}, v{a}')
            E.lg(f'ds_write_b64 v{vE}, {vr(KVR+2*w,2)} offset:{off + 512*(7-w)}')
    def setD(c):
        r = vDraw + c // 2
        e(f'v_and_b32 v{vDv}, 0xffff0000, v{r}' if c & 1 else f'v_lshlrev_b32 v{vDv}, 16, v{r}')
    e(f's_cmp_ge_u32 s{sWave}, 4')
    e('s_cbranch_scc1 Lconv_B')
    tsn = ts.n
    w2pf()
    e(f's_cmp_eq_u32 s{sMode}, 0')
    e('s_cbranch_scc1 LcA0')
    e(f'v_subrev_u32 v{vB}, {2*RS}, v{vB}')
    e(f'v_subrev_u32 v{vE}, {2*RS}, v{vE}')
    e('s_waitcnt vmcnt(0)')
    e(f'v_mov_b32 v{vDraw+1}, v{vDraw}')
    e('s_branch LcA2')
    for c in range(4):
        e(f'LcA{c}:')
        buf = c & 1
        if c in (0, 2):
            if c == 2:
                e(f's_cmp_eq_u32 s{sMode}, 0'); e('s_cbranch_scc1 LcAx2')
            e('s_waitcnt vmcnt(0)')
            e(f'ds_write_b16 v{vHh}, v{vH0} offset:30')
            e('s_waitcnt lgkmcnt(0)')
            if c == 2:
                e('s_branch Lcph2_ok'); e('LcAx2:')
        if c > 0: cpoll(f'cph{c}', 32, c, vPr)
        E.reset()
        ts.stamp(E)
        def prog(c=c):
            e(f'v_mov_b32 v251, {c + 1}')
            E.lg(f'ds_write_b32 v{vPr}, v251 offset:48')
        vh = (1, 3, 5) if c == Opt.w2at else None
        if c == 2:
            e(f's_cmp_eq_u32 s{sMode}, 0'); e('s_cbranch_scc1 LcA2f')
            cpass([0, 1, 2, 3], 8, ACC0 + 32*c, c*RS, True)
            e('s_branch LcA2d')
            e('LcA2f:')
            E.reset()
        if c >= 2: cpoll(f'cpoll1{c}', 4)
        cpass([0, 1, 2, 3] if c < 2 else list(range(8)), 8, ACC0 + 32*c, c*RS, True, prog if c < 2 else None, (vh, w2one) if vh else None)
        if c >= 2:
            setD(c)
            epi(range(8), ACC0 + 32*c, c*RS, 8)
        if c == 2: e('LcA2d:')
        if c < 3:
            for i in range(4):
                e(f'v_add_u32 v{vA[i]}, {2*HS}, v{vA[i]}' if buf == 0 else f'v_subrev_u32 v{vA[i]}, {2*HS}, v{vA[i]}')
    ts.stamp(E)
    e(f's_cmp_lg_u32 s{sMode}, 0')
    e('s_cbranch_scc1 LcAe2')
    for c in range(3):
        if c == 2: e('s_branch Lconv_fin')
        e(f'LcAe{c}:')
        cpoll(f'cpe{c}', 16, c + 1, vPr)
        E.reset()
        setD(c)
        epi(range(8), ACC0 + 32*c, c*RS, 4)
    e('s_branch Lconv_fin')
    e('Lconv_B:')
    tsA = ts.n; ts.n = tsn
    e(f's_cmp_lg_u32 s{sMode}, 0')
    e('s_cbranch_scc1 LcBh3')
    cpoll('cpa2', 48, 2, vPr)
    hloadA(1)
    e('s_waitcnt vmcnt(0)')
    hreadyA(1, 3)
    e('LcBh3:')
    cpoll('cpoll2', 4)
    if Opt.cprio: e('s_setprio 1')
    e(f's_lshl_b32 s{sIt}, s{sMode}, 1')
    e('LcB:')
    e('s_waitcnt vmcnt(0) lgkmcnt(0)')
    E.reset()
    w0 = E.lg(f'ds_write_b16 v{vHh}, v{vH0} offset:30')
    e(f'v_lshlrev_b32 v{vDv}, 16, v{vDraw}')
    e(f'v_alignbit_b32 v{vDraw}, v{vDraw+1}, v{vDraw}, 16')
    e(f'v_lshrrev_b32 v{vDraw+1}, 16, v{vDraw+1}')
    E.need(w0)
    def refill():
        e(f's_cmp_ge_u32 s{sIt}, {Opt.nb - 1}')
        e('s_cbranch_scc1 LcB_nr')
        e(f's_add_u32 s{sCh}, s{sCh}, 1')
        hload(2, 0, HS2)
        e('LcB_nr:')
    cpass([4, 5, 6, 7], 4, ACC0, 0, True, refill)
    epi(range(4, 8), ACC0, 0, 8)
    e(f's_add_u32 s{sIt}, s{sIt}, 1')
    e(f'v_mov_b32 v14, s{sIt}')
    E.all_lg()
    e(f'ds_write_b32 v{vPr}, v14 offset:16')
    e(f'v_add_u32 v{vB}, {RS}, v{vB}')
    e(f'v_add_u32 v{vE}, {RS}, v{vE}')
    e(f's_cmp_lt_u32 s{sIt}, {Opt.nb}')
    e('s_cbranch_scc1 LcB')
    while ts.n < tsA: ts.stamp(E)
    e('Lconv_fin:')
    e('s_waitcnt vmcnt(0) lgkmcnt(0)')
    E.reset()
    ts.stamp(E)
    e('s_barrier')
    e(f'v_lshrrev_b32 v2, 5, v{vLane}')
    e(f'v_lshrrev_b32 v3, 2, v{vLane}')
    e('v_and_b32 v3, 3, v3')
    e('v_lshl_add_u32 v3, v2, 3, v3')
    e(f'v_mul_u32_u24 v3, {RS}, v3')
    e(f'v_and_b32 v4, 16, v{vLane}')
    e('v_lshl_add_u32 v3, v4, 1, v3')
    e(f'v_and_b32 v5, 3, v{vLane}')
    e('v_lshl_add_u32 v3, v5, 3, v3')
    e(f's_lshl_b32 s{sT0}, s{sWave}, 9')
    e(f's_add_u32 s{sT0}, s{sT0}, {KVB}')
    e(f'v_add_u32 v3, s{sT0}, v3')
    e(f'v_and_b32 v5, 31, v{vLane}')
    e(f's_lshl_b32 s{sT0}, s{sWave}, 8')
    e(f'v_add_u32 v5, s{sT0}, v5')
    e(f'v_sub_u32 v5, {2047-224}, v5')
    e('v_lshlrev_b32 v5, 4, v5')
    e('v_lshl_add_u32 v5, v2, 15, v5')
    e(f's_lshl_b32 s{sT0}, s{sCT}, 16')
    e(f's_add_u32 s{sT0}, s{sT0}, {WS_Y}')
    e(f's_add_u32 s{sT1}, s{sT0}, 4096')
    rd = []
    for blk in range(8):
        r = 16 + 4*blk
        i0 = E.lg(f'ds_read_b64_tr_b16 {vr(r,2)}, v3 offset:{64*blk}')
        i1 = E.lg(f'ds_read_b64_tr_b16 {vr(r+2,2)}, v3 offset:{64*blk + 4*RS}')
        rd.append([i0, i1])
    E.all_lg()
    e(f's_cmp_eq_u32 s{sMode}, 0')
    e('s_cbranch_scc1 Lconv_st')
    e(f's_sub_u32 exec_lo, s{sHsel}, 1')
    e(f's_sub_u32 exec_hi, 0, s{sHsel}')
    e('Lconv_st:')
    for blk in range(8):
        E.vm(f'buffer_store_dwordx4 {vr(16+4*blk)}, v5, {sr(srdWS)}, s{sT0} offen offset:{(7-blk)*512}{SC}')
    e('s_mov_b64 exec, -1')
    E.all_vm()
    e('s_barrier')
    e(f's_cmp_lg_u32 s{sWave}, 7')
    e('s_cbranch_scc1 Lconv_end')
    e(f'v_add_u32 v{vFo_}, 1, v{vFo_}')
    e(f's_mov_b64 exec, {(1 << NMT) - 1}')
    e(f'buffer_store_dword v{vFo_}, v{vFa_}, {sr(srdWS)}, 0 offen{SC}')
    e('s_mov_b64 exec, -1')
    e('Lconv_end:')
    if Opt.ts:
        ts.stamp(E)
        ts.flush(E, 60)
    e('s_endpgm')
    e('Lhelper:')
    srd(E, srdW2, sW2, D*F*2)
    e(f's_mul_i32 s{sT0}, s{sFS}, 663552')
    e(f's_and_b32 s10, s{sFS}, 1')
    e('s_xor_b32 s10, s10, 1')
    e('s_lshl_b32 s10, s10, 2')
    if Opt.hkv:
        srd(E, srdK, sK, S*D*2)
        srd(E, srdV, sV, S*D*2)
        e(f's_lshl_b32 s{sT1}, s{sFS}, 7')
        e(f's_add_u32 s{sT1}, s{sT1}, {1024*1152}')
        e('v_mul_u32_u24 v5, 1152, v0')
        for i in range(2):
            e(f'buffer_load_dword v8, v5, {sr(srdK)}, s{sT1} offen{Opt.ntkv}')
            e(f'buffer_load_dword v8, v5, {sr(srdV)}, s{sT1} offen{Opt.ntkv}')
            if i == 0: e(f's_add_u32 s{sT1}, s{sT1}, {512*1152}')
        e('s_barrier')
    elif Opt.hdelay: e(f's_sleep {Opt.hdelay}')
    for i in range(6):
        e(f'v_add_u32 v2, {512*i}, v0')
        e('v_mul_u32_u24 v3, 13108, v2')
        e('v_lshrrev_b32 v3, 16, v3')
        e('v_mul_u32_u24 v4, 5, v3')
        e('v_sub_u32 v4, v2, v4')
        e('v_cmp_eq_u32 vcc, 4, v4')
        e('v_add_u32 v4, s10, v4')
        e('v_min_u32 v3, 575, v3')
        e('v_cndmask_b32 v4, v4, 8, vcc')
        e('v_mul_u32_u24 v3, 1152, v3')
        e('v_lshl_add_u32 v3, v4, 7, v3')
        e(f'buffer_load_dword v8, v3, {sr(srdW2)}, s{sT0} offen')
        e('s_barrier')
    if Opt.ts:
        e('s_waitcnt vmcnt(0)')
        srd(E, srdWS, sWS, WS_BYTES)
        ts.n = 1; ts.stamp(E); ts.flush(E, 60); e('s_mov_b64 exec, -1')
    if Opt.tlbw:
        srd(E, srdWS, sWS, WS_BYTES)
        srd(E, srdB1, sOUT, S*D*2)
        e('v_lshlrev_b32 v2, 16, v0')
        e(f'buffer_load_dword v14, v2, {sr(srdWS)}, 0 offen{SC}')
        e(f'buffer_load_dword v15, v2, {sr(srdB1)}, 0 offen')
    e('s_waitcnt vmcnt(0)')
    e('s_endpgm')

def k1(E):
    e = E.e
    e('.p2align 8')
    e(f'.type {KNAME},@function')
    e(f'{KNAME}:')
    e(f's_cmp_ge_u32 s2, {NWG}')
    e('s_cbranch_scc1 Lk1_exit')
    TS().rt0(E)
    e('s_load_dwordx16 s[16:31], s[0:1], 0')
    e('s_load_dwordx8 s[32:39], s[0:1], 64')
    e('s_load_dwordx2 s[40:41], s[0:1], 96')
    e(f'v_and_b32 v{vLane}, 63, v0')
    e('v_lshrrev_b32 v2, 6, v0')
    e(f's_and_b32 s{sFS}, s2, 7')
    e(f'v_readfirstlane_b32 s{sWave}, v2')
    e(f's_lshr_b32 s{sMT}, s2, 3')
    if Opt.code_pf:
        e('s_getpc_b64 s[10:11]')
        e('Lpc:')
        e(f'v_lshl_add_u32 v3, v0, 5, s{sMT}')
        e('v_lshlrev_b32 v3, 7, v3')
        e('v_cmp_gt_u32 vcc, Lk1_exit-Lpc, v3')
        e('s_and_saveexec_b64 s[12:13], vcc')
        e('s_cbranch_execz Lnocpf')
        e(f'global_load_dword v{vDum}, v3, s[10:11]')
        e('Lnocpf:')
        e('s_mov_b64 exec, s[12:13]')
    e(f's_cmp_lt_u32 s{sMT}, {IDX_MLP0}')
    e('s_waitcnt lgkmcnt(0)')
    e('s_cbranch_scc1 Lconv')
    if Opt.nomlp: e('s_endpgm')
    ts = TS()
    ts.stamp(E)
    P = mlp_prologue(E, ts)
    pre_ids = []
    mlp_ln(E, P, ts, lambda: pre_ids.extend(mlp_prefill(E)))
    st = E.state(); tsn = ts.n
    e(f's_cmp_ge_u32 s{sWave}, 4')
    e('s_cbranch_scc1 LmlpB')
    mlp_main(E, 'P', P, ts, pre_ids)
    e('LmlpB:')
    E.set_state(st); ts.n = tsn
    E.vm_n -= 8 - (1 if Opt.qpf else 0)
    mlp_main(E, 'Q', P, ts, pre_ids)
    for l in stubs: e(l)
    e('Lmlp_end:')
    e('Lconv:')
    E.reset()
    conv(E)
    e('Lk1_exit:')
    e('s_endpgm')

def desc(name, vg, sg):
    return f'''.p2align 6
.amdhsa_kernel {name}
  .amdhsa_next_free_vgpr {vg}
  .amdhsa_next_free_sgpr {sg}
  .amdhsa_accum_offset {vg}
  .amdhsa_group_segment_fixed_size 0
  .amdhsa_kernarg_size 104
  .amdhsa_user_sgpr_count 2
  .amdhsa_user_sgpr_kernarg_segment_ptr 1
  .amdhsa_system_sgpr_workgroup_id_x 1
.end_amdhsa_kernel
'''

def build():
    E = Em()
    e = E.e
    head = HDR + f'; @launch grid=({NWG},1,1) block=(512,1,1) lds={LDS_BYTES}\n'
    head += f'.amdgcn_target "amdgcn-amd-amdhsa--gfx950"\n.text\n.globl {KNAME}\n'
    k1(E)
    tail = '.section .rodata,"a"\n' + desc(KNAME, 256, 102)
    return head + E.text() + tail

if __name__ == '__main__':
    out = sys.argv[1] if len(sys.argv) > 1 else 'cdna_kernels/' + NAME + '.s'
    for a in sys.argv[2:]:
        k, v = a.split('=', 1)
        cur = getattr(Opt, k)
        setattr(Opt, k, type(cur)(int(v)) if isinstance(cur, (bool, int)) else v)
    Em.lgmerge = Opt.lgmerge
    t = build()
    open(out, 'w').write(t)
    print(out, len(t), 'bytes', t.count('\n'), 'lines')
```
